```python
import torch

def _softmax(x, axis=-1):
    return torch.softmax(x, dim=axis)
def _gelu(x):
    return torch.nn.functional.gelu(x, approximate="tanh")
def _silu(x):
    return torch.nn.functional.silu(x)
def _sigmoid(x):
    return torch.sigmoid(x)
def _layernorm(x, axis=-1, eps=1e-5):
    m = x.mean(dim=axis, keepdim=True)
    v = x.var(dim=axis, keepdim=True, unbiased=False)
    return (x - m) / torch.sqrt(v + eps)
def _scatter_add(tgt, idx, src, axis=0):
    return tgt.clone().index_add_(axis, idx, src)
def _segment_sum(src, seg, n):
    out = torch.zeros((n,) + src.shape[1:], dtype=src.dtype)
    return out.index_add_(0, seg, src)
def _pad(x, pw):
    flat = tuple(v for pair in reversed(pw) for v in pair)
    return torch.nn.functional.pad(x, flat)

kernel_name = 'recurrent_scan__sliding_block_cached__glu_gated_geglu__decode'

def setup_inputs():

    _w = (lambda a: (lambda t: t.to(torch.bfloat16) if t.is_floating_point() else t)(torch.as_tensor(a)))
    def _A_setup():
        B, Sq, D = 1, 1, 512
        Hq, Hkv, Sk, Dh = 32, 8, 65536, 128
        assert Hq % Hkv == 0, (Hq, Hkv)
        return {
            "x": _w((lambda *s: torch.randn(*s, dtype=torch.bfloat16) * 0.4)(B, Sq, D)),
            "k_cache": _w((lambda *s: torch.randn(*s, dtype=torch.bfloat16) * 1.6)(B, Hkv, Sk, Dh)),
            "v_cache": _w((lambda *s: torch.randn(*s, dtype=torch.bfloat16) * 1.6)(B, Hkv, Sk, Dh)),
            "wq": _w((lambda *s: torch.randn(*s, dtype=torch.bfloat16) * 1.6)(D, Hq * Dh) * (D ** -0.5)),
            "wo": _w((lambda *s: torch.randn(*s, dtype=torch.bfloat16) * 1.6)(Hq * Dh, D) * ((Hq * Dh) ** -0.5)),
        }
    _A_in = _A_setup()

    def _B_setup():
        B, S, Dm, Df = 1, 1, 512, 1792
        return {
            "x": _w((lambda *s: torch.randn(*s, dtype=torch.bfloat16) * 0.4)(B, S, Dm)),
            "w_gate": _w((lambda *s: torch.randn(*s, dtype=torch.bfloat16) * 1.6)(Dm, Df) * (Dm ** -0.5)),
            "w_up": _w((lambda *s: torch.randn(*s, dtype=torch.bfloat16) * 1.6)(Dm, Df) * (Dm ** -0.5)),
            "w_down": _w((lambda *s: torch.randn(*s, dtype=torch.bfloat16) * 1.6)(Df, Dm) * (Df ** -0.5)),
        }
    _B_in = _B_setup()

    return {
        "A_x": _A_in["x"],
        "A_k_cache": _A_in["k_cache"],
        "A_v_cache": _A_in["v_cache"],
        "A_wq": _A_in["wq"],
        "A_wo": _A_in["wo"],
        "B_x": _B_in["x"],
        "B_w_gate": _B_in["w_gate"],
        "B_w_up": _B_in["w_up"],
        "B_w_down": _B_in["w_down"],
    }

def reference(A_x, A_k_cache, A_v_cache, A_wq, A_wo, B_x, B_w_gate, B_w_up, B_w_down):
    def _A_ref(x, k_cache, v_cache, wq, wo):
        B, Sq, D = x.shape
        Hq, Dh = 32, 128
        Hkv, Sk = k_cache.shape[1], k_cache.shape[2]
        W = min(4096, max(256, Sk // 4))
        rep = Hq // Hkv
        q = (lambda x, *d: x.permute(*d))((x @ wq).reshape(B, Sq, Hq, Dh), 0, 2, 1, 3)
        k = (lambda x, n, axis: torch.repeat_interleave(x, n, dim=axis))(k_cache[:, :, Sk - W:, :], rep, axis=1)
        v = (lambda x, n, axis: torch.repeat_interleave(x, n, dim=axis))(v_cache[:, :, Sk - W:, :], rep, axis=1)
        scores = torch.einsum("bhqd,bhkd->bhqk", q, k) * (Dh ** -0.5)
        p = _softmax(scores, axis=-1)
        o = torch.einsum("bhqk,bhkd->bhqd", p, v)
        return (lambda x, *d: x.permute(*d))(o, 0, 2, 1, 3).reshape(B, Sq, Hq * Dh) @ wo

    def _B_ref(x, w_gate, w_up, w_down):
        g = torch.einsum("bsd,df->bsf", x, w_gate)
        u = torch.einsum("bsd,df->bsf", x, w_up)
        h = _gelu(g) * u
        return torch.einsum("bsf,fd->bsd", h, w_down)

    x = A_x
    xn = _layernorm(x, axis=-1)
    s = _A_ref(xn, A_k_cache, A_v_cache, A_wq, A_wo)
    g = _silu(_B_ref(xn, B_w_gate, B_w_up, B_w_down))
    return x + s * g
```

```python
import sys, argparse

NAME = "recurrent_scan__sliding_block_cached__glu_gated_geglu__decode"
HEADER = open("cdna_kernels/%s.s.ref" % NAME).read().split("; Override launch")[0]

INB1 = 0x10000
INBS = 0x20000
INB4 = 0x30000
INB2 = 0x80000
INB3S = 0x400000
INB3D = 0x500000
DIAG = 0x1000000
L_WQ = 0
L_K = 16384
L_V = 49152
L_G = 81920
L_U = 90112
L_WO = 98304
L_WD = 114688
L_M = 122880
L_XN = L_M
L_Q = L_M + 1024
L_P = L_M + 2048
L_Z = L_M + 6144
L_OW = L_Z
L_HW = L_Z + 1024
L_ST = L_Z + 2048
L_FL = L_Z + 2304
F_PROG = 0
F_XN = 4
F_Q = 8
F_OPUB = 12
LDS_BYTES = L_Z + 2560

LOG2E = 0x3fb8aa3b
SCALE = 0x3db504f3
ST0 = 76

class Asm:
    def __init__(self, diag=False):
        self.l = []; self.diag = diag; self.nstamp = 0; self.uid = 0
    def __call__(self, s):
        for x in s.strip().split("\n"):
            x = x.strip()
            if x: self.l.append("    " + x)
    def label(self, n): self.l.append(n + ":")
    def nop(self, n=1): self("s_nop %d" % (n - 1))
    def comment(self, s): self.l.append("    ; " + s)
    def newlabel(self, p):
        self.uid += 1; return "%s_%d" % (p, self.uid)
    def stamp(self):
        if not self.diag: return
        i = self.nstamp; assert i < 13, "too many stamps"
        self("s_memrealtime s[%d:%d]" % (ST0 + 2 * i, ST0 + 1 + 2 * i))
        self.nstamp += 1
    def stamp_flush(self, vtmp):
        if not self.diag: return
        n = self.nstamp
        self("s_waitcnt lgkmcnt(0)")
        self("s_mov_b64 exec, 1")
        self("s_lshl_b32 s64, s2, 10")
        self("s_lshl_b32 s65, s3, 7")
        self("s_add_u32 s64, s64, s65")
        self("s_add_u32 s64, s64, 0x%x" % DIAG)
        self("v_mov_b32 v%d, 0" % (vtmp + 2))
        for i in range(n):
            self("v_mov_b32 v%d, s%d" % (vtmp, ST0 + 2 * i))
            self("v_mov_b32 v%d, s%d" % (vtmp + 1, ST0 + 1 + 2 * i))
            self("buffer_store_dwordx2 v[%d:%d], v%d, s[56:59], s64 offen offset:%d" % (vtmp, vtmp + 1, vtmp + 2, i * 8))
            self.nop(2)
        self("v_mov_b32 v%d, %d" % (vtmp, n))
        self("buffer_store_dword v%d, v%d, s[56:59], s64 offen offset:120" % (vtmp, vtmp + 2))

def allreduce(a, op, v, t):
    for r in (1, 2, 4, 8):
        a.nop(2)
        a("v_%s_f32_dpp v%d, v%d, v%d row_ror:%d row_mask:0xf bank_mask:0xf" % (op, v, v, v, r))
    for sw in ("16", "32"):
        a("v_mov_b32 v%d, v%d" % (t, v))
        a.nop(2)
        a("v_permlane%s_swap_b32 v%d, v%d" % (sw, v, t))
        a("v_%s_f32 v%d, v%d, v%d" % (op, v, v, t))

def xreduce(a, op, regs, tmps):
    for sw in ("16", "32"):
        for r, t in zip(regs, tmps):
            a("v_mov_b32 v%d, v%d" % (t, r))
        a.nop(2 if len(regs) < 3 else 1)
        for r, t in zip(regs, tmps):
            a("v_permlane%s_swap_b32 v%d, v%d" % (sw, r, t))
        for r, t in zip(regs, tmps):
            a("v_%s_f32 v%d, v%d, v%d" % (op, r, r, t))

def bf16_round(a, dst, src, tmp):
    a("v_cvt_pk_bf16_f32 v%d, v%d, v%d" % (tmp, src, src))
    a("v_lshlrev_b32 v%d, 16, v%d" % (dst, tmp))

def layernorm(a, xr, f, t, xp):
    for i in range(4):
        a("v_lshlrev_b32 v%d, 16, v%d" % (f + 2 * i, xr + i))
        a("v_and_b32 v%d, 0xffff0000, v%d" % (f + 2 * i + 1, xr + i))
    a("v_add_f32 v%d, v%d, v%d" % (t, f, f + 1))
    a("v_add_f32 v%d, v%d, v%d" % (t + 1, f + 2, f + 3))
    a("v_add_f32 v%d, v%d, v%d" % (t + 2, f + 4, f + 5))
    a("v_add_f32 v%d, v%d, v%d" % (t + 3, f + 6, f + 7))
    a("v_add_f32 v%d, v%d, v%d" % (t, t, t + 1))
    a("v_add_f32 v%d, v%d, v%d" % (t + 2, t + 2, t + 3))
    a("v_add_f32 v%d, v%d, v%d" % (t, t, t + 2))
    allreduce(a, "add", t, t + 1)
    a("v_mul_f32 v%d, 0x3b000000, v%d" % (t, t))
    a("v_sub_f32 v%d, v%d, v%d" % (t + 2, f, t))
    a("v_mul_f32 v%d, v%d, v%d" % (t + 1, t + 2, t + 2))
    for i in range(1, 8):
        a("v_sub_f32 v%d, v%d, v%d" % (t + 2, f + i, t))
        a("v_fmac_f32 v%d, v%d, v%d" % (t + 1, t + 2, t + 2))
    allreduce(a, "add", t + 1, t + 2)
    a("v_mul_f32 v%d, 0x3b000000, v%d" % (t + 1, t + 1))
    a("v_cvt_pk_bf16_f32 v%d, v%d, v%d" % (t + 2, t, t + 1))
    a("v_lshlrev_b32 v%d, 16, v%d" % (t, t + 2))
    a("v_and_b32 v%d, 0xffff0000, v%d" % (t + 1, t + 2))
    a("v_add_f32 v%d, 0x3727c5ac, v%d" % (t + 1, t + 1))
    bf16_round(a, t + 1, t + 1, t + 2)
    a("v_sqrt_f32 v%d, v%d" % (t + 1, t + 1))
    a.nop(1)
    bf16_round(a, t + 1, t + 1, t + 2)
    a("v_rcp_f32 v%d, v%d" % (t + 2, t + 1))
    for i in range(8):
        a("v_sub_f32 v%d, v%d, v%d" % (f + i, f + i, t))
    for i in range(4):
        a("v_cvt_pk_bf16_f32 v%d, v%d, v%d" % (xp + i, f + 2 * i, f + 2 * i + 1))
    for i in range(4):
        a("v_lshlrev_b32 v%d, 16, v%d" % (f + 2 * i, xp + i))
        a("v_and_b32 v%d, 0xffff0000, v%d" % (f + 2 * i + 1, xp + i))
    for i in range(8):
        a("v_mul_f32 v%d, v%d, v%d" % (t + 3, f + i, t + 2))
        a("v_fma_f32 v%d, -v%d, v%d, v%d" % (t + 4, t + 3, t + 1, f + i))
        a("v_fma_f32 v%d, v%d, v%d, v%d" % (f + i, t + 4, t + 2, t + 3))
    for i in range(4):
        a("v_cvt_pk_bf16_f32 v%d, v%d, v%d" % (xp + i, f + 2 * i, f + 2 * i + 1))

def srd(a, d, base, nbytes):
    a("s_mov_b32 s%d, s%d" % (d, base))
    a("s_mov_b32 s%d, s%d" % (d + 1, base + 1))
    a("s_mov_b32 s%d, 0x%x" % (d + 2, nbytes))
    a("s_mov_b32 s%d, 0x20000" % (d + 3))

def after_kernarg(a):
    a("s_waitcnt lgkmcnt(0)")
    a("s_load_dwordx2 s[40:41], s[38:39], 0")
    srd(a, 56, 38, 0x20000000)

def tag_and_barrier(a):
    a("s_waitcnt lgkmcnt(0)")
    a("s_add_u32 s40, s40, 16")
    a("s_add_u32 s41, s41, 0x9e3779b9")
    a("s_barrier")

def lds_wait_ge(a, vfl, vtmp, off, thr, sleep=1):
    name = a.newlabel("L_w")
    a("s_mov_b32 s64, SPIN")
    a.label(name)
    a("ds_read_b32 v%d, v%d offset:%d" % (vtmp, vfl, off))
    a("s_waitcnt lgkmcnt(0)")
    a("v_cmp_gt_u32 vcc, %d, v%d" % (thr, vtmp) if thr <= 64 else "v_cmp_gt_u32 vcc, 0x%x, v%d" % (thr, vtmp))
    a("s_cbranch_vccz %s_ok" % name)
    if sleep: a("s_sleep %d" % sleep)
    a("s_sub_u32 s64, s64, 1")
    a("s_cbranch_scc1 L_end")
    a("s_branch %s" % name)
    a.label(name + "_ok")

def tagcheck(a, regs, tag="s[40:41]"):
    a("v_cmp_ne_u64 vcc, %s, v[%d:%d]" % (tag, regs[0] + 2, regs[0] + 3))
    for r in regs[1:]:
        a("v_cmp_ne_u64 s[60:61], %s, v[%d:%d]" % (tag, r + 2, r + 3))
        a("s_or_b64 vcc, vcc, s[60:61]")

def gen(diag=False, W=20, forceslow=False):
    a = Asm(diag)
    out = []
    out.append(HEADER.rstrip("\n"))
    out.append("; @launch grid=(256,1,1) block=(512,1,1) lds=%d" % LDS_BYTES)
    out.append('.amdgcn_target "amdgcn-amd-amdhsa--gfx950"')
    out.append(".set SPIN, 0x40000")
    out.append(".text")
    out.append(".globl %s_kernel" % NAME)
    out.append(".p2align 8")
    out.append(".type %s_kernel,@function" % NAME)
    out.append("%s_kernel:" % NAME)

    a("""
    s_cmp_ge_u32 s2, 256
    s_cbranch_scc1 L_end
    s_load_dwordx16 s[16:31], s[0:1], 0
    s_load_dwordx8 s[32:39], s[0:1], 64
    v_lshrrev_b32 v1, 6, v0
    v_and_b32 v0, 63, v0
    s_and_b32 s4, s2, 7
    v_readfirstlane_b32 s3, v1
    s_lshr_b32 s5, s2, 3
    v_and_b32 v4, 15, v0
    v_lshrrev_b32 v5, 4, v0
    v_mov_b32 v7, %d
    """ % L_FL)
    a.stamp()
    a("""
    s_cmp_eq_u32 s3, 1
    s_cbranch_scc1 L_q
    s_cmp_eq_u32 s3, 6
    s_cbranch_scc1 L_f
    s_cmp_eq_u32 s3, 7
    s_cbranch_scc1 L_o
    s_cmp_lg_u32 s3, 0
    s_cbranch_scc1 L_att
    """)
    nst0 = a.nstamp

    a("s_setprio 2")
    a("""
    v_lshrrev_b32 v6, 2, v0
    v_and_b32 v8, 3, v0
    v_lshrrev_b32 v9, 5, v0
    v_lshlrev_b32 v2, 1, v9
    v_xor_b32 v8, v8, v2
    v_lshlrev_b32 v8, 4, v8
    v_lshl_or_b32 v10, v6, 13, v8
    s_lshr_b32 s6, s5, 4
    s_lshl_b32 s6, s6, 21
    s_lshl_b32 s7, s4, 10
    s_add_u32 s6, s6, s7
    s_and_b32 s7, s5, 15
    s_lshl_b32 s7, s7, 6
    s_add_u32 s6, s6, s7
    s_mov_b32 s46, 0x400000
    s_mov_b32 s47, 0x20000
    s_mov_b32 m0, %d
    s_waitcnt lgkmcnt(0)
    s_mov_b32 s44, s22
    s_mov_b32 s45, s23
    """ % L_WQ)
    a.stamp()

    def loader_setup2():
        a("v_mul_u32_u24 v11, %d, v6" % 3584)
        a("v_add_u32 v11, v11, v8")
        for b in range(4):
            a("v_add_u32 v2, %d, v5" % (4 * b))
            a("v_xor_b32 v2, v4, v2")
            a("v_lshlrev_b32 v2, 4, v2")
            a("v_lshl_or_b32 v%d, v5, 8, v2" % (12 + b))
        for b in range(2):
            a("v_add_u32 v2, %d, v5" % (4 * b))
            a("v_lshlrev_b32 v2, 1, v2")
            a("v_xor_b32 v2, v4, v2")
            a("v_lshlrev_b32 v2, 4, v2")
            a("v_lshl_or_b32 v%d, v5, 8, v2" % (16 + b))
        a("v_and_b32 v3, 31, v0")
        for b in range(2):
            a("v_add_u32 v2, %d, v9" % (2 * b))
            a("v_lshlrev_b32 v2, 2, v2")
            a("v_xor_b32 v2, v3, v2")
            a("v_lshlrev_b32 v2, 4, v2")
            a("v_lshl_or_b32 v%d, v9, 10, v2" % (18 + b))
        a("v_lshlrev_b32 v2, 2, v5")
        a("v_xor_b32 v2, v4, v2")
        a("v_lshlrev_b32 v2, 4, v2")
        a("v_lshl_or_b32 v20, v5, 10, v2")
        srd(a, 48, 18, 0x8000000)
        srd(a, 52, 20, 0x8000000)
        srd(a, 60, 28, 512 * 1792 * 2)
        srd(a, 64, 30, 512 * 1792 * 2)
        srd(a, 68, 24, 4096 * 512 * 2)
        srd(a, 72, 32, 1792 * 512 * 2)
        srd(a, 56, 38, 0x20000000)
        a("""
        s_lshl_b32 s8, s4, 24
        s_lshl_b32 s7, s5, 15
        s_add_u32 s8, s8, s7
        s_add_u32 s8, s8, 0xf00000
        s_mov_b32 s9, s8
        """)
        a("""
        s_mul_i32 s14, s4, 7
        s_lshr_b32 s7, s5, 2
        s_add_u32 s14, s14, s7
        s_and_b32 s15, s5, 3
        s_mul_i32 s10, s15, %d
        s_lshl_b32 s7, s14, 6
        s_add_u32 s10, s10, s7
        s_mov_b32 s11, s10
        """ % (128 * 3584))
        a("""
        s_lshl_b32 s12, s4, 19
        s_lshr_b32 s7, s5, 1
        s_lshl_b32 s7, s7, 15
        s_add_u32 s12, s12, s7
        s_and_b32 s7, s5, 1
        s_lshl_b32 s7, s7, 9
        s_add_u32 s12, s12, s7
        """)
        a("""
        s_lshl_b32 s13, s14, 15
        s_lshl_b32 s7, s15, 8
        s_add_u32 s13, s13, s7
        """)

    def item(kind, i):
        if kind == "wq":
            pre = [] if i == 0 else ["s_mov_b32 m0, %d" % (L_WQ + i * 1024), "s_add_u32 s6, s6, 0x20000"]
            return pre + ["buffer_load_dwordx4 v10, s[44:47], s6 offen nt lds"]
        if kind in ("K", "V"):
            base = L_K if kind == "K" else L_V
            sr = 8 if kind == "K" else 9
            pre = []
            if i % 4 == 0:
                pre = ["s_mov_b32 m0, %d" % (base + i * 1024), ("s_add_u32 s%d, s%d, 4096" % (sr, sr)) if i else "s_nop 0"]
            vr = 12 + (i % 4) if kind == "K" else 16 + (i % 2)
            return pre + ["buffer_load_dwordx4 v%d, s[%d:%d], s%d offen offset:%d nt lds" % (vr, 48 if kind == "K" else 52, 51 if kind == "K" else 55, sr, (i % 4) * 1024)]
        if kind in ("G", "U"):
            base = L_G if kind == "G" else L_U
            sr = 10 if kind == "G" else 11
            d = 60 if kind == "G" else 64
            pre = ["s_mov_b32 m0, %d" % (base + i * 1024), ("s_add_u32 s%d, s%d, %d" % (sr, sr, 16 * 3584)) if i else "s_nop 0"]
            return pre + ["buffer_load_dwordx4 v11, s[%d:%d], s%d offen nt lds" % (d, d + 3, sr)]
        if kind == "wo":
            pre = ["s_mov_b32 m0, %d" % (L_WO + i * 1024), "s_add_u32 s12, s12, 2048" if i else "s_nop 0"]
            return pre + ["buffer_load_dwordx4 v%d, s[68:71], s12 offen nt lds" % (18 + (i % 2))]
        if kind == "wd":
            pre = ["s_mov_b32 m0, %d" % (L_WD + i * 1024), "s_add_u32 s13, s13, 4096" if i else "s_nop 0"]
            return pre + ["buffer_load_dwordx4 v20, s[72:75], s13 offen nt lds"]

    def stream(full):
        seq = [("wq", i) for i in range(16)] + [("K", i) for i in range(32)] + [("V", i) for i in range(32)]
        if full:
            seq += [("G", i) for i in range(8)] + [("U", i) for i in range(8)]
        seq += [("wo", i) for i in range(16)]
        if full:
            seq += [("wd", i) for i in range(8)]
        prog = {}
        for n, (k, i) in enumerate(seq):
            cnt = n + 1
            if k == "wq" and i in (7, 15): prog[cnt] = i + 1
            if k == "K" and i % 8 == 7: prog[cnt] = 16 + i + 1
            if k == "V" and i % 8 == 7: prog[cnt] = 48 + i + 1
            if k == "U" and i == 7: prog[cnt] = 96
            if k == "wo" and i == 15: prog[cnt] = 112
            if k == "wd" and i == 7: prog[cnt] = 120
        return seq, prog

    for i in range(16):
        for x in item("wq", i): a(x)
    loader_setup2()
    assert W >= 16
    seqF, progF = stream(True)
    for n in range(16, W):
        for x in item(*seqF[n]): a(x)
    a("s_barrier")
    a.stamp()

    def emit_rest(seq, prog):
        N = len(seq)
        def publish(cnt):
            a("v_mov_b32 v2, %d" % prog[cnt])
            a("ds_write_b32 v7, v2 offset:%d" % F_PROG)
            if prog[cnt] in (16, 48, 80, 96, 112, 120): a.stamp()
        for n in range(W, N):
            a("s_waitcnt vmcnt(%d)" % (W - 1))
            lines = item(*seq[n])
            for x in lines: a(x)
            landed = n - W + 1
            if landed in prog: publish(landed)
        for landed in range(N - W + 1, N + 1):
            if landed in prog:
                a("s_waitcnt vmcnt(%d)" % (N - landed))
                publish(landed)
    nst1 = a.nstamp
    a("s_cmp_ge_u32 s5, 28")
    a("s_cbranch_scc1 L_ld_short")
    emit_rest(seqF, progF)
    a.stamp_flush(28)
    a("s_endpgm")
    a.label("L_ld_short")
    a.nstamp = nst1
    seqS, progS = stream(False)
    assert seqS[:W] == seqF[:W]
    emit_rest(seqS, progS)
    a.stamp_flush(28)
    a("s_endpgm")

    a.nstamp = nst0
    a.label("L_q")
    a("s_setprio 3")
    a("""
    v_lshlrev_b32 v2, 4, v0
    s_mov_b32 s50, 1024
    s_mov_b32 s51, 0x20000
    s_waitcnt lgkmcnt(0)
    s_mov_b32 s48, s16
    s_mov_b32 s49, s17
    buffer_load_dwordx4 v[8:11], v2, s[48:51], 0 offen
    s_load_dwordx2 s[40:41], s[38:39], 0
    s_getreg_b32 s44, hwreg(HW_REG_XCC_ID, 0, 4)
    """)
    srd(a, 56, 38, 0x20000000)
    a("""
    v_add_u32 v12, %d, v2
    s_lshr_b32 s6, s5, 4
    s_lshl_b32 s6, s6, 9
    s_add_u32 s6, s6, %d
    v_lshlrev_b32 v13, 4, v5
    v_add_u32 v13, s6, v13
    v_lshrrev_b32 v3, 2, v4
    v_lshl_add_u32 v3, v5, 3, v3
    v_lshlrev_b32 v3, 6, v3
    v_bfe_u32 v6, v0, 1, 1
    v_and_b32 v14, 1, v5
    v_lshlrev_b32 v14, 1, v14
    v_xor_b32 v6, v6, v14
    v_lshl_or_b32 v3, v6, 4, v3
    v_and_b32 v6, 1, v0
    v_lshl_or_b32 v14, v6, 3, v3
    v_xor_b32 v15, 32, v14
    """ % (L_XN, L_XN))
    a("""
    s_lshl_b32 s14, s4, 13
    s_add_u32 s14, s14, 0x%x
    s_add_u32 s13, s14, 4096
    s_lshl_b32 s15, s5, 8
    s_add_u32 s15, s15, s14
    v_lshl_add_u32 v3, v5, 2, v4
    v_lshlrev_b32 v3, 4, v3
    v_lshlrev_b32 v6, 6, v5
    v_bfe_u32 v16, v0, 1, 1
    v_lshl_or_b32 v6, v16, 5, v6
    v_bfe_u32 v16, v0, 2, 2
    v_lshl_or_b32 v6, v16, 3, v6
    v_and_b32 v16, 1, v0
    v_lshl_or_b32 v6, v16, 2, v6
    v_add_u32 v6, %d, v6
    s_mov_b32 s8, 0xaaaaaaaa
    s_mov_b32 s9, 0xaaaaaaaa
    s_mov_b32 s10, 0xcccccccc
    s_mov_b32 s11, 0xcccccccc
    v_mov_b32 v144, 1
    """ % (INB1, L_Q))
    tag_and_barrier(a)
    a("s_xor_b32 s46, s40, s44")
    a("s_mov_b32 s47, s41")
    if forceslow:
        a("s_mov_b32 s47, 0")
    a("s_waitcnt vmcnt(0)")
    a.stamp()
    layernorm(a, 8, 80, 88, 96)
    a("ds_write_b128 v12, v[96:99]")
    a("ds_write_b32 v7, v144 offset:%d" % F_XN)
    for k in range(8):
        a("ds_read_b128 v[%d:%d], v13 offset:%d" % (100 + 4 * k, 103 + 4 * k, k * 64))
    a.stamp()
    for half in range(2):
        lds_wait_ge(a, 7, 80, F_PROG, 8 * (half + 1), sleep=0)
        for kk in range(4):
            k = half * 4 + kk
            for s in range(2):
                for h in range(2):
                    r = 16 + (kk * 4 + s * 2 + h) * 2 + half * 32
                    a("ds_read_b64_tr_b16 v[%d:%d], v%d offset:%d" % (r, r + 1, 14 + s, k * 2048 + h * 256))
        for kk in range(4):
            k = half * 4 + kk
            a("s_waitcnt lgkmcnt(%d)" % (12 - 4 * kk))
            for s in range(2):
                r = 16 + (kk * 4 + s * 2) * 2 + half * 32
                c_ = "0" if k == 0 else "v[%d:%d]" % (132 + 4 * s, 135 + 4 * s)
                a("v_mfma_f32_16x16x32_bf16 v[%d:%d], v[%d:%d], v[%d:%d], %s" % (132 + 4 * s, 135 + 4 * s, r, r + 3, 100 + 4 * k, 103 + 4 * k, c_))
    a.stamp()
    a("v_mov_b32 v142, s46")
    a("v_mov_b32 v143, s41")
    a.nop(7)
    a("""
    v_cndmask_b32_e64 v80, v132, v134, s[8:9]
    v_cndmask_b32_e64 v81, v133, v135, s[8:9]
    v_cndmask_b32_e64 v82, v136, v138, s[8:9]
    v_cndmask_b32_e64 v83, v137, v139, s[8:9]
    v_cndmask_b32_e64 v140, v80, v82, s[10:11]
    v_cndmask_b32_e64 v141, v81, v83, s[10:11]
    s_mov_b32 exec_lo, 0x000f000f
    s_mov_b32 exec_hi, 0x000f000f
    buffer_store_dwordx4 v[140:143], v3, s[56:59], s15 offen sc1
    s_mov_b64 exec, -1
    """)
    a.stamp()
    def qissue(base):
        for k in range(4):
            a("buffer_load_dwordx4 v[%d:%d], v2, s[56:59], s14 offen offset:%d sc1" % (base + 4 * k, base + 3 + 4 * k, k * 1024))
            a("buffer_load_dwordx4 v[%d:%d], v2, s[56:59], s13 offen offset:%d sc1" % (base + 16 + 4 * k, base + 19 + 4 * k, k * 1024))
    def qcheck(base, lab):
        regs = [base + 4 * k for k in range(8)]
        tagcheck(a, regs, "s[46:47]")
        a("v_mov_b32 v144, 2")
        a("s_cbranch_vccz %s" % lab)
        a("v_mov_b32 v80, 0")
        for r in regs:
            a("v_xor_b32 v81, s40, v%d" % (r + 2))
            a("v_lshrrev_b32 v81, 4, v81")
            a("v_xor_b32 v82, s41, v%d" % (r + 3))
            a("v_or3_b32 v80, v80, v81, v82")
        a("v_cmp_ne_u32 vcc, 0, v80")
        a("v_mov_b32 v144, 1")
        a("s_cbranch_vccz %s" % lab)
    a("s_mov_b32 s64, SPIN")
    qissue(16)
    a("s_sleep 8")
    qissue(48)
    a.label("L_q_poll")
    a("s_waitcnt vmcnt(8)")
    qcheck(16, "L_q_d0")
    qissue(16)
    a("s_waitcnt vmcnt(8)")
    qcheck(48, "L_q_d1")
    qissue(48)
    a("s_sub_u32 s64, s64, 1")
    a("s_cbranch_scc1 L_end")
    a("s_branch L_q_poll")
    for nm, base in (("L_q_d0", 16), ("L_q_d1", 48)):
        a.label(nm)
        for k in range(4):
            a("v_add_f32 v%d, v%d, v%d" % (80 + 2 * k, base + 4 * k, base + 16 + 4 * k))
            a("v_add_f32 v%d, v%d, v%d" % (81 + 2 * k, base + 1 + 4 * k, base + 17 + 4 * k))
        if base == 16: a("s_branch L_q_dd")
    a.label("L_q_dd")
    for k in range(4):
        a("v_cvt_pk_bf16_f32 v%d, v%d, v%d" % (88 + k, 80 + 2 * k, 81 + 2 * k))
    a("ds_write2st64_b32 v6, v88, v89 offset0:0 offset1:1")
    a("ds_write2st64_b32 v6, v90, v91 offset0:2 offset1:3")
    a("ds_write_b32 v7, v144 offset:%d" % F_Q)
    a.stamp()
    a("s_cmp_lt_u32 s5, 24")
    a("s_cbranch_scc1 L_q_done")
    a("""
    s_setprio 1
    s_lshl_b32 s6, s4, 3
    s_add_u32 s6, s6, s5
    s_sub_u32 s6, s6, 24
    s_lshl_b32 s12, s6, 13
    s_add_u32 s12, s12, 0x%x
    s_add_u32 s13, s12, 4096
    s_lshl_b32 s14, s6, 12
    s_add_u32 s14, s14, 0x%x
    s_lshl_b32 s15, s6, 4
    v_and_b32 v3, 3, v0
    v_lshlrev_b32 v3, 2, v3
    v_add_u32 v3, s15, v3
    s_mov_b32 s52, s34
    s_mov_b32 s53, s35
    s_mov_b32 s54, 1024
    s_mov_b32 s55, 0x20000
    s_waitcnt vmcnt(0)
    buffer_load_dword v6, v3, s[48:51], 0 offen
    """ % (INB3S, INB3D))
    lds_wait_ge(a, 7, 80, F_OPUB, 1, sleep=2)
    a("s_setprio 3")
    a.stamp()
    NS = 3
    def fissue(base):
        for k in range(8):
            a("buffer_load_dwordx4 v[%d:%d], v2, s[56:59], s%d offen offset:%d sc1" % (base + 4 * k, base + 3 + 4 * k, 12 + k // 4, (k % 4) * 1024))
        for k in range(4):
            a("buffer_load_dwordx4 v[%d:%d], v2, s[56:59], s14 offen offset:%d sc1" % (base + 32 + 4 * k, base + 35 + 4 * k, k * 1024))
    def fcheck(base, lab):
        a("v_cmp_ne_u64 vcc, s[40:41], v[%d:%d]" % (base + 46, base + 47))
        a("s_mov_b32 vcc_hi, 0")
        for k in range(11):
            a("v_cmp_ne_u64 s[60:61], s[40:41], v[%d:%d]" % (base + 4 * k + 2, base + 4 * k + 3))
            a("s_or_b64 vcc, vcc, s[60:61]")
        a("s_cbranch_vccz %s" % lab)
    bases = [16 + 48 * i for i in range(NS)]
    a("s_mov_b32 s64, SPIN")
    for i, b in enumerate(bases):
        fissue(b)
        if i < NS - 1: a("s_sleep 4")
    a.label("L_f_poll3")
    for i, b in enumerate(bases):
        a("s_waitcnt vmcnt(%d)" % (12 * (NS - 1)))
        fcheck(b, "L_fin_d%d" % i)
        fissue(b)
    a("s_sub_u32 s64, s64, 1")
    a("s_cbranch_scc1 L_end")
    a("s_branch L_f_poll3")
    for i, b in enumerate(bases):
        a.label("L_fin_d%d" % i)
        a("""
        s_mov_b32 exec_lo, 0
        v_mov_b32 v%d, 0
        v_mov_b32 v%d, 0
        s_mov_b32 exec_lo, -1
        """ % (b + 44, b + 45))
        for e in range(2):
            a("v_add_f32 v%d, v%d, v%d" % (160 + e, b + e, b + 4 + e))
            a("v_add_f32 v%d, v%d, v%d" % (164 + e, b + 8 + e, b + 12 + e))
            a("v_add_f32 v%d, v%d, v%d" % (166 + e, b + 16 + e, b + 20 + e))
            a("v_add_f32 v%d, v%d, v%d" % (168 + e, b + 24 + e, b + 28 + e))
            a("v_add_f32 v%d, v%d, v%d" % (162 + e, b + 32 + e, b + 36 + e))
            a("v_add_f32 v%d, v%d, v%d" % (170 + e, b + 40 + e, b + 44 + e))
        if i < NS - 1: a("s_branch L_fin_dd")
    a.label("L_fin_dd")
    a.stamp()
    a("""
    v_add_f32 v160, v160, v164
    v_add_f32 v161, v161, v165
    v_add_f32 v166, v166, v168
    v_add_f32 v167, v167, v169
    v_add_f32 v162, v162, v170
    v_add_f32 v163, v163, v171
    v_add_f32 v160, v160, v166
    v_add_f32 v161, v161, v167
    """)
    for r in (4, 8):
        a.nop(1)
        for v in (162, 163, 160, 161):
            a("v_add_f32_dpp v%d, v%d, v%d row_ror:%d row_mask:0xf bank_mask:0xf" % (v, v, v, r))
    xreduce(a, "add", [160, 161, 162, 163], [164, 165, 166, 167])
    a("""
    v_cvt_pk_bf16_f32 v164, v160, v161
    v_cvt_pk_bf16_f32 v165, v162, v163
    v_lshlrev_b32 v160, 16, v164
    v_and_b32 v161, 0xffff0000, v164
    v_lshlrev_b32 v162, 16, v165
    v_and_b32 v163, 0xffff0000, v165
    v_mul_f32 v164, 0xbfb8aa3b, v162
    v_mul_f32 v165, 0xbfb8aa3b, v163
    v_exp_f32 v164, v164
    v_exp_f32 v165, v165
    s_nop 0
    v_add_f32 v164, 1.0, v164
    v_add_f32 v165, 1.0, v165
    v_rcp_f32 v166, v164
    v_rcp_f32 v167, v165
    s_nop 0
    v_mul_f32 v168, v162, v166
    v_mul_f32 v169, v163, v167
    v_fma_f32 v170, -v168, v164, v162
    v_fma_f32 v171, -v169, v165, v163
    v_fma_f32 v170, v170, v166, v168
    v_fma_f32 v171, v171, v167, v169
    v_cmp_class_f32 vcc, v170, 3
    v_cmp_class_f32 s[60:61], v171, 3
    s_nop 1
    v_cndmask_b32 v170, v170, v168, vcc
    v_cndmask_b32_e64 v171, v171, v169, s[60:61]
    v_cvt_pk_bf16_f32 v164, v170, v171
    v_lshlrev_b32 v170, 16, v164
    v_and_b32 v171, 0xffff0000, v164
    v_mul_f32 v170, v160, v170
    v_mul_f32 v171, v161, v171
    v_cvt_pk_bf16_f32 v164, v170, v171
    v_lshlrev_b32 v170, 16, v164
    v_and_b32 v171, 0xffff0000, v164
    v_lshlrev_b32 v164, 16, v6
    v_and_b32 v165, 0xffff0000, v6
    v_add_f32 v170, v164, v170
    v_add_f32 v171, v165, v171
    v_cvt_pk_bf16_f32 v164, v170, v171
    s_mov_b64 exec, 15
    buffer_store_dword v164, v3, s[52:55], 0 offen
    s_cmp_lg_u32 s2, 192
    s_cbranch_scc1 L_q_done
    s_mov_b64 exec, 1
    v_mov_b32 v166, s40
    v_mov_b32 v167, s41
    v_mov_b32 v168, 0
    buffer_store_dwordx2 v[166:167], v168, s[56:59], 0 offen
    """)
    a.label("L_q_done")
    a.stamp()
    a.stamp_flush(172)
    a("s_endpgm")

    a.nstamp = nst0
    a.label("L_att")
    a("s_sub_u32 s62, s3, 2")
    a("""
    s_cmp_lg_u32 s62, 0
    s_cbranch_scc1 L_att_nz
    v_lshlrev_b32 v2, 4, v0
    v_add_u32 v2, %d, v2
    v_mov_b32 v8, 0
    v_mov_b32 v9, 0
    v_mov_b32 v10, 0
    v_mov_b32 v11, 0
    ds_write_b128 v2, v[8:11]
    ds_write_b128 v2, v[8:11] offset:1024
    v_lshlrev_b32 v2, 3, v0
    v_add_u32 v2, %d, v2
    ds_write_b64 v2, v[8:9]
    """ % (L_Z, L_Z + 2048))
    a.label("L_att_nz")
    a("""
    s_lshl_b32 s6, s62, 13
    s_add_u32 s6, s6, %d
    v_lshlrev_b32 v2, 8, v4
    v_add_u32 v2, s6, v2
    """ % L_K)
    for kk in range(4):
        a("v_add_u32 v3, %d, v5" % (4 * kk))
        a("v_xor_b32 v3, v3, v4")
        a("v_lshl_add_u32 v%d, v3, 4, v2" % (8 + kk))
    a("""
    v_lshrrev_b32 v3, 2, v4
    v_lshlrev_b32 v6, 8, v3
    v_lshl_or_b32 v6, v5, 4, v6
    v_add_u32 v6, %d, v6
    v_lshl_add_u32 v2, v5, 2, v3
    v_lshlrev_b32 v2, 8, v2
    v_add_u32 v2, %d, v2
    v_and_b32 v12, 1, v0
    v_lshl_add_u32 v2, v12, 3, v2
    v_and_b32 v12, 1, v5
    v_lshl_add_u32 v12, v12, 2, v3
    v_lshlrev_b32 v12, 1, v12
    v_bfe_u32 v13, v0, 1, 1
    s_lshl_b32 s6, s62, 2
    v_add_u32 v13, s6, v13
    v_xor_b32 v12, v12, v13
    v_lshl_add_u32 v12, v12, 4, v2
    v_xor_b32 v13, 32, v12
    """ % (L_Q, L_V))
    a("""
    v_lshlrev_b32 v15, 4, v0
    v_add_u32 v15, %d, v15
    s_lshl_b32 s6, s62, 10
    v_add_u32 v14, s6, v15
    v_lshlrev_b32 v17, 4, v3
    v_add_u32 v17, %d, v17
    s_lshl_b32 s6, s62, 6
    v_add_u32 v16, s6, v17
    """ % (L_P, L_ST))
    a("""
    s_lshl_b32 s6, s4, 17
    s_lshl_b32 s7, s62, 13
    s_add_u32 s6, s6, s7
    s_lshl_b32 s7, s5, 8
    s_add_u32 s6, s6, s7
    s_add_u32 s12, s6, 0x%x
    v_lshlrev_b32 v18, 15, v3
    v_lshl_or_b32 v18, v5, 6, v18
    v_and_b32 v2, 3, v0
    v_lshl_or_b32 v18, v2, 4, v18
    s_lshl_b32 s6, s4, 11
    s_lshl_b32 s7, s5, 4
    s_add_u32 s6, s6, s7
    s_add_u32 s13, s6, 0x%x
    v_lshlrev_b32 v19, 9, v3
    s_mov_b32 s8, 0xaaaaaaaa
    s_mov_b32 s9, 0xaaaaaaaa
    s_mov_b32 s10, 0xcccccccc
    s_mov_b32 s11, 0xcccccccc
    s_mov_b32 s14, 0x%x
    s_mov_b32 s15, 0x%x
    s_lshl_b32 s63, s62, 3
    s_add_u32 s63, s63, 24
    """ % (INB2, INBS, SCALE, LOG2E))
    after_kernarg(a)
    tag_and_barrier(a)
    a.stamp()
    a("s_mov_b32 s64, SPIN")
    a.label("L_att_kw")
    a("""
    ds_read_b32 v20, v7 offset:%d
    s_waitcnt lgkmcnt(0)
    v_cmp_gt_u32 vcc, s63, v20
    s_cbranch_vccz L_att_kok
    s_sleep 2
    s_sub_u32 s64, s64, 1
    s_cbranch_scc1 L_end
    s_branch L_att_kw
    """ % F_PROG)
    a.label("L_att_kok")
    for tau in range(2):
        for kk in range(4):
            r = 32 + (tau * 4 + kk) * 4
            a("ds_read_b128 v[%d:%d], v%d offset:%d" % (r, r + 3, 8 + kk, tau * 4096))
    a.stamp()
    a("s_mov_b32 s64, SPIN")
    a.label("L_att_qw")
    a("ds_read_b32 v20, v7 offset:%d" % F_Q)
    for kk in range(4):
        a("ds_read_b128 v[%d:%d], v6 offset:%d" % (64 + 4 * kk, 67 + 4 * kk, kk * 64))
    a("""
    s_waitcnt lgkmcnt(0)
    v_cmp_eq_u32 vcc, 0, v20
    s_cbranch_vccz L_att_qok
    s_sleep 1
    s_sub_u32 s64, s64, 1
    s_cbranch_scc1 L_end
    s_branch L_att_qw
    """)
    a.label("L_att_qok")
    a.stamp()
    a("s_setprio 3")
    a("v_readfirstlane_b32 s45, v20")
    for kk in range(4):
        for tau in range(2):
            r = 32 + (tau * 4 + kk) * 4
            c_ = "0" if kk == 0 else "v[%d:%d]" % (80 + 4 * tau, 83 + 4 * tau)
            a("v_mfma_f32_16x16x32_bf16 v[%d:%d], v[%d:%d], v[%d:%d], %s" % (80 + 4 * tau, 83 + 4 * tau, r, r + 3, 64 + 4 * kk, 67 + 4 * kk, c_))
    a.nop(8)
    for rnd in range(2):
        for i in range(4):
            a("v_cvt_pk_bf16_f32 v%d, v%d, v%d" % (88 + i, 80 + 2 * i, 81 + 2 * i))
        for i in range(4):
            a("v_lshlrev_b32 v%d, 16, v%d" % (80 + 2 * i, 88 + i))
            a("v_and_b32 v%d, 0xffff0000, v%d" % (81 + 2 * i, 88 + i))
        if rnd == 0:
            for i in range(8):
                a("v_mul_f32 v%d, s14, v%d" % (80 + i, 80 + i))
    a("""
    v_max3_f32 v92, v80, v81, v82
    v_max3_f32 v93, v83, v84, v85
    v_max3_f32 v92, v92, v86, v87
    v_max_f32 v92, v92, v93
    """)
    xreduce(a, "max", [92], [93])
    a("v_mul_f32 v92, s15, v92")
    for i in range(8):
        a("v_fma_f32 v%d, v%d, s15, -v92" % (80 + i, 80 + i))
    for i in range(8):
        a("v_exp_f32 v%d, v%d" % (80 + i, 80 + i))
    a.nop(1)
    for i in range(4):
        a("v_cvt_pk_bf16_f32 v%d, v%d, v%d" % (88 + i, 80 + 2 * i, 81 + 2 * i))
    a("ds_write_b128 v14, v[88:91]")
    a("""
    v_add_f32 v93, v80, v81
    v_add_f32 v94, v82, v83
    v_add_f32 v95, v84, v85
    v_add_f32 v96, v86, v87
    v_add_f32 v93, v93, v94
    v_add_f32 v95, v95, v96
    v_add_f32 v93, v93, v95
    """)
    xreduce(a, "add", [93], [96])
    a("""
    v_mov_b32 v94, 1
    v_mov_b32 v95, 1
    s_mov_b64 exec, 0x1111
    ds_write_b128 v16, v[92:95]
    s_mov_b64 exec, -1
    """)
    a.stamp()
    a("s_mov_b32 s64, SPIN")
    a.label("L_att_pw")
    a("s_sub_u32 s64, s64, 1")
    a("s_cbranch_scc1 L_end")
    for w in range(4):
        a("ds_read_b128 v[%d:%d], v17 offset:%d" % (32 + 4 * w, 35 + 4 * w, 64 * w))
    for w in range(4):
        a("ds_read_b128 v[%d:%d], v15 offset:%d" % (48 + 4 * w, 51 + 4 * w, 1024 * w))
    a("""
    s_waitcnt lgkmcnt(0)
    v_min_u32 v64, v34, v38
    v_min3_u32 v64, v64, v42, v46
    v_cmp_eq_u32 vcc, 0, v64
    s_cbranch_vccnz L_att_pw
    """)
    a.stamp()
    a("""
    v_max3_f32 v64, v32, v36, v40
    v_max_f32 v64, v64, v44
    """)
    for w in range(4):
        a("v_sub_f32 v%d, v%d, v64" % (68 + w, 32 + 4 * w))
    for w in range(4):
        a("v_exp_f32 v%d, v%d" % (68 + w, 68 + w))
    a.nop(1)
    a("v_mul_f32 v65, v68, v33")
    for w in range(1, 4):
        a("v_fmac_f32 v65, v%d, v%d" % (68 + w, 33 + 4 * w))
    a("""
    v_mov_b32 v66, s40
    v_mov_b32 v67, s41
    v_mov_b32 v74, s40
    v_mov_b32 v75, s41
    s_cmp_lg_u32 s62, 0
    s_cbranch_scc1 L_att_nost
    s_mov_b64 exec, 0x1111
    s_cmp_eq_u32 s45, 2
    s_cbranch_scc1 L_att_stf
    buffer_store_dwordx4 v[64:67], v19, s[56:59], s13 offen sc1
    s_branch L_att_st2
    """)
    a.label("L_att_stf")
    a("buffer_store_dwordx4 v[64:67], v19, s[56:59], s13 offen")
    a.label("L_att_st2")
    a("s_mov_b64 exec, -1")
    a.label("L_att_nost")
    for chi in range(4):
        lds_wait_ge(a, 7, 76, F_PROG, 56 + 8 * chi, sleep=1 if chi < 3 else 0)
        if chi == 3: a.stamp()
        for t in range(2):
            for h in range(2):
                r = 96 + t * 4 + h * 2
                a("ds_read_b64_tr_b16 v[%d:%d], v%d offset:%d" % (r, r + 1, 12 + t, chi * 8192 + h * 4096))
        for t in range(2):
            a("s_waitcnt lgkmcnt(%d)" % (2 - 2 * t))
            a("v_mfma_f32_16x16x32_bf16 v[%d:%d], v[%d:%d], v[%d:%d], 0" % (104 + 4 * t, 107 + 4 * t, 96 + 4 * t, 99 + 4 * t, 48 + 4 * chi, 51 + 4 * chi))
        a.nop(8)
        a("""
        v_cndmask_b32_e64 v112, v104, v106, s[8:9]
        v_cndmask_b32_e64 v113, v105, v107, s[8:9]
        v_cndmask_b32_e64 v114, v108, v110, s[8:9]
        v_cndmask_b32_e64 v115, v109, v111, s[8:9]
        v_cndmask_b32_e64 v112, v112, v114, s[10:11]
        v_cndmask_b32_e64 v113, v113, v115, s[10:11]
        """)
        if chi == 0:
            a("v_mul_f32 v72, v68, v112")
            a("v_mul_f32 v73, v68, v113")
        else:
            a("v_fmac_f32 v72, v%d, v112" % (68 + chi))
            a("v_fmac_f32 v73, v%d, v113" % (68 + chi))
    a("""
    s_cmp_eq_u32 s45, 2
    s_cbranch_scc1 L_att_of
    buffer_store_dwordx4 v[72:75], v18, s[56:59], s12 offen sc1
    s_branch L_att_o2
    """)
    a.label("L_att_of")
    a("buffer_store_dwordx4 v[72:75], v18, s[56:59], s12 offen")
    a.label("L_att_o2")
    a.stamp()
    a.stamp_flush(28)
    a("s_endpgm")

    a.nstamp = nst0
    a.label("L_o")
    a("""
    s_lshl_b32 s10, s4, 11
    s_lshr_b32 s6, s5, 3
    s_lshl_b32 s6, s6, 9
    s_add_u32 s10, s10, s6
    s_add_u32 s10, s10, 0x%x
    v_lshlrev_b32 v8, 4, v5
    s_lshl_b32 s6, s4, 4
    s_lshr_b32 s7, s5, 1
    s_add_u32 s6, s6, s7
    s_lshl_b32 s11, s6, 13
    s_add_u32 s11, s11, 0x%x
    s_add_u32 s12, s11, 4096
    v_lshlrev_b32 v2, 4, v0
    v_bfe_u32 v3, v0, 1, 1
    v_lshlrev_b32 v9, 5, v3
    v_bfe_u32 v3, v0, 2, 2
    v_lshl_or_b32 v9, v3, 3, v9
    v_and_b32 v6, 1, v0
    v_lshl_or_b32 v9, v6, 2, v9
    v_add_u32 v9, %d, v9
    v_lshrrev_b32 v10, 1, v4
    v_lshlrev_b32 v10, 6, v10
    v_lshl_or_b32 v10, v5, 4, v10
    v_add_u32 v10, %d, v10
    v_lshl_add_u32 v6, v5, 3, v3
    v_lshlrev_b32 v6, 9, v6
    v_add_u32 v6, %d, v6
    v_and_b32 v11, 3, v0
    """ % (INBS, INB2, L_OW + 7 * 64, L_OW, L_WO))
    for aa in range(4):
        a("v_xor_b32 v16, %d, v3" % aa)
        a("v_lshl_or_b32 v16, v16, 2, v11")
        a("v_lshl_add_u32 v%d, v16, 4, v6" % (12 + aa))
    a("""
    s_lshl_b32 s6, s6, 6
    s_and_b32 s7, s5, 1
    s_lshl_b32 s7, s7, 18
    s_add_u32 s6, s6, s7
    s_add_u32 s14, s6, 0x%x
    s_add_u32 s15, s14, 0x20000
    v_lshl_add_u32 v6, v3, 2, v5
    v_lshlrev_b32 v6, 13, v6
    v_lshl_or_b32 v6, v11, 4, v6
    s_mov_b32 s8, 0xaaaaaaaa
    s_mov_b32 s9, 0xaaaaaaaa
    v_mov_b32 v11, 1
    """ % INB3S)
    after_kernarg(a)
    tag_and_barrier(a)
    a.stamp()
    lds_wait_ge(a, 7, 16, F_Q, 1, sleep=4)
    a("s_mov_b32 s64, SPIN")
    a.label("L_o_sp")
    a("s_sub_u32 s64, s64, 1")
    a("s_cbranch_scc1 L_end")
    for k in range(8):
        a("buffer_load_dwordx4 v[%d:%d], v8, s[56:59], s10 offen offset:%d sc1" % (16 + 4 * k, 19 + 4 * k, k * 64))
    a("s_waitcnt vmcnt(0)")
    tagcheck(a, [16 + 4 * k for k in range(8)])
    a("s_cbranch_vccnz L_o_sp")
    a.stamp()
    def oissue(base):
        for k in range(8):
            a("buffer_load_dwordx4 v[%d:%d], v2, s[56:59], s%d offen offset:%d sc1" % (base + 4 * k, base + 3 + 4 * k, 11 + k // 4, (k % 4) * 1024))
    oissue(128)
    a("""
    v_max3_f32 v56, v16, v20, v24
    v_max3_f32 v57, v28, v32, v36
    v_max3_f32 v56, v56, v40, v44
    v_max_f32 v56, v56, v57
    """)
    xreduce(a, "max", [56], [57])
    for k in range(8):
        a("v_sub_f32 v%d, v%d, v56" % (48 + k, 16 + 4 * k))
    for k in range(8):
        a("v_exp_f32 v%d, v%d" % (48 + k, 48 + k))
    a.nop(1)
    a("v_mul_f32 v57, v48, v17")
    for k in range(1, 8):
        a("v_fmac_f32 v57, v%d, v%d" % (48 + k, 17 + 4 * k))
    xreduce(a, "add", [57], [58])
    a("v_rcp_f32 v58, v57")
    a("s_mov_b32 s65, 0")
    a("s_setprio 3")
    oissue(160)
    def wo_pre():
        for al in range(2):
            for t in range(8):
                for h in range(2):
                    r = 64 + ((al * 8 + t) * 2 + h) * 2
                    a("ds_read_b64_tr_b16 v[%d:%d], v%d offset:%d" % (r, r + 1, 12 + (t >> 1), al * 256 + (t & 1) * 8 + h * 2048))
    def opp(lab):
        a("s_cmp_lg_u32 s65, 0")
        a("s_cbranch_scc1 %s" % lab)
        a("ds_read_b32 v59, v7 offset:%d" % F_PROG)
        a("s_waitcnt lgkmcnt(0)")
        a("v_cmp_gt_u32 vcc, 0x70, v59")
        a("s_cbranch_vccnz %s" % lab)
        wo_pre()
        a("s_mov_b32 s65, 1")
        a.label(lab)
    a("s_mov_b32 s64, SPIN")
    a.label("L_o_poll")
    opp("L_o_np")
    a("s_waitcnt vmcnt(8)")
    tagcheck(a, [128 + 4 * k for k in range(8)])
    a("s_cbranch_vccz L_o_d0")
    oissue(128)
    a("s_waitcnt vmcnt(8)")
    tagcheck(a, [160 + 4 * k for k in range(8)])
    a("s_cbranch_vccz L_o_d1")
    oissue(160)
    a("s_sub_u32 s64, s64, 1")
    a("s_cbranch_scc1 L_end")
    a("s_branch L_o_poll")
    for nm, base in (("L_o_d0", 128), ("L_o_d1", 160)):
        a.label(nm)
        a("v_mul_f32 v60, v48, v%d" % base)
        a("v_mul_f32 v61, v48, v%d" % (base + 1))
        a("v_mul_f32 v62, v49, v%d" % (base + 4))
        a("v_mul_f32 v63, v49, v%d" % (base + 5))
        for k in range(2, 8):
            a("v_fmac_f32 v%d, v%d, v%d" % (60 + 2 * (k & 1), 48 + k, base + 4 * k))
            a("v_fmac_f32 v%d, v%d, v%d" % (61 + 2 * (k & 1), 48 + k, base + 4 * k + 1))
        if base == 128: a("s_branch L_o_dd")
    a.label("L_o_dd")
    a.stamp()
    a("v_add_f32 v60, v60, v62")
    a("v_add_f32 v61, v61, v63")
    xreduce(a, "add", [60, 61], [62, 63])
    for r in (60, 61):
        a("v_mul_f32 v62, v%d, v58" % r)
        a("v_fma_f32 v63, -v62, v57, v%d" % r)
        a("v_fma_f32 v%d, v63, v58, v62" % r)
    a("v_cvt_pk_bf16_f32 v60, v60, v61")
    a("ds_write_b32 v9, v60")
    for t in range(8):
        a("ds_read_b128 v[%d:%d], v10 offset:%d" % (16 + 4 * t, 19 + 4 * t, (7 - t) * 64))
    a("s_cmp_lg_u32 s65, 0")
    a("s_cbranch_scc1 L_o_have")
    lds_wait_ge(a, 7, 59, F_PROG, 112, sleep=0)
    wo_pre()
    a.label("L_o_have")
    a("""
    v_mov_b32 v194, s40
    v_mov_b32 v195, s41
    v_mov_b32 v198, s40
    v_mov_b32 v199, s41
    s_waitcnt lgkmcnt(0)
    """)
    a.stamp()
    for t in range(8):
        for al in range(2):
            r = 64 + (al * 8 + t) * 4
            c_ = "0" if t == 0 else "v[%d:%d]" % (48 + 4 * al, 51 + 4 * al)
            a("v_mfma_f32_16x16x32_bf16 v[%d:%d], v[%d:%d], v[%d:%d], %s" % (48 + 4 * al, 51 + 4 * al, r, r + 3, 16 + 4 * t, 19 + 4 * t, c_))
    a.nop(7)
    a("""
    v_cndmask_b32_e64 v192, v48, v50, s[8:9]
    v_cndmask_b32_e64 v193, v49, v51, s[8:9]
    v_cndmask_b32_e64 v196, v52, v54, s[8:9]
    v_cndmask_b32_e64 v197, v53, v55, s[8:9]
    buffer_store_dwordx4 v[192:195], v6, s[56:59], s14 offen sc1
    buffer_store_dwordx4 v[196:199], v6, s[56:59], s15 offen sc1
    ds_write_b32 v7, v11 offset:%d
    """ % F_OPUB)
    a.stamp()
    a.stamp_flush(28)
    a("s_endpgm")

    a.nstamp = nst0
    a.label("L_f")
    a("""
    s_cmp_ge_u32 s5, 28
    s_cbranch_scc1 L_end
    s_mul_i32 s14, s4, 7
    s_lshr_b32 s7, s5, 2
    s_add_u32 s14, s14, s7
    s_and_b32 s15, s5, 3
    """)
    a("""
    s_lshl_b32 s6, s15, 8
    s_add_u32 s6, s6, %d
    v_lshlrev_b32 v13, 4, v5
    v_add_u32 v13, s6, v13
    v_lshrrev_b32 v3, 2, v4
    v_lshl_add_u32 v2, v5, 3, v3
    v_lshlrev_b32 v12, 6, v2
    v_bfe_u32 v6, v0, 1, 1
    v_and_b32 v14, 1, v5
    v_lshlrev_b32 v14, 1, v14
    v_xor_b32 v6, v6, v14
    v_lshl_or_b32 v12, v6, 4, v12
    v_and_b32 v6, 1, v0
    v_lshl_or_b32 v12, v6, 3, v12
    v_add_u32 v14, %d, v12
    v_xor_b32 v15, 32, v14
    """ % (L_XN, L_G))
    a("""
    v_lshlrev_b32 v2, 8, v2
    v_add_u32 v2, %d, v2
    v_and_b32 v12, 3, v0
    """ % L_WD)
    for aa in range(4):
        a("v_xor_b32 v16, %d, v3" % aa)
        a("v_lshl_or_b32 v16, v16, 2, v12")
        a("v_lshl_add_u32 v%d, v16, 4, v2" % (8 + aa))
    a("""
    s_lshl_b32 s11, s14, 11
    s_add_u32 s11, s11, 0x%x
    s_lshl_b32 s6, s15, 8
    s_add_u32 s10, s11, s6
    v_bfe_u32 v16, v0, 2, 1
    v_lshlrev_b32 v16, 10, v16
    v_lshl_or_b32 v16, v5, 6, v16
    v_lshl_or_b32 v16, v12, 4, v16
    v_lshlrev_b32 v2, 4, v0
    v_bfe_u32 v6, v0, 1, 1
    v_lshlrev_b32 v17, 5, v6
    v_lshl_or_b32 v17, v3, 3, v17
    v_and_b32 v6, 1, v0
    v_lshl_or_b32 v17, v6, 2, v17
    v_add_u32 v17, %d, v17
    v_lshrrev_b32 v18, 1, v4
    v_lshlrev_b32 v18, 6, v18
    v_lshl_or_b32 v18, v5, 4, v18
    v_add_u32 v18, %d, v18
    s_lshl_b32 s12, s15, 16
    s_lshl_b32 s6, s14, 6
    s_add_u32 s12, s12, s6
    s_add_u32 s12, s12, 0x%x
    v_lshl_add_u32 v19, v3, 2, v5
    v_lshlrev_b32 v19, 12, v19
    v_lshl_or_b32 v19, v12, 4, v19
    s_mov_b32 s8, 0xaaaaaaaa
    s_mov_b32 s9, 0xaaaaaaaa
    v_bfe_u32 v6, v0, 1, 2
    """ % (INB4, L_HW + 7 * 64, L_HW, INB3D))
    after_kernarg(a)
    tag_and_barrier(a)
    a.stamp()
    lds_wait_ge(a, 7, 20, F_XN, 1, sleep=4)
    for k in range(4):
        a("ds_read_b128 v[%d:%d], v13 offset:%d" % (20 + 4 * k, 23 + 4 * k, k * 64))
    a("v_mov_b32 v36, 0")
    a("s_waitcnt lgkmcnt(0)")
    for u in range(4):
        a("v_cmp_eq_u32 vcc, %d, v6" % u)
        a.nop(2)
        for k in range(4):
            for i in range(4):
                a("v_cndmask_b32 v%d, v36, v%d, vcc" % (128 + (u * 4 + k) * 4 + i, 20 + 4 * k + i))
    a("""
    v_mov_b32 v42, s40
    v_mov_b32 v43, s41
    """)
    lds_wait_ge(a, 7, 20, F_Q, 1, sleep=4)
    a("v_readfirstlane_b32 s45, v20")
    lds_wait_ge(a, 7, 20, F_PROG, 96, sleep=1)
    a.stamp()
    a("s_setprio 3")
    for u in range(4):
        for k in range(4):
            for h in range(2):
                r = 64 + ((u * 4 + k) * 2 + h) * 2
                a("ds_read_b64_tr_b16 v[%d:%d], v%d offset:%d" % (r, r + 1, 14 + (u & 1), (u >> 1) * 8192 + k * 2048 + h * 256))
        if u >= 1:
            a("s_waitcnt lgkmcnt(8)")
            for k in range(4):
                n = (u - 1) * 4 + k
                c_ = "0" if n == 0 else "v[36:39]"
                a("v_mfma_f32_16x16x32_bf16 v[36:39], v[%d:%d], v[%d:%d], %s" % (64 + n * 4, 67 + n * 4, 128 + n * 4, 131 + n * 4, c_))
    a("s_waitcnt lgkmcnt(0)")
    for k in range(4):
        n = 12 + k
        a("v_mfma_f32_16x16x32_bf16 v[36:39], v[%d:%d], v[%d:%d], v[36:39]" % (64 + n * 4, 67 + n * 4, 128 + n * 4, 131 + n * 4))
    a.nop(8)
    a("""
    v_cndmask_b32_e64 v40, v36, v38, s[8:9]
    v_cndmask_b32_e64 v41, v37, v39, s[8:9]
    s_mov_b32 exec_lo, 0x00ff00ff
    s_mov_b32 exec_hi, 0x00ff00ff
    s_cmp_eq_u32 s45, 2
    s_cbranch_scc1 L_f_pf
    buffer_store_dwordx4 v[40:43], v16, s[56:59], s10 offen sc1
    s_branch L_f_p2
    """)
    a.label("L_f_pf")
    a("buffer_store_dwordx4 v[40:43], v16, s[56:59], s10 offen")
    a.label("L_f_p2")
    a("s_mov_b64 exec, -1")
    a.stamp()
    a("s_mov_b32 s65, 0")
    def wd_pre():
        for t in range(8):
            for h in range(2):
                r = 64 + (t * 2 + h) * 2
                a("ds_read_b64_tr_b16 v[%d:%d], v%d offset:%d" % (r, r + 1, 8 + (t >> 1), (t & 1) * 8 + h * 1024))
    def gissue(base):
        a("buffer_load_dwordx4 v[%d:%d], v2, s[56:59], s11 offen sc1" % (base, base + 3))
        a("buffer_load_dwordx4 v[%d:%d], v2, s[56:59], s11 offen offset:1024 sc1" % (base + 4, base + 7))
    gissue(20)
    a("s_sleep 4")
    gissue(28)
    a("s_mov_b32 s64, SPIN")
    a.label("L_f_poll")
    a("""
    s_cmp_lg_u32 s65, 0
    s_cbranch_scc1 L_f_np
    ds_read_b32 v44, v7 offset:%d
    s_waitcnt lgkmcnt(0)
    v_cmp_gt_u32 vcc, 0x78, v44
    s_cbranch_vccnz L_f_np
    """ % F_PROG)
    wd_pre()
    a("s_mov_b32 s65, 1")
    a.label("L_f_np")
    a("s_waitcnt vmcnt(2)")
    tagcheck(a, [20, 24])
    a("s_cbranch_vccz L_f_d0")
    gissue(20)
    a("s_waitcnt vmcnt(2)")
    tagcheck(a, [28, 32])
    a("s_cbranch_vccz L_f_d1")
    gissue(28)
    a("s_sub_u32 s64, s64, 1")
    a("s_cbranch_scc1 L_end")
    a("s_branch L_f_poll")
    for nm, base in (("L_f_d0", 20), ("L_f_d1", 28)):
        a.label(nm)
        a("v_mov_b32 v44, v%d" % base)
        a("v_mov_b32 v45, v%d" % (base + 1))
        a("v_mov_b32 v46, v%d" % (base + 4))
        a("v_mov_b32 v47, v%d" % (base + 5))
        if base == 20: a("s_branch L_f_dd")
    a.label("L_f_dd")
    a.stamp()
    xreduce(a, "add", [44, 45, 46, 47], [48, 49, 50, 51])
    a("""
    s_mov_b32 s16, 0x3d372713
    s_mov_b32 s17, 0xc0135761
    v_cvt_pk_bf16_f32 v48, v44, v45
    v_cvt_pk_bf16_f32 v49, v46, v47
    v_lshlrev_b32 v44, 16, v48
    v_and_b32 v45, 0xffff0000, v48
    v_lshlrev_b32 v46, 16, v49
    v_and_b32 v47, 0xffff0000, v49
    v_mul_f32 v48, v44, v44
    v_mul_f32 v49, v45, v45
    v_mul_f32 v48, v48, v44
    v_mul_f32 v49, v49, v45
    v_fma_f32 v48, v48, s16, v44
    v_fma_f32 v49, v49, s16, v45
    v_mul_f32 v48, s17, v48
    v_mul_f32 v49, s17, v49
    v_exp_f32 v48, v48
    v_exp_f32 v49, v49
    s_nop 0
    v_add_f32 v48, 1.0, v48
    v_add_f32 v49, 1.0, v49
    v_rcp_f32 v48, v48
    v_rcp_f32 v49, v49
    s_nop 0
    v_mul_f32 v44, v44, v48
    v_mul_f32 v45, v45, v49
    v_cvt_pk_bf16_f32 v48, v44, v45
    v_lshlrev_b32 v44, 16, v48
    v_and_b32 v45, 0xffff0000, v48
    v_mul_f32 v44, v44, v46
    v_mul_f32 v45, v45, v47
    v_cvt_pk_bf16_f32 v48, v44, v45
    ds_write_b32 v17, v48
    """)
    for t in range(8):
        a("ds_read_b128 v[%d:%d], v18 offset:%d" % (128 + 4 * t, 131 + 4 * t, (7 - t) * 64))
    a("s_cmp_lg_u32 s65, 0")
    a("s_cbranch_scc1 L_f_have")
    lds_wait_ge(a, 7, 44, F_PROG, 120, sleep=0)
    wd_pre()
    a.label("L_f_have")
    a("s_waitcnt lgkmcnt(0)")
    a.stamp()
    for t in range(8):
        c_ = "0" if t == 0 else "v[36:39]"
        a("v_mfma_f32_16x16x32_bf16 v[36:39], v[%d:%d], v[%d:%d], %s" % (64 + 4 * t, 67 + 4 * t, 128 + 4 * t, 131 + 4 * t, c_))
    a.nop(8)
    a("""
    v_cndmask_b32_e64 v40, v36, v38, s[8:9]
    v_cndmask_b32_e64 v41, v37, v39, s[8:9]
    buffer_store_dwordx4 v[40:43], v19, s[56:59], s12 offen sc1
    """)
    a.stamp()
    a.stamp_flush(28)
    a.label("L_end")
    a("s_endpgm")

    out += a.l
    out.append('''.section .rodata,"a"
.p2align 6
.amdhsa_kernel %s_kernel
  .amdhsa_next_free_vgpr 200
  .amdhsa_next_free_sgpr 102
  .amdhsa_accum_offset 200
  .amdhsa_group_segment_fixed_size 0
  .amdhsa_kernarg_size 96
  .amdhsa_user_sgpr_count 2
  .amdhsa_user_sgpr_kernarg_segment_ptr 1
  .amdhsa_system_sgpr_workgroup_id_x 1
  .amdhsa_float_denorm_mode_32 3
.end_amdhsa_kernel''' % NAME)
    return "\n".join(out) + "\n"

if __name__ == "__main__":
    ap = argparse.ArgumentParser()
    ap.add_argument("-o", default="cdna_kernels/%s.s" % NAME)
    ap.add_argument("--diag", action="store_true")
    ap.add_argument("--slow", action="store_true")
    ap.add_argument("-W", type=int, default=20)
    args = ap.parse_args()
    open(args.o, "w").write(gen(diag=args.diag, W=args.W, forceslow=args.slow))
    print("wrote", args.o)
```

```python
import sys, argparse

NAME = "recurrent_scan__sliding_block_cached__glu_gated_geglu__decode"
HEADER = open("cdna_kernels/%s.s.ref" % NAME).read().split("; Override launch")[0]

INB1 = 0x10000
INBS = 0x20000
INB4 = 0x30000
INB2 = 0x80000
INB3S = 0x400000
INB3D = 0x500000
DIAG = 0x1000000
L_WQ = 0
L_K = 16384
L_V = 49152
L_G = 81920
L_U = 90112
L_WO = 98304
L_WD = 114688
L_M = 122880
L_XN = L_M
L_Q = L_M + 1024
L_P = L_M + 2048
L_Z = L_M + 6144
L_OW = L_Z
L_HW = L_Z + 1024
L_ST = L_Z + 2048
L_FL = L_Z + 2304
F_PROG = 0
F_XN = 4
F_Q = 8
F_OPUB = 12
LDS_BYTES = L_Z + 2560

LOG2E = 0x3fb8aa3b
SCALE = 0x3db504f3
ST0 = 76

class Asm:
    def __init__(self, diag=False):
        self.l = []; self.diag = diag; self.dbg = True; self.nstamp = 0; self.uid = 0
    def __call__(self, s):
        for x in s.strip().split("\n"):
            x = x.strip()
            if x: self.l.append("    " + x)
    def label(self, n): self.l.append(n + ":")
    def nop(self, n=1): self("s_nop %d" % (n - 1))
    def comment(self, s): self.l.append("    ; " + s)
    def newlabel(self, p):
        self.uid += 1; return "%s_%d" % (p, self.uid)
    def stamp(self):
        if not self.diag: return
        i = self.nstamp; assert i < 13, "too many stamps"
        self("s_memrealtime s[%d:%d]" % (ST0 + 2 * i, ST0 + 1 + 2 * i))
        self.nstamp += 1
    def stamp_flush(self, vtmp, dbgmap=()):
        if not self.diag: return
        n = self.nstamp
        if self.dbg:
            self("s_waitcnt vmcnt(0) lgkmcnt(0)")
            self("s_mov_b64 exec, 1")
            self("s_mov_b32 s68, s36")
            self("s_mov_b32 s69, s37")
            self("s_mov_b32 s70, 256")
            self("s_mov_b32 s71, 0x20000")
            self("v_mov_b32 v%d, 0" % (vtmp + 2))
            for k, (slot, idx, inv) in enumerate(dbgmap):
                assert idx < n
                self("v_mov_b32 v%d, s%d" % (vtmp + (k & 1), ST0 + 2 * idx))
                if inv: self("v_not_b32 v%d, v%d" % (vtmp + (k & 1), vtmp + (k & 1)))
                self("buffer_atomic_umax v%d, off, s[68:71], 0 offset:%d sc1" % (vtmp + (k & 1), slot * 4))
                self.nop(4)
            return
        self("s_waitcnt lgkmcnt(0)")
        self("s_mov_b64 exec, 1")
        self("s_lshl_b32 s64, s2, 10")
        self("s_lshl_b32 s65, s3, 7")
        self("s_add_u32 s64, s64, s65")
        self("s_add_u32 s64, s64, 0x%x" % DIAG)
        self("v_mov_b32 v%d, 0" % (vtmp + 2))
        for i in range(n):
            self("v_mov_b32 v%d, s%d" % (vtmp, ST0 + 2 * i))
            self("v_mov_b32 v%d, s%d" % (vtmp + 1, ST0 + 1 + 2 * i))
            self("buffer_store_dwordx2 v[%d:%d], v%d, s[56:59], s64 offen offset:%d" % (vtmp, vtmp + 1, vtmp + 2, i * 8))
            self.nop(2)
        self("v_mov_b32 v%d, %d" % (vtmp, n))
        self("buffer_store_dword v%d, v%d, s[56:59], s64 offen offset:120" % (vtmp, vtmp + 2))

def allreduce(a, op, v, t):
    for r in (1, 2, 4, 8):
        a.nop(2)
        a("v_%s_f32_dpp v%d, v%d, v%d row_ror:%d row_mask:0xf bank_mask:0xf" % (op, v, v, v, r))
    for sw in ("16", "32"):
        a("v_mov_b32 v%d, v%d" % (t, v))
        a.nop(2)
        a("v_permlane%s_swap_b32 v%d, v%d" % (sw, v, t))
        a("v_%s_f32 v%d, v%d, v%d" % (op, v, v, t))

def xreduce(a, op, regs, tmps):
    for sw in ("16", "32"):
        for r, t in zip(regs, tmps):
            a("v_mov_b32 v%d, v%d" % (t, r))
        a.nop(2 if len(regs) < 3 else 1)
        for r, t in zip(regs, tmps):
            a("v_permlane%s_swap_b32 v%d, v%d" % (sw, r, t))
        for r, t in zip(regs, tmps):
            a("v_%s_f32 v%d, v%d, v%d" % (op, r, r, t))

def bf16_round(a, dst, src, tmp):
    a("v_cvt_pk_bf16_f32 v%d, v%d, v%d" % (tmp, src, src))
    a("v_lshlrev_b32 v%d, 16, v%d" % (dst, tmp))

def layernorm(a, xr, f, t, xp):
    for i in range(4):
        a("v_lshlrev_b32 v%d, 16, v%d" % (f + 2 * i, xr + i))
        a("v_and_b32 v%d, 0xffff0000, v%d" % (f + 2 * i + 1, xr + i))
    a("v_add_f32 v%d, v%d, v%d" % (t, f, f + 1))
    a("v_add_f32 v%d, v%d, v%d" % (t + 1, f + 2, f + 3))
    a("v_add_f32 v%d, v%d, v%d" % (t + 2, f + 4, f + 5))
    a("v_add_f32 v%d, v%d, v%d" % (t + 3, f + 6, f + 7))
    a("v_add_f32 v%d, v%d, v%d" % (t, t, t + 1))
    a("v_add_f32 v%d, v%d, v%d" % (t + 2, t + 2, t + 3))
    a("v_add_f32 v%d, v%d, v%d" % (t, t, t + 2))
    allreduce(a, "add", t, t + 1)
    a("v_mul_f32 v%d, 0x3b000000, v%d" % (t, t))
    a("v_sub_f32 v%d, v%d, v%d" % (t + 2, f, t))
    a("v_mul_f32 v%d, v%d, v%d" % (t + 1, t + 2, t + 2))
    for i in range(1, 8):
        a("v_sub_f32 v%d, v%d, v%d" % (t + 2, f + i, t))
        a("v_fmac_f32 v%d, v%d, v%d" % (t + 1, t + 2, t + 2))
    allreduce(a, "add", t + 1, t + 2)
    a("v_mul_f32 v%d, 0x3b000000, v%d" % (t + 1, t + 1))
    a("v_cvt_pk_bf16_f32 v%d, v%d, v%d" % (t + 2, t, t + 1))
    a("v_lshlrev_b32 v%d, 16, v%d" % (t, t + 2))
    a("v_and_b32 v%d, 0xffff0000, v%d" % (t + 1, t + 2))
    a("v_add_f32 v%d, 0x3727c5ac, v%d" % (t + 1, t + 1))
    bf16_round(a, t + 1, t + 1, t + 2)
    a("v_sqrt_f32 v%d, v%d" % (t + 1, t + 1))
    a.nop(1)
    bf16_round(a, t + 1, t + 1, t + 2)
    a("v_rcp_f32 v%d, v%d" % (t + 2, t + 1))
    for i in range(8):
        a("v_sub_f32 v%d, v%d, v%d" % (f + i, f + i, t))
    for i in range(4):
        a("v_cvt_pk_bf16_f32 v%d, v%d, v%d" % (xp + i, f + 2 * i, f + 2 * i + 1))
    for i in range(4):
        a("v_lshlrev_b32 v%d, 16, v%d" % (f + 2 * i, xp + i))
        a("v_and_b32 v%d, 0xffff0000, v%d" % (f + 2 * i + 1, xp + i))
    for i in range(8):
        a("v_mul_f32 v%d, v%d, v%d" % (t + 3, f + i, t + 2))
        a("v_fma_f32 v%d, -v%d, v%d, v%d" % (t + 4, t + 3, t + 1, f + i))
        a("v_fma_f32 v%d, v%d, v%d, v%d" % (f + i, t + 4, t + 2, t + 3))
    for i in range(4):
        a("v_cvt_pk_bf16_f32 v%d, v%d, v%d" % (xp + i, f + 2 * i, f + 2 * i + 1))

def srd(a, d, base, nbytes):
    a("s_mov_b32 s%d, s%d" % (d, base))
    a("s_mov_b32 s%d, s%d" % (d + 1, base + 1))
    a("s_mov_b32 s%d, 0x%x" % (d + 2, nbytes))
    a("s_mov_b32 s%d, 0x20000" % (d + 3))

def after_kernarg(a):
    a("s_waitcnt lgkmcnt(0)")
    a("s_load_dwordx2 s[40:41], s[38:39], 0")
    srd(a, 56, 38, 0x20000000)

def tag_and_barrier(a):
    a("s_waitcnt lgkmcnt(0)")
    a("s_add_u32 s40, s40, 16")
    a("s_add_u32 s41, s41, 0x9e3779b9")
    a("s_barrier")

def lds_wait_ge(a, vfl, vtmp, off, thr, sleep=1):
    name = a.newlabel("L_w")
    a("s_mov_b32 s64, SPIN")
    a.label(name)
    a("ds_read_b32 v%d, v%d offset:%d" % (vtmp, vfl, off))
    a("s_waitcnt lgkmcnt(0)")
    a("v_cmp_gt_u32 vcc, %d, v%d" % (thr, vtmp) if thr <= 64 else "v_cmp_gt_u32 vcc, 0x%x, v%d" % (thr, vtmp))
    a("s_cbranch_vccz %s_ok" % name)
    if sleep: a("s_sleep %d" % sleep)
    a("s_sub_u32 s64, s64, 1")
    a("s_cbranch_scc1 L_end")
    a("s_branch %s" % name)
    a.label(name + "_ok")

def tagcheck(a, regs, tag="s[40:41]"):
    a("v_cmp_ne_u64 vcc, %s, v[%d:%d]" % (tag, regs[0] + 2, regs[0] + 3))
    for r in regs[1:]:
        a("v_cmp_ne_u64 s[60:61], %s, v[%d:%d]" % (tag, r + 2, r + 3))
        a("s_or_b64 vcc, vcc, s[60:61]")

def gen(diag=False, W=20, forceslow=False):
    a = Asm(diag)
    out = []
    out.append(HEADER.rstrip("\n"))
    out.append("; @launch grid=(256,1,1) block=(512,1,1) lds=%d" % LDS_BYTES)
    out.append('.amdgcn_target "amdgcn-amd-amdhsa--gfx950"')
    out.append(".set SPIN, 0x40000")
    out.append(".text")
    out.append(".globl %s_kernel" % NAME)
    out.append(".p2align 8")
    out.append(".type %s_kernel,@function" % NAME)
    out.append("%s_kernel:" % NAME)

    a("""
    s_cmp_ge_u32 s2, 256
    s_cbranch_scc1 L_end
    s_load_dwordx16 s[16:31], s[0:1], 0
    s_load_dwordx8 s[32:39], s[0:1], 64
    v_lshrrev_b32 v1, 6, v0
    v_and_b32 v0, 63, v0
    s_and_b32 s4, s2, 7
    v_readfirstlane_b32 s3, v1
    s_lshr_b32 s5, s2, 3
    v_and_b32 v4, 15, v0
    v_lshrrev_b32 v5, 4, v0
    v_mov_b32 v7, %d
    """ % L_FL)
    a.stamp()
    a("""
    s_cmp_eq_u32 s3, 1
    s_cbranch_scc1 L_q
    s_cmp_eq_u32 s3, 6
    s_cbranch_scc1 L_f
    s_cmp_eq_u32 s3, 7
    s_cbranch_scc1 L_o
    s_cmp_lg_u32 s3, 0
    s_cbranch_scc1 L_att
    """)
    nst0 = a.nstamp

    a("s_setprio 2")
    a("""
    v_lshrrev_b32 v6, 2, v0
    v_and_b32 v8, 3, v0
    v_lshrrev_b32 v9, 5, v0
    v_lshlrev_b32 v2, 1, v9
    v_xor_b32 v8, v8, v2
    v_lshlrev_b32 v8, 4, v8
    v_lshl_or_b32 v10, v6, 13, v8
    s_lshr_b32 s6, s5, 4
    s_lshl_b32 s6, s6, 21
    s_lshl_b32 s7, s4, 10
    s_add_u32 s6, s6, s7
    s_and_b32 s7, s5, 15
    s_lshl_b32 s7, s7, 6
    s_add_u32 s6, s6, s7
    s_mov_b32 s46, 0x400000
    s_mov_b32 s47, 0x20000
    s_mov_b32 m0, %d
    s_waitcnt lgkmcnt(0)
    s_mov_b32 s44, s22
    s_mov_b32 s45, s23
    """ % L_WQ)
    a.stamp()

    def loader_setup2():
        a("v_mul_u32_u24 v11, %d, v6" % 3584)
        a("v_add_u32 v11, v11, v8")
        for b in range(4):
            a("v_add_u32 v2, %d, v5" % (4 * b))
            a("v_xor_b32 v2, v4, v2")
            a("v_lshlrev_b32 v2, 4, v2")
            a("v_lshl_or_b32 v%d, v5, 8, v2" % (12 + b))
        for b in range(2):
            a("v_add_u32 v2, %d, v5" % (4 * b))
            a("v_lshlrev_b32 v2, 1, v2")
            a("v_xor_b32 v2, v4, v2")
            a("v_lshlrev_b32 v2, 4, v2")
            a("v_lshl_or_b32 v%d, v5, 8, v2" % (16 + b))
        a("v_and_b32 v3, 31, v0")
        for b in range(2):
            a("v_add_u32 v2, %d, v9" % (2 * b))
            a("v_lshlrev_b32 v2, 2, v2")
            a("v_xor_b32 v2, v3, v2")
            a("v_lshlrev_b32 v2, 4, v2")
            a("v_lshl_or_b32 v%d, v9, 10, v2" % (18 + b))
        a("v_lshlrev_b32 v2, 2, v5")
        a("v_xor_b32 v2, v4, v2")
        a("v_lshlrev_b32 v2, 4, v2")
        a("v_lshl_or_b32 v20, v5, 10, v2")
        srd(a, 48, 18, 0x8000000)
        srd(a, 52, 20, 0x8000000)
        srd(a, 60, 28, 512 * 1792 * 2)
        srd(a, 64, 30, 512 * 1792 * 2)
        srd(a, 68, 24, 4096 * 512 * 2)
        srd(a, 72, 32, 1792 * 512 * 2)
        srd(a, 56, 38, 0x20000000)
        a("""
        s_lshl_b32 s8, s4, 24
        s_lshl_b32 s7, s5, 15
        s_add_u32 s8, s8, s7
        s_add_u32 s8, s8, 0xf00000
        s_mov_b32 s9, s8
        """)
        a("""
        s_mul_i32 s14, s4, 7
        s_lshr_b32 s7, s5, 2
        s_add_u32 s14, s14, s7
        s_and_b32 s15, s5, 3
        s_mul_i32 s10, s15, %d
        s_lshl_b32 s7, s14, 6
        s_add_u32 s10, s10, s7
        s_mov_b32 s11, s10
        """ % (128 * 3584))
        a("""
        s_lshl_b32 s12, s4, 19
        s_lshr_b32 s7, s5, 1
        s_lshl_b32 s7, s7, 15
        s_add_u32 s12, s12, s7
        s_and_b32 s7, s5, 1
        s_lshl_b32 s7, s7, 9
        s_add_u32 s12, s12, s7
        """)
        a("""
        s_lshl_b32 s13, s14, 15
        s_lshl_b32 s7, s15, 8
        s_add_u32 s13, s13, s7
        """)

    def item(kind, i):
        if kind == "wq":
            pre = [] if i == 0 else ["s_mov_b32 m0, %d" % (L_WQ + i * 1024), "s_add_u32 s6, s6, 0x20000"]
            return pre + ["buffer_load_dwordx4 v10, s[44:47], s6 offen nt lds"]
        if kind in ("K", "V"):
            base = L_K if kind == "K" else L_V
            sr = 8 if kind == "K" else 9
            pre = []
            if i % 4 == 0:
                pre = ["s_mov_b32 m0, %d" % (base + i * 1024), ("s_add_u32 s%d, s%d, 4096" % (sr, sr)) if i else "s_nop 0"]
            vr = 12 + (i % 4) if kind == "K" else 16 + (i % 2)
            return pre + ["buffer_load_dwordx4 v%d, s[%d:%d], s%d offen offset:%d nt lds" % (vr, 48 if kind == "K" else 52, 51 if kind == "K" else 55, sr, (i % 4) * 1024)]
        if kind in ("G", "U"):
            base = L_G if kind == "G" else L_U
            sr = 10 if kind == "G" else 11
            d = 60 if kind == "G" else 64
            pre = ["s_mov_b32 m0, %d" % (base + i * 1024), ("s_add_u32 s%d, s%d, %d" % (sr, sr, 16 * 3584)) if i else "s_nop 0"]
            return pre + ["buffer_load_dwordx4 v11, s[%d:%d], s%d offen nt lds" % (d, d + 3, sr)]
        if kind == "wo":
            pre = ["s_mov_b32 m0, %d" % (L_WO + i * 1024), "s_add_u32 s12, s12, 2048" if i else "s_nop 0"]
            return pre + ["buffer_load_dwordx4 v%d, s[68:71], s12 offen nt lds" % (18 + (i % 2))]
        if kind == "wd":
            pre = ["s_mov_b32 m0, %d" % (L_WD + i * 1024), "s_add_u32 s13, s13, 4096" if i else "s_nop 0"]
            return pre + ["buffer_load_dwordx4 v20, s[72:75], s13 offen nt lds"]

    def stream(full):
        seq = [("wq", i) for i in range(16)] + [("K", i) for i in range(32)] + [("V", i) for i in range(32)]
        if full:
            seq += [("G", i) for i in range(8)] + [("U", i) for i in range(8)]
        seq += [("wo", i) for i in range(16)]
        if full:
            seq += [("wd", i) for i in range(8)]
        prog = {}
        for n, (k, i) in enumerate(seq):
            cnt = n + 1
            if k == "wq" and i in (7, 15): prog[cnt] = i + 1
            if k == "K" and i % 8 == 7: prog[cnt] = 16 + i + 1
            if k == "V" and i % 8 == 7: prog[cnt] = 48 + i + 1
            if k == "U" and i == 7: prog[cnt] = 96
            if k == "wo" and i == 15: prog[cnt] = 112
            if k == "wd" and i == 7: prog[cnt] = 120
        return seq, prog

    for i in range(16):
        for x in item("wq", i): a(x)
    loader_setup2()
    assert W >= 16
    seqF, progF = stream(True)
    for n in range(16, W):
        for x in item(*seqF[n]): a(x)
    a("s_barrier")
    a.stamp()

    def emit_rest(seq, prog):
        N = len(seq)
        def publish(cnt):
            a("v_mov_b32 v2, %d" % prog[cnt])
            a("ds_write_b32 v7, v2 offset:%d" % F_PROG)
            if prog[cnt] in (16, 48, 80, 96, 112, 120): a.stamp()
        for n in range(W, N):
            a("s_waitcnt vmcnt(%d)" % (W - 1))
            lines = item(*seq[n])
            for x in lines: a(x)
            landed = n - W + 1
            if landed in prog: publish(landed)
        for landed in range(N - W + 1, N + 1):
            if landed in prog:
                a("s_waitcnt vmcnt(%d)" % (N - landed))
                publish(landed)
    nst1 = a.nstamp
    a("s_cmp_ge_u32 s5, 28")
    a("s_cbranch_scc1 L_ld_short")
    emit_rest(seqF, progF)
    a.stamp_flush(28, [(0,0,1),(1,0,0),(2,3,0),(3,4,0),(4,5,0),(5,8,0)])
    a("s_endpgm")
    a.label("L_ld_short")
    a.nstamp = nst1
    seqS, progS = stream(False)
    assert seqS[:W] == seqF[:W]
    emit_rest(seqS, progS)
    a.stamp_flush(28, [(0,0,1),(1,0,0),(2,3,0),(3,4,0),(4,5,0),(5,6,0)])
    a("s_endpgm")

    a.nstamp = nst0
    a.label("L_q")
    a("s_setprio 3")
    a("""
    v_lshlrev_b32 v2, 4, v0
    s_mov_b32 s50, 1024
    s_mov_b32 s51, 0x20000
    s_waitcnt lgkmcnt(0)
    s_mov_b32 s48, s16
    s_mov_b32 s49, s17
    buffer_load_dwordx4 v[8:11], v2, s[48:51], 0 offen
    s_load_dwordx2 s[40:41], s[38:39], 0
    s_getreg_b32 s44, hwreg(HW_REG_XCC_ID, 0, 4)
    """)
    srd(a, 56, 38, 0x20000000)
    a("""
    v_add_u32 v12, %d, v2
    s_lshr_b32 s6, s5, 4
    s_lshl_b32 s6, s6, 9
    s_add_u32 s6, s6, %d
    v_lshlrev_b32 v13, 4, v5
    v_add_u32 v13, s6, v13
    v_lshrrev_b32 v3, 2, v4
    v_lshl_add_u32 v3, v5, 3, v3
    v_lshlrev_b32 v3, 6, v3
    v_bfe_u32 v6, v0, 1, 1
    v_and_b32 v14, 1, v5
    v_lshlrev_b32 v14, 1, v14
    v_xor_b32 v6, v6, v14
    v_lshl_or_b32 v3, v6, 4, v3
    v_and_b32 v6, 1, v0
    v_lshl_or_b32 v14, v6, 3, v3
    v_xor_b32 v15, 32, v14
    """ % (L_XN, L_XN))
    a("""
    s_lshl_b32 s14, s4, 13
    s_add_u32 s14, s14, 0x%x
    s_add_u32 s13, s14, 4096
    s_lshl_b32 s15, s5, 8
    s_add_u32 s15, s15, s14
    v_lshl_add_u32 v3, v5, 2, v4
    v_lshlrev_b32 v3, 4, v3
    v_lshlrev_b32 v6, 6, v5
    v_bfe_u32 v16, v0, 1, 1
    v_lshl_or_b32 v6, v16, 5, v6
    v_bfe_u32 v16, v0, 2, 2
    v_lshl_or_b32 v6, v16, 3, v6
    v_and_b32 v16, 1, v0
    v_lshl_or_b32 v6, v16, 2, v6
    v_add_u32 v6, %d, v6
    s_mov_b32 s8, 0xaaaaaaaa
    s_mov_b32 s9, 0xaaaaaaaa
    s_mov_b32 s10, 0xcccccccc
    s_mov_b32 s11, 0xcccccccc
    v_mov_b32 v144, 1
    """ % (INB1, L_Q))
    tag_and_barrier(a)
    a("s_xor_b32 s46, s40, s44")
    a("s_mov_b32 s47, s41")
    if forceslow:
        a("s_mov_b32 s47, 0")
    a("s_waitcnt vmcnt(0)")
    a.stamp()
    layernorm(a, 8, 80, 88, 96)
    a("ds_write_b128 v12, v[96:99]")
    a("ds_write_b32 v7, v144 offset:%d" % F_XN)
    for k in range(8):
        a("ds_read_b128 v[%d:%d], v13 offset:%d" % (100 + 4 * k, 103 + 4 * k, k * 64))
    a.stamp()
    for half in range(2):
        lds_wait_ge(a, 7, 80, F_PROG, 8 * (half + 1), sleep=0)
        for kk in range(4):
            k = half * 4 + kk
            for s in range(2):
                for h in range(2):
                    r = 16 + (kk * 4 + s * 2 + h) * 2 + half * 32
                    a("ds_read_b64_tr_b16 v[%d:%d], v%d offset:%d" % (r, r + 1, 14 + s, k * 2048 + h * 256))
        for kk in range(4):
            k = half * 4 + kk
            a("s_waitcnt lgkmcnt(%d)" % (12 - 4 * kk))
            for s in range(2):
                r = 16 + (kk * 4 + s * 2) * 2 + half * 32
                c_ = "0" if k == 0 else "v[%d:%d]" % (132 + 4 * s, 135 + 4 * s)
                a("v_mfma_f32_16x16x32_bf16 v[%d:%d], v[%d:%d], v[%d:%d], %s" % (132 + 4 * s, 135 + 4 * s, r, r + 3, 100 + 4 * k, 103 + 4 * k, c_))
    a.stamp()
    a("v_mov_b32 v142, s46")
    a("v_mov_b32 v143, s41")
    a.nop(7)
    a("""
    v_cndmask_b32_e64 v80, v132, v134, s[8:9]
    v_cndmask_b32_e64 v81, v133, v135, s[8:9]
    v_cndmask_b32_e64 v82, v136, v138, s[8:9]
    v_cndmask_b32_e64 v83, v137, v139, s[8:9]
    v_cndmask_b32_e64 v140, v80, v82, s[10:11]
    v_cndmask_b32_e64 v141, v81, v83, s[10:11]
    s_mov_b32 exec_lo, 0x000f000f
    s_mov_b32 exec_hi, 0x000f000f
    buffer_store_dwordx4 v[140:143], v3, s[56:59], s15 offen sc1
    s_mov_b64 exec, -1
    """)
    a.stamp()
    def qissue(base):
        for k in range(4):
            a("buffer_load_dwordx4 v[%d:%d], v2, s[56:59], s14 offen offset:%d sc1" % (base + 4 * k, base + 3 + 4 * k, k * 1024))
            a("buffer_load_dwordx4 v[%d:%d], v2, s[56:59], s13 offen offset:%d sc1" % (base + 16 + 4 * k, base + 19 + 4 * k, k * 1024))
    def qcheck(base, lab):
        regs = [base + 4 * k for k in range(8)]
        tagcheck(a, regs, "s[46:47]")
        a("v_mov_b32 v144, 2")
        a("s_cbranch_vccz %s" % lab)
        a("v_mov_b32 v80, 0")
        for r in regs:
            a("v_xor_b32 v81, s40, v%d" % (r + 2))
            a("v_lshrrev_b32 v81, 4, v81")
            a("v_xor_b32 v82, s41, v%d" % (r + 3))
            a("v_or3_b32 v80, v80, v81, v82")
        a("v_cmp_ne_u32 vcc, 0, v80")
        a("v_mov_b32 v144, 1")
        a("s_cbranch_vccz %s" % lab)
    a("s_mov_b32 s64, SPIN")
    qissue(16)
    a("s_sleep 8")
    qissue(48)
    a.label("L_q_poll")
    a("s_waitcnt vmcnt(8)")
    qcheck(16, "L_q_d0")
    qissue(16)
    a("s_waitcnt vmcnt(8)")
    qcheck(48, "L_q_d1")
    qissue(48)
    a("s_sub_u32 s64, s64, 1")
    a("s_cbranch_scc1 L_end")
    a("s_branch L_q_poll")
    for nm, base in (("L_q_d0", 16), ("L_q_d1", 48)):
        a.label(nm)
        for k in range(4):
            a("v_add_f32 v%d, v%d, v%d" % (80 + 2 * k, base + 4 * k, base + 16 + 4 * k))
            a("v_add_f32 v%d, v%d, v%d" % (81 + 2 * k, base + 1 + 4 * k, base + 17 + 4 * k))
        if base == 16: a("s_branch L_q_dd")
    a.label("L_q_dd")
    for k in range(4):
        a("v_cvt_pk_bf16_f32 v%d, v%d, v%d" % (88 + k, 80 + 2 * k, 81 + 2 * k))
    a("ds_write2st64_b32 v6, v88, v89 offset0:0 offset1:1")
    a("ds_write2st64_b32 v6, v90, v91 offset0:2 offset1:3")
    a("ds_write_b32 v7, v144 offset:%d" % F_Q)
    a.stamp()
    a("s_cmp_lt_u32 s5, 24")
    a("s_cbranch_scc1 L_q_done")
    a("""
    s_setprio 1
    s_lshl_b32 s6, s4, 3
    s_add_u32 s6, s6, s5
    s_sub_u32 s6, s6, 24
    s_lshl_b32 s12, s6, 13
    s_add_u32 s12, s12, 0x%x
    s_add_u32 s13, s12, 4096
    s_lshl_b32 s14, s6, 12
    s_add_u32 s14, s14, 0x%x
    s_lshl_b32 s15, s6, 4
    v_and_b32 v3, 3, v0
    v_lshlrev_b32 v3, 2, v3
    v_add_u32 v3, s15, v3
    s_mov_b32 s52, s34
    s_mov_b32 s53, s35
    s_mov_b32 s54, 1024
    s_mov_b32 s55, 0x20000
    s_waitcnt vmcnt(0)
    buffer_load_dword v6, v3, s[48:51], 0 offen
    """ % (INB3S, INB3D))
    lds_wait_ge(a, 7, 80, F_OPUB, 1, sleep=2)
    a("s_setprio 3")
    a.stamp()
    NS = 3
    def fissue(base):
        for k in range(8):
            a("buffer_load_dwordx4 v[%d:%d], v2, s[56:59], s%d offen offset:%d sc1" % (base + 4 * k, base + 3 + 4 * k, 12 + k // 4, (k % 4) * 1024))
        for k in range(4):
            a("buffer_load_dwordx4 v[%d:%d], v2, s[56:59], s14 offen offset:%d sc1" % (base + 32 + 4 * k, base + 35 + 4 * k, k * 1024))
    def fcheck(base, lab):
        a("v_cmp_ne_u64 vcc, s[40:41], v[%d:%d]" % (base + 46, base + 47))
        a("s_mov_b32 vcc_hi, 0")
        for k in range(11):
            a("v_cmp_ne_u64 s[60:61], s[40:41], v[%d:%d]" % (base + 4 * k + 2, base + 4 * k + 3))
            a("s_or_b64 vcc, vcc, s[60:61]")
        a("s_cbranch_vccz %s" % lab)
    bases = [16 + 48 * i for i in range(NS)]
    a("s_mov_b32 s64, SPIN")
    for i, b in enumerate(bases):
        fissue(b)
        if i < NS - 1: a("s_sleep 4")
    a.label("L_f_poll3")
    for i, b in enumerate(bases):
        a("s_waitcnt vmcnt(%d)" % (12 * (NS - 1)))
        fcheck(b, "L_fin_d%d" % i)
        fissue(b)
    a("s_sub_u32 s64, s64, 1")
    a("s_cbranch_scc1 L_end")
    a("s_branch L_f_poll3")
    for i, b in enumerate(bases):
        a.label("L_fin_d%d" % i)
        a("""
        s_mov_b32 exec_lo, 0
        v_mov_b32 v%d, 0
        v_mov_b32 v%d, 0
        s_mov_b32 exec_lo, -1
        """ % (b + 44, b + 45))
        for e in range(2):
            a("v_add_f32 v%d, v%d, v%d" % (160 + e, b + e, b + 4 + e))
            a("v_add_f32 v%d, v%d, v%d" % (164 + e, b + 8 + e, b + 12 + e))
            a("v_add_f32 v%d, v%d, v%d" % (166 + e, b + 16 + e, b + 20 + e))
            a("v_add_f32 v%d, v%d, v%d" % (168 + e, b + 24 + e, b + 28 + e))
            a("v_add_f32 v%d, v%d, v%d" % (162 + e, b + 32 + e, b + 36 + e))
            a("v_add_f32 v%d, v%d, v%d" % (170 + e, b + 40 + e, b + 44 + e))
        if i < NS - 1: a("s_branch L_fin_dd")
    a.label("L_fin_dd")
    a.stamp()
    a("""
    v_add_f32 v160, v160, v164
    v_add_f32 v161, v161, v165
    v_add_f32 v166, v166, v168
    v_add_f32 v167, v167, v169
    v_add_f32 v162, v162, v170
    v_add_f32 v163, v163, v171
    v_add_f32 v160, v160, v166
    v_add_f32 v161, v161, v167
    """)
    for r in (4, 8):
        a.nop(1)
        for v in (162, 163, 160, 161):
            a("v_add_f32_dpp v%d, v%d, v%d row_ror:%d row_mask:0xf bank_mask:0xf" % (v, v, v, r))
    xreduce(a, "add", [160, 161, 162, 163], [164, 165, 166, 167])
    a("""
    v_cvt_pk_bf16_f32 v164, v160, v161
    v_cvt_pk_bf16_f32 v165, v162, v163
    v_lshlrev_b32 v160, 16, v164
    v_and_b32 v161, 0xffff0000, v164
    v_lshlrev_b32 v162, 16, v165
    v_and_b32 v163, 0xffff0000, v165
    v_mul_f32 v164, 0xbfb8aa3b, v162
    v_mul_f32 v165, 0xbfb8aa3b, v163
    v_exp_f32 v164, v164
    v_exp_f32 v165, v165
    s_nop 0
    v_add_f32 v164, 1.0, v164
    v_add_f32 v165, 1.0, v165
    v_rcp_f32 v166, v164
    v_rcp_f32 v167, v165
    s_nop 0
    v_mul_f32 v168, v162, v166
    v_mul_f32 v169, v163, v167
    v_fma_f32 v170, -v168, v164, v162
    v_fma_f32 v171, -v169, v165, v163
    v_fma_f32 v170, v170, v166, v168
    v_fma_f32 v171, v171, v167, v169
    v_cmp_class_f32 vcc, v170, 3
    v_cmp_class_f32 s[60:61], v171, 3
    s_nop 1
    v_cndmask_b32 v170, v170, v168, vcc
    v_cndmask_b32_e64 v171, v171, v169, s[60:61]
    v_cvt_pk_bf16_f32 v164, v170, v171
    v_lshlrev_b32 v170, 16, v164
    v_and_b32 v171, 0xffff0000, v164
    v_mul_f32 v170, v160, v170
    v_mul_f32 v171, v161, v171
    v_cvt_pk_bf16_f32 v164, v170, v171
    v_lshlrev_b32 v170, 16, v164
    v_and_b32 v171, 0xffff0000, v164
    v_lshlrev_b32 v164, 16, v6
    v_and_b32 v165, 0xffff0000, v6
    v_add_f32 v170, v164, v170
    v_add_f32 v171, v165, v171
    v_cvt_pk_bf16_f32 v164, v170, v171
    s_mov_b64 exec, 15
    buffer_store_dword v164, v3, s[52:55], 0 offen
    """)
    a.stamp_flush(172, [(13,7,0)])
    a("""
    s_cmp_lg_u32 s2, 192
    s_cbranch_scc1 L_q_done
    s_mov_b64 exec, 1
    v_mov_b32 v166, s40
    v_mov_b32 v167, s41
    v_mov_b32 v168, 0
    buffer_store_dwordx2 v[166:167], v168, s[56:59], 0 offen
    """)
    a.label("L_q_done")
    a.stamp()
    a.stamp_flush(172, [(6,1,0),(7,4,0),(8,5,0),(14,8,0)])
    a("s_endpgm")

    a.nstamp = nst0
    a.label("L_att")
    a("s_sub_u32 s62, s3, 2")
    a("""
    s_cmp_lg_u32 s62, 0
    s_cbranch_scc1 L_att_nz
    v_lshlrev_b32 v2, 4, v0
    v_add_u32 v2, %d, v2
    v_mov_b32 v8, 0
    v_mov_b32 v9, 0
    v_mov_b32 v10, 0
    v_mov_b32 v11, 0
    ds_write_b128 v2, v[8:11]
    ds_write_b128 v2, v[8:11] offset:1024
    v_lshlrev_b32 v2, 3, v0
    v_add_u32 v2, %d, v2
    ds_write_b64 v2, v[8:9]
    """ % (L_Z, L_Z + 2048))
    a.label("L_att_nz")
    a("""
    s_lshl_b32 s6, s62, 13
    s_add_u32 s6, s6, %d
    v_lshlrev_b32 v2, 8, v4
    v_add_u32 v2, s6, v2
    """ % L_K)
    for kk in range(4):
        a("v_add_u32 v3, %d, v5" % (4 * kk))
        a("v_xor_b32 v3, v3, v4")
        a("v_lshl_add_u32 v%d, v3, 4, v2" % (8 + kk))
    a("""
    v_lshrrev_b32 v3, 2, v4
    v_lshlrev_b32 v6, 8, v3
    v_lshl_or_b32 v6, v5, 4, v6
    v_add_u32 v6, %d, v6
    v_lshl_add_u32 v2, v5, 2, v3
    v_lshlrev_b32 v2, 8, v2
    v_add_u32 v2, %d, v2
    v_and_b32 v12, 1, v0
    v_lshl_add_u32 v2, v12, 3, v2
    v_and_b32 v12, 1, v5
    v_lshl_add_u32 v12, v12, 2, v3
    v_lshlrev_b32 v12, 1, v12
    v_bfe_u32 v13, v0, 1, 1
    s_lshl_b32 s6, s62, 2
    v_add_u32 v13, s6, v13
    v_xor_b32 v12, v12, v13
    v_lshl_add_u32 v12, v12, 4, v2
    v_xor_b32 v13, 32, v12
    """ % (L_Q, L_V))
    a("""
    v_lshlrev_b32 v15, 4, v0
    v_add_u32 v15, %d, v15
    s_lshl_b32 s6, s62, 10
    v_add_u32 v14, s6, v15
    v_lshlrev_b32 v17, 4, v3
    v_add_u32 v17, %d, v17
    s_lshl_b32 s6, s62, 6
    v_add_u32 v16, s6, v17
    """ % (L_P, L_ST))
    a("""
    s_lshl_b32 s6, s4, 17
    s_lshl_b32 s7, s62, 13
    s_add_u32 s6, s6, s7
    s_lshl_b32 s7, s5, 8
    s_add_u32 s6, s6, s7
    s_add_u32 s12, s6, 0x%x
    v_lshlrev_b32 v18, 15, v3
    v_lshl_or_b32 v18, v5, 6, v18
    v_and_b32 v2, 3, v0
    v_lshl_or_b32 v18, v2, 4, v18
    s_lshl_b32 s6, s4, 11
    s_lshl_b32 s7, s5, 4
    s_add_u32 s6, s6, s7
    s_add_u32 s13, s6, 0x%x
    v_lshlrev_b32 v19, 9, v3
    s_mov_b32 s8, 0xaaaaaaaa
    s_mov_b32 s9, 0xaaaaaaaa
    s_mov_b32 s10, 0xcccccccc
    s_mov_b32 s11, 0xcccccccc
    s_mov_b32 s14, 0x%x
    s_mov_b32 s15, 0x%x
    s_lshl_b32 s63, s62, 3
    s_add_u32 s63, s63, 24
    """ % (INB2, INBS, SCALE, LOG2E))
    after_kernarg(a)
    tag_and_barrier(a)
    a.stamp()
    a("s_mov_b32 s64, SPIN")
    a.label("L_att_kw")
    a("""
    ds_read_b32 v20, v7 offset:%d
    s_waitcnt lgkmcnt(0)
    v_cmp_gt_u32 vcc, s63, v20
    s_cbranch_vccz L_att_kok
    s_sleep 2
    s_sub_u32 s64, s64, 1
    s_cbranch_scc1 L_end
    s_branch L_att_kw
    """ % F_PROG)
    a.label("L_att_kok")
    for tau in range(2):
        for kk in range(4):
            r = 32 + (tau * 4 + kk) * 4
            a("ds_read_b128 v[%d:%d], v%d offset:%d" % (r, r + 3, 8 + kk, tau * 4096))
    a.stamp()
    a("s_mov_b32 s64, SPIN")
    a.label("L_att_qw")
    a("ds_read_b32 v20, v7 offset:%d" % F_Q)
    for kk in range(4):
        a("ds_read_b128 v[%d:%d], v6 offset:%d" % (64 + 4 * kk, 67 + 4 * kk, kk * 64))
    a("""
    s_waitcnt lgkmcnt(0)
    v_cmp_eq_u32 vcc, 0, v20
    s_cbranch_vccz L_att_qok
    s_sleep 1
    s_sub_u32 s64, s64, 1
    s_cbranch_scc1 L_end
    s_branch L_att_qw
    """)
    a.label("L_att_qok")
    a.stamp()
    a("s_setprio 3")
    a("v_readfirstlane_b32 s45, v20")
    for kk in range(4):
        for tau in range(2):
            r = 32 + (tau * 4 + kk) * 4
            c_ = "0" if kk == 0 else "v[%d:%d]" % (80 + 4 * tau, 83 + 4 * tau)
            a("v_mfma_f32_16x16x32_bf16 v[%d:%d], v[%d:%d], v[%d:%d], %s" % (80 + 4 * tau, 83 + 4 * tau, r, r + 3, 64 + 4 * kk, 67 + 4 * kk, c_))
    a.nop(8)
    for rnd in range(2):
        for i in range(4):
            a("v_cvt_pk_bf16_f32 v%d, v%d, v%d" % (88 + i, 80 + 2 * i, 81 + 2 * i))
        for i in range(4):
            a("v_lshlrev_b32 v%d, 16, v%d" % (80 + 2 * i, 88 + i))
            a("v_and_b32 v%d, 0xffff0000, v%d" % (81 + 2 * i, 88 + i))
        if rnd == 0:
            for i in range(8):
                a("v_mul_f32 v%d, s14, v%d" % (80 + i, 80 + i))
    a("""
    v_max3_f32 v92, v80, v81, v82
    v_max3_f32 v93, v83, v84, v85
    v_max3_f32 v92, v92, v86, v87
    v_max_f32 v92, v92, v93
    """)
    xreduce(a, "max", [92], [93])
    a("v_mul_f32 v92, s15, v92")
    for i in range(8):
        a("v_fma_f32 v%d, v%d, s15, -v92" % (80 + i, 80 + i))
    for i in range(8):
        a("v_exp_f32 v%d, v%d" % (80 + i, 80 + i))
    a.nop(1)
    for i in range(4):
        a("v_cvt_pk_bf16_f32 v%d, v%d, v%d" % (88 + i, 80 + 2 * i, 81 + 2 * i))
    a("ds_write_b128 v14, v[88:91]")
    a("""
    v_add_f32 v93, v80, v81
    v_add_f32 v94, v82, v83
    v_add_f32 v95, v84, v85
    v_add_f32 v96, v86, v87
    v_add_f32 v93, v93, v94
    v_add_f32 v95, v95, v96
    v_add_f32 v93, v93, v95
    """)
    xreduce(a, "add", [93], [96])
    a("""
    v_mov_b32 v94, 1
    v_mov_b32 v95, 1
    s_mov_b64 exec, 0x1111
    ds_write_b128 v16, v[92:95]
    s_mov_b64 exec, -1
    """)
    a.stamp()
    a("s_mov_b32 s64, SPIN")
    a.label("L_att_pw")
    a("s_sub_u32 s64, s64, 1")
    a("s_cbranch_scc1 L_end")
    for w in range(4):
        a("ds_read_b128 v[%d:%d], v17 offset:%d" % (32 + 4 * w, 35 + 4 * w, 64 * w))
    for w in range(4):
        a("ds_read_b128 v[%d:%d], v15 offset:%d" % (48 + 4 * w, 51 + 4 * w, 1024 * w))
    a("""
    s_waitcnt lgkmcnt(0)
    v_min_u32 v64, v34, v38
    v_min3_u32 v64, v64, v42, v46
    v_cmp_eq_u32 vcc, 0, v64
    s_cbranch_vccnz L_att_pw
    """)
    a.stamp()
    a("""
    v_max3_f32 v64, v32, v36, v40
    v_max_f32 v64, v64, v44
    """)
    for w in range(4):
        a("v_sub_f32 v%d, v%d, v64" % (68 + w, 32 + 4 * w))
    for w in range(4):
        a("v_exp_f32 v%d, v%d" % (68 + w, 68 + w))
    a.nop(1)
    a("v_mul_f32 v65, v68, v33")
    for w in range(1, 4):
        a("v_fmac_f32 v65, v%d, v%d" % (68 + w, 33 + 4 * w))
    a("""
    v_mov_b32 v66, s40
    v_mov_b32 v67, s41
    v_mov_b32 v74, s40
    v_mov_b32 v75, s41
    s_cmp_lg_u32 s62, 0
    s_cbranch_scc1 L_att_nost
    s_mov_b64 exec, 0x1111
    s_cmp_eq_u32 s45, 2
    s_cbranch_scc1 L_att_stf
    buffer_store_dwordx4 v[64:67], v19, s[56:59], s13 offen sc1
    s_branch L_att_st2
    """)
    a.label("L_att_stf")
    a("buffer_store_dwordx4 v[64:67], v19, s[56:59], s13 offen")
    a.label("L_att_st2")
    a("s_mov_b64 exec, -1")
    a.label("L_att_nost")
    for chi in range(4):
        lds_wait_ge(a, 7, 76, F_PROG, 56 + 8 * chi, sleep=1 if chi < 3 else 0)
        if chi == 3: a.stamp()
        for t in range(2):
            for h in range(2):
                r = 96 + t * 4 + h * 2
                a("ds_read_b64_tr_b16 v[%d:%d], v%d offset:%d" % (r, r + 1, 12 + t, chi * 8192 + h * 4096))
        for t in range(2):
            a("s_waitcnt lgkmcnt(%d)" % (2 - 2 * t))
            a("v_mfma_f32_16x16x32_bf16 v[%d:%d], v[%d:%d], v[%d:%d], 0" % (104 + 4 * t, 107 + 4 * t, 96 + 4 * t, 99 + 4 * t, 48 + 4 * chi, 51 + 4 * chi))
        a.nop(8)
        a("""
        v_cndmask_b32_e64 v112, v104, v106, s[8:9]
        v_cndmask_b32_e64 v113, v105, v107, s[8:9]
        v_cndmask_b32_e64 v114, v108, v110, s[8:9]
        v_cndmask_b32_e64 v115, v109, v111, s[8:9]
        v_cndmask_b32_e64 v112, v112, v114, s[10:11]
        v_cndmask_b32_e64 v113, v113, v115, s[10:11]
        """)
        if chi == 0:
            a("v_mul_f32 v72, v68, v112")
            a("v_mul_f32 v73, v68, v113")
        else:
            a("v_fmac_f32 v72, v%d, v112" % (68 + chi))
            a("v_fmac_f32 v73, v%d, v113" % (68 + chi))
    a("""
    s_cmp_eq_u32 s45, 2
    s_cbranch_scc1 L_att_of
    buffer_store_dwordx4 v[72:75], v18, s[56:59], s12 offen sc1
    s_branch L_att_o2
    """)
    a.label("L_att_of")
    a("buffer_store_dwordx4 v[72:75], v18, s[56:59], s12 offen")
    a.label("L_att_o2")
    a.stamp()
    a.stamp_flush(28, [(9,7,0)])
    a("s_endpgm")

    a.nstamp = nst0
    a.label("L_o")
    a("""
    s_lshl_b32 s10, s4, 11
    s_lshr_b32 s6, s5, 3
    s_lshl_b32 s6, s6, 9
    s_add_u32 s10, s10, s6
    s_add_u32 s10, s10, 0x%x
    v_lshlrev_b32 v8, 4, v5
    s_lshl_b32 s6, s4, 4
    s_lshr_b32 s7, s5, 1
    s_add_u32 s6, s6, s7
    s_lshl_b32 s11, s6, 13
    s_add_u32 s11, s11, 0x%x
    s_add_u32 s12, s11, 4096
    v_lshlrev_b32 v2, 4, v0
    v_bfe_u32 v3, v0, 1, 1
    v_lshlrev_b32 v9, 5, v3
    v_bfe_u32 v3, v0, 2, 2
    v_lshl_or_b32 v9, v3, 3, v9
    v_and_b32 v6, 1, v0
    v_lshl_or_b32 v9, v6, 2, v9
    v_add_u32 v9, %d, v9
    v_lshrrev_b32 v10, 1, v4
    v_lshlrev_b32 v10, 6, v10
    v_lshl_or_b32 v10, v5, 4, v10
    v_add_u32 v10, %d, v10
    v_lshl_add_u32 v6, v5, 3, v3
    v_lshlrev_b32 v6, 9, v6
    v_add_u32 v6, %d, v6
    v_and_b32 v11, 3, v0
    """ % (INBS, INB2, L_OW + 7 * 64, L_OW, L_WO))
    for aa in range(4):
        a("v_xor_b32 v16, %d, v3" % aa)
        a("v_lshl_or_b32 v16, v16, 2, v11")
        a("v_lshl_add_u32 v%d, v16, 4, v6" % (12 + aa))
    a("""
    s_lshl_b32 s6, s6, 6
    s_and_b32 s7, s5, 1
    s_lshl_b32 s7, s7, 18
    s_add_u32 s6, s6, s7
    s_add_u32 s14, s6, 0x%x
    s_add_u32 s15, s14, 0x20000
    v_lshl_add_u32 v6, v3, 2, v5
    v_lshlrev_b32 v6, 13, v6
    v_lshl_or_b32 v6, v11, 4, v6
    s_mov_b32 s8, 0xaaaaaaaa
    s_mov_b32 s9, 0xaaaaaaaa
    v_mov_b32 v11, 1
    """ % INB3S)
    after_kernarg(a)
    tag_and_barrier(a)
    a.stamp()
    lds_wait_ge(a, 7, 16, F_Q, 1, sleep=4)
    a("s_mov_b32 s64, SPIN")
    a.label("L_o_sp")
    a("s_sub_u32 s64, s64, 1")
    a("s_cbranch_scc1 L_end")
    for k in range(8):
        a("buffer_load_dwordx4 v[%d:%d], v8, s[56:59], s10 offen offset:%d sc1" % (16 + 4 * k, 19 + 4 * k, k * 64))
    a("s_waitcnt vmcnt(0)")
    tagcheck(a, [16 + 4 * k for k in range(8)])
    a("s_cbranch_vccnz L_o_sp")
    a.stamp()
    def oissue(base):
        for k in range(8):
            a("buffer_load_dwordx4 v[%d:%d], v2, s[56:59], s%d offen offset:%d sc1" % (base + 4 * k, base + 3 + 4 * k, 11 + k // 4, (k % 4) * 1024))
    oissue(128)
    a("""
    v_max3_f32 v56, v16, v20, v24
    v_max3_f32 v57, v28, v32, v36
    v_max3_f32 v56, v56, v40, v44
    v_max_f32 v56, v56, v57
    """)
    xreduce(a, "max", [56], [57])
    for k in range(8):
        a("v_sub_f32 v%d, v%d, v56" % (48 + k, 16 + 4 * k))
    for k in range(8):
        a("v_exp_f32 v%d, v%d" % (48 + k, 48 + k))
    a.nop(1)
    a("v_mul_f32 v57, v48, v17")
    for k in range(1, 8):
        a("v_fmac_f32 v57, v%d, v%d" % (48 + k, 17 + 4 * k))
    xreduce(a, "add", [57], [58])
    a("v_rcp_f32 v58, v57")
    a("s_mov_b32 s65, 0")
    a("s_setprio 3")
    oissue(160)
    def wo_pre():
        for al in range(2):
            for t in range(8):
                for h in range(2):
                    r = 64 + ((al * 8 + t) * 2 + h) * 2
                    a("ds_read_b64_tr_b16 v[%d:%d], v%d offset:%d" % (r, r + 1, 12 + (t >> 1), al * 256 + (t & 1) * 8 + h * 2048))
    def opp(lab):
        a("s_cmp_lg_u32 s65, 0")
        a("s_cbranch_scc1 %s" % lab)
        a("ds_read_b32 v59, v7 offset:%d" % F_PROG)
        a("s_waitcnt lgkmcnt(0)")
        a("v_cmp_gt_u32 vcc, 0x70, v59")
        a("s_cbranch_vccnz %s" % lab)
        wo_pre()
        a("s_mov_b32 s65, 1")
        a.label(lab)
    a("s_mov_b32 s64, SPIN")
    a.label("L_o_poll")
    opp("L_o_np")
    a("s_waitcnt vmcnt(8)")
    tagcheck(a, [128 + 4 * k for k in range(8)])
    a("s_cbranch_vccz L_o_d0")
    oissue(128)
    a("s_waitcnt vmcnt(8)")
    tagcheck(a, [160 + 4 * k for k in range(8)])
    a("s_cbranch_vccz L_o_d1")
    oissue(160)
    a("s_sub_u32 s64, s64, 1")
    a("s_cbranch_scc1 L_end")
    a("s_branch L_o_poll")
    for nm, base in (("L_o_d0", 128), ("L_o_d1", 160)):
        a.label(nm)
        a("v_mul_f32 v60, v48, v%d" % base)
        a("v_mul_f32 v61, v48, v%d" % (base + 1))
        a("v_mul_f32 v62, v49, v%d" % (base + 4))
        a("v_mul_f32 v63, v49, v%d" % (base + 5))
        for k in range(2, 8):
            a("v_fmac_f32 v%d, v%d, v%d" % (60 + 2 * (k & 1), 48 + k, base + 4 * k))
            a("v_fmac_f32 v%d, v%d, v%d" % (61 + 2 * (k & 1), 48 + k, base + 4 * k + 1))
        if base == 128: a("s_branch L_o_dd")
    a.label("L_o_dd")
    a.stamp()
    a("v_add_f32 v60, v60, v62")
    a("v_add_f32 v61, v61, v63")
    xreduce(a, "add", [60, 61], [62, 63])
    for r in (60, 61):
        a("v_mul_f32 v62, v%d, v58" % r)
        a("v_fma_f32 v63, -v62, v57, v%d" % r)
        a("v_fma_f32 v%d, v63, v58, v62" % r)
    a("v_cvt_pk_bf16_f32 v60, v60, v61")
    a("ds_write_b32 v9, v60")
    for t in range(8):
        a("ds_read_b128 v[%d:%d], v10 offset:%d" % (16 + 4 * t, 19 + 4 * t, (7 - t) * 64))
    a("s_cmp_lg_u32 s65, 0")
    a("s_cbranch_scc1 L_o_have")
    lds_wait_ge(a, 7, 59, F_PROG, 112, sleep=0)
    wo_pre()
    a.label("L_o_have")
    a("""
    v_mov_b32 v194, s40
    v_mov_b32 v195, s41
    v_mov_b32 v198, s40
    v_mov_b32 v199, s41
    s_waitcnt lgkmcnt(0)
    """)
    a.stamp()
    for t in range(8):
        for al in range(2):
            r = 64 + (al * 8 + t) * 4
            c_ = "0" if t == 0 else "v[%d:%d]" % (48 + 4 * al, 51 + 4 * al)
            a("v_mfma_f32_16x16x32_bf16 v[%d:%d], v[%d:%d], v[%d:%d], %s" % (48 + 4 * al, 51 + 4 * al, r, r + 3, 16 + 4 * t, 19 + 4 * t, c_))
    a.nop(7)
    a("""
    v_cndmask_b32_e64 v192, v48, v50, s[8:9]
    v_cndmask_b32_e64 v193, v49, v51, s[8:9]
    v_cndmask_b32_e64 v196, v52, v54, s[8:9]
    v_cndmask_b32_e64 v197, v53, v55, s[8:9]
    buffer_store_dwordx4 v[192:195], v6, s[56:59], s14 offen sc1
    buffer_store_dwordx4 v[196:199], v6, s[56:59], s15 offen sc1
    ds_write_b32 v7, v11 offset:%d
    """ % F_OPUB)
    a.stamp()
    a.stamp_flush(28, [(10,3,0),(11,5,0)])
    a("s_endpgm")

    a.nstamp = nst0
    a.label("L_f")
    a("""
    s_cmp_ge_u32 s5, 28
    s_cbranch_scc1 L_end
    s_mul_i32 s14, s4, 7
    s_lshr_b32 s7, s5, 2
    s_add_u32 s14, s14, s7
    s_and_b32 s15, s5, 3
    """)
    a("""
    s_lshl_b32 s6, s15, 8
    s_add_u32 s6, s6, %d
    v_lshlrev_b32 v13, 4, v5
    v_add_u32 v13, s6, v13
    v_lshrrev_b32 v3, 2, v4
    v_lshl_add_u32 v2, v5, 3, v3
    v_lshlrev_b32 v12, 6, v2
    v_bfe_u32 v6, v0, 1, 1
    v_and_b32 v14, 1, v5
    v_lshlrev_b32 v14, 1, v14
    v_xor_b32 v6, v6, v14
    v_lshl_or_b32 v12, v6, 4, v12
    v_and_b32 v6, 1, v0
    v_lshl_or_b32 v12, v6, 3, v12
    v_add_u32 v14, %d, v12
    v_xor_b32 v15, 32, v14
    """ % (L_XN, L_G))
    a("""
    v_lshlrev_b32 v2, 8, v2
    v_add_u32 v2, %d, v2
    v_and_b32 v12, 3, v0
    """ % L_WD)
    for aa in range(4):
        a("v_xor_b32 v16, %d, v3" % aa)
        a("v_lshl_or_b32 v16, v16, 2, v12")
        a("v_lshl_add_u32 v%d, v16, 4, v2" % (8 + aa))
    a("""
    s_lshl_b32 s11, s14, 11
    s_add_u32 s11, s11, 0x%x
    s_lshl_b32 s6, s15, 8
    s_add_u32 s10, s11, s6
    v_bfe_u32 v16, v0, 2, 1
    v_lshlrev_b32 v16, 10, v16
    v_lshl_or_b32 v16, v5, 6, v16
    v_lshl_or_b32 v16, v12, 4, v16
    v_lshlrev_b32 v2, 4, v0
    v_bfe_u32 v6, v0, 1, 1
    v_lshlrev_b32 v17, 5, v6
    v_lshl_or_b32 v17, v3, 3, v17
    v_and_b32 v6, 1, v0
    v_lshl_or_b32 v17, v6, 2, v17
    v_add_u32 v17, %d, v17
    v_lshrrev_b32 v18, 1, v4
    v_lshlrev_b32 v18, 6, v18
    v_lshl_or_b32 v18, v5, 4, v18
    v_add_u32 v18, %d, v18
    s_lshl_b32 s12, s15, 16
    s_lshl_b32 s6, s14, 6
    s_add_u32 s12, s12, s6
    s_add_u32 s12, s12, 0x%x
    v_lshl_add_u32 v19, v3, 2, v5
    v_lshlrev_b32 v19, 12, v19
    v_lshl_or_b32 v19, v12, 4, v19
    s_mov_b32 s8, 0xaaaaaaaa
    s_mov_b32 s9, 0xaaaaaaaa
    v_bfe_u32 v6, v0, 1, 2
    """ % (INB4, L_HW + 7 * 64, L_HW, INB3D))
    after_kernarg(a)
    tag_and_barrier(a)
    a.stamp()
    lds_wait_ge(a, 7, 20, F_XN, 1, sleep=4)
    for k in range(4):
        a("ds_read_b128 v[%d:%d], v13 offset:%d" % (20 + 4 * k, 23 + 4 * k, k * 64))
    a("v_mov_b32 v36, 0")
    a("s_waitcnt lgkmcnt(0)")
    for u in range(4):
        a("v_cmp_eq_u32 vcc, %d, v6" % u)
        a.nop(2)
        for k in range(4):
            for i in range(4):
                a("v_cndmask_b32 v%d, v36, v%d, vcc" % (128 + (u * 4 + k) * 4 + i, 20 + 4 * k + i))
    a("""
    v_mov_b32 v42, s40
    v_mov_b32 v43, s41
    """)
    lds_wait_ge(a, 7, 20, F_Q, 1, sleep=4)
    a("v_readfirstlane_b32 s45, v20")
    lds_wait_ge(a, 7, 20, F_PROG, 96, sleep=1)
    a.stamp()
    a("s_setprio 3")
    for u in range(4):
        for k in range(4):
            for h in range(2):
                r = 64 + ((u * 4 + k) * 2 + h) * 2
                a("ds_read_b64_tr_b16 v[%d:%d], v%d offset:%d" % (r, r + 1, 14 + (u & 1), (u >> 1) * 8192 + k * 2048 + h * 256))
        if u >= 1:
            a("s_waitcnt lgkmcnt(8)")
            for k in range(4):
                n = (u - 1) * 4 + k
                c_ = "0" if n == 0 else "v[36:39]"
                a("v_mfma_f32_16x16x32_bf16 v[36:39], v[%d:%d], v[%d:%d], %s" % (64 + n * 4, 67 + n * 4, 128 + n * 4, 131 + n * 4, c_))
    a("s_waitcnt lgkmcnt(0)")
    for k in range(4):
        n = 12 + k
        a("v_mfma_f32_16x16x32_bf16 v[36:39], v[%d:%d], v[%d:%d], v[36:39]" % (64 + n * 4, 67 + n * 4, 128 + n * 4, 131 + n * 4))
    a.nop(8)
    a("""
    v_cndmask_b32_e64 v40, v36, v38, s[8:9]
    v_cndmask_b32_e64 v41, v37, v39, s[8:9]
    s_mov_b32 exec_lo, 0x00ff00ff
    s_mov_b32 exec_hi, 0x00ff00ff
    s_cmp_eq_u32 s45, 2
    s_cbranch_scc1 L_f_pf
    buffer_store_dwordx4 v[40:43], v16, s[56:59], s10 offen sc1
    s_branch L_f_p2
    """)
    a.label("L_f_pf")
    a("buffer_store_dwordx4 v[40:43], v16, s[56:59], s10 offen")
    a.label("L_f_p2")
    a("s_mov_b64 exec, -1")
    a.stamp()
    a("s_mov_b32 s65, 0")
    def wd_pre():
        for t in range(8):
            for h in range(2):
                r = 64 + (t * 2 + h) * 2
                a("ds_read_b64_tr_b16 v[%d:%d], v%d offset:%d" % (r, r + 1, 8 + (t >> 1), (t & 1) * 8 + h * 1024))
    def gissue(base):
        a("buffer_load_dwordx4 v[%d:%d], v2, s[56:59], s11 offen sc1" % (base, base + 3))
        a("buffer_load_dwordx4 v[%d:%d], v2, s[56:59], s11 offen offset:1024 sc1" % (base + 4, base + 7))
    gissue(20)
    a("s_sleep 4")
    gissue(28)
    a("s_mov_b32 s64, SPIN")
    a.label("L_f_poll")
    a("""
    s_cmp_lg_u32 s65, 0
    s_cbranch_scc1 L_f_np
    ds_read_b32 v44, v7 offset:%d
    s_waitcnt lgkmcnt(0)
    v_cmp_gt_u32 vcc, 0x78, v44
    s_cbranch_vccnz L_f_np
    """ % F_PROG)
    wd_pre()
    a("s_mov_b32 s65, 1")
    a.label("L_f_np")
    a("s_waitcnt vmcnt(2)")
    tagcheck(a, [20, 24])
    a("s_cbranch_vccz L_f_d0")
    gissue(20)
    a("s_waitcnt vmcnt(2)")
    tagcheck(a, [28, 32])
    a("s_cbranch_vccz L_f_d1")
    gissue(28)
    a("s_sub_u32 s64, s64, 1")
    a("s_cbranch_scc1 L_end")
    a("s_branch L_f_poll")
    for nm, base in (("L_f_d0", 20), ("L_f_d1", 28)):
        a.label(nm)
        a("v_mov_b32 v44, v%d" % base)
        a("v_mov_b32 v45, v%d" % (base + 1))
        a("v_mov_b32 v46, v%d" % (base + 4))
        a("v_mov_b32 v47, v%d" % (base + 5))
        if base == 20: a("s_branch L_f_dd")
    a.label("L_f_dd")
    a.stamp()
    xreduce(a, "add", [44, 45, 46, 47], [48, 49, 50, 51])
    a("""
    s_mov_b32 s16, 0x3d372713
    s_mov_b32 s17, 0xc0135761
    v_cvt_pk_bf16_f32 v48, v44, v45
    v_cvt_pk_bf16_f32 v49, v46, v47
    v_lshlrev_b32 v44, 16, v48
    v_and_b32 v45, 0xffff0000, v48
    v_lshlrev_b32 v46, 16, v49
    v_and_b32 v47, 0xffff0000, v49
    v_mul_f32 v48, v44, v44
    v_mul_f32 v49, v45, v45
    v_mul_f32 v48, v48, v44
    v_mul_f32 v49, v49, v45
    v_fma_f32 v48, v48, s16, v44
    v_fma_f32 v49, v49, s16, v45
    v_mul_f32 v48, s17, v48
    v_mul_f32 v49, s17, v49
    v_exp_f32 v48, v48
    v_exp_f32 v49, v49
    s_nop 0
    v_add_f32 v48, 1.0, v48
    v_add_f32 v49, 1.0, v49
    v_rcp_f32 v48, v48
    v_rcp_f32 v49, v49
    s_nop 0
    v_mul_f32 v44, v44, v48
    v_mul_f32 v45, v45, v49
    v_cvt_pk_bf16_f32 v48, v44, v45
    v_lshlrev_b32 v44, 16, v48
    v_and_b32 v45, 0xffff0000, v48
    v_mul_f32 v44, v44, v46
    v_mul_f32 v45, v45, v47
    v_cvt_pk_bf16_f32 v48, v44, v45
    ds_write_b32 v17, v48
    """)
    for t in range(8):
        a("ds_read_b128 v[%d:%d], v18 offset:%d" % (128 + 4 * t, 131 + 4 * t, (7 - t) * 64))
    a("s_cmp_lg_u32 s65, 0")
    a("s_cbranch_scc1 L_f_have")
    lds_wait_ge(a, 7, 44, F_PROG, 120, sleep=0)
    wd_pre()
    a.label("L_f_have")
    a("s_waitcnt lgkmcnt(0)")
    a.stamp()
    for t in range(8):
        c_ = "0" if t == 0 else "v[36:39]"
        a("v_mfma_f32_16x16x32_bf16 v[36:39], v[%d:%d], v[%d:%d], %s" % (64 + 4 * t, 67 + 4 * t, 128 + 4 * t, 131 + 4 * t, c_))
    a.nop(8)
    a("""
    v_cndmask_b32_e64 v40, v36, v38, s[8:9]
    v_cndmask_b32_e64 v41, v37, v39, s[8:9]
    buffer_store_dwordx4 v[40:43], v19, s[56:59], s12 offen sc1
    """)
    a.stamp()
    a.stamp_flush(28, [(15,3,0),(12,6,0)])
    a.label("L_end")
    a("s_endpgm")

    out += a.l
    out.append('''.section .rodata,"a"
.p2align 6
.amdhsa_kernel %s_kernel
  .amdhsa_next_free_vgpr 200
  .amdhsa_next_free_sgpr 102
  .amdhsa_accum_offset 200
  .amdhsa_group_segment_fixed_size 0
  .amdhsa_kernarg_size 96
  .amdhsa_user_sgpr_count 2
  .amdhsa_user_sgpr_kernarg_segment_ptr 1
  .amdhsa_system_sgpr_workgroup_id_x 1
  .amdhsa_float_denorm_mode_32 3
.end_amdhsa_kernel''' % NAME)
    return "\n".join(out) + "\n"

if __name__ == "__main__":
    ap = argparse.ArgumentParser()
    ap.add_argument("-o", default="cdna_kernels/%s.s" % NAME)
    ap.add_argument("--diag", action="store_true")
    ap.add_argument("--slow", action="store_true")
    ap.add_argument("-W", type=int, default=20)
    args = ap.parse_args()
    open(args.o, "w").write(gen(diag=args.diag, W=args.W, forceslow=args.slow))
    print("wrote", args.o)
```

```python
import sys, argparse, os

NAME = "recurrent_scan__sliding_block_cached__glu_gated_geglu__decode"
HEADER = open("cdna_kernels/%s.s.ref" % NAME).read().split("; Override launch")[0]

INB1 = 0x10000
INBS = 0x20000
INB4 = 0x30000
INB2 = 0x80000
INB3S = 0x400000
INB3D = 0x500000
DIAG = 0x1000000
L_WQ = 0
L_K = 16384
L_V = 49152
L_G = 81920
L_U = 90112
L_WO = 98304
L_WD = 114688
L_M = 122880
L_XN = L_M
L_Q = L_M + 1024
L_P = L_M + 2048
L_Z = L_M + 6144
L_OW = L_Z
L_HW = L_Z + 1024
L_ST = L_Z + 2048
L_FL = L_Z + 2304
F_PROG = 0
F_XN = 4
F_Q = 8
F_OPUB = 12
LDS_BYTES = L_Z + 2560

LOG2E = 0x3fb8aa3b
SCALE = 0x3db504f3
ST0 = 76

class Asm:
    def __init__(self, diag=False):
        self.l = []; self.diag = diag; self.dbg = True; self.dbgwg = int(os.environ.get('DBGWG','192')); self.nstamp = 0; self.uid = 0
    def __call__(self, s):
        for x in s.strip().split("\n"):
            x = x.strip()
            if x: self.l.append("    " + x)
    def label(self, n): self.l.append(n + ":")
    def nop(self, n=1): self("s_nop %d" % (n - 1))
    def comment(self, s): self.l.append("    ; " + s)
    def newlabel(self, p):
        self.uid += 1; return "%s_%d" % (p, self.uid)
    def stamp(self):
        if not self.diag: return
        i = self.nstamp; assert i < 13, "too many stamps"
        self("s_memrealtime s[%d:%d]" % (ST0 + 2 * i, ST0 + 1 + 2 * i))
        self.nstamp += 1
    def stamp_flush(self, vtmp, dbgmap=()):
        if not self.diag: return
        n = self.nstamp
        if self.dbg:
            lab = self.newlabel("L_nodbg")
            self("s_cmp_lg_u32 s2, %d" % self.dbgwg)
            self("s_cbranch_scc1 %s" % lab)
            self("s_waitcnt vmcnt(0) lgkmcnt(0)")
            self("s_mov_b64 exec, 1")
            self("s_mov_b32 s68, s36")
            self("s_mov_b32 s69, s37")
            self("s_mov_b32 s70, 256")
            self("s_mov_b32 s71, 0x20000")
            self("v_mov_b32 v%d, 0" % (vtmp + 2))
            for k, (slot, idx, inv) in enumerate(dbgmap):
                assert idx < n
                self("v_mov_b32 v%d, s%d" % (vtmp + (k & 1), ST0 + 2 * idx))
                if inv: self("v_not_b32 v%d, v%d" % (vtmp + (k & 1), vtmp + (k & 1)))
                self("buffer_store_dword v%d, off, s[68:71], 0 offset:%d" % (vtmp + (k & 1), slot * 4))
                self.nop(4)
            self.label(lab)
            return
        self("s_waitcnt lgkmcnt(0)")
        self("s_mov_b64 exec, 1")
        self("s_lshl_b32 s64, s2, 10")
        self("s_lshl_b32 s65, s3, 7")
        self("s_add_u32 s64, s64, s65")
        self("s_add_u32 s64, s64, 0x%x" % DIAG)
        self("v_mov_b32 v%d, 0" % (vtmp + 2))
        for i in range(n):
            self("v_mov_b32 v%d, s%d" % (vtmp, ST0 + 2 * i))
            self("v_mov_b32 v%d, s%d" % (vtmp + 1, ST0 + 1 + 2 * i))
            self("buffer_store_dwordx2 v[%d:%d], v%d, s[56:59], s64 offen offset:%d" % (vtmp, vtmp + 1, vtmp + 2, i * 8))
            self.nop(2)
        self("v_mov_b32 v%d, %d" % (vtmp, n))
        self("buffer_store_dword v%d, v%d, s[56:59], s64 offen offset:120" % (vtmp, vtmp + 2))

def allreduce(a, op, v, t):
    for r in (1, 2, 4, 8):
        a.nop(2)
        a("v_%s_f32_dpp v%d, v%d, v%d row_ror:%d row_mask:0xf bank_mask:0xf" % (op, v, v, v, r))
    for sw in ("16", "32"):
        a("v_mov_b32 v%d, v%d" % (t, v))
        a.nop(2)
        a("v_permlane%s_swap_b32 v%d, v%d" % (sw, v, t))
        a("v_%s_f32 v%d, v%d, v%d" % (op, v, v, t))

def xreduce(a, op, regs, tmps):
    for sw in ("16", "32"):
        for r, t in zip(regs, tmps):
            a("v_mov_b32 v%d, v%d" % (t, r))
        a.nop(2 if len(regs) < 3 else 1)
        for r, t in zip(regs, tmps):
            a("v_permlane%s_swap_b32 v%d, v%d" % (sw, r, t))
        for r, t in zip(regs, tmps):
            a("v_%s_f32 v%d, v%d, v%d" % (op, r, r, t))

def bf16_round(a, dst, src, tmp):
    a("v_cvt_pk_bf16_f32 v%d, v%d, v%d" % (tmp, src, src))
    a("v_lshlrev_b32 v%d, 16, v%d" % (dst, tmp))

def layernorm(a, xr, f, t, xp):
    for i in range(4):
        a("v_lshlrev_b32 v%d, 16, v%d" % (f + 2 * i, xr + i))
        a("v_and_b32 v%d, 0xffff0000, v%d" % (f + 2 * i + 1, xr + i))
    a("v_add_f32 v%d, v%d, v%d" % (t, f, f + 1))
    a("v_add_f32 v%d, v%d, v%d" % (t + 1, f + 2, f + 3))
    a("v_add_f32 v%d, v%d, v%d" % (t + 2, f + 4, f + 5))
    a("v_add_f32 v%d, v%d, v%d" % (t + 3, f + 6, f + 7))
    a("v_add_f32 v%d, v%d, v%d" % (t, t, t + 1))
    a("v_add_f32 v%d, v%d, v%d" % (t + 2, t + 2, t + 3))
    a("v_add_f32 v%d, v%d, v%d" % (t, t, t + 2))
    allreduce(a, "add", t, t + 1)
    a("v_mul_f32 v%d, 0x3b000000, v%d" % (t, t))
    a("v_sub_f32 v%d, v%d, v%d" % (t + 2, f, t))
    a("v_mul_f32 v%d, v%d, v%d" % (t + 1, t + 2, t + 2))
    for i in range(1, 8):
        a("v_sub_f32 v%d, v%d, v%d" % (t + 2, f + i, t))
        a("v_fmac_f32 v%d, v%d, v%d" % (t + 1, t + 2, t + 2))
    allreduce(a, "add", t + 1, t + 2)
    a("v_mul_f32 v%d, 0x3b000000, v%d" % (t + 1, t + 1))
    a("v_cvt_pk_bf16_f32 v%d, v%d, v%d" % (t + 2, t, t + 1))
    a("v_lshlrev_b32 v%d, 16, v%d" % (t, t + 2))
    a("v_and_b32 v%d, 0xffff0000, v%d" % (t + 1, t + 2))
    a("v_add_f32 v%d, 0x3727c5ac, v%d" % (t + 1, t + 1))
    bf16_round(a, t + 1, t + 1, t + 2)
    a("v_sqrt_f32 v%d, v%d" % (t + 1, t + 1))
    a.nop(1)
    bf16_round(a, t + 1, t + 1, t + 2)
    a("v_rcp_f32 v%d, v%d" % (t + 2, t + 1))
    for i in range(8):
        a("v_sub_f32 v%d, v%d, v%d" % (f + i, f + i, t))
    for i in range(4):
        a("v_cvt_pk_bf16_f32 v%d, v%d, v%d" % (xp + i, f + 2 * i, f + 2 * i + 1))
    for i in range(4):
        a("v_lshlrev_b32 v%d, 16, v%d" % (f + 2 * i, xp + i))
        a("v_and_b32 v%d, 0xffff0000, v%d" % (f + 2 * i + 1, xp + i))
    for i in range(8):
        a("v_mul_f32 v%d, v%d, v%d" % (t + 3, f + i, t + 2))
        a("v_fma_f32 v%d, -v%d, v%d, v%d" % (t + 4, t + 3, t + 1, f + i))
        a("v_fma_f32 v%d, v%d, v%d, v%d" % (f + i, t + 4, t + 2, t + 3))
    for i in range(4):
        a("v_cvt_pk_bf16_f32 v%d, v%d, v%d" % (xp + i, f + 2 * i, f + 2 * i + 1))

def srd(a, d, base, nbytes):
    a("s_mov_b32 s%d, s%d" % (d, base))
    a("s_mov_b32 s%d, s%d" % (d + 1, base + 1))
    a("s_mov_b32 s%d, 0x%x" % (d + 2, nbytes))
    a("s_mov_b32 s%d, 0x20000" % (d + 3))

def after_kernarg(a):
    a("s_waitcnt lgkmcnt(0)")
    a("s_load_dwordx2 s[40:41], s[38:39], 0")
    srd(a, 56, 38, 0x20000000)

def tag_and_barrier(a):
    a("s_waitcnt lgkmcnt(0)")
    a("s_add_u32 s40, s40, 16")
    a("s_add_u32 s41, s41, 0x9e3779b9")
    a("s_barrier")

def lds_wait_ge(a, vfl, vtmp, off, thr, sleep=1):
    name = a.newlabel("L_w")
    a("s_mov_b32 s64, SPIN")
    a.label(name)
    a("ds_read_b32 v%d, v%d offset:%d" % (vtmp, vfl, off))
    a("s_waitcnt lgkmcnt(0)")
    a("v_cmp_gt_u32 vcc, %d, v%d" % (thr, vtmp) if thr <= 64 else "v_cmp_gt_u32 vcc, 0x%x, v%d" % (thr, vtmp))
    a("s_cbranch_vccz %s_ok" % name)
    if sleep: a("s_sleep %d" % sleep)
    a("s_sub_u32 s64, s64, 1")
    a("s_cbranch_scc1 L_end")
    a("s_branch %s" % name)
    a.label(name + "_ok")

def tagcheck(a, regs, tag="s[40:41]"):
    a("v_cmp_ne_u64 vcc, %s, v[%d:%d]" % (tag, regs[0] + 2, regs[0] + 3))
    for r in regs[1:]:
        a("v_cmp_ne_u64 s[60:61], %s, v[%d:%d]" % (tag, r + 2, r + 3))
        a("s_or_b64 vcc, vcc, s[60:61]")

def gen(diag=False, W=20, forceslow=False):
    a = Asm(diag)
    out = []
    out.append(HEADER.rstrip("\n"))
    out.append("; @launch grid=(256,1,1) block=(512,1,1) lds=%d" % LDS_BYTES)
    out.append('.amdgcn_target "amdgcn-amd-amdhsa--gfx950"')
    out.append(".set SPIN, 0x40000")
    out.append(".text")
    out.append(".globl %s_kernel" % NAME)
    out.append(".p2align 8")
    out.append(".type %s_kernel,@function" % NAME)
    out.append("%s_kernel:" % NAME)

    a("""
    s_cmp_ge_u32 s2, 256
    s_cbranch_scc1 L_end
    s_load_dwordx16 s[16:31], s[0:1], 0
    s_load_dwordx8 s[32:39], s[0:1], 64
    v_lshrrev_b32 v1, 6, v0
    v_and_b32 v0, 63, v0
    s_and_b32 s4, s2, 7
    v_readfirstlane_b32 s3, v1
    s_lshr_b32 s5, s2, 3
    v_and_b32 v4, 15, v0
    v_lshrrev_b32 v5, 4, v0
    v_mov_b32 v7, %d
    """ % L_FL)
    a.stamp()
    a("""
    s_cmp_eq_u32 s3, 1
    s_cbranch_scc1 L_q
    s_cmp_eq_u32 s3, 6
    s_cbranch_scc1 L_f
    s_cmp_eq_u32 s3, 7
    s_cbranch_scc1 L_o
    s_cmp_lg_u32 s3, 0
    s_cbranch_scc1 L_att
    """)
    nst0 = a.nstamp

    a("s_setprio 2")
    a("""
    v_lshrrev_b32 v6, 2, v0
    v_and_b32 v8, 3, v0
    v_lshrrev_b32 v9, 5, v0
    v_lshlrev_b32 v2, 1, v9
    v_xor_b32 v8, v8, v2
    v_lshlrev_b32 v8, 4, v8
    v_lshl_or_b32 v10, v6, 13, v8
    s_lshr_b32 s6, s5, 4
    s_lshl_b32 s6, s6, 21
    s_lshl_b32 s7, s4, 10
    s_add_u32 s6, s6, s7
    s_and_b32 s7, s5, 15
    s_lshl_b32 s7, s7, 6
    s_add_u32 s6, s6, s7
    s_mov_b32 s46, 0x400000
    s_mov_b32 s47, 0x20000
    s_mov_b32 m0, %d
    s_waitcnt lgkmcnt(0)
    s_mov_b32 s44, s22
    s_mov_b32 s45, s23
    """ % L_WQ)
    a.stamp()

    def loader_setup2():
        a("v_mul_u32_u24 v11, %d, v6" % 3584)
        a("v_add_u32 v11, v11, v8")
        for b in range(4):
            a("v_add_u32 v2, %d, v5" % (4 * b))
            a("v_xor_b32 v2, v4, v2")
            a("v_lshlrev_b32 v2, 4, v2")
            a("v_lshl_or_b32 v%d, v5, 8, v2" % (12 + b))
        for b in range(2):
            a("v_add_u32 v2, %d, v5" % (4 * b))
            a("v_lshlrev_b32 v2, 1, v2")
            a("v_xor_b32 v2, v4, v2")
            a("v_lshlrev_b32 v2, 4, v2")
            a("v_lshl_or_b32 v%d, v5, 8, v2" % (16 + b))
        a("v_and_b32 v3, 31, v0")
        for b in range(2):
            a("v_add_u32 v2, %d, v9" % (2 * b))
            a("v_lshlrev_b32 v2, 2, v2")
            a("v_xor_b32 v2, v3, v2")
            a("v_lshlrev_b32 v2, 4, v2")
            a("v_lshl_or_b32 v%d, v9, 10, v2" % (18 + b))
        a("v_lshlrev_b32 v2, 2, v5")
        a("v_xor_b32 v2, v4, v2")
        a("v_lshlrev_b32 v2, 4, v2")
        a("v_lshl_or_b32 v20, v5, 10, v2")
        srd(a, 48, 18, 0x8000000)
        srd(a, 52, 20, 0x8000000)
        srd(a, 60, 28, 512 * 1792 * 2)
        srd(a, 64, 30, 512 * 1792 * 2)
        srd(a, 68, 24, 4096 * 512 * 2)
        srd(a, 72, 32, 1792 * 512 * 2)
        srd(a, 56, 38, 0x20000000)
        a("""
        s_lshl_b32 s8, s4, 24
        s_lshl_b32 s7, s5, 15
        s_add_u32 s8, s8, s7
        s_add_u32 s8, s8, 0xf00000
        s_mov_b32 s9, s8
        """)
        a("""
        s_mul_i32 s14, s4, 7
        s_lshr_b32 s7, s5, 2
        s_add_u32 s14, s14, s7
        s_and_b32 s15, s5, 3
        s_mul_i32 s10, s15, %d
        s_lshl_b32 s7, s14, 6
        s_add_u32 s10, s10, s7
        s_mov_b32 s11, s10
        """ % (128 * 3584))
        a("""
        s_lshl_b32 s12, s4, 19
        s_lshr_b32 s7, s5, 1
        s_lshl_b32 s7, s7, 15
        s_add_u32 s12, s12, s7
        s_and_b32 s7, s5, 1
        s_lshl_b32 s7, s7, 9
        s_add_u32 s12, s12, s7
        """)
        a("""
        s_lshl_b32 s13, s14, 15
        s_lshl_b32 s7, s15, 8
        s_add_u32 s13, s13, s7
        """)

    def item(kind, i):
        if kind == "wq":
            pre = [] if i == 0 else ["s_mov_b32 m0, %d" % (L_WQ + i * 1024), "s_add_u32 s6, s6, 0x20000"]
            return pre + ["buffer_load_dwordx4 v10, s[44:47], s6 offen nt lds"]
        if kind in ("K", "V"):
            base = L_K if kind == "K" else L_V
            sr = 8 if kind == "K" else 9
            pre = []
            if i % 4 == 0:
                pre = ["s_mov_b32 m0, %d" % (base + i * 1024), ("s_add_u32 s%d, s%d, 4096" % (sr, sr)) if i else "s_nop 0"]
            vr = 12 + (i % 4) if kind == "K" else 16 + (i % 2)
            return pre + ["buffer_load_dwordx4 v%d, s[%d:%d], s%d offen offset:%d nt lds" % (vr, 48 if kind == "K" else 52, 51 if kind == "K" else 55, sr, (i % 4) * 1024)]
        if kind in ("G", "U"):
            base = L_G if kind == "G" else L_U
            sr = 10 if kind == "G" else 11
            d = 60 if kind == "G" else 64
            pre = ["s_mov_b32 m0, %d" % (base + i * 1024), ("s_add_u32 s%d, s%d, %d" % (sr, sr, 16 * 3584)) if i else "s_nop 0"]
            return pre + ["buffer_load_dwordx4 v11, s[%d:%d], s%d offen nt lds" % (d, d + 3, sr)]
        if kind == "wo":
            pre = ["s_mov_b32 m0, %d" % (L_WO + i * 1024), "s_add_u32 s12, s12, 2048" if i else "s_nop 0"]
            return pre + ["buffer_load_dwordx4 v%d, s[68:71], s12 offen nt lds" % (18 + (i % 2))]
        if kind == "wd":
            pre = ["s_mov_b32 m0, %d" % (L_WD + i * 1024), "s_add_u32 s13, s13, 4096" if i else "s_nop 0"]
            return pre + ["buffer_load_dwordx4 v20, s[72:75], s13 offen nt lds"]

    def stream(full):
        seq = [("wq", i) for i in range(16)] + [("K", i) for i in range(32)] + [("V", i) for i in range(32)]
        if full:
            seq += [("G", i) for i in range(8)] + [("U", i) for i in range(8)]
        seq += [("wo", i) for i in range(16)]
        if full:
            seq += [("wd", i) for i in range(8)]
        prog = {}
        for n, (k, i) in enumerate(seq):
            cnt = n + 1
            if k == "wq" and i in (7, 15): prog[cnt] = i + 1
            if k == "K" and i % 8 == 7: prog[cnt] = 16 + i + 1
            if k == "V" and i % 8 == 7: prog[cnt] = 48 + i + 1
            if k == "U" and i == 7: prog[cnt] = 96
            if k == "wo" and i == 15: prog[cnt] = 112
            if k == "wd" and i == 7: prog[cnt] = 120
        return seq, prog

    for i in range(16):
        for x in item("wq", i): a(x)
    loader_setup2()
    assert W >= 16
    seqF, progF = stream(True)
    for n in range(16, W):
        for x in item(*seqF[n]): a(x)
    a("s_barrier")
    a.stamp()

    def emit_rest(seq, prog):
        N = len(seq)
        def publish(cnt):
            a("v_mov_b32 v2, %d" % prog[cnt])
            a("ds_write_b32 v7, v2 offset:%d" % F_PROG)
            if prog[cnt] in (16, 48, 80, 96, 112, 120): a.stamp()
        for n in range(W, N):
            a("s_waitcnt vmcnt(%d)" % (W - 1))
            lines = item(*seq[n])
            for x in lines: a(x)
            landed = n - W + 1
            if landed in prog: publish(landed)
        for landed in range(N - W + 1, N + 1):
            if landed in prog:
                a("s_waitcnt vmcnt(%d)" % (N - landed))
                publish(landed)
    nst1 = a.nstamp
    a("s_cmp_ge_u32 s5, 28")
    a("s_cbranch_scc1 L_ld_short")
    emit_rest(seqF, progF)
    a.stamp_flush(28, [(0,0,0),(1,2,0),(2,3,0),(3,4,0),(4,5,0),(5,8,0)])
    a("s_endpgm")
    a.label("L_ld_short")
    a.nstamp = nst1
    seqS, progS = stream(False)
    assert seqS[:W] == seqF[:W]
    emit_rest(seqS, progS)
    a.stamp_flush(28, [(0,0,0),(1,2,0),(2,3,0),(3,4,0),(4,5,0),(5,6,0)])
    a("s_endpgm")

    a.nstamp = nst0
    a.label("L_q")
    a("s_setprio 3")
    a("""
    v_lshlrev_b32 v2, 4, v0
    s_mov_b32 s50, 1024
    s_mov_b32 s51, 0x20000
    s_waitcnt lgkmcnt(0)
    s_mov_b32 s48, s16
    s_mov_b32 s49, s17
    buffer_load_dwordx4 v[8:11], v2, s[48:51], 0 offen
    s_load_dwordx2 s[40:41], s[38:39], 0
    s_getreg_b32 s44, hwreg(HW_REG_XCC_ID, 0, 4)
    """)
    srd(a, 56, 38, 0x20000000)
    a("""
    v_add_u32 v12, %d, v2
    s_lshr_b32 s6, s5, 4
    s_lshl_b32 s6, s6, 9
    s_add_u32 s6, s6, %d
    v_lshlrev_b32 v13, 4, v5
    v_add_u32 v13, s6, v13
    v_lshrrev_b32 v3, 2, v4
    v_lshl_add_u32 v3, v5, 3, v3
    v_lshlrev_b32 v3, 6, v3
    v_bfe_u32 v6, v0, 1, 1
    v_and_b32 v14, 1, v5
    v_lshlrev_b32 v14, 1, v14
    v_xor_b32 v6, v6, v14
    v_lshl_or_b32 v3, v6, 4, v3
    v_and_b32 v6, 1, v0
    v_lshl_or_b32 v14, v6, 3, v3
    v_xor_b32 v15, 32, v14
    """ % (L_XN, L_XN))
    a("""
    s_lshl_b32 s14, s4, 13
    s_add_u32 s14, s14, 0x%x
    s_add_u32 s13, s14, 4096
    s_lshl_b32 s15, s5, 8
    s_add_u32 s15, s15, s14
    v_lshl_add_u32 v3, v5, 2, v4
    v_lshlrev_b32 v3, 4, v3
    v_lshlrev_b32 v6, 6, v5
    v_bfe_u32 v16, v0, 1, 1
    v_lshl_or_b32 v6, v16, 5, v6
    v_bfe_u32 v16, v0, 2, 2
    v_lshl_or_b32 v6, v16, 3, v6
    v_and_b32 v16, 1, v0
    v_lshl_or_b32 v6, v16, 2, v6
    v_add_u32 v6, %d, v6
    s_mov_b32 s8, 0xaaaaaaaa
    s_mov_b32 s9, 0xaaaaaaaa
    s_mov_b32 s10, 0xcccccccc
    s_mov_b32 s11, 0xcccccccc
    v_mov_b32 v144, 1
    """ % (INB1, L_Q))
    tag_and_barrier(a)
    a("s_xor_b32 s46, s40, s44")
    a("s_mov_b32 s47, s41")
    if forceslow:
        a("s_mov_b32 s47, 0")
    a("s_waitcnt vmcnt(0)")
    a.stamp()
    layernorm(a, 8, 80, 88, 96)
    a("ds_write_b128 v12, v[96:99]")
    a("ds_write_b32 v7, v144 offset:%d" % F_XN)
    for k in range(8):
        a("ds_read_b128 v[%d:%d], v13 offset:%d" % (100 + 4 * k, 103 + 4 * k, k * 64))
    a.stamp()
    for half in range(2):
        lds_wait_ge(a, 7, 80, F_PROG, 8 * (half + 1), sleep=0)
        for kk in range(4):
            k = half * 4 + kk
            for s in range(2):
                for h in range(2):
                    r = 16 + (kk * 4 + s * 2 + h) * 2 + half * 32
                    a("ds_read_b64_tr_b16 v[%d:%d], v%d offset:%d" % (r, r + 1, 14 + s, k * 2048 + h * 256))
        for kk in range(4):
            k = half * 4 + kk
            a("s_waitcnt lgkmcnt(%d)" % (12 - 4 * kk))
            for s in range(2):
                r = 16 + (kk * 4 + s * 2) * 2 + half * 32
                c_ = "0" if k == 0 else "v[%d:%d]" % (132 + 4 * s, 135 + 4 * s)
                a("v_mfma_f32_16x16x32_bf16 v[%d:%d], v[%d:%d], v[%d:%d], %s" % (132 + 4 * s, 135 + 4 * s, r, r + 3, 100 + 4 * k, 103 + 4 * k, c_))
    a.stamp()
    a("v_mov_b32 v142, s46")
    a("v_mov_b32 v143, s41")
    a.nop(7)
    a("""
    v_cndmask_b32_e64 v80, v132, v134, s[8:9]
    v_cndmask_b32_e64 v81, v133, v135, s[8:9]
    v_cndmask_b32_e64 v82, v136, v138, s[8:9]
    v_cndmask_b32_e64 v83, v137, v139, s[8:9]
    v_cndmask_b32_e64 v140, v80, v82, s[10:11]
    v_cndmask_b32_e64 v141, v81, v83, s[10:11]
    s_mov_b32 exec_lo, 0x000f000f
    s_mov_b32 exec_hi, 0x000f000f
    buffer_store_dwordx4 v[140:143], v3, s[56:59], s15 offen sc1
    s_mov_b64 exec, -1
    """)
    a.stamp()
    def qissue(base):
        for k in range(4):
            a("buffer_load_dwordx4 v[%d:%d], v2, s[56:59], s14 offen offset:%d sc1" % (base + 4 * k, base + 3 + 4 * k, k * 1024))
            a("buffer_load_dwordx4 v[%d:%d], v2, s[56:59], s13 offen offset:%d sc1" % (base + 16 + 4 * k, base + 19 + 4 * k, k * 1024))
    def qcheck(base, lab):
        regs = [base + 4 * k for k in range(8)]
        tagcheck(a, regs, "s[46:47]")
        a("v_mov_b32 v144, 2")
        a("s_cbranch_vccz %s" % lab)
        a("v_mov_b32 v80, 0")
        for r in regs:
            a("v_xor_b32 v81, s40, v%d" % (r + 2))
            a("v_lshrrev_b32 v81, 4, v81")
            a("v_xor_b32 v82, s41, v%d" % (r + 3))
            a("v_or3_b32 v80, v80, v81, v82")
        a("v_cmp_ne_u32 vcc, 0, v80")
        a("v_mov_b32 v144, 1")
        a("s_cbranch_vccz %s" % lab)
    a("s_mov_b32 s64, SPIN")
    qissue(16)
    a("s_sleep 8")
    qissue(48)
    a.label("L_q_poll")
    a("s_waitcnt vmcnt(8)")
    qcheck(16, "L_q_d0")
    qissue(16)
    a("s_waitcnt vmcnt(8)")
    qcheck(48, "L_q_d1")
    qissue(48)
    a("s_sub_u32 s64, s64, 1")
    a("s_cbranch_scc1 L_end")
    a("s_branch L_q_poll")
    for nm, base in (("L_q_d0", 16), ("L_q_d1", 48)):
        a.label(nm)
        for k in range(4):
            a("v_add_f32 v%d, v%d, v%d" % (80 + 2 * k, base + 4 * k, base + 16 + 4 * k))
            a("v_add_f32 v%d, v%d, v%d" % (81 + 2 * k, base + 1 + 4 * k, base + 17 + 4 * k))
        if base == 16: a("s_branch L_q_dd")
    a.label("L_q_dd")
    for k in range(4):
        a("v_cvt_pk_bf16_f32 v%d, v%d, v%d" % (88 + k, 80 + 2 * k, 81 + 2 * k))
    a("ds_write2st64_b32 v6, v88, v89 offset0:0 offset1:1")
    a("ds_write2st64_b32 v6, v90, v91 offset0:2 offset1:3")
    a("ds_write_b32 v7, v144 offset:%d" % F_Q)
    a.stamp()
    a("s_cmp_lt_u32 s5, 24")
    a("s_cbranch_scc1 L_q_done")
    a("""
    s_setprio 1
    s_lshl_b32 s6, s4, 3
    s_add_u32 s6, s6, s5
    s_sub_u32 s6, s6, 24
    s_lshl_b32 s12, s6, 13
    s_add_u32 s12, s12, 0x%x
    s_add_u32 s13, s12, 4096
    s_lshl_b32 s14, s6, 12
    s_add_u32 s14, s14, 0x%x
    s_lshl_b32 s15, s6, 4
    v_and_b32 v3, 3, v0
    v_lshlrev_b32 v3, 2, v3
    v_add_u32 v3, s15, v3
    s_mov_b32 s52, s34
    s_mov_b32 s53, s35
    s_mov_b32 s54, 1024
    s_mov_b32 s55, 0x20000
    s_waitcnt vmcnt(0)
    buffer_load_dword v6, v3, s[48:51], 0 offen
    """ % (INB3S, INB3D))
    lds_wait_ge(a, 7, 80, F_OPUB, 1, sleep=2)
    a("s_setprio 3")
    a.stamp()
    NS = 3
    def fissue(base):
        for k in range(8):
            a("buffer_load_dwordx4 v[%d:%d], v2, s[56:59], s%d offen offset:%d sc1" % (base + 4 * k, base + 3 + 4 * k, 12 + k // 4, (k % 4) * 1024))
        for k in range(4):
            a("buffer_load_dwordx4 v[%d:%d], v2, s[56:59], s14 offen offset:%d sc1" % (base + 32 + 4 * k, base + 35 + 4 * k, k * 1024))
    def fcheck(base, lab):
        a("v_cmp_ne_u64 vcc, s[40:41], v[%d:%d]" % (base + 46, base + 47))
        a("s_mov_b32 vcc_hi, 0")
        for k in range(11):
            a("v_cmp_ne_u64 s[60:61], s[40:41], v[%d:%d]" % (base + 4 * k + 2, base + 4 * k + 3))
            a("s_or_b64 vcc, vcc, s[60:61]")
        a("s_cbranch_vccz %s" % lab)
    bases = [16 + 48 * i for i in range(NS)]
    a("s_mov_b32 s64, SPIN")
    for i, b in enumerate(bases):
        fissue(b)
        if i < NS - 1: a("s_sleep 4")
    a.label("L_f_poll3")
    for i, b in enumerate(bases):
        a("s_waitcnt vmcnt(%d)" % (12 * (NS - 1)))
        fcheck(b, "L_fin_d%d" % i)
        fissue(b)
    a("s_sub_u32 s64, s64, 1")
    a("s_cbranch_scc1 L_end")
    a("s_branch L_f_poll3")
    for i, b in enumerate(bases):
        a.label("L_fin_d%d" % i)
        a("""
        s_mov_b32 exec_lo, 0
        v_mov_b32 v%d, 0
        v_mov_b32 v%d, 0
        s_mov_b32 exec_lo, -1
        """ % (b + 44, b + 45))
        for e in range(2):
            a("v_add_f32 v%d, v%d, v%d" % (160 + e, b + e, b + 4 + e))
            a("v_add_f32 v%d, v%d, v%d" % (164 + e, b + 8 + e, b + 12 + e))
            a("v_add_f32 v%d, v%d, v%d" % (166 + e, b + 16 + e, b + 20 + e))
            a("v_add_f32 v%d, v%d, v%d" % (168 + e, b + 24 + e, b + 28 + e))
            a("v_add_f32 v%d, v%d, v%d" % (162 + e, b + 32 + e, b + 36 + e))
            a("v_add_f32 v%d, v%d, v%d" % (170 + e, b + 40 + e, b + 44 + e))
        if i < NS - 1: a("s_branch L_fin_dd")
    a.label("L_fin_dd")
    a.stamp()
    a("""
    v_add_f32 v160, v160, v164
    v_add_f32 v161, v161, v165
    v_add_f32 v166, v166, v168
    v_add_f32 v167, v167, v169
    v_add_f32 v162, v162, v170
    v_add_f32 v163, v163, v171
    v_add_f32 v160, v160, v166
    v_add_f32 v161, v161, v167
    """)
    for r in (4, 8):
        a.nop(1)
        for v in (162, 163, 160, 161):
            a("v_add_f32_dpp v%d, v%d, v%d row_ror:%d row_mask:0xf bank_mask:0xf" % (v, v, v, r))
    xreduce(a, "add", [160, 161, 162, 163], [164, 165, 166, 167])
    a("""
    v_cvt_pk_bf16_f32 v164, v160, v161
    v_cvt_pk_bf16_f32 v165, v162, v163
    v_lshlrev_b32 v160, 16, v164
    v_and_b32 v161, 0xffff0000, v164
    v_lshlrev_b32 v162, 16, v165
    v_and_b32 v163, 0xffff0000, v165
    v_mul_f32 v164, 0xbfb8aa3b, v162
    v_mul_f32 v165, 0xbfb8aa3b, v163
    v_exp_f32 v164, v164
    v_exp_f32 v165, v165
    s_nop 0
    v_add_f32 v164, 1.0, v164
    v_add_f32 v165, 1.0, v165
    v_rcp_f32 v166, v164
    v_rcp_f32 v167, v165
    s_nop 0
    v_mul_f32 v168, v162, v166
    v_mul_f32 v169, v163, v167
    v_fma_f32 v170, -v168, v164, v162
    v_fma_f32 v171, -v169, v165, v163
    v_fma_f32 v170, v170, v166, v168
    v_fma_f32 v171, v171, v167, v169
    v_cmp_class_f32 vcc, v170, 3
    v_cmp_class_f32 s[60:61], v171, 3
    s_nop 1
    v_cndmask_b32 v170, v170, v168, vcc
    v_cndmask_b32_e64 v171, v171, v169, s[60:61]
    v_cvt_pk_bf16_f32 v164, v170, v171
    v_lshlrev_b32 v170, 16, v164
    v_and_b32 v171, 0xffff0000, v164
    v_mul_f32 v170, v160, v170
    v_mul_f32 v171, v161, v171
    v_cvt_pk_bf16_f32 v164, v170, v171
    v_lshlrev_b32 v170, 16, v164
    v_and_b32 v171, 0xffff0000, v164
    v_lshlrev_b32 v164, 16, v6
    v_and_b32 v165, 0xffff0000, v6
    v_add_f32 v170, v164, v170
    v_add_f32 v171, v165, v171
    v_cvt_pk_bf16_f32 v164, v170, v171
    s_mov_b64 exec, 15
    buffer_store_dword v164, v3, s[52:55], 0 offen
    """)
    a.stamp_flush(172, [(13,7,0)])
    a("""
    s_cmp_lg_u32 s2, 192
    s_cbranch_scc1 L_q_done
    s_mov_b64 exec, 1
    v_mov_b32 v166, s40
    v_mov_b32 v167, s41
    v_mov_b32 v168, 0
    buffer_store_dwordx2 v[166:167], v168, s[56:59], 0 offen
    """)
    a.label("L_q_done")
    a.stamp()
    a.stamp_flush(172, [(6,1,0),(7,4,0),(8,5,0),(14,8,0)])
    a("s_endpgm")

    a.nstamp = nst0
    a.label("L_att")
    a("s_sub_u32 s62, s3, 2")
    a("""
    s_cmp_lg_u32 s62, 0
    s_cbranch_scc1 L_att_nz
    v_lshlrev_b32 v2, 4, v0
    v_add_u32 v2, %d, v2
    v_mov_b32 v8, 0
    v_mov_b32 v9, 0
    v_mov_b32 v10, 0
    v_mov_b32 v11, 0
    ds_write_b128 v2, v[8:11]
    ds_write_b128 v2, v[8:11] offset:1024
    v_lshlrev_b32 v2, 3, v0
    v_add_u32 v2, %d, v2
    ds_write_b64 v2, v[8:9]
    """ % (L_Z, L_Z + 2048))
    a.label("L_att_nz")
    a("""
    s_lshl_b32 s6, s62, 13
    s_add_u32 s6, s6, %d
    v_lshlrev_b32 v2, 8, v4
    v_add_u32 v2, s6, v2
    """ % L_K)
    for kk in range(4):
        a("v_add_u32 v3, %d, v5" % (4 * kk))
        a("v_xor_b32 v3, v3, v4")
        a("v_lshl_add_u32 v%d, v3, 4, v2" % (8 + kk))
    a("""
    v_lshrrev_b32 v3, 2, v4
    v_lshlrev_b32 v6, 8, v3
    v_lshl_or_b32 v6, v5, 4, v6
    v_add_u32 v6, %d, v6
    v_lshl_add_u32 v2, v5, 2, v3
    v_lshlrev_b32 v2, 8, v2
    v_add_u32 v2, %d, v2
    v_and_b32 v12, 1, v0
    v_lshl_add_u32 v2, v12, 3, v2
    v_and_b32 v12, 1, v5
    v_lshl_add_u32 v12, v12, 2, v3
    v_lshlrev_b32 v12, 1, v12
    v_bfe_u32 v13, v0, 1, 1
    s_lshl_b32 s6, s62, 2
    v_add_u32 v13, s6, v13
    v_xor_b32 v12, v12, v13
    v_lshl_add_u32 v12, v12, 4, v2
    v_xor_b32 v13, 32, v12
    """ % (L_Q, L_V))
    a("""
    v_lshlrev_b32 v15, 4, v0
    v_add_u32 v15, %d, v15
    s_lshl_b32 s6, s62, 10
    v_add_u32 v14, s6, v15
    v_lshlrev_b32 v17, 4, v3
    v_add_u32 v17, %d, v17
    s_lshl_b32 s6, s62, 6
    v_add_u32 v16, s6, v17
    """ % (L_P, L_ST))
    a("""
    s_lshl_b32 s6, s4, 17
    s_lshl_b32 s7, s62, 13
    s_add_u32 s6, s6, s7
    s_lshl_b32 s7, s5, 8
    s_add_u32 s6, s6, s7
    s_add_u32 s12, s6, 0x%x
    v_lshlrev_b32 v18, 15, v3
    v_lshl_or_b32 v18, v5, 6, v18
    v_and_b32 v2, 3, v0
    v_lshl_or_b32 v18, v2, 4, v18
    s_lshl_b32 s6, s4, 11
    s_lshl_b32 s7, s5, 4
    s_add_u32 s6, s6, s7
    s_add_u32 s13, s6, 0x%x
    v_lshlrev_b32 v19, 9, v3
    s_mov_b32 s8, 0xaaaaaaaa
    s_mov_b32 s9, 0xaaaaaaaa
    s_mov_b32 s10, 0xcccccccc
    s_mov_b32 s11, 0xcccccccc
    s_mov_b32 s14, 0x%x
    s_mov_b32 s15, 0x%x
    s_lshl_b32 s63, s62, 3
    s_add_u32 s63, s63, 24
    """ % (INB2, INBS, SCALE, LOG2E))
    after_kernarg(a)
    tag_and_barrier(a)
    a.stamp()
    a("s_mov_b32 s64, SPIN")
    a.label("L_att_kw")
    a("""
    ds_read_b32 v20, v7 offset:%d
    s_waitcnt lgkmcnt(0)
    v_cmp_gt_u32 vcc, s63, v20
    s_cbranch_vccz L_att_kok
    s_sleep 2
    s_sub_u32 s64, s64, 1
    s_cbranch_scc1 L_end
    s_branch L_att_kw
    """ % F_PROG)
    a.label("L_att_kok")
    for tau in range(2):
        for kk in range(4):
            r = 32 + (tau * 4 + kk) * 4
            a("ds_read_b128 v[%d:%d], v%d offset:%d" % (r, r + 3, 8 + kk, tau * 4096))
    a.stamp()
    a("s_mov_b32 s64, SPIN")
    a.label("L_att_qw")
    a("ds_read_b32 v20, v7 offset:%d" % F_Q)
    for kk in range(4):
        a("ds_read_b128 v[%d:%d], v6 offset:%d" % (64 + 4 * kk, 67 + 4 * kk, kk * 64))
    a("""
    s_waitcnt lgkmcnt(0)
    v_cmp_eq_u32 vcc, 0, v20
    s_cbranch_vccz L_att_qok
    s_sleep 1
    s_sub_u32 s64, s64, 1
    s_cbranch_scc1 L_end
    s_branch L_att_qw
    """)
    a.label("L_att_qok")
    a.stamp()
    a("s_setprio 3")
    a("v_readfirstlane_b32 s45, v20")
    for kk in range(4):
        for tau in range(2):
            r = 32 + (tau * 4 + kk) * 4
            c_ = "0" if kk == 0 else "v[%d:%d]" % (80 + 4 * tau, 83 + 4 * tau)
            a("v_mfma_f32_16x16x32_bf16 v[%d:%d], v[%d:%d], v[%d:%d], %s" % (80 + 4 * tau, 83 + 4 * tau, r, r + 3, 64 + 4 * kk, 67 + 4 * kk, c_))
    a.nop(8)
    for rnd in range(2):
        for i in range(4):
            a("v_cvt_pk_bf16_f32 v%d, v%d, v%d" % (88 + i, 80 + 2 * i, 81 + 2 * i))
        for i in range(4):
            a("v_lshlrev_b32 v%d, 16, v%d" % (80 + 2 * i, 88 + i))
            a("v_and_b32 v%d, 0xffff0000, v%d" % (81 + 2 * i, 88 + i))
        if rnd == 0:
            for i in range(8):
                a("v_mul_f32 v%d, s14, v%d" % (80 + i, 80 + i))
    a("""
    v_max3_f32 v92, v80, v81, v82
    v_max3_f32 v93, v83, v84, v85
    v_max3_f32 v92, v92, v86, v87
    v_max_f32 v92, v92, v93
    """)
    xreduce(a, "max", [92], [93])
    a("v_mul_f32 v92, s15, v92")
    for i in range(8):
        a("v_fma_f32 v%d, v%d, s15, -v92" % (80 + i, 80 + i))
    for i in range(8):
        a("v_exp_f32 v%d, v%d" % (80 + i, 80 + i))
    a.nop(1)
    for i in range(4):
        a("v_cvt_pk_bf16_f32 v%d, v%d, v%d" % (88 + i, 80 + 2 * i, 81 + 2 * i))
    a("ds_write_b128 v14, v[88:91]")
    a("""
    v_add_f32 v93, v80, v81
    v_add_f32 v94, v82, v83
    v_add_f32 v95, v84, v85
    v_add_f32 v96, v86, v87
    v_add_f32 v93, v93, v94
    v_add_f32 v95, v95, v96
    v_add_f32 v93, v93, v95
    """)
    xreduce(a, "add", [93], [96])
    a("""
    v_mov_b32 v94, 1
    v_mov_b32 v95, 1
    s_mov_b64 exec, 0x1111
    ds_write_b128 v16, v[92:95]
    s_mov_b64 exec, -1
    """)
    a.stamp()
    a("s_mov_b32 s64, SPIN")
    a.label("L_att_pw")
    a("s_sub_u32 s64, s64, 1")
    a("s_cbranch_scc1 L_end")
    for w in range(4):
        a("ds_read_b128 v[%d:%d], v17 offset:%d" % (32 + 4 * w, 35 + 4 * w, 64 * w))
    for w in range(4):
        a("ds_read_b128 v[%d:%d], v15 offset:%d" % (48 + 4 * w, 51 + 4 * w, 1024 * w))
    a("""
    s_waitcnt lgkmcnt(0)
    v_min_u32 v64, v34, v38
    v_min3_u32 v64, v64, v42, v46
    v_cmp_eq_u32 vcc, 0, v64
    s_cbranch_vccnz L_att_pw
    """)
    a.stamp()
    a("""
    v_max3_f32 v64, v32, v36, v40
    v_max_f32 v64, v64, v44
    """)
    for w in range(4):
        a("v_sub_f32 v%d, v%d, v64" % (68 + w, 32 + 4 * w))
    for w in range(4):
        a("v_exp_f32 v%d, v%d" % (68 + w, 68 + w))
    a.nop(1)
    a("v_mul_f32 v65, v68, v33")
    for w in range(1, 4):
        a("v_fmac_f32 v65, v%d, v%d" % (68 + w, 33 + 4 * w))
    a("""
    v_mov_b32 v66, s40
    v_mov_b32 v67, s41
    v_mov_b32 v74, s40
    v_mov_b32 v75, s41
    s_cmp_lg_u32 s62, 0
    s_cbranch_scc1 L_att_nost
    s_mov_b64 exec, 0x1111
    s_cmp_eq_u32 s45, 2
    s_cbranch_scc1 L_att_stf
    buffer_store_dwordx4 v[64:67], v19, s[56:59], s13 offen sc1
    s_branch L_att_st2
    """)
    a.label("L_att_stf")
    a("buffer_store_dwordx4 v[64:67], v19, s[56:59], s13 offen")
    a.label("L_att_st2")
    a("s_mov_b64 exec, -1")
    a.label("L_att_nost")
    for chi in range(4):
        lds_wait_ge(a, 7, 76, F_PROG, 56 + 8 * chi, sleep=1 if chi < 3 else 0)
        if chi == 3: a.stamp()
        for t in range(2):
            for h in range(2):
                r = 96 + t * 4 + h * 2
                a("ds_read_b64_tr_b16 v[%d:%d], v%d offset:%d" % (r, r + 1, 12 + t, chi * 8192 + h * 4096))
        for t in range(2):
            a("s_waitcnt lgkmcnt(%d)" % (2 - 2 * t))
            a("v_mfma_f32_16x16x32_bf16 v[%d:%d], v[%d:%d], v[%d:%d], 0" % (104 + 4 * t, 107 + 4 * t, 96 + 4 * t, 99 + 4 * t, 48 + 4 * chi, 51 + 4 * chi))
        a.nop(8)
        a("""
        v_cndmask_b32_e64 v112, v104, v106, s[8:9]
        v_cndmask_b32_e64 v113, v105, v107, s[8:9]
        v_cndmask_b32_e64 v114, v108, v110, s[8:9]
        v_cndmask_b32_e64 v115, v109, v111, s[8:9]
        v_cndmask_b32_e64 v112, v112, v114, s[10:11]
        v_cndmask_b32_e64 v113, v113, v115, s[10:11]
        """)
        if chi == 0:
            a("v_mul_f32 v72, v68, v112")
            a("v_mul_f32 v73, v68, v113")
        else:
            a("v_fmac_f32 v72, v%d, v112" % (68 + chi))
            a("v_fmac_f32 v73, v%d, v113" % (68 + chi))
    a("""
    s_cmp_eq_u32 s45, 2
    s_cbranch_scc1 L_att_of
    buffer_store_dwordx4 v[72:75], v18, s[56:59], s12 offen sc1
    s_branch L_att_o2
    """)
    a.label("L_att_of")
    a("buffer_store_dwordx4 v[72:75], v18, s[56:59], s12 offen")
    a.label("L_att_o2")
    a.stamp()
    a.stamp_flush(28, [(9,7,0)])
    a("s_endpgm")

    a.nstamp = nst0
    a.label("L_o")
    a("""
    s_lshl_b32 s10, s4, 11
    s_lshr_b32 s6, s5, 3
    s_lshl_b32 s6, s6, 9
    s_add_u32 s10, s10, s6
    s_add_u32 s10, s10, 0x%x
    v_lshlrev_b32 v8, 4, v5
    s_lshl_b32 s6, s4, 4
    s_lshr_b32 s7, s5, 1
    s_add_u32 s6, s6, s7
    s_lshl_b32 s11, s6, 13
    s_add_u32 s11, s11, 0x%x
    s_add_u32 s12, s11, 4096
    v_lshlrev_b32 v2, 4, v0
    v_bfe_u32 v3, v0, 1, 1
    v_lshlrev_b32 v9, 5, v3
    v_bfe_u32 v3, v0, 2, 2
    v_lshl_or_b32 v9, v3, 3, v9
    v_and_b32 v6, 1, v0
    v_lshl_or_b32 v9, v6, 2, v9
    v_add_u32 v9, %d, v9
    v_lshrrev_b32 v10, 1, v4
    v_lshlrev_b32 v10, 6, v10
    v_lshl_or_b32 v10, v5, 4, v10
    v_add_u32 v10, %d, v10
    v_lshl_add_u32 v6, v5, 3, v3
    v_lshlrev_b32 v6, 9, v6
    v_add_u32 v6, %d, v6
    v_and_b32 v11, 3, v0
    """ % (INBS, INB2, L_OW + 7 * 64, L_OW, L_WO))
    for aa in range(4):
        a("v_xor_b32 v16, %d, v3" % aa)
        a("v_lshl_or_b32 v16, v16, 2, v11")
        a("v_lshl_add_u32 v%d, v16, 4, v6" % (12 + aa))
    a("""
    s_lshl_b32 s6, s6, 6
    s_and_b32 s7, s5, 1
    s_lshl_b32 s7, s7, 18
    s_add_u32 s6, s6, s7
    s_add_u32 s14, s6, 0x%x
    s_add_u32 s15, s14, 0x20000
    v_lshl_add_u32 v6, v3, 2, v5
    v_lshlrev_b32 v6, 13, v6
    v_lshl_or_b32 v6, v11, 4, v6
    s_mov_b32 s8, 0xaaaaaaaa
    s_mov_b32 s9, 0xaaaaaaaa
    v_mov_b32 v11, 1
    """ % INB3S)
    after_kernarg(a)
    tag_and_barrier(a)
    a.stamp()
    lds_wait_ge(a, 7, 16, F_Q, 1, sleep=4)
    a("s_mov_b32 s64, SPIN")
    a.label("L_o_sp")
    a("s_sub_u32 s64, s64, 1")
    a("s_cbranch_scc1 L_end")
    for k in range(8):
        a("buffer_load_dwordx4 v[%d:%d], v8, s[56:59], s10 offen offset:%d sc1" % (16 + 4 * k, 19 + 4 * k, k * 64))
    a("s_waitcnt vmcnt(0)")
    tagcheck(a, [16 + 4 * k for k in range(8)])
    a("s_cbranch_vccnz L_o_sp")
    a.stamp()
    def oissue(base):
        for k in range(8):
            a("buffer_load_dwordx4 v[%d:%d], v2, s[56:59], s%d offen offset:%d sc1" % (base + 4 * k, base + 3 + 4 * k, 11 + k // 4, (k % 4) * 1024))
    oissue(128)
    a("""
    v_max3_f32 v56, v16, v20, v24
    v_max3_f32 v57, v28, v32, v36
    v_max3_f32 v56, v56, v40, v44
    v_max_f32 v56, v56, v57
    """)
    xreduce(a, "max", [56], [57])
    for k in range(8):
        a("v_sub_f32 v%d, v%d, v56" % (48 + k, 16 + 4 * k))
    for k in range(8):
        a("v_exp_f32 v%d, v%d" % (48 + k, 48 + k))
    a.nop(1)
    a("v_mul_f32 v57, v48, v17")
    for k in range(1, 8):
        a("v_fmac_f32 v57, v%d, v%d" % (48 + k, 17 + 4 * k))
    xreduce(a, "add", [57], [58])
    a("v_rcp_f32 v58, v57")
    a("s_mov_b32 s65, 0")
    a("s_setprio 3")
    oissue(160)
    def wo_pre():
        for al in range(2):
            for t in range(8):
                for h in range(2):
                    r = 64 + ((al * 8 + t) * 2 + h) * 2
                    a("ds_read_b64_tr_b16 v[%d:%d], v%d offset:%d" % (r, r + 1, 12 + (t >> 1), al * 256 + (t & 1) * 8 + h * 2048))
    def opp(lab):
        a("s_cmp_lg_u32 s65, 0")
        a("s_cbranch_scc1 %s" % lab)
        a("ds_read_b32 v59, v7 offset:%d" % F_PROG)
        a("s_waitcnt lgkmcnt(0)")
        a("v_cmp_gt_u32 vcc, 0x70, v59")
        a("s_cbranch_vccnz %s" % lab)
        wo_pre()
        a("s_mov_b32 s65, 1")
        a.label(lab)
    a("s_mov_b32 s64, SPIN")
    a.label("L_o_poll")
    opp("L_o_np")
    a("s_waitcnt vmcnt(8)")
    tagcheck(a, [128 + 4 * k for k in range(8)])
    a("s_cbranch_vccz L_o_d0")
    oissue(128)
    a("s_waitcnt vmcnt(8)")
    tagcheck(a, [160 + 4 * k for k in range(8)])
    a("s_cbranch_vccz L_o_d1")
    oissue(160)
    a("s_sub_u32 s64, s64, 1")
    a("s_cbranch_scc1 L_end")
    a("s_branch L_o_poll")
    for nm, base in (("L_o_d0", 128), ("L_o_d1", 160)):
        a.label(nm)
        a("v_mul_f32 v60, v48, v%d" % base)
        a("v_mul_f32 v61, v48, v%d" % (base + 1))
        a("v_mul_f32 v62, v49, v%d" % (base + 4))
        a("v_mul_f32 v63, v49, v%d" % (base + 5))
        for k in range(2, 8):
            a("v_fmac_f32 v%d, v%d, v%d" % (60 + 2 * (k & 1), 48 + k, base + 4 * k))
            a("v_fmac_f32 v%d, v%d, v%d" % (61 + 2 * (k & 1), 48 + k, base + 4 * k + 1))
        if base == 128: a("s_branch L_o_dd")
    a.label("L_o_dd")
    a.stamp()
    a("v_add_f32 v60, v60, v62")
    a("v_add_f32 v61, v61, v63")
    xreduce(a, "add", [60, 61], [62, 63])
    for r in (60, 61):
        a("v_mul_f32 v62, v%d, v58" % r)
        a("v_fma_f32 v63, -v62, v57, v%d" % r)
        a("v_fma_f32 v%d, v63, v58, v62" % r)
    a("v_cvt_pk_bf16_f32 v60, v60, v61")
    a("ds_write_b32 v9, v60")
    for t in range(8):
        a("ds_read_b128 v[%d:%d], v10 offset:%d" % (16 + 4 * t, 19 + 4 * t, (7 - t) * 64))
    a("s_cmp_lg_u32 s65, 0")
    a("s_cbranch_scc1 L_o_have")
    lds_wait_ge(a, 7, 59, F_PROG, 112, sleep=0)
    wo_pre()
    a.label("L_o_have")
    a("""
    v_mov_b32 v194, s40
    v_mov_b32 v195, s41
    v_mov_b32 v198, s40
    v_mov_b32 v199, s41
    s_waitcnt lgkmcnt(0)
    """)
    a.stamp()
    for t in range(8):
        for al in range(2):
            r = 64 + (al * 8 + t) * 4
            c_ = "0" if t == 0 else "v[%d:%d]" % (48 + 4 * al, 51 + 4 * al)
            a("v_mfma_f32_16x16x32_bf16 v[%d:%d], v[%d:%d], v[%d:%d], %s" % (48 + 4 * al, 51 + 4 * al, r, r + 3, 16 + 4 * t, 19 + 4 * t, c_))
    a.nop(7)
    a("""
    v_cndmask_b32_e64 v192, v48, v50, s[8:9]
    v_cndmask_b32_e64 v193, v49, v51, s[8:9]
    v_cndmask_b32_e64 v196, v52, v54, s[8:9]
    v_cndmask_b32_e64 v197, v53, v55, s[8:9]
    buffer_store_dwordx4 v[192:195], v6, s[56:59], s14 offen sc1
    buffer_store_dwordx4 v[196:199], v6, s[56:59], s15 offen sc1
    ds_write_b32 v7, v11 offset:%d
    """ % F_OPUB)
    a.stamp()
    a.stamp_flush(28, [(10,3,0),(11,5,0)])
    a("s_endpgm")

    a.nstamp = nst0
    a.label("L_f")
    a("""
    s_cmp_ge_u32 s5, 28
    s_cbranch_scc1 L_end
    s_mul_i32 s14, s4, 7
    s_lshr_b32 s7, s5, 2
    s_add_u32 s14, s14, s7
    s_and_b32 s15, s5, 3
    """)
    a("""
    s_lshl_b32 s6, s15, 8
    s_add_u32 s6, s6, %d
    v_lshlrev_b32 v13, 4, v5
    v_add_u32 v13, s6, v13
    v_lshrrev_b32 v3, 2, v4
    v_lshl_add_u32 v2, v5, 3, v3
    v_lshlrev_b32 v12, 6, v2
    v_bfe_u32 v6, v0, 1, 1
    v_and_b32 v14, 1, v5
    v_lshlrev_b32 v14, 1, v14
    v_xor_b32 v6, v6, v14
    v_lshl_or_b32 v12, v6, 4, v12
    v_and_b32 v6, 1, v0
    v_lshl_or_b32 v12, v6, 3, v12
    v_add_u32 v14, %d, v12
    v_xor_b32 v15, 32, v14
    """ % (L_XN, L_G))
    a("""
    v_lshlrev_b32 v2, 8, v2
    v_add_u32 v2, %d, v2
    v_and_b32 v12, 3, v0
    """ % L_WD)
    for aa in range(4):
        a("v_xor_b32 v16, %d, v3" % aa)
        a("v_lshl_or_b32 v16, v16, 2, v12")
        a("v_lshl_add_u32 v%d, v16, 4, v2" % (8 + aa))
    a("""
    s_lshl_b32 s11, s14, 11
    s_add_u32 s11, s11, 0x%x
    s_lshl_b32 s6, s15, 8
    s_add_u32 s10, s11, s6
    v_bfe_u32 v16, v0, 2, 1
    v_lshlrev_b32 v16, 10, v16
    v_lshl_or_b32 v16, v5, 6, v16
    v_lshl_or_b32 v16, v12, 4, v16
    v_lshlrev_b32 v2, 4, v0
    v_bfe_u32 v6, v0, 1, 1
    v_lshlrev_b32 v17, 5, v6
    v_lshl_or_b32 v17, v3, 3, v17
    v_and_b32 v6, 1, v0
    v_lshl_or_b32 v17, v6, 2, v17
    v_add_u32 v17, %d, v17
    v_lshrrev_b32 v18, 1, v4
    v_lshlrev_b32 v18, 6, v18
    v_lshl_or_b32 v18, v5, 4, v18
    v_add_u32 v18, %d, v18
    s_lshl_b32 s12, s15, 16
    s_lshl_b32 s6, s14, 6
    s_add_u32 s12, s12, s6
    s_add_u32 s12, s12, 0x%x
    v_lshl_add_u32 v19, v3, 2, v5
    v_lshlrev_b32 v19, 12, v19
    v_lshl_or_b32 v19, v12, 4, v19
    s_mov_b32 s8, 0xaaaaaaaa
    s_mov_b32 s9, 0xaaaaaaaa
    v_bfe_u32 v6, v0, 1, 2
    """ % (INB4, L_HW + 7 * 64, L_HW, INB3D))
    after_kernarg(a)
    tag_and_barrier(a)
    a.stamp()
    lds_wait_ge(a, 7, 20, F_XN, 1, sleep=4)
    for k in range(4):
        a("ds_read_b128 v[%d:%d], v13 offset:%d" % (20 + 4 * k, 23 + 4 * k, k * 64))
    a("v_mov_b32 v36, 0")
    a("s_waitcnt lgkmcnt(0)")
    for u in range(4):
        a("v_cmp_eq_u32 vcc, %d, v6" % u)
        a.nop(2)
        for k in range(4):
            for i in range(4):
                a("v_cndmask_b32 v%d, v36, v%d, vcc" % (128 + (u * 4 + k) * 4 + i, 20 + 4 * k + i))
    a("""
    v_mov_b32 v42, s40
    v_mov_b32 v43, s41
    """)
    lds_wait_ge(a, 7, 20, F_Q, 1, sleep=4)
    a("v_readfirstlane_b32 s45, v20")
    lds_wait_ge(a, 7, 20, F_PROG, 96, sleep=1)
    a.stamp()
    a("s_setprio 3")
    for u in range(4):
        for k in range(4):
            for h in range(2):
                r = 64 + ((u * 4 + k) * 2 + h) * 2
                a("ds_read_b64_tr_b16 v[%d:%d], v%d offset:%d" % (r, r + 1, 14 + (u & 1), (u >> 1) * 8192 + k * 2048 + h * 256))
        if u >= 1:
            a("s_waitcnt lgkmcnt(8)")
            for k in range(4):
                n = (u - 1) * 4 + k
                c_ = "0" if n == 0 else "v[36:39]"
                a("v_mfma_f32_16x16x32_bf16 v[36:39], v[%d:%d], v[%d:%d], %s" % (64 + n * 4, 67 + n * 4, 128 + n * 4, 131 + n * 4, c_))
    a("s_waitcnt lgkmcnt(0)")
    for k in range(4):
        n = 12 + k
        a("v_mfma_f32_16x16x32_bf16 v[36:39], v[%d:%d], v[%d:%d], v[36:39]" % (64 + n * 4, 67 + n * 4, 128 + n * 4, 131 + n * 4))
    a.nop(8)
    a("""
    v_cndmask_b32_e64 v40, v36, v38, s[8:9]
    v_cndmask_b32_e64 v41, v37, v39, s[8:9]
    s_mov_b32 exec_lo, 0x00ff00ff
    s_mov_b32 exec_hi, 0x00ff00ff
    s_cmp_eq_u32 s45, 2
    s_cbranch_scc1 L_f_pf
    buffer_store_dwordx4 v[40:43], v16, s[56:59], s10 offen sc1
    s_branch L_f_p2
    """)
    a.label("L_f_pf")
    a("buffer_store_dwordx4 v[40:43], v16, s[56:59], s10 offen")
    a.label("L_f_p2")
    a("s_mov_b64 exec, -1")
    a.stamp()
    a("s_mov_b32 s65, 0")
    def wd_pre():
        for t in range(8):
            for h in range(2):
                r = 64 + (t * 2 + h) * 2
                a("ds_read_b64_tr_b16 v[%d:%d], v%d offset:%d" % (r, r + 1, 8 + (t >> 1), (t & 1) * 8 + h * 1024))
    def gissue(base):
        a("buffer_load_dwordx4 v[%d:%d], v2, s[56:59], s11 offen sc1" % (base, base + 3))
        a("buffer_load_dwordx4 v[%d:%d], v2, s[56:59], s11 offen offset:1024 sc1" % (base + 4, base + 7))
    gissue(20)
    a("s_sleep 4")
    gissue(28)
    a("s_mov_b32 s64, SPIN")
    a.label("L_f_poll")
    a("""
    s_cmp_lg_u32 s65, 0
    s_cbranch_scc1 L_f_np
    ds_read_b32 v44, v7 offset:%d
    s_waitcnt lgkmcnt(0)
    v_cmp_gt_u32 vcc, 0x78, v44
    s_cbranch_vccnz L_f_np
    """ % F_PROG)
    wd_pre()
    a("s_mov_b32 s65, 1")
    a.label("L_f_np")
    a("s_waitcnt vmcnt(2)")
    tagcheck(a, [20, 24])
    a("s_cbranch_vccz L_f_d0")
    gissue(20)
    a("s_waitcnt vmcnt(2)")
    tagcheck(a, [28, 32])
    a("s_cbranch_vccz L_f_d1")
    gissue(28)
    a("s_sub_u32 s64, s64, 1")
    a("s_cbranch_scc1 L_end")
    a("s_branch L_f_poll")
    for nm, base in (("L_f_d0", 20), ("L_f_d1", 28)):
        a.label(nm)
        a("v_mov_b32 v44, v%d" % base)
        a("v_mov_b32 v45, v%d" % (base + 1))
        a("v_mov_b32 v46, v%d" % (base + 4))
        a("v_mov_b32 v47, v%d" % (base + 5))
        if base == 20: a("s_branch L_f_dd")
    a.label("L_f_dd")
    a.stamp()
    xreduce(a, "add", [44, 45, 46, 47], [48, 49, 50, 51])
    a("""
    s_mov_b32 s16, 0x3d372713
    s_mov_b32 s17, 0xc0135761
    v_cvt_pk_bf16_f32 v48, v44, v45
    v_cvt_pk_bf16_f32 v49, v46, v47
    v_lshlrev_b32 v44, 16, v48
    v_and_b32 v45, 0xffff0000, v48
    v_lshlrev_b32 v46, 16, v49
    v_and_b32 v47, 0xffff0000, v49
    v_mul_f32 v48, v44, v44
    v_mul_f32 v49, v45, v45
    v_mul_f32 v48, v48, v44
    v_mul_f32 v49, v49, v45
    v_fma_f32 v48, v48, s16, v44
    v_fma_f32 v49, v49, s16, v45
    v_mul_f32 v48, s17, v48
    v_mul_f32 v49, s17, v49
    v_exp_f32 v48, v48
    v_exp_f32 v49, v49
    s_nop 0
    v_add_f32 v48, 1.0, v48
    v_add_f32 v49, 1.0, v49
    v_rcp_f32 v48, v48
    v_rcp_f32 v49, v49
    s_nop 0
    v_mul_f32 v44, v44, v48
    v_mul_f32 v45, v45, v49
    v_cvt_pk_bf16_f32 v48, v44, v45
    v_lshlrev_b32 v44, 16, v48
    v_and_b32 v45, 0xffff0000, v48
    v_mul_f32 v44, v44, v46
    v_mul_f32 v45, v45, v47
    v_cvt_pk_bf16_f32 v48, v44, v45
    ds_write_b32 v17, v48
    """)
    for t in range(8):
        a("ds_read_b128 v[%d:%d], v18 offset:%d" % (128 + 4 * t, 131 + 4 * t, (7 - t) * 64))
    a("s_cmp_lg_u32 s65, 0")
    a("s_cbranch_scc1 L_f_have")
    lds_wait_ge(a, 7, 44, F_PROG, 120, sleep=0)
    wd_pre()
    a.label("L_f_have")
    a("s_waitcnt lgkmcnt(0)")
    a.stamp()
    for t in range(8):
        c_ = "0" if t == 0 else "v[36:39]"
        a("v_mfma_f32_16x16x32_bf16 v[36:39], v[%d:%d], v[%d:%d], %s" % (64 + 4 * t, 67 + 4 * t, 128 + 4 * t, 131 + 4 * t, c_))
    a.nop(8)
    a("""
    v_cndmask_b32_e64 v40, v36, v38, s[8:9]
    v_cndmask_b32_e64 v41, v37, v39, s[8:9]
    buffer_store_dwordx4 v[40:43], v19, s[56:59], s12 offen sc1
    """)
    a.stamp()
    a.stamp_flush(28, [(15,3,0),(12,6,0)])
    a.label("L_end")
    a("s_endpgm")

    out += a.l
    out.append('''.section .rodata,"a"
.p2align 6
.amdhsa_kernel %s_kernel
  .amdhsa_next_free_vgpr 200
  .amdhsa_next_free_sgpr 102
  .amdhsa_accum_offset 200
  .amdhsa_group_segment_fixed_size 0
  .amdhsa_kernarg_size 96
  .amdhsa_user_sgpr_count 2
  .amdhsa_user_sgpr_kernarg_segment_ptr 1
  .amdhsa_system_sgpr_workgroup_id_x 1
  .amdhsa_float_denorm_mode_32 3
.end_amdhsa_kernel''' % NAME)
    return "\n".join(out) + "\n"

if __name__ == "__main__":
    ap = argparse.ArgumentParser()
    ap.add_argument("-o", default="cdna_kernels/%s.s" % NAME)
    ap.add_argument("--diag", action="store_true")
    ap.add_argument("--slow", action="store_true")
    ap.add_argument("-W", type=int, default=20)
    args = ap.parse_args()
    open(args.o, "w").write(gen(diag=args.diag, W=args.W, forceslow=args.slow))
    print("wrote", args.o)
```

```python
import sys, argparse

NAME = "recurrent_scan__sliding_block_cached__glu_gated_geglu__decode"
HEADER = open("cdna_kernels/%s.s.ref" % NAME).read().split("; Override launch")[0]

INB1 = 0x10000
INB4 = 0x20000
INB2 = 0x40000
INB3 = 0x400000
DIAG = 0x1000000
L_Q = 0
L_XN = 1024
L_FL = 2048
L_XNF = L_FL
L_QF = L_FL + 4
L_KVF = L_FL + 16
L_FF = L_FL + 32
L_S = L_FL + 256
L_O = 3072
LDS_BYTES = 3072 + 8192

LOG2E = 0x3fb8aa3b
SCALE = 0x3db504f3

class Asm:
    def __init__(self, diag=False):
        self.l = []; self.diag = diag; self.nstamp = 0
    def __call__(self, s):
        for x in s.strip().split("\n"):
            x = x.strip()
            if x: self.l.append("    " + x)
    def label(self, n): self.l.append(n + ":")
    def nop(self, n=1): self("s_nop %d" % (n - 1))
    def comment(self, s): self.l.append("    ; " + s)
    def stamp(self):
        if not self.diag: return
        i = self.nstamp; assert i < 16
        self("s_memrealtime s[%d:%d]" % (66 + 2 * i, 67 + 2 * i))
        self.nstamp += 1
    def stamp_flush(self, vtmp):
        if not self.diag: return
        n = self.nstamp
        self("s_waitcnt lgkmcnt(0)")
        self("s_mov_b64 exec, 1")
        self("s_lshl_b32 s64, s2, 10")
        self("s_lshl_b32 s65, s3, 7")
        self("s_add_u32 s64, s64, s65")
        self("s_add_u32 s64, s64, 0x%x" % DIAG)
        self("v_mov_b32 v%d, 0" % (vtmp + 2))
        for i in range(n):
            self("v_mov_b32 v%d, s%d" % (vtmp, 66 + 2 * i))
            self("v_mov_b32 v%d, s%d" % (vtmp + 1, 67 + 2 * i))
            self("buffer_store_dwordx2 v[%d:%d], v%d, s[56:59], s64 offen offset:%d" % (vtmp, vtmp + 1, vtmp + 2, i * 8))
            self.nop(2)
        self("v_mov_b32 v%d, %d" % (vtmp, n))
        self("buffer_store_dword v%d, v%d, s[56:59], s64 offen offset:120" % (vtmp, vtmp + 2))

def allreduce(a, op, v, t):
    for r in (1, 2, 4, 8):
        a.nop(2)
        a("v_%s_f32_dpp v%d, v%d, v%d row_ror:%d row_mask:0xf bank_mask:0xf" % (op, v, v, v, r))
    for sw in ("16", "32"):
        a("v_mov_b32 v%d, v%d" % (t, v))
        a.nop(2)
        a("v_permlane%s_swap_b32 v%d, v%d" % (sw, v, t))
        a("v_%s_f32 v%d, v%d, v%d" % (op, v, v, t))

def bf16_round(a, dst, src, tmp):
    a("v_cvt_pk_bf16_f32 v%d, v%d, v%d" % (tmp, src, src))
    a("v_lshlrev_b32 v%d, 16, v%d" % (dst, tmp))

def layernorm(a, xr, f, t, xp):
    for i in range(4):
        a("v_lshlrev_b32 v%d, 16, v%d" % (f + 2 * i, xr + i))
        a("v_and_b32 v%d, 0xffff0000, v%d" % (f + 2 * i + 1, xr + i))
    a("v_add_f32 v%d, v%d, v%d" % (t, f, f + 1))
    a("v_add_f32 v%d, v%d, v%d" % (t + 1, f + 2, f + 3))
    a("v_add_f32 v%d, v%d, v%d" % (t + 2, f + 4, f + 5))
    a("v_add_f32 v%d, v%d, v%d" % (t + 3, f + 6, f + 7))
    a("v_add_f32 v%d, v%d, v%d" % (t, t, t + 1))
    a("v_add_f32 v%d, v%d, v%d" % (t + 2, t + 2, t + 3))
    a("v_add_f32 v%d, v%d, v%d" % (t, t, t + 2))
    allreduce(a, "add", t, t + 1)
    a("v_mul_f32 v%d, 0x3b000000, v%d" % (t, t))
    a("v_sub_f32 v%d, v%d, v%d" % (t + 2, f, t))
    a("v_mul_f32 v%d, v%d, v%d" % (t + 1, t + 2, t + 2))
    for i in range(1, 8):
        a("v_sub_f32 v%d, v%d, v%d" % (t + 2, f + i, t))
        a("v_fmac_f32 v%d, v%d, v%d" % (t + 1, t + 2, t + 2))
    allreduce(a, "add", t + 1, t + 2)
    a("v_mul_f32 v%d, 0x3b000000, v%d" % (t + 1, t + 1))
    a("v_cvt_pk_bf16_f32 v%d, v%d, v%d" % (t + 2, t, t + 1))
    a("v_lshlrev_b32 v%d, 16, v%d" % (t, t + 2))
    a("v_and_b32 v%d, 0xffff0000, v%d" % (t + 1, t + 2))
    a("v_add_f32 v%d, 0x3727c5ac, v%d" % (t + 1, t + 1))
    bf16_round(a, t + 1, t + 1, t + 2)
    a("v_sqrt_f32 v%d, v%d" % (t + 1, t + 1))
    a.nop(1)
    bf16_round(a, t + 1, t + 1, t + 2)
    a("v_rcp_f32 v%d, v%d" % (t + 2, t + 1))
    for i in range(8):
        a("v_sub_f32 v%d, v%d, v%d" % (f + i, f + i, t))
    for i in range(4):
        a("v_cvt_pk_bf16_f32 v%d, v%d, v%d" % (xp + i, f + 2 * i, f + 2 * i + 1))
    for i in range(4):
        a("v_lshlrev_b32 v%d, 16, v%d" % (f + 2 * i, xp + i))
        a("v_and_b32 v%d, 0xffff0000, v%d" % (f + 2 * i + 1, xp + i))
    for i in range(8):
        a("v_mul_f32 v%d, v%d, v%d" % (t + 3, f + i, t + 2))
        a("v_fma_f32 v%d, -v%d, v%d, v%d" % (t + 4, t + 3, t + 1, f + i))
        a("v_fma_f32 v%d, v%d, v%d, v%d" % (f + i, t + 4, t + 2, t + 3))
    for i in range(4):
        a("v_cvt_pk_bf16_f32 v%d, v%d, v%d" % (xp + i, f + 2 * i, f + 2 * i + 1))

def srd(a, d, base, nbytes):
    a("s_mov_b32 s%d, s%d" % (d, base))
    a("s_mov_b32 s%d, s%d" % (d + 1, base + 1))
    a("s_mov_b32 s%d, 0x%x" % (d + 2, nbytes))
    a("s_mov_b32 s%d, 0x20000" % (d + 3))

def common_after_kernarg(a):
    a("s_waitcnt lgkmcnt(0)")
    a("s_load_dwordx2 s[40:41], s[38:39], 0")
    srd(a, 56, 38, 0x20000000)

def make_tag(a):
    a("s_waitcnt lgkmcnt(0)")
    a("s_add_u32 s40, s40, 1")
    a("s_add_u32 s41, s41, 0x9e3779b9")

def lds_wait(a, name, vaddr, vtmp, nd, sleep=1, offset=0):
    a("s_mov_b32 s64, SPIN")
    a.label(name)
    if nd == 1:
        a("ds_read_b32 v%d, v%d offset:%d" % (vtmp, vaddr, offset))
        a("s_waitcnt lgkmcnt(0)")
        a("v_cmp_eq_u32 vcc, 0, v%d" % vtmp)
    else:
        a("ds_read_b128 v[%d:%d], v%d offset:%d" % (vtmp, vtmp + 3, vaddr, offset))
        a("s_waitcnt lgkmcnt(0)")
        a("v_min_u32 v%d, v%d, v%d" % (vtmp, vtmp, vtmp + 1))
        a("v_min3_u32 v%d, v%d, v%d, v%d" % (vtmp, vtmp, vtmp + 2, vtmp + 3))
        a("v_cmp_eq_u32 vcc, 0, v%d" % vtmp)
    a("s_cbranch_vccz %s_ok" % name)
    a("s_sleep %d" % sleep)
    a("s_sub_u32 s64, s64, 1")
    a("s_cbranch_scc1 L_end")
    a("s_branch %s" % name)
    a.label(name + "_ok")

def gen(diag=False, ldflag="nt", stflag="sc1", pollflag="sc1"):
    a = Asm(diag)
    LD = (" " + ldflag) if ldflag else ""
    ST = " " + stflag
    PL = " " + pollflag
    out = []
    out.append(HEADER.rstrip("\n"))
    out.append("; @launch grid=(256,1,1) block=(448,1,1) lds=%d" % LDS_BYTES)
    out.append('.amdgcn_target "amdgcn-amd-amdhsa--gfx950"')
    out.append(".set SPIN, 0x40000")
    out.append(".text")
    out.append(".globl %s_kernel" % NAME)
    out.append(".p2align 8")
    out.append(".type %s_kernel,@function" % NAME)
    out.append("%s_kernel:" % NAME)

    a("""
    s_cmp_ge_u32 s2, 256
    s_cbranch_scc1 L_end
    s_load_dwordx16 s[16:31], s[0:1], 0
    s_load_dwordx8 s[32:39], s[0:1], 64
    v_lshrrev_b32 v1, 6, v0
    v_and_b32 v0, 63, v0
    s_and_b32 s4, s2, 7
    v_readfirstlane_b32 s3, v1
    s_lshr_b32 s5, s2, 3
    s_mov_b32 s42, 0x05040100
    s_mov_b32 s43, 0x07060302
    """)
    a.stamp()
    a("""
    s_cmp_eq_u32 s3, 0
    s_cbranch_scc1 L_q
    s_cmp_lt_u32 s3, 5
    s_cbranch_scc1 L_att
    s_cmp_eq_u32 s3, 5
    s_cbranch_scc1 L_f
    """)
    nst0 = a.nstamp

    a.label("L_o")
    a("""
    v_lshlrev_b32 v2, 4, v0
    s_lshl_b32 s6, s4, 19
    s_lshl_b32 s7, s5, 14
    s_add_u32 s6, s6, s7
    s_add_u32 s7, s6, 4096
    s_add_u32 s8, s6, 8192
    s_add_u32 s9, s6, 12288
    s_lshl_b32 s10, s2, 13
    s_add_u32 s11, s10, 0x%x
    s_add_u32 s10, s10, 0x%x
    v_lshrrev_b32 v3, 3, v0
    v_lshlrev_b32 v3, 4, v3
    """ % (INB3, INB2))
    a("""
    s_lshl_b32 s12, s2, 4
    v_lshlrev_b32 v4, 15, v0
    v_add_u32 v4, s12, v4
    s_mov_b32 s12, 0x%x
    s_mov_b32 s13, 0x%x
    s_mov_b32 s14, 0x%x
    s_mov_b32 s15, 0x%x
    v_lshrrev_b32 v5, 5, v0
    v_lshlrev_b32 v5, 1, v5
    s_lshl_b32 s60, s2, 2
    v_add_u32 v5, s60, v5
    v_mov_b32 v7, %d
    """ % (INB3, INB3 + 8192, INB3 + 16384, INB3 + 24576, L_FL))
    common_after_kernarg(a)
    srd(a, 44, 24, 4096 * 512 * 2)
    srd(a, 48, 16, 1024)
    srd(a, 52, 34, 1024)
    a("buffer_load_ushort v6, v5, s[48:51], 0 offen")
    make_tag(a)
    a("s_barrier")
    a("s_cmp_ge_u32 s2, 224")
    a("s_cbranch_scc1 L_o_w2")
    lds_wait(a, "L_o_w1", 7, 16, 1, sleep=2, offset=L_FF - L_FL)
    a("s_branch L_o_go")
    a.label("L_o_w2")
    lds_wait(a, "L_o_w3", 7, 16, 4, sleep=2, offset=L_KVF - L_FL)
    a.label("L_o_go")
    a.stamp()
    for k in range(16):
        a("buffer_load_dwordx4 v[%d:%d], v2, s[44:47], s%d offen offset:%d%s" % (16 + 4 * k, 19 + 4 * k, 6 + k // 4, (k % 4) * 1024, LD))
    for i in range(4):
        a("v_mov_b32 v%d, 0" % (144 + 4 * i))
        a("v_mov_b32 v%d, 0" % (145 + 4 * i))
        a("v_mov_b32 v%d, s40" % (146 + 4 * i))
        a("v_mov_b32 v%d, s41" % (147 + 4 * i))
    a("s_waitcnt vmcnt(0)")
    a.stamp()
    for kp in range(8):
        for q in range(4):
            wa = 16 + (2 * kp) * 4 + q
            wb = 16 + (2 * kp + 1) * 4 + q
            a("v_perm_b32 v%d, v%d, v%d, s42" % (80 + kp * 8 + 2 * q, wb, wa))
            a("v_perm_b32 v%d, v%d, v%d, s43" % (80 + kp * 8 + 2 * q + 1, wb, wa))
    a("s_mov_b32 s64, SPIN")
    a.label("L_o_gate")
    for w in range(4):
        a("ds_read_b32 v%d, v7 offset:%d" % (16 + w, L_S - L_FL + 16 * w + 8))
    a("""
    s_waitcnt lgkmcnt(0)
    v_min_u32 v16, v16, v17
    v_min3_u32 v16, v16, v18, v19
    v_cmp_eq_u32 vcc, 0, v16
    s_cbranch_vccz L_o_gate_done
    s_sleep 2
    s_sub_u32 s64, s64, 1
    s_cbranch_scc1 L_end
    s_branch L_o_gate
    """)
    a.label("L_o_gate_done")
    a.stamp()
    a("s_setprio 3")
    a("s_mov_b32 s64, SPIN")
    a("s_add_u32 s65, s10, 4096")
    a.label("L_o_poll2")
    a("s_sub_u32 s64, s64, 1")
    a("s_cbranch_scc1 L_end")
    for k in range(4):
        a("buffer_load_dwordx4 v[%d:%d], v2, s[56:59], s10 offen offset:%d%s" % (16 + 4 * k, 19 + 4 * k, k * 1024, PL))
    for k in range(4):
        a("buffer_load_dwordx4 v[%d:%d], v3, s[56:59], s65 offen offset:%d%s" % (32 + 4 * k, 35 + 4 * k, k * 128, PL))
    a("s_waitcnt vmcnt(0)")
    a("v_cmp_ne_u64 vcc, s[40:41], v[18:19]")
    for k in range(1, 8):
        a("v_cmp_ne_u64 s[60:61], s[40:41], v[%d:%d]" % (18 + 4 * k, 19 + 4 * k))
        a("s_or_b64 vcc, vcc, s[60:61]")
    a("s_cbranch_scc1 L_o_poll2")
    a.stamp()
    a("""
    v_max3_f32 v48, v32, v36, v40
    v_max_f32 v48, v48, v44
    """)
    a.nop(2)
    a("v_max_f32_dpp v48, v48, v48 row_ror:8 row_mask:0xf bank_mask:0xf")
    for sw in ("16", "32"):
        a("v_mov_b32 v49, v48")
        a.nop(2)
        a("v_permlane%s_swap_b32 v48, v49" % sw)
        a("v_max_f32 v48, v48, v49")
    for k in range(4):
        a("v_sub_f32 v%d, v%d, v48" % (50 + k, 32 + 4 * k))
    for k in range(4):
        a("v_exp_f32 v%d, v%d" % (50 + k, 50 + k))
    a.nop(1)
    a("""
    v_mul_f32 v54, v50, v33
    v_mul_f32 v55, v50, v16
    v_mul_f32 v56, v50, v17
    """)
    for k in range(1, 4):
        a("v_fmac_f32 v54, v%d, v%d" % (50 + k, 33 + 4 * k))
        a("v_fmac_f32 v55, v%d, v%d" % (50 + k, 16 + 4 * k))
        a("v_fmac_f32 v56, v%d, v%d" % (50 + k, 17 + 4 * k))
    a.nop(1)
    for r in (54, 55, 56):
        a("v_add_f32_dpp v%d, v%d, v%d row_ror:8 row_mask:0xf bank_mask:0xf" % (r, r, r))
    for sw in ("16", "32"):
        for r in (54, 55, 56):
            a("v_mov_b32 v%d, v%d" % (r + 3, r))
        a.nop(1)
        for r in (54, 55, 56):
            a("v_permlane%s_swap_b32 v%d, v%d" % (sw, r, r + 3))
        for r in (54, 55, 56):
            a("v_add_f32 v%d, v%d, v%d" % (r, r, r + 3))
    a("v_rcp_f32 v57, v54")
    a.nop(1)
    for r in (55, 56):
        a("v_mul_f32 v58, v%d, v57" % r)
        a("v_fma_f32 v59, -v58, v54, v%d" % r)
        a("v_fma_f32 v%d, v59, v57, v58" % r)
    a("v_cvt_pk_bf16_f32 v60, v55, v56")
    a.nop(1)
    for i in range(8):
        a("v_readlane_b32 s%d, v60, %d" % (20 + i, i))
    a.nop(2)
    for kp in range(8):
        for col in range(8):
            a("v_dot2c_f32_bf16 v%d, s%d, v%d" % (144 + 4 * (col // 2) + (col % 2), 20 + kp, 80 + kp * 8 + col))
    a.nop(3)
    for i in range(4):
        a("buffer_store_dwordx4 v[%d:%d], v4, s[56:59], s%d offen%s" % (144 + 4 * i, 147 + 4 * i, 12 + i, ST))
    a.stamp()
    a("s_add_u32 s60, s11, 4096")
    a("s_mov_b32 s64, SPIN")
    a.label("L_o_poll3")
    a("s_sub_u32 s64, s64, 1")
    a("s_cbranch_scc1 L_end")
    for k in range(4):
        a("buffer_load_dwordx4 v[%d:%d], v2, s[56:59], s11 offen offset:%d%s" % (16 + 4 * k, 19 + 4 * k, k * 1024, PL))
    for k in range(4):
        a("buffer_load_dwordx4 v[%d:%d], v2, s[56:59], s60 offen offset:%d%s" % (32 + 4 * k, 35 + 4 * k, k * 1024, PL))
    a("s_waitcnt vmcnt(0)")
    a("v_cmp_ne_u64 vcc, s[40:41], v[46:47]")
    a("s_mov_b32 vcc_hi, 0")
    for k in range(7):
        a("v_cmp_ne_u64 s[62:63], s[40:41], v[%d:%d]" % (18 + 4 * k, 19 + 4 * k))
        a("s_or_b64 vcc, vcc, s[62:63]")
    a("s_cbranch_scc1 L_o_poll3")
    a.stamp()
    a("""
    s_mov_b32 exec_lo, 0
    v_mov_b32 v44, 0
    v_mov_b32 v45, 0
    s_mov_b32 exec_lo, -1
    v_add_f32 v16, v16, v20
    v_add_f32 v17, v17, v21
    v_add_f32 v24, v24, v28
    v_add_f32 v25, v25, v29
    v_add_f32 v32, v32, v36
    v_add_f32 v33, v33, v37
    v_add_f32 v40, v40, v44
    v_add_f32 v41, v41, v45
    v_add_f32 v16, v16, v24
    v_add_f32 v17, v17, v25
    v_add_f32 v32, v32, v40
    v_add_f32 v33, v33, v41
    """)
    a.nop(1)
    a("""
    v_permlane32_swap_b32 v16, v17
    v_permlane32_swap_b32 v32, v33
    v_add_f32 v16, v16, v17
    v_add_f32 v32, v32, v33
    v_mov_b32 v17, v16
    v_mov_b32 v33, v32
    """)
    a.nop(1)
    a("""
    v_permlane16_swap_b32 v16, v17
    v_permlane16_swap_b32 v32, v33
    v_add_f32 v16, v16, v17
    v_add_f32 v32, v32, v33
    """)
    for r in (1, 2, 4, 8):
        a.nop(1)
        a("v_add_f32_dpp v16, v16, v16 row_ror:%d row_mask:0xf bank_mask:0xf" % r)
        a("v_add_f32_dpp v32, v32, v32 row_ror:%d row_mask:0xf bank_mask:0xf" % r)
    a("""
    v_cvt_pk_bf16_f32 v18, v16, v32
    v_lshlrev_b32 v16, 16, v18
    v_and_b32 v32, 0xffff0000, v18
    v_mul_f32 v19, 0xbfb8aa3b, v32
    v_exp_f32 v19, v19
    """)
    a.nop(1)
    a("v_add_f32 v19, 1.0, v19")
    a("v_rcp_f32 v20, v19")
    a.nop(1)
    a("""
    v_mul_f32 v21, v32, v20
    v_fma_f32 v22, -v21, v19, v32
    v_fma_f32 v22, v22, v20, v21
    v_cmp_class_f32 vcc, v22, 3
    """)
    a.nop(2)
    a("v_cndmask_b32 v22, v22, v21, vcc")
    bf16_round(a, 22, 22, 23)
    a("v_mul_f32 v22, v16, v22")
    bf16_round(a, 22, 22, 23)
    a("""
    v_lshlrev_b32 v6, 16, v6
    v_add_f32 v22, v6, v22
    v_cvt_pk_bf16_f32 v22, v22, v22
    s_mov_b32 exec_lo, 1
    s_mov_b32 exec_hi, 1
    buffer_store_short v22, v5, s[52:55], 0 offen
    s_cmp_lg_u32 s2, 0
    s_cbranch_scc1 L_o_done
    s_mov_b32 exec_hi, 0
    v_mov_b32 v24, s40
    v_mov_b32 v25, s41
    v_mov_b32 v26, 0
    buffer_store_dwordx2 v[24:25], v26, s[56:59], 0 offen
    """)
    a.label("L_o_done")
    a.stamp()
    a.stamp_flush(28)
    a("s_endpgm")

    a.nstamp = nst0
    a.label("L_att")
    a("""
    s_sub_u32 s33, s3, 1
    """)
    a.l.pop()
    a("""
    s_sub_u32 s62, s3, 1
    s_lshl_b32 s6, s4, 24
    s_lshl_b32 s7, s5, 15
    s_add_u32 s6, s6, s7
    s_lshl_b32 s7, s62, 13
    s_add_u32 s6, s6, s7
    s_add_u32 s6, s6, 0xf00000
    s_add_u32 s7, s6, 4096
    v_and_b32 v4, 15, v0
    v_lshrrev_b32 v5, 4, v0
    v_lshlrev_b32 v2, 8, v4
    v_lshl_or_b32 v2, v5, 4, v2
    v_lshlrev_b32 v3, 4, v4
    v_lshl_or_b32 v3, v5, 10, v3
    """)
    common_after_kernarg(a)
    srd(a, 44, 18, 0x8000000)
    srd(a, 48, 20, 0x8000000)
    a("s_barrier")
    a.stamp()
    for tau in range(2):
        for kk in range(4):
            r = 16 + (tau * 4 + kk) * 4
            a("buffer_load_dwordx4 v[%d:%d], v2, s[44:47], s%d offen offset:%d%s" % (r, r + 3, 6 + tau, kk * 64, LD))
    for j in range(8):
        r = 48 + j * 4
        a("buffer_load_dwordx4 v[%d:%d], v3, s[48:51], s%d offen offset:%d%s" % (r, r + 3, 6 + j // 4, (j % 4) * 256, LD))
    a("""
    s_lshl_b32 s8, s62, 2
    s_add_u32 s8, s8, %d
    v_mov_b32 v6, s8
    v_mov_b32 v7, 1
    ds_write_b32 v6, v7
    """ % L_KVF)
    a.stamp()
    a("""
    v_lshrrev_b32 v6, 2, v4
    v_lshlrev_b32 v6, 8, v6
    v_lshl_or_b32 v6, v5, 4, v6
    v_mov_b32 v7, %d
    """ % L_QF)
    a("""
    s_lshl_b32 s8, s62, 11
    s_add_u32 s8, s8, %d
    v_lshlrev_b32 v8, 2, v0
    v_add_u32 v8, s8, v8
    v_lshrrev_b32 v9, 2, v4
    v_lshlrev_b32 v9, 6, v9
    s_lshl_b32 s8, s62, 4
    s_add_u32 s8, s8, %d
    v_add_u32 v9, s8, v9
    """ % (L_O, L_S))
    a("""
    s_lshl_b32 s8, s62, 6
    s_add_u32 s9, s8, %d
    v_lshlrev_b32 v10, 2, v4
    v_lshl_or_b32 v10, v5, 9, v10
    v_add_u32 v10, s9, v10
    s_add_u32 s9, s8, %d
    v_mov_b32 v11, s9
    """ % (L_O, L_S))
    a("""
    s_lshl_b32 s8, s62, 19
    s_lshl_b32 s9, s4, 13
    s_add_u32 s8, s8, s9
    s_add_u32 s8, s8, 0x%x
    v_lshrrev_b32 v12, 1, v4
    v_lshlrev_b32 v12, 16, v12
    v_add_u32 v12, s8, v12
    s_lshl_b32 s9, s5, 4
    s_add_u32 s9, s9, 4096
    v_add_u32 v13, s9, v12
    v_and_b32 v14, 1, v4
    v_lshlrev_b32 v14, 6, v14
    v_lshl_or_b32 v14, v5, 4, v14
    s_lshl_b32 s9, s5, 7
    v_add3_u32 v12, v12, v14, s9
    s_mov_b32 s10, 0x%x
    s_mov_b32 s11, 0x%x
    """ % (INB2, SCALE, LOG2E))
    make_tag(a)
    a("s_waitcnt vmcnt(8)")
    a.stamp()
    a("s_mov_b32 s64, SPIN")
    a.label("L_att_qwait")
    a("ds_read_b32 v80, v7")
    for kk in range(4):
        a("ds_read_b128 v[%d:%d], v6 offset:%d" % (96 + 4 * kk, 99 + 4 * kk, L_Q + kk * 64))
    a("""
    s_waitcnt lgkmcnt(0)
    v_cmp_eq_u32 vcc, 0, v80
    s_cbranch_vccz L_att_qok
    s_sleep 1
    s_sub_u32 s64, s64, 1
    s_cbranch_scc1 L_end
    s_branch L_att_qwait
    """)
    a.label("L_att_qok")
    a.stamp()
    a("s_setprio 3")
    for kk in range(4):
        for tau in range(2):
            r = 16 + (tau * 4 + kk) * 4
            c = "0" if kk == 0 else "v[%d:%d]" % (80 + 4 * tau, 83 + 4 * tau)
            a("v_mfma_f32_16x16x32_bf16 v[%d:%d], v[%d:%d], v[%d:%d], %s" % (80 + 4 * tau, 83 + 4 * tau, r, r + 3, 96 + 4 * kk, 99 + 4 * kk, c))
    a.nop(8)
    for rnd in range(2):
        for i in range(4):
            a("v_cvt_pk_bf16_f32 v%d, v%d, v%d" % (88 + i, 80 + 2 * i, 81 + 2 * i))
        for i in range(4):
            a("v_lshlrev_b32 v%d, 16, v%d" % (80 + 2 * i, 88 + i))
            a("v_and_b32 v%d, 0xffff0000, v%d" % (81 + 2 * i, 88 + i))
        if rnd == 0:
            for i in range(8):
                a("v_mul_f32 v%d, s10, v%d" % (80 + i, 80 + i))
    a("""
    v_max3_f32 v92, v80, v81, v82
    v_max3_f32 v93, v83, v84, v85
    v_max3_f32 v92, v92, v86, v87
    v_max_f32 v92, v92, v93
    """)
    for sw in ("16", "32"):
        a("v_mov_b32 v93, v92")
        a.nop(2)
        a("v_permlane%s_swap_b32 v92, v93" % sw)
        a("v_max_f32 v92, v92, v93")
    a("v_mul_f32 v92, s11, v92")
    for i in range(8):
        a("v_fma_f32 v%d, v%d, s11, -v92" % (80 + i, 80 + i))
    for i in range(8):
        a("v_exp_f32 v%d, v%d" % (80 + i, 80 + i))
    a.nop(1)
    for i in range(4):
        a("v_cvt_pk_bf16_f32 v%d, v%d, v%d" % (88 + i, 80 + 2 * i, 81 + 2 * i))
    a("""
    v_add_f32 v93, v80, v81
    v_add_f32 v94, v82, v83
    v_add_f32 v95, v84, v85
    v_add_f32 v96, v86, v87
    v_add_f32 v93, v93, v94
    v_add_f32 v95, v95, v96
    v_add_f32 v93, v93, v95
    """)
    for sw in ("16", "32"):
        a("v_mov_b32 v96, v93")
        a.nop(2)
        a("v_permlane%s_swap_b32 v93, v96" % sw)
        a("v_add_f32 v93, v93, v96")
    a("""
    v_mov_b32 v94, 1
    v_mov_b32 v95, 1
    s_waitcnt vmcnt(0)
    """)
    a.stamp()
    for t in range(8):
        q = t // 2
        sel = "s42" if t % 2 == 0 else "s43"
        for i in range(4):
            a("v_perm_b32 v%d, v%d, v%d, %s" % (96 + t * 4 + i, 48 + (2 * i + 1) * 4 + q, 48 + (2 * i) * 4 + q, sel))
    a.nop(2)
    for t in range(8):
        a("v_mfma_f32_16x16x32_bf16 v[%d:%d], v[88:91], v[%d:%d], 0" % (128 + 4 * t, 131 + 4 * t, 96 + 4 * t, 99 + 4 * t))
    a.nop(8)
    for t in range(0, 8, 2):
        a("ds_write2st64_b32 v8, v%d, v%d offset0:%d offset1:%d" % (128 + 4 * t, 128 + 4 * (t + 1), t, t + 1))
    a("s_mov_b64 exec, 0x1111")
    a("ds_write_b128 v9, v[92:95]")
    a("s_mov_b64 exec, -1")
    a.stamp()
    a("s_mov_b32 s64, SPIN")
    a.label("L_att_cwait")
    a("s_sub_u32 s64, s64, 1")
    a("s_cbranch_scc1 L_end")
    for w in range(4):
        a("ds_read_b128 v[%d:%d], v11 offset:%d" % (16 + 4 * w, 19 + 4 * w, 16 * w))
    for w in range(4):
        a("ds_read2st64_b32 v[%d:%d], v10 offset0:%d offset1:%d" % (32 + 2 * w, 33 + 2 * w, 8 * w, 8 * w + 1))
    a("""
    s_waitcnt lgkmcnt(0)
    v_min_u32 v44, v18, v22
    v_min3_u32 v44, v44, v26, v30
    v_cmp_eq_u32 vcc, 0, v44
    s_cbranch_vccnz L_att_cwait
    """)
    a.stamp()
    a("""
    v_max3_f32 v44, v16, v20, v24
    v_max_f32 v44, v44, v28
    """)
    for w in range(4):
        a("v_sub_f32 v%d, v%d, v44" % (48 + w, 16 + 4 * w))
    for w in range(4):
        a("v_exp_f32 v%d, v%d" % (48 + w, 48 + w))
    a.nop(1)
    a("""
    v_mul_f32 v45, v48, v17
    v_mul_f32 v40, v48, v32
    v_mul_f32 v41, v48, v33
    """)
    for w in range(1, 4):
        a("v_fmac_f32 v45, v%d, v%d" % (48 + w, 17 + 4 * w))
        a("v_fmac_f32 v40, v%d, v%d" % (48 + w, 32 + 2 * w))
        a("v_fmac_f32 v41, v%d, v%d" % (48 + w, 33 + 2 * w))
    a("""
    v_mov_b32 v42, s40
    v_mov_b32 v43, s41
    v_mov_b32 v46, s40
    v_mov_b32 v47, s41
    buffer_store_dwordx4 v[40:43], v12, s[56:59], 0 offen%s
    s_mov_b64 exec, 0x5555
    buffer_store_dwordx4 v[44:47], v13, s[56:59], 0 offen%s
    """ % (ST, ST))
    a.stamp()
    a.stamp_flush(28)
    a("s_endpgm")

    a.nstamp = nst0
    a.label("L_q")
    a("s_setprio 3")
    a("""
    v_lshlrev_b32 v2, 3, v0
    v_mov_b32 v8, 0
    v_mov_b32 v9, 0
    ds_write_b64 v2, v[8:9] offset:%d
    """ % L_FL)
    a("""
    v_lshlrev_b32 v2, 4, v0
    v_lshrrev_b32 v3, 2, v0
    v_lshlrev_b32 v3, 17, v3
    v_and_b32 v4, 3, v0
    v_lshl_or_b32 v3, v4, 4, v3
    s_lshl_b32 s6, s4, 10
    s_and_b32 s7, s5, 15
    s_lshl_b32 s7, s7, 6
    s_add_u32 s6, s6, s7
    s_lshr_b32 s7, s5, 4
    s_lshl_b32 s7, s7, 21
    s_add_u32 s6, s6, s7
    v_add_u32 v3, s6, v3
    """)
    for k in range(8):
        a("s_mov_b32 s%d, 0x%x" % (6 + k, k * 16384))
    a("s_waitcnt lgkmcnt(0)")
    srd(a, 48, 16, 1024)
    srd(a, 44, 22, 512 * 4096 * 2)
    a.stamp()
    a("buffer_load_dwordx4 v[8:11], v2, s[48:51], 0 offen")
    a("v_add_u32 v12, 0x2000, v3")
    for k in range(16):
        a("buffer_load_dwordx4 v[%d:%d], v%d, s[44:47], s%d offen%s" % (16 + 4 * k, 19 + 4 * k, 3 if k % 2 == 0 else 12, 6 + k // 2, LD))
    a("s_barrier")
    a.stamp()
    a("s_load_dwordx2 s[40:41], s[38:39], 0")
    srd(a, 56, 38, 0x20000000)
    a("""
    s_lshl_b32 s14, s4, 13
    s_add_u32 s14, s14, 0x%x
    s_add_u32 s13, s14, 4096
    s_lshr_b32 s15, s5, 4
    s_lshl_b32 s15, s15, 12
    s_add_u32 s15, s15, s14
    s_and_b32 s12, s5, 15
    s_lshl_b32 s12, s12, 8
    s_add_u32 s15, s15, s12
    v_lshrrev_b32 v5, 5, v0
    v_lshlrev_b32 v5, 5, v5
    v_bfe_u32 v6, v0, 4, 1
    v_lshl_or_b32 v5, v6, 4, v5
    v_lshl_or_b32 v5, v4, 6, v5
    v_lshlrev_b32 v6, 2, v0
    v_mov_b32 v7, %d
    """ % (INB1, L_FL))
    a("""
    s_lshr_b32 s12, s5, 4
    s_lshl_b32 s12, s12, 9
    s_add_u32 s12, s12, %d
    v_lshrrev_b32 v13, 2, v0
    v_lshlrev_b32 v13, 5, v13
    v_add_u32 v13, s12, v13
    v_mov_b32 v14, 1
    """ % L_XN)
    for i in range(8):
        a("v_mov_b32 v%d, 0" % (112 + i))
    make_tag(a)
    a("s_waitcnt vmcnt(16)")
    a.stamp()
    layernorm(a, 8, 80, 88, 96)
    a("ds_write_b128 v2, v[96:99] offset:%d" % L_XN)
    a("ds_write_b32 v7, v14 offset:%d" % (L_XNF - L_FL))
    a("ds_read_b128 v[100:103], v13")
    a("ds_read_b128 v[104:107], v13 offset:16")
    a("s_waitcnt lgkmcnt(0)")
    a.stamp()
    for kp in range(8):
        a("s_waitcnt vmcnt(%d)" % (14 - 2 * kp))
        for q in range(4):
            wa = 16 + (2 * kp) * 4 + q
            wb = 16 + (2 * kp + 1) * 4 + q
            a("v_perm_b32 v%d, v%d, v%d, s42" % (80 + 2 * q, wb, wa))
            a("v_perm_b32 v%d, v%d, v%d, s43" % (81 + 2 * q, wb, wa))
        for col in range(8):
            a("v_dot2c_f32_bf16 v%d, v%d, v%d" % (112 + col, 100 + kp, 80 + col))
    a.nop(3)
    a.stamp()
    for i in range(4):
        a("v_permlane32_swap_b32 v%d, v%d" % (112 + i, 116 + i))
    for i in range(4):
        a("v_add_f32 v%d, v%d, v%d" % (112 + i, 112 + i, 116 + i))
    a.nop(1)
    a("v_permlane16_swap_b32 v112, v114")
    a("v_permlane16_swap_b32 v113, v115")
    a("v_add_f32 v112, v112, v114")
    a("v_add_f32 v113, v113, v115")
    a("v_mov_b32 v114, s40")
    for r in (4, 8):
        a.nop(1)
        a("v_add_f32_dpp v112, v112, v112 row_ror:%d row_mask:0xf bank_mask:0xf" % r)
        a("v_add_f32_dpp v113, v113, v113 row_ror:%d row_mask:0xf bank_mask:0xf" % r)
    a("""
    v_mov_b32 v115, s41
    s_mov_b32 exec_lo, 0x000f000f
    s_mov_b32 exec_hi, 0x000f000f
    buffer_store_dwordx4 v[112:115], v5, s[56:59], s15 offen%s
    s_mov_b64 exec, -1
    """ % ST)
    a.stamp()
    a("s_mov_b32 s64, SPIN")
    a.label("L_q_poll")
    a("s_sub_u32 s64, s64, 1")
    a("s_cbranch_scc1 L_end")
    for k in range(4):
        a("buffer_load_dwordx4 v[%d:%d], v2, s[56:59], s14 offen offset:%d%s" % (16 + 4 * k, 19 + 4 * k, k * 1024, PL))
        a("buffer_load_dwordx4 v[%d:%d], v2, s[56:59], s13 offen offset:%d%s" % (32 + 4 * k, 35 + 4 * k, k * 1024, PL))
    a("s_waitcnt vmcnt(0)")
    a("v_cmp_ne_u64 vcc, s[40:41], v[18:19]")
    for k in range(1, 8):
        a("v_cmp_ne_u64 s[60:61], s[40:41], v[%d:%d]" % (18 + 4 * k, 19 + 4 * k))
        a("s_or_b64 vcc, vcc, s[60:61]")
    a("s_cbranch_scc1 L_q_poll")
    for k in range(4):
        a("v_add_f32 v%d, v%d, v%d" % (16 + 4 * k, 16 + 4 * k, 32 + 4 * k))
        a("v_add_f32 v%d, v%d, v%d" % (17 + 4 * k, 17 + 4 * k, 33 + 4 * k))
    for k in range(4):
        a("v_cvt_pk_bf16_f32 v%d, v%d, v%d" % (48 + k, 16 + 4 * k, 17 + 4 * k))
    a("ds_write2st64_b32 v6, v48, v49 offset0:0 offset1:1")
    a("ds_write2st64_b32 v6, v50, v51 offset0:2 offset1:3")
    a("ds_write_b32 v7, v14 offset:%d" % (L_QF - L_FL))
    a.stamp()
    a.stamp_flush(28)
    a("s_endpgm")

    a.nstamp = nst0
    a.label("L_f")
    a("""
    s_cmp_ge_u32 s2, 224
    s_cbranch_scc1 L_end
    s_mul_i32 s6, s4, 28
    s_add_u32 s6, s6, s5
    s_and_b32 s7, s6, 3
    s_lshr_b32 s62, s6, 2
    v_lshlrev_b32 v2, 4, v0
    v_lshrrev_b32 v3, 2, v0
    s_mov_b32 s8, %d
    v_mul_lo_u32 v3, v3, s8
    v_and_b32 v5, 3, v0
    v_lshl_add_u32 v3, v5, 4, v3
    s_mul_i32 s8, s7, %d
    s_lshl_b32 s9, s62, 6
    s_add_u32 s8, s8, s9
    v_add_u32 v3, s8, v3
    s_lshl_b32 s8, s6, 13
    s_add_u32 s9, s8, 4096
    """ % (8 * 3584, 128 * 3584))
    a("""
    s_lshl_b32 s12, s2, 4
    s_add_u32 s12, s12, 4096
    v_lshlrev_b32 v4, 15, v0
    v_add_u32 v4, s12, v4
    s_mov_b32 s12, 0x%x
    s_mov_b32 s13, 0x%x
    s_mov_b32 s14, 0x%x
    s_mov_b32 s15, 0x%x
    """ % (INB3, INB3 + 8192, INB3 + 16384, INB3 + 24576))
    a("""
    s_lshl_b32 s10, s62, 11
    s_lshl_b32 s11, s7, 7
    s_add_u32 s10, s10, s11
    s_add_u32 s10, s10, 0x%x
    v_lshrrev_b32 v6, 4, v0
    v_lshlrev_b32 v6, 5, v6
    v_lshl_or_b32 v6, v5, 9, v6
    s_lshl_b32 s11, s6, 9
    s_add_u32 s11, s11, 0x%x
    v_and_b32 v8, 31, v0
    v_lshlrev_b32 v8, 4, v8
    v_mov_b32 v7, %d
    s_lshl_b32 s63, s7, 8
    s_add_u32 s63, s63, %d
    v_lshrrev_b32 v9, 2, v0
    v_lshlrev_b32 v9, 4, v9
    v_add_u32 v9, s63, v9
    v_mov_b32 v10, 1
    """ % (INB4, INB4, L_FL, L_XN))
    common_after_kernarg(a)
    srd(a, 44, 28, 512 * 1792 * 2)
    srd(a, 48, 30, 512 * 1792 * 2)
    srd(a, 52, 32, 1792 * 512 * 2)
    for k in range(8):
        a("s_mov_b32 s%d, %d" % (16 + k, k * 3584))
    make_tag(a)
    a("s_barrier")
    lds_wait(a, "L_f_w1", 7, 16, 4, sleep=2, offset=L_KVF - L_FL)
    a.stamp()
    for k in range(8):
        a("buffer_load_dwordx4 v[%d:%d], v3, s[44:47], s%d offen%s" % (16 + 4 * k, 19 + 4 * k, 16 + k, LD))
        a("buffer_load_dwordx4 v[%d:%d], v3, s[48:51], s%d offen%s" % (48 + 4 * k, 51 + 4 * k, 16 + k, LD))
    for k in range(8):
        a("buffer_load_dwordx4 v[%d:%d], v2, s[52:55], s%d offen offset:%d%s" % (80 + 4 * k, 83 + 4 * k, 8 + k // 4, (k % 4) * 1024, LD))
    a("ds_write_b32 v7, v10 offset:%d" % (L_FF - L_FL))
    a.stamp()
    for i in range(16):
        a("v_mov_b32 v%d, 0" % (128 + i))
    for i in range(4):
        a("v_mov_b32 v%d, 0" % (176 + 4 * i))
        a("v_mov_b32 v%d, 0" % (177 + 4 * i))
        a("v_mov_b32 v%d, s40" % (178 + 4 * i))
        a("v_mov_b32 v%d, s41" % (179 + 4 * i))
    lds_wait(a, "L_f_w2", 7, 112, 1, sleep=2, offset=L_XNF - L_FL)
    a("ds_read_b128 v[12:15], v9")
    a("s_waitcnt lgkmcnt(0)")
    a.stamp()
    for kp in range(4):
        a("s_waitcnt vmcnt(%d)" % (20 - 4 * kp))
        for m in range(2):
            for q in range(4):
                wa = 16 + 32 * m + (2 * kp) * 4 + q
                wb = 16 + 32 * m + (2 * kp + 1) * 4 + q
                a("v_perm_b32 v%d, v%d, v%d, s42" % (112 + 2 * q, wb, wa))
                a("v_perm_b32 v%d, v%d, v%d, s43" % (113 + 2 * q, wb, wa))
            for col in range(8):
                a("v_dot2c_f32_bf16 v%d, v%d, v%d" % (128 + 8 * m + col, 12 + kp, 112 + col))
    a.nop(3)
    a.stamp()
    for m in range(2):
        for i in range(4):
            a("v_permlane32_swap_b32 v%d, v%d" % (128 + 8 * m + i, 132 + 8 * m + i))
    for m in range(2):
        for i in range(4):
            a("v_add_f32 v%d, v%d, v%d" % (128 + 8 * m + i, 128 + 8 * m + i, 132 + 8 * m + i))
    a.nop(1)
    for m in range(2):
        a("v_permlane16_swap_b32 v%d, v%d" % (128 + 8 * m, 130 + 8 * m))
        a("v_permlane16_swap_b32 v%d, v%d" % (129 + 8 * m, 131 + 8 * m))
    a("""
    v_add_f32 v112, v128, v130
    v_add_f32 v116, v129, v131
    v_add_f32 v113, v136, v138
    v_add_f32 v117, v137, v139
    v_mov_b32 v114, s40
    v_mov_b32 v115, s41
    """)
    for r in (4, 8):
        for v in (112, 116, 113, 117):
            a("v_add_f32_dpp v%d, v%d, v%d row_ror:%d row_mask:0xf bank_mask:0xf" % (v, v, v, r))
    a("""
    v_mov_b32 v118, s40
    v_mov_b32 v119, s41
    s_mov_b32 exec_lo, 0x000f000f
    s_mov_b32 exec_hi, 0x000f000f
    buffer_store_dwordx4 v[112:115], v6, s[56:59], s10 offen%s
    buffer_store_dwordx4 v[116:119], v6, s[56:59], s10 offen offset:16%s
    s_mov_b64 exec, -1
    s_waitcnt vmcnt(2)
    """ % (ST, ST))
    a.stamp()
    for kp in range(4):
        for q in range(4):
            wa = 80 + (2 * kp) * 4 + q
            wb = 80 + (2 * kp + 1) * 4 + q
            a("v_perm_b32 v%d, v%d, v%d, s42" % (144 + kp * 8 + 2 * q, wb, wa))
            a("v_perm_b32 v%d, v%d, v%d, s43" % (145 + kp * 8 + 2 * q, wb, wa))
    a("s_mov_b32 s64, SPIN")
    a.label("L_f_poll")
    a("""
    s_sub_u32 s64, s64, 1
    s_cbranch_scc1 L_end
    buffer_load_dwordx4 v[16:19], v8, s[56:59], s11 offen%s
    s_waitcnt vmcnt(0)
    v_cmp_ne_u64 vcc, s[40:41], v[18:19]
    s_cbranch_vccnz L_f_poll
    """ % PL)
    a.stamp()
    a("""
    v_add_f32_dpp v16, v16, v16 row_ror:8 row_mask:0xf bank_mask:0xf
    v_add_f32_dpp v17, v17, v17 row_ror:8 row_mask:0xf bank_mask:0xf
    v_mov_b32 v18, v16
    v_mov_b32 v19, v17
    s_mov_b32 s16, 0x3d372713
    s_mov_b32 s17, 0xc0135761
    v_permlane16_swap_b32 v16, v18
    v_permlane16_swap_b32 v17, v19
    v_add_f32 v16, v16, v18
    v_add_f32 v17, v17, v19
    v_cvt_pk_bf16_f32 v18, v16, v17
    v_lshlrev_b32 v16, 16, v18
    v_and_b32 v17, 0xffff0000, v18
    v_mul_f32 v20, v16, v16
    v_mul_f32 v20, v20, v16
    v_fma_f32 v20, v20, s16, v16
    v_mul_f32 v20, s17, v20
    v_exp_f32 v20, v20
    """)
    a.nop(1)
    a("v_add_f32 v20, 1.0, v20")
    a("v_rcp_f32 v20, v20")
    a.nop(1)
    a("v_mul_f32 v16, v16, v20")
    bf16_round(a, 16, 16, 18)
    a("v_mul_f32 v16, v16, v17")
    a.nop(2)
    a("v_mov_b32_dpp v17, v16 quad_perm:[1,0,3,2] row_mask:0xf bank_mask:0xf")
    a("v_cvt_pk_bf16_f32 v18, v16, v17")
    a.nop(1)
    for G in range(4):
        a("v_readlane_b32 s%d, v18, %d" % (20 + G, 2 * G))
    a.nop(2)
    for kp in range(4):
        for col in range(8):
            a("v_dot2c_f32_bf16 v%d, s%d, v%d" % (176 + 4 * (col // 2) + (col % 2), 20 + kp, 144 + kp * 8 + col))
    a.nop(3)
    for i in range(4):
        a("buffer_store_dwordx4 v[%d:%d], v4, s[56:59], s%d offen%s" % (176 + 4 * i, 179 + 4 * i, 12 + i, ST))
    a.stamp()
    a.stamp_flush(28)
    a.label("L_end")
    a("s_endpgm")

    out += a.l
    out.append('''.section .rodata,"a"
.p2align 6
.amdhsa_kernel %s_kernel
  .amdhsa_next_free_vgpr 192
  .amdhsa_next_free_sgpr 102
  .amdhsa_accum_offset 192
  .amdhsa_group_segment_fixed_size 0
  .amdhsa_kernarg_size 96
  .amdhsa_user_sgpr_count 2
  .amdhsa_user_sgpr_kernarg_segment_ptr 1
  .amdhsa_system_sgpr_workgroup_id_x 1
  .amdhsa_float_denorm_mode_32 3
.end_amdhsa_kernel''' % NAME)
    return "\n".join(out) + "\n"

if __name__ == "__main__":
    ap = argparse.ArgumentParser()
    ap.add_argument("-o", default="cdna_kernels/%s.s" % NAME)
    ap.add_argument("--diag", action="store_true")
    ap.add_argument("--ld", default="nt")
    args = ap.parse_args()
    open(args.o, "w").write(gen(diag=args.diag, ldflag=args.ld))
    print("wrote", args.o)
```

```python
import sys, argparse

NAME = "recurrent_scan__sliding_block_cached__glu_gated_geglu__decode"
HEADER = open("cdna_kernels/%s.s.ref" % NAME).read().split("; Override launch")[0]

INBS = 0x1000
INB4 = 0x5000
INB1 = 0x21000
INB1S = 0x31000
INB3D = 0x41000
INB3S = 0x80000
INB2 = 0x100000
DIAG = 0x1000000
L_WQ = 0
L_K = 16384
L_V = 49152
L_G = 81920
L_U = 90112
L_WO = 98304
L_WD = 114688
L_M = 122880
L_XN = L_M
L_Q = L_M + 1024
L_P = L_M + 2048
L_Z = L_M + 6144
L_OW = L_Z
L_HW = L_Z + 1024
L_ST = L_Z + 2048
L_FL = L_Z + 2304
L_AL = L_Z + 2560
F_PROG = 0
F_XN = 4
F_Q = 8
F_OPUB = 12
F_TAG = 16
F_TAGV = 24
F_APUB = 28
LDS_BYTES = L_Z + 4096

LOG2E = 0x3fb8aa3b
SCALE = 0x3db504f3
ST0 = 76
OGATE = 72
OSTAG = 4

class Asm:
    def __init__(self, diag=False):
        self.l = []; self.diag = diag; self.nstamp = 0; self.uid = 0
    def __call__(self, s):
        for x in s.strip().split("\n"):
            x = x.strip()
            if x: self.l.append("    " + x)
    def label(self, n): self.l.append(n + ":")
    def nop(self, n=1): self("s_nop %d" % (n - 1))
    def comment(self, s): self.l.append("    ; " + s)
    def page(self): self.l.append(".p2align 12")
    def pad(self, name, target):
        self.label(name); self("s_cbranch_execz %s" % target)
    def newlabel(self, p):
        self.uid += 1; return "%s_%d" % (p, self.uid)
    def stamp(self):
        if not self.diag: return
        i = self.nstamp; assert i < 13, "too many stamps"
        self("s_memrealtime s[%d:%d]" % (ST0 + 2 * i, ST0 + 1 + 2 * i))
        self.nstamp += 1
    def log(self, sidx, smask, vlog):
        if not self.diag: return
        self("s_memrealtime s[6:7]")
        self("s_bcnt1_i32_b64 s62, %s" % smask)
        self("s_min_u32 m0, s%d, 63" % sidx)
        self("s_waitcnt lgkmcnt(0)")
        self("v_writelane_b32 v%d, s6, m0" % vlog)
        self("v_writelane_b32 v%d, s62, m0" % (vlog + 1))
        self("s_add_u32 s%d, s%d, 1" % (sidx, sidx))
        self("s_cmp_lg_u64 %s, 0" % smask)
    def log_flush(self, vlog, vt, slot):
        if not self.diag: return
        self("s_mov_b64 exec, -1")
        self("s_lshl_b32 s64, s2, 12")
        self("s_add_u32 s64, s64, 0x%x" % (DIAG + 0x100000 + slot * 512))
        self("v_lshlrev_b32 v%d, 2, v0" % vt)
        self("buffer_store_dword v%d, v%d, s[56:59], s64 offen" % (vlog, vt))
        self("buffer_store_dword v%d, v%d, s[56:59], s64 offen offset:256" % (vlog + 1, vt))
    def stamp_flush(self, vtmp):
        if not self.diag: return
        n = self.nstamp
        self("s_waitcnt vmcnt(0) lgkmcnt(0)")
        self("s_mov_b64 exec, 1")
        self("s_lshl_b32 s64, s2, 10")
        self("s_lshl_b32 s65, s3, 7")
        self("s_add_u32 s64, s64, s65")
        self("s_add_u32 s64, s64, 0x%x" % DIAG)
        self("v_mov_b32 v%d, 0" % (vtmp + 2))
        for i in range(n):
            self("v_mov_b32 v%d, s%d" % (vtmp, ST0 + 2 * i))
            self("v_mov_b32 v%d, s%d" % (vtmp + 1, ST0 + 1 + 2 * i))
            self("buffer_store_dwordx2 v[%d:%d], v%d, s[56:59], s64 offen offset:%d" % (vtmp, vtmp + 1, vtmp + 2, i * 8))
            self.nop(2)
        self("v_mov_b32 v%d, %d" % (vtmp, n))
        self("buffer_store_dword v%d, v%d, s[56:59], s64 offen offset:120" % (vtmp, vtmp + 2))

def allreduce(a, op, v, t):
    for r in (1, 2, 4, 8):
        a.nop(2)
        a("v_%s_f32_dpp v%d, v%d, v%d row_ror:%d row_mask:0xf bank_mask:0xf" % (op, v, v, v, r))
    for sw in ("16", "32"):
        a("v_mov_b32 v%d, v%d" % (t, v))
        a.nop(2)
        a("v_permlane%s_swap_b32 v%d, v%d" % (sw, v, t))
        a("v_%s_f32 v%d, v%d, v%d" % (op, v, v, t))

def xreduce(a, op, regs, tmps):
    for sw in ("16", "32"):
        for r, t in zip(regs, tmps):
            a("v_mov_b32 v%d, v%d" % (t, r))
        a.nop(2 if len(regs) < 3 else 1)
        for r, t in zip(regs, tmps):
            a("v_permlane%s_swap_b32 v%d, v%d" % (sw, r, t))
        for r, t in zip(regs, tmps):
            a("v_%s_f32 v%d, v%d, v%d" % (op, r, r, t))

def bf16_round(a, dst, src, tmp):
    a("v_cvt_pk_bf16_f32 v%d, v%d, v%d" % (tmp, src, src))
    a("v_lshlrev_b32 v%d, 16, v%d" % (dst, tmp))

def layernorm(a, xr, f, t, xp):
    for i in range(4):
        a("v_lshlrev_b32 v%d, 16, v%d" % (f + 2 * i, xr + i))
        a("v_and_b32 v%d, 0xffff0000, v%d" % (f + 2 * i + 1, xr + i))
    a("v_add_f32 v%d, v%d, v%d" % (t, f, f + 1))
    a("v_add_f32 v%d, v%d, v%d" % (t + 1, f + 2, f + 3))
    a("v_add_f32 v%d, v%d, v%d" % (t + 2, f + 4, f + 5))
    a("v_add_f32 v%d, v%d, v%d" % (t + 3, f + 6, f + 7))
    a("v_add_f32 v%d, v%d, v%d" % (t, t, t + 1))
    a("v_add_f32 v%d, v%d, v%d" % (t + 2, t + 2, t + 3))
    a("v_add_f32 v%d, v%d, v%d" % (t, t, t + 2))
    allreduce(a, "add", t, t + 1)
    a("v_mul_f32 v%d, 0x3b000000, v%d" % (t, t))
    a("v_sub_f32 v%d, v%d, v%d" % (t + 2, f, t))
    a("v_mul_f32 v%d, v%d, v%d" % (t + 1, t + 2, t + 2))
    for i in range(1, 8):
        a("v_sub_f32 v%d, v%d, v%d" % (t + 2, f + i, t))
        a("v_fmac_f32 v%d, v%d, v%d" % (t + 1, t + 2, t + 2))
    allreduce(a, "add", t + 1, t + 2)
    a("v_mul_f32 v%d, 0x3b000000, v%d" % (t + 1, t + 1))
    a("v_cvt_pk_bf16_f32 v%d, v%d, v%d" % (t + 2, t, t + 1))
    a("v_lshlrev_b32 v%d, 16, v%d" % (t, t + 2))
    a("v_and_b32 v%d, 0xffff0000, v%d" % (t + 1, t + 2))
    a("v_add_f32 v%d, 0x3727c5ac, v%d" % (t + 1, t + 1))
    bf16_round(a, t + 1, t + 1, t + 2)
    a("v_sqrt_f32 v%d, v%d" % (t + 1, t + 1))
    a.nop(1)
    bf16_round(a, t + 1, t + 1, t + 2)
    a("v_rcp_f32 v%d, v%d" % (t + 2, t + 1))
    for i in range(8):
        a("v_sub_f32 v%d, v%d, v%d" % (f + i, f + i, t))
    for i in range(4):
        a("v_cvt_pk_bf16_f32 v%d, v%d, v%d" % (xp + i, f + 2 * i, f + 2 * i + 1))
    for i in range(4):
        a("v_lshlrev_b32 v%d, 16, v%d" % (f + 2 * i, xp + i))
        a("v_and_b32 v%d, 0xffff0000, v%d" % (f + 2 * i + 1, xp + i))
    for i in range(8):
        a("v_mul_f32 v%d, v%d, v%d" % (t + 3, f + i, t + 2))
        a("v_fma_f32 v%d, -v%d, v%d, v%d" % (t + 4, t + 3, t + 1, f + i))
        a("v_fma_f32 v%d, v%d, v%d, v%d" % (f + i, t + 4, t + 2, t + 3))
    for i in range(4):
        a("v_cvt_pk_bf16_f32 v%d, v%d, v%d" % (xp + i, f + 2 * i, f + 2 * i + 1))

def srd(a, d, base, nbytes):
    a("s_mov_b32 s%d, s%d" % (d, base))
    a("s_mov_b32 s%d, s%d" % (d + 1, base + 1))
    a("s_mov_b32 s%d, 0x%x" % (d + 2, nbytes))
    a("s_mov_b32 s%d, 0x20000" % (d + 3))

def early_barrier(a):
    a("s_waitcnt lgkmcnt(0)")
    a("s_barrier")
    srd(a, 56, 38, 0x20000000)

def make_tag(a):
    a("""
    s_waitcnt lgkmcnt(0)
    s_add_u32 s40, s40, 16
    s_and_b32 s40, s40, -16
    s_add_u32 s41, s41, 0x9e3779b9
    """)

def get_tag(a, vt):
    a("ds_read_b64 v[%d:%d], v7 offset:%d" % (vt, vt + 1, F_TAG))
    a("s_waitcnt lgkmcnt(0)")
    a("v_readfirstlane_b32 s40, v%d" % vt)
    a("v_readfirstlane_b32 s41, v%d" % (vt + 1))
    a.nop(2)

def lds_wait_ge(a, vfl, vtmp, off, thr, sleep=1):
    name = a.newlabel("L_w")
    a("s_mov_b32 s64, SPIN")
    a.label(name)
    a("ds_read_b32 v%d, v%d offset:%d" % (vtmp, vfl, off))
    a("s_waitcnt lgkmcnt(0)")
    a("v_cmp_gt_u32 vcc, %d, v%d" % (thr, vtmp) if thr <= 64 else "v_cmp_gt_u32 vcc, 0x%x, v%d" % (thr, vtmp))
    a("s_cbranch_vccz %s_ok" % name)
    if sleep: a("s_sleep %d" % sleep)
    a("s_sub_u32 s64, s64, 1")
    a("s_cbranch_scc1 L_end")
    a("s_branch %s" % name)
    a.label(name + "_ok")

def tagcheck(a, regs, tag="s[40:41]"):
    a("v_cmp_ne_u64 vcc, %s, v[%d:%d]" % (tag, regs[0] + 2, regs[0] + 3))
    for r in regs[1:]:
        a("v_cmp_ne_u64 s[60:61], %s, v[%d:%d]" % (tag, r + 2, r + 3))
        a("s_or_b64 vcc, vcc, s[60:61]")

def gen(diag=False, W=16, forceslow=False, onlyld=False, kvmode=1, W0=24, P=None):
    P = P or {}
    def opt(k, d): return P.get(k, d)
    a = Asm(diag)
    out = []
    out.append(HEADER.rstrip("\n"))
    out.append("; @launch grid=(256,1,1) block=(512,1,1) lds=%d" % LDS_BYTES)
    out.append('.amdgcn_target "amdgcn-amd-amdhsa--gfx950"')
    out.append(".set SPIN, 0x40000")
    out.append(".text")
    out.append(".globl %s_kernel" % NAME)
    out.append(".p2align 8")
    out.append(".type %s_kernel,@function" % NAME)
    out.append("%s_kernel:" % NAME)

    a("""
    s_cmp_ge_u32 s2, 256
    s_cbranch_scc1 L_end0
    s_load_dwordx16 s[16:31], s[0:1], 0
    s_load_dwordx8 s[32:39], s[0:1], 64
    v_lshrrev_b32 v1, 6, v0
    v_lshlrev_b32 v2, 3, v0
    v_mov_b32 v8, 0
    v_mov_b32 v9, 0
    v_readfirstlane_b32 s3, v1
    v_add_u32 v2, %d, v2
    v_and_b32 v0, 63, v0
    ds_write_b64 v2, v[8:9]
    s_and_b32 s4, s2, 7
    s_lshr_b32 s5, s2, 3
    v_and_b32 v4, 15, v0
    v_lshrrev_b32 v5, 4, v0
    v_mov_b32 v7, %d
    """ % (L_Z, L_FL))
    a.stamp()
    nst0 = a.nstamp
    a("""
    s_cmp_eq_u32 s3, 0
    s_cbranch_scc1 L_ld
    """)
    if onlyld:
        a("s_branch L_end0")
    a("""
    s_cmp_eq_u32 s3, 1
    s_cbranch_scc1 L_qh
    s_mov_b32 s58, 0x20000000
    s_mov_b32 s59, 0x20000
    s_waitcnt lgkmcnt(0)
    s_load_dwordx2 s[40:41], s[38:39], 0
    s_mov_b32 s56, s38
    s_mov_b32 s57, s39
    s_barrier
    s_cmp_eq_u32 s3, 6
    s_cbranch_scc1 L_f
    s_cmp_eq_u32 s3, 7
    s_cbranch_scc1 L_o
    s_cmp_eq_u32 s3, 2
    s_cbranch_scc1 L_att
    s_mov_b64 exec, 0
    s_cmp_eq_u32 s3, 3
    s_cbranch_scc1 PAD_Q1
    s_cmp_eq_u32 s3, 4
    s_cbranch_scc1 PAD_Q2
    s_branch PAD_A1
    """)
    a.label("L_end0")
    a("s_endpgm")
    a.label("L_qh")
    a("""
    s_setprio 3
    v_lshlrev_b32 v2, 4, v0
    s_mov_b32 s50, 1024
    s_mov_b32 s51, 0x20000
    s_mov_b32 s58, 0x20000000
    s_mov_b32 s59, 0x20000
    s_waitcnt lgkmcnt(0)
    s_mov_b32 s48, s16
    s_mov_b32 s49, s17
    s_mov_b32 s56, s38
    s_mov_b32 s57, s39
    buffer_load_dwordx4 v[8:11], v2, s[48:51], 0 offen
    s_getreg_b32 s44, hwreg(HW_REG_XCC_ID, 0, 4)
    s_barrier
    s_branch L_q
    """)

    a.label("L_ld")
    a("s_setprio 2")
    a("""
    v_lshrrev_b32 v6, 2, v0
    v_and_b32 v8, 3, v0
    v_lshrrev_b32 v9, 5, v0
    v_lshlrev_b32 v2, 1, v9
    v_xor_b32 v8, v8, v2
    v_lshlrev_b32 v8, 4, v8
    v_lshl_or_b32 v10, v6, 13, v8
    s_lshr_b32 s6, s5, 4
    s_lshl_b32 s6, s6, 21
    s_lshl_b32 s7, s4, 10
    s_add_u32 s6, s6, s7
    s_and_b32 s7, s5, 15
    s_lshl_b32 s7, s7, 6
    s_add_u32 s6, s6, s7
    s_mov_b32 s46, 0x400000
    s_mov_b32 s47, 0x20000
    s_mov_b32 m0, %d
    s_movk_i32 s42, 1024
    s_movk_i32 s43, 4096
    s_mov_b32 s40, 0x20000
    s_mov_b32 s41, %d
    """ % (L_WQ, 16 * 3584))
    for b in range(4):
        a("v_add_u32 v2, %d, v5" % (4 * b))
        a("v_xor_b32 v2, v4, v2")
        a("v_lshlrev_b32 v2, 4, v2")
        a("v_lshl_or_b32 v%d, v5, 8, v2" % (12 + b))
    a("""
    s_lshl_b32 s8, s4, 24
    s_lshl_b32 s7, s5, %d
    s_add_u32 s8, s8, s7
    s_add_u32 s8, s8, 0xf00000
    s_mov_b32 s9, s8
    s_mov_b32 s50, 0x8000000
    s_mov_b32 s51, 0x20000
    s_waitcnt lgkmcnt(0)
    s_mov_b32 s44, s22
    s_mov_b32 s45, s23
    s_mov_b32 s48, s18
    s_mov_b32 s49, s19
    """ % ({0: 15, 1: 12}[kvmode]))
    a.stamp()

    def loader_setup2():
        a("v_mul_u32_u24 v11, %d, v6" % 3584)
        a("v_add_u32 v11, v11, v8")
        for b in range(2):
            a("v_add_u32 v2, %d, v5" % (4 * b))
            a("v_lshlrev_b32 v2, 1, v2")
            a("v_xor_b32 v2, v4, v2")
            a("v_lshlrev_b32 v2, 4, v2")
            a("v_lshl_or_b32 v%d, v5, 8, v2" % (16 + b))
        a("v_and_b32 v3, 31, v0")
        for b in range(2):
            a("v_add_u32 v2, %d, v9" % (2 * b))
            a("v_lshlrev_b32 v2, 2, v2")
            a("v_xor_b32 v2, v3, v2")
            a("v_lshlrev_b32 v2, 4, v2")
            a("v_lshl_or_b32 v%d, v9, 10, v2" % (18 + b))
        a("v_lshlrev_b32 v2, 2, v5")
        a("v_xor_b32 v2, v4, v2")
        a("v_lshlrev_b32 v2, 4, v2")
        a("v_lshl_or_b32 v20, v5, 10, v2")
        srd(a, 52, 20, 0x8000000)
        srd(a, 60, 28, 512 * 1792 * 2)
        srd(a, 64, 30, 512 * 1792 * 2)
        srd(a, 68, 24, 4096 * 512 * 2)
        srd(a, 72, 32, 1792 * 512 * 2)
        srd(a, 56, 38, 0x20000000)
        a("""
        s_mul_i32 s14, s4, 7
        s_lshr_b32 s7, s5, 2
        s_add_u32 s14, s14, s7
        s_and_b32 s15, s5, 3
        s_mul_i32 s10, s15, %d
        s_lshl_b32 s7, s14, 6
        s_add_u32 s10, s10, s7
        s_mov_b32 s11, s10
        """ % (128 * 3584))
        a("""
        s_lshl_b32 s12, s4, 19
        s_lshr_b32 s7, s5, 1
        s_lshl_b32 s7, s7, 15
        s_add_u32 s12, s12, s7
        s_and_b32 s7, s5, 1
        s_lshl_b32 s7, s7, 9
        s_add_u32 s12, s12, s7
        """)
        a("""
        s_lshl_b32 s13, s14, 15
        s_lshl_b32 s7, s15, 8
        s_add_u32 s13, s13, s7
        """)

    def item(kind, i):
        def m0set(base, i): return "s_mov_b32 m0, %d" % base if i == 0 else "s_add_u32 m0, m0, s42"
        if kind == "wq":
            pre = [] if i == 0 else ["s_add_u32 m0, m0, s42", "s_add_u32 s6, s6, s40"]
            return pre + ["buffer_load_dwordx4 v10, s[44:47], s6 offen nt lds"]
        if kind in ("K", "V"):
            base = L_K if kind == "K" else L_V
            sr = 8 if kind == "K" else 9
            pre = []
            if i % 4 == 0:
                pre = ["s_mov_b32 m0, %d" % base if i == 0 else "s_add_u32 m0, m0, s43", ("s_add_u32 s%d, s%d, %s" % (sr, sr, "s43" if kvmode == 0 else "s40")) if i else "s_nop 0"]
            vr = 12 + (i % 4) if kind == "K" else 16 + (i % 2)
            return pre + ["buffer_load_dwordx4 v%d, s[%d:%d], s%d offen offset:%d nt lds" % (vr, 48 if kind == "K" else 52, 51 if kind == "K" else 55, sr, (i % 4) * 1024)]
        if kind in ("G", "U"):
            base = L_G if kind == "G" else L_U
            sr = 10 if kind == "G" else 11
            d = 60 if kind == "G" else 64
            pre = [m0set(base, i), ("s_add_u32 s%d, s%d, s41" % (sr, sr)) if i else "s_nop 0"]
            return pre + ["buffer_load_dwordx4 v11, s[%d:%d], s%d offen nt lds" % (d, d + 3, sr)]
        if kind == "wo":
            pre = [m0set(L_WO, i), "s_add_u32 s12, s12, 0x800" if i else "s_nop 0"]
            return pre + ["buffer_load_dwordx4 v%d, s[68:71], s12 offen nt lds" % (18 + (i % 2))]
        if kind == "wd":
            pre = [m0set(L_WD, i), "s_add_u32 s13, s13, s43" if i else "s_nop 0"]
            return pre + ["buffer_load_dwordx4 v20, s[72:75], s13 offen nt lds"]

    def stream(full):
        seq = [("wq", i) for i in range(16)] + [("K", i) for i in range(32)] + [("V", i) for i in range(32)]
        if full:
            seq += [("G", i) for i in range(8)] + [("U", i) for i in range(8)]
        seq += [("wo", i) for i in range(16)]
        if full:
            seq += [("wd", i) for i in range(8)]
        prog = {}
        for n, (k, i) in enumerate(seq):
            cnt = n + 1
            if k == "wq" and i in (7, 15): prog[cnt] = i + 1
            if k == "K" and i % 8 == 7: prog[cnt] = 16 + i + 1
            if k == "V" and i % 8 == 7: prog[cnt] = 48 + i + 1
            if k == "U" and i == 7: prog[cnt] = 96
            if k == "wo" and i == 15: prog[cnt] = 112
            if k == "wd" and i == 7: prog[cnt] = 120
        return seq, prog

    WL = opt("WL", W)
    def win(n):
        if n >= 80: return WL
        return max(W, W0 - max(0, n - W0) * opt("shrink", 1))
    seqF, progF = stream(True)
    seqS, progS = stream(False)
    NB = opt("nb", 6)
    if NB == 0: a("s_barrier")
    for i in range(16):
        for x in item("wq", i): a(x)
        if i == NB - 1: a("s_barrier")
    assert 16 <= W0 <= 48
    for n in range(16, W0):
        for x in item(*seqF[n]): a(x)
    a.stamp()
    loader_setup2()

    def publish(prog, cnt):
        a("v_mov_b32 v2, %d" % prog[cnt])
        a("ds_write_b32 v7, v2 offset:%d" % F_PROG)
        if prog[cnt] in (16, 48, 80, 96, 112, 120): a.stamp()
    def emit(seq, prog, n0, n1, done):
        for n in range(n0, n1):
            target = n - win(n) + 1
            for cnt in range(done + 1, target + 1):
                if cnt in prog and cnt < target:
                    a("s_waitcnt vmcnt(%d)" % (n - cnt))
                    publish(prog, cnt)
            if target > done:
                a("s_waitcnt vmcnt(%d)" % (n - target))
            for x in item(*seq[n]): a(x)
            if target > done and target in prog: publish(prog, target)
            done = max(done, target)
        return done
    def drain(seq, prog, done):
        N = len(seq)
        for cnt in range(done + 1, N + 1):
            if cnt in prog:
                a("s_waitcnt vmcnt(%d)" % (N - cnt))
                publish(prog, cnt)
    done = emit(seqF, progF, W0, 80, 0)
    nst1 = a.nstamp
    a("s_cmp_lt_u32 s5, 28")
    a("s_cbranch_scc1 L_ld_full")
    d2 = emit(seqS, progS, 80, len(seqS), done)
    drain(seqS, progS, d2)
    a.stamp_flush(28)
    a("s_endpgm")
    a.label("L_ld_full")
    a.nstamp = nst1
    d2 = emit(seqF, progF, 80, len(seqF), done)
    drain(seqF, progF, d2)
    a.stamp_flush(28)
    a("s_endpgm")

    a.nstamp = nst0
    a.page()
    a.label("L_q")
    a("""
    v_add_u32 v12, %d, v2
    s_lshr_b32 s6, s5, 4
    s_lshl_b32 s6, s6, 9
    s_add_u32 s6, s6, %d
    v_lshlrev_b32 v13, 4, v5
    v_add_u32 v13, s6, v13
    v_lshrrev_b32 v3, 2, v4
    v_lshl_add_u32 v3, v5, 3, v3
    v_lshlrev_b32 v3, 6, v3
    v_bfe_u32 v6, v0, 1, 1
    v_and_b32 v14, 1, v5
    v_lshlrev_b32 v14, 1, v14
    v_xor_b32 v6, v6, v14
    v_lshl_or_b32 v3, v6, 4, v3
    v_and_b32 v6, 1, v0
    v_lshl_or_b32 v14, v6, 3, v3
    v_xor_b32 v15, 32, v14
    """ % (L_XN, L_XN))
    a("""
    s_lshl_b32 s14, s4, 13
    s_add_u32 s14, s14, 0x%x
    s_add_u32 s13, s14, 4096
    s_lshl_b32 s15, s5, 8
    s_add_u32 s15, s15, s14
    v_lshl_add_u32 v3, v5, 2, v4
    v_lshlrev_b32 v3, 4, v3
    v_lshlrev_b32 v6, 6, v5
    v_bfe_u32 v16, v0, 1, 1
    v_lshl_or_b32 v6, v16, 5, v6
    v_bfe_u32 v16, v0, 2, 2
    v_lshl_or_b32 v6, v16, 3, v6
    v_and_b32 v16, 1, v0
    v_lshl_or_b32 v6, v16, 2, v6
    v_add_u32 v6, %d, v6
    s_mov_b32 s8, 0xaaaaaaaa
    s_mov_b32 s9, 0xaaaaaaaa
    s_mov_b32 s10, 0xcccccccc
    s_mov_b32 s11, 0xcccccccc
    v_mov_b32 v144, 1
    """ % (INB1, L_Q))
    a("""
    s_mov_b32 s52, s34
    s_mov_b32 s53, s35
    s_mov_b32 s54, 1024
    s_mov_b32 s55, 0x20000
    """)
    QM = [[16 + 2 * k for k in range(8)], [32, 34, 36, 38, 66, 68, 70, 72]]
    for M in QM:
        for m in M: a("s_mov_b64 s[%d:%d], -1" % (m, m + 1))
    a("s_waitcnt vmcnt(0)")
    a.stamp()
    layernorm(a, 8, 80, 88, 96)
    a("ds_write_b128 v12, v[96:99]")
    a("ds_write_b32 v7, v144 offset:%d" % F_XN)
    a.pad("PAD_Q1", "L_att_x")
    for k in range(8):
        a("ds_read_b128 v[%d:%d], v13 offset:%d" % (100 + 4 * k, 103 + 4 * k, k * 64))
    a.stamp()
    for half in range(2):
        lds_wait_ge(a, 7, 80, F_PROG, 8 * (half + 1), sleep=0)
        for kk in range(4):
            k = half * 4 + kk
            for s in range(2):
                for h in range(2):
                    r = 16 + (kk * 4 + s * 2 + h) * 2 + half * 32
                    a("ds_read_b64_tr_b16 v[%d:%d], v%d offset:%d" % (r, r + 1, 14 + s, k * 2048 + h * 256))
        if half == 1: a("ds_read_b96 v[146:148], v7 offset:%d" % F_TAG)
        for kk in range(4):
            k = half * 4 + kk
            a("s_waitcnt lgkmcnt(%d)" % (12 - 4 * kk + half))
            for s in range(2):
                r = 16 + (kk * 4 + s * 2) * 2 + half * 32
                c_ = "0" if k == 0 else "v[%d:%d]" % (132 + 4 * s, 135 + 4 * s)
                a("v_mfma_f32_16x16x32_bf16 v[%d:%d], v[%d:%d], v[%d:%d], %s" % (132 + 4 * s, 135 + 4 * s, r, r + 3, 100 + 4 * k, 103 + 4 * k, c_))
    a.stamp()
    a("s_mov_b32 s64, SPIN")
    a.label("L_q_tw")
    a("""
    s_waitcnt lgkmcnt(0)
    v_cmp_eq_u32 vcc, 0, v148
    s_cbranch_vccz L_q_tok
    ds_read_b96 v[146:148], v7 offset:%d
    s_sub_u32 s64, s64, 1
    s_cbranch_scc1 L_end
    s_branch L_q_tw
    """ % F_TAG)
    a.label("L_q_tok")
    a("""
    v_or_b32 v142, s44, v146
    v_mov_b32 v143, v147
    v_readfirstlane_b32 s40, v146
    v_readfirstlane_b32 s41, v147
    v_readfirstlane_b32 s46, v142
    v_readfirstlane_b32 s47, v147
    """)
    a("""
    v_cndmask_b32_e64 v80, v132, v134, s[8:9]
    v_cndmask_b32_e64 v81, v133, v135, s[8:9]
    v_cndmask_b32_e64 v82, v136, v138, s[8:9]
    v_cndmask_b32_e64 v83, v137, v139, s[8:9]
    v_cndmask_b32_e64 v140, v80, v82, s[10:11]
    v_cndmask_b32_e64 v141, v81, v83, s[10:11]
    s_mov_b32 exec_lo, 0x000f000f
    s_mov_b32 exec_hi, 0x000f000f
    %s
    """ % ("s_nop 0" if forceslow else "buffer_store_dwordx4 v[140:143], v3, s[56:59], s15 offen"))
    a.stamp()
    def qissue(i, sa=14, sb=13):
        for k in range(8):
            a("s_mov_b64 exec, s[%d:%d]" % (QM[i][k], QM[i][k] + 1))
            a("buffer_load_dwordx4 v[%d:%d], v2, s[56:59], s%d offen offset:%d sc1" % (16 + 32 * i + 4 * k, 19 + 32 * i + 4 * k, sa if k < 4 else sb, (k % 4) * 1024))
        a("s_mov_b64 exec, -1")
    def qcheck(i):
        for k in range(8):
            a("v_cmp_ne_u64 s[%d:%d], s[46:47], v[%d:%d]" % (QM[i][k], QM[i][k] + 1, 18 + 32 * i + 4 * k, 19 + 32 * i + 4 * k))
        for k in range(8):
            a("s_or_b64 s[60:61], s[%d:%d], %s" % (QM[i][k], QM[i][k] + 1, "s[60:61]" if k else "0"))
    if diag:
        a("s_mov_b64 exec, -1")
        a("v_mov_b32 v176, 0")
        a("v_mov_b32 v177, 0")
        a("s_mov_b32 s63, 1")
    if opt("qdel", 0): a("s_sleep %d" % opt("qdel", 0))
    qissue(0)
    a("s_mov_b32 s64, %d" % opt("qthr", 16))
    a("v_mov_b32 v144, 2")
    a("s_sleep %d" % opt("qstag", 10))
    qissue(1)
    a.pad("PAD_Q2", "L_att_x")
    a.label("L_q_poll")
    for i in range(2):
        a("s_waitcnt vmcnt(8)")
        qcheck(i)
        a.log(63, "s[60:61]", 176)
        a("s_cbranch_scc0 L_q_d%d" % i)
        qissue(i)
    a("s_sub_u32 s64, s64, 1")
    a("s_cbranch_scc0 L_q_poll")
    a("s_branch L_q_slow")
    for i in (1, 0):
        a.label("L_q_d%d" % i)
        for k in range(4):
            a("v_add_f32 v%d, v%d, v%d" % (80 + 2 * k, 16 + 32 * i + 4 * k, 32 + 32 * i + 4 * k))
            a("v_add_f32 v%d, v%d, v%d" % (81 + 2 * k, 17 + 32 * i + 4 * k, 33 + 32 * i + 4 * k))
        if i == 1: a("s_branch L_q_dd")
    a.label("L_q_dd")
    for k in range(4):
        a("v_cvt_pk_bf16_f32 v%d, v%d, v%d" % (88 + k, 80 + 2 * k, 81 + 2 * k))
    a("ds_write2st64_b32 v6, v88, v89 offset0:0 offset1:1")
    a("ds_write2st64_b32 v6, v90, v91 offset0:2 offset1:3")
    a("ds_write_b32 v7, v144 offset:%d" % F_Q)
    a.stamp()
    a("s_cmp_ge_u32 s5, 24")
    a("s_cbranch_scc1 L_fin")
    if diag: a("s_branch L_q_done")
    a("s_endpgm")
    a.label("L_q_slow")
    a("""
    s_mov_b32 exec_lo, 0x000f000f
    s_mov_b32 exec_hi, 0x000f000f
    s_add_u32 s15, s15, 0x%x
    buffer_store_dwordx4 v[140:143], v3, s[56:59], s15 offen sc1
    s_mov_b64 exec, -1
    s_waitcnt vmcnt(0)
    """ % (INB1S - INB1))
    for m in QM[0]: a("s_mov_b64 s[%d:%d], -1" % (m, m + 1))
    a("s_mov_b32 s64, 0")
    a.label("L_q_spoll")
    a("""
    s_mov_b32 s12, s14
    s_mov_b32 s6, s13
    s_bitcmp1_b32 s64, 0
    s_cbranch_scc1 L_q_fa
    s_add_u32 s12, s14, 0x%x
    s_add_u32 s6, s13, 0x%x
    """ % (INB1S - INB1, INB1S - INB1))
    a.label("L_q_fa")
    qissue(0, 12, 6)
    a("s_add_u32 s64, s64, 1")
    a("s_cmp_gt_u32 s64, SPIN")
    a("s_cbranch_scc1 L_end")
    a("s_waitcnt vmcnt(0)")
    for k in range(8):
        a("v_xor_b32 v80, s40, v%d" % (18 + 4 * k))
        a("v_cmp_lt_u32 s[%d:%d], 15, v80" % (16 + 2 * k, 17 + 2 * k))
        a("v_cmp_ne_u32 vcc, s41, v%d" % (19 + 4 * k))
        a("s_or_b64 s[%d:%d], s[%d:%d], vcc" % (16 + 2 * k, 17 + 2 * k, 16 + 2 * k, 17 + 2 * k))
        a("s_or_b64 s[60:61], s[%d:%d], %s" % (16 + 2 * k, 17 + 2 * k, "s[60:61]" if k else "0"))
    a("s_cbranch_scc1 L_q_spoll")
    a("v_cmp_ne_u32 vcc, s46, v18")
    for k in range(1, 8):
        a("v_cmp_ne_u32 s[60:61], s46, v%d" % (18 + 4 * k))
        a("s_or_b64 vcc, vcc, s[60:61]")
    a("s_cselect_b32 s6, 1, %d" % (1 if forceslow else 2))
    a("v_mov_b32 v144, s6")
    a("s_branch L_q_d0")
    a.page()
    a.label("L_fin")
    a("""
    s_setprio 1
    s_lshl_b32 s6, s4, 3
    s_add_u32 s6, s6, s5
    s_sub_u32 s6, s6, 24
    s_lshl_b32 s12, s6, 13
    s_add_u32 s12, s12, 0x%x
    s_add_u32 s13, s12, 4096
    s_mul_i32 s14, s6, 3584
    s_add_u32 s14, s14, 0x%x
    s_lshl_b32 s15, s6, 4
    v_and_b32 v3, 3, v0
    v_lshlrev_b32 v3, 2, v3
    v_add_u32 v3, s15, v3
    s_waitcnt vmcnt(0)
    buffer_load_dword v6, v3, s[48:51], 0 offen
    """ % (INB3S, INB3D))
    for i, M in enumerate([[16 + 2 * k for k in range(12)], [42, 44, 46, 66, 68, 70, 72, 74, 94, 96, 98, 100]]):
        for m in M: a("s_mov_b64 s[%d:%d], -1" % (m, m + 1))
        a("s_mov_b32 s%d, 0" % (M[11] + 1))
        a("v_mov_b32 v%d, 0" % (16 + 48 * i + 44))
        a("v_mov_b32 v%d, 0" % (16 + 48 * i + 45))
    if diag:
        a("v_mov_b32 v180, 0")
        a("v_mov_b32 v181, 0")
        a("s_mov_b32 s63, 1")
    lds_wait_ge(a, 7, 160, F_OPUB, 1, sleep=2)
    a("s_setprio 3")
    a.stamp()
    NS = 2
    FM = [[16 + 2 * k for k in range(12)], [42, 44, 46, 66, 68, 70, 72, 74, 94, 96, 98, 100]]
    bases = [16 + 48 * i for i in range(NS)]
    def fissue(i):
        base = bases[i]
        for k in range(12):
            a("s_mov_b64 exec, s[%d:%d]" % (FM[i][k], FM[i][k] + 1))
            a("buffer_load_dwordx4 v[%d:%d], v2, s[56:59], s%d offen offset:%d sc1" % (base + 4 * k, base + 3 + 4 * k, 12 + k // 4, (k % 4) * 1024))
        a("s_mov_b64 exec, -1")
    def fcheck(i, lab):
        base = bases[i]
        for k in range(12):
            a("v_cmp_ne_u64 s[%d:%d], s[40:41], v[%d:%d]" % (FM[i][k], FM[i][k] + 1, base + 4 * k + 2, base + 4 * k + 3))
        a("s_mov_b32 s%d, 0" % (FM[i][11] + 1))
        for k in range(12):
            a("s_or_b64 s[60:61], s[%d:%d], %s" % (FM[i][k], FM[i][k] + 1, "s[60:61]" if k else "0"))
        a.log(63, "s[60:61]", 180)
        a("s_cbranch_scc0 %s" % lab)
    a("s_mov_b32 s64, SPIN")
    if opt("fdel", 0): a("s_sleep %d" % opt("fdel", 0))
    for i in range(NS):
        fissue(i)
        if i < NS - 1: a("s_sleep %d" % opt("fstag", 8))
    a.label("L_f_poll3")
    for i in range(NS):
        a("s_waitcnt vmcnt(%d)" % (12 * (NS - 1)))
        fcheck(i, "L_fin_d%d" % i)
        fissue(i)
    a("s_sub_u32 s64, s64, 1")
    a("s_cbranch_scc1 L_end")
    a("s_branch L_f_poll3")
    for i, b in enumerate(bases):
        a.label("L_fin_d%d" % i)
        for e in range(2):
            a("v_add_f32 v%d, v%d, v%d" % (160 + e, b + e, b + 4 + e))
            a("v_add_f32 v%d, v%d, v%d" % (164 + e, b + 8 + e, b + 12 + e))
            a("v_add_f32 v%d, v%d, v%d" % (166 + e, b + 16 + e, b + 20 + e))
            a("v_add_f32 v%d, v%d, v%d" % (168 + e, b + 24 + e, b + 28 + e))
            a("v_add_f32 v%d, v%d, v%d" % (162 + e, b + 32 + e, b + 36 + e))
            a("v_add_f32 v%d, v%d, v%d" % (170 + e, b + 40 + e, b + 44 + e))
        if i < NS - 1: a("s_branch L_fin_dd")
    a.label("L_fin_dd")
    a.stamp()
    a("""
    v_add_f32 v160, v160, v164
    v_add_f32 v161, v161, v165
    v_add_f32 v166, v166, v168
    v_add_f32 v167, v167, v169
    v_add_f32 v162, v162, v170
    v_add_f32 v163, v163, v171
    v_add_f32 v160, v160, v166
    v_add_f32 v161, v161, v167
    """)
    for r in (4, 8):
        a.nop(1)
        for v in (162, 163, 160, 161):
            a("v_add_f32_dpp v%d, v%d, v%d row_ror:%d row_mask:0xf bank_mask:0xf" % (v, v, v, r))
    xreduce(a, "add", [160, 161, 162, 163], [164, 165, 166, 167])
    a("""
    v_cvt_pk_bf16_f32 v164, v160, v161
    v_cvt_pk_bf16_f32 v165, v162, v163
    v_lshlrev_b32 v160, 16, v164
    v_and_b32 v161, 0xffff0000, v164
    v_lshlrev_b32 v162, 16, v165
    v_and_b32 v163, 0xffff0000, v165
    v_mul_f32 v164, 0xbfb8aa3b, v162
    v_mul_f32 v165, 0xbfb8aa3b, v163
    v_exp_f32 v164, v164
    v_exp_f32 v165, v165
    s_nop 0
    v_add_f32 v164, 1.0, v164
    v_add_f32 v165, 1.0, v165
    v_rcp_f32 v166, v164
    v_rcp_f32 v167, v165
    s_nop 0
    v_mul_f32 v168, v162, v166
    v_mul_f32 v169, v163, v167
    v_fma_f32 v170, -v168, v164, v162
    v_fma_f32 v171, -v169, v165, v163
    v_fma_f32 v170, v170, v166, v168
    v_fma_f32 v171, v171, v167, v169
    v_cmp_class_f32 vcc, v170, 3
    v_cmp_class_f32 s[60:61], v171, 3
    s_nop 1
    v_cndmask_b32 v170, v170, v168, vcc
    v_cndmask_b32_e64 v171, v171, v169, s[60:61]
    v_cvt_pk_bf16_f32 v164, v170, v171
    v_lshlrev_b32 v170, 16, v164
    v_and_b32 v171, 0xffff0000, v164
    v_mul_f32 v170, v160, v170
    v_mul_f32 v171, v161, v171
    v_cvt_pk_bf16_f32 v164, v170, v171
    v_lshlrev_b32 v170, 16, v164
    v_and_b32 v171, 0xffff0000, v164
    v_lshlrev_b32 v164, 16, v6
    v_and_b32 v165, 0xffff0000, v6
    v_add_f32 v170, v164, v170
    v_add_f32 v171, v165, v171
    v_cvt_pk_bf16_f32 v164, v170, v171
    s_mov_b64 exec, 15
    buffer_store_dword v164, v3, s[52:55], 0 offen
    """)
    a.log_flush(180, 178, 2)
    a("""
    s_cmp_lg_u32 s2, 192
    s_cbranch_scc1 L_q_done
    s_mov_b64 exec, 1
    v_mov_b32 v166, s40
    v_mov_b32 v167, s41
    v_mov_b32 v168, 0
    buffer_store_dwordx2 v[166:167], v168, s[56:59], 0 offen
    """)
    a.label("L_q_done")
    a.stamp()
    a.log_flush(176, 178, 0)
    a.stamp_flush(172)
    a("s_endpgm")

    a.nstamp = nst0
    a.page()
    a.label("L_att_x")
    a("s_mov_b64 exec, -1")
    a.label("L_att")
    a("s_sub_u32 s62, s3, 2")
    a("""
    s_lshl_b32 s6, s62, 13
    s_add_u32 s6, s6, %d
    v_lshlrev_b32 v2, 8, v4
    v_add_u32 v2, s6, v2
    """ % L_K)
    for kk in range(4):
        a("v_add_u32 v3, %d, v5" % (4 * kk))
        a("v_xor_b32 v3, v3, v4")
        a("v_lshl_add_u32 v%d, v3, 4, v2" % (8 + kk))
    a("""
    v_lshrrev_b32 v3, 2, v4
    v_lshlrev_b32 v6, 8, v3
    v_lshl_or_b32 v6, v5, 4, v6
    v_add_u32 v6, %d, v6
    v_lshl_add_u32 v2, v5, 2, v3
    v_lshlrev_b32 v2, 8, v2
    v_add_u32 v2, %d, v2
    v_and_b32 v12, 1, v0
    v_lshl_add_u32 v2, v12, 3, v2
    v_and_b32 v12, 1, v5
    v_lshl_add_u32 v12, v12, 2, v3
    v_lshlrev_b32 v12, 1, v12
    v_bfe_u32 v13, v0, 1, 1
    s_lshl_b32 s6, s62, 2
    v_add_u32 v13, s6, v13
    v_xor_b32 v12, v12, v13
    v_lshl_add_u32 v12, v12, 4, v2
    v_xor_b32 v13, 32, v12
    """ % (L_Q, L_V))
    a("""
    v_lshlrev_b32 v15, 4, v0
    v_add_u32 v15, %d, v15
    s_lshl_b32 s6, s62, 10
    v_add_u32 v14, s6, v15
    v_lshlrev_b32 v17, 4, v3
    v_add_u32 v17, %d, v17
    s_lshl_b32 s6, s62, 6
    v_add_u32 v16, s6, v17
    """ % (L_P, L_ST))
    a("""
    s_lshl_b32 s6, s4, 17
    s_lshl_b32 s7, s62, 13
    s_add_u32 s6, s6, s7
    s_lshl_b32 s7, s5, 8
    s_add_u32 s6, s6, s7
    s_add_u32 s12, s6, 0x%x
    v_lshlrev_b32 v18, 15, v3
    v_lshl_or_b32 v18, v5, 6, v18
    v_and_b32 v2, 3, v0
    v_lshl_or_b32 v18, v2, 4, v18
    s_lshl_b32 s6, s4, 11
    s_lshl_b32 s7, s5, 4
    s_add_u32 s6, s6, s7
    s_add_u32 s13, s6, 0x%x
    v_lshlrev_b32 v19, 9, v3
    s_mov_b32 s8, 0xaaaaaaaa
    s_mov_b32 s9, 0xaaaaaaaa
    s_mov_b32 s10, 0xcccccccc
    s_mov_b32 s11, 0xcccccccc
    s_mov_b32 s14, 0x%x
    s_mov_b32 s15, 0x%x
    s_lshl_b32 s63, s62, 3
    s_add_u32 s63, s63, 24
    """ % (INB2, INBS, SCALE, LOG2E))
    make_tag(a)
    a("""
    v_mov_b32 v22, s40
    v_mov_b32 v23, s41
    v_mov_b32 v24, 1
    s_cmp_lg_u32 s62, 0
    s_cbranch_scc1 L_att_nt
    ds_write_b96 v7, v[22:24] offset:%d
    """ % F_TAG)
    a.label("L_att_nt")
    if opt("pwo", 0) == 2:
        a("v_not_b32 v24, v22")
        a("v_not_b32 v25, v23")
        a("buffer_store_dwordx4 v[22:25], v18, s[56:59], s12 offen")
    a.stamp()
    a("s_mov_b32 s64, SPIN")
    a.label("L_att_kw")
    a("""
    ds_read_b32 v20, v7 offset:%d
    s_waitcnt lgkmcnt(0)
    v_cmp_gt_u32 vcc, s63, v20
    s_cbranch_vccz L_att_kok
    s_sleep 2
    s_sub_u32 s64, s64, 1
    s_cbranch_scc1 L_end
    s_branch L_att_kw
    """ % F_PROG)
    a.label("L_att_kok")
    for tau in range(2):
        for kk in range(4):
            r = 32 + (tau * 4 + kk) * 4
            a("ds_read_b128 v[%d:%d], v%d offset:%d" % (r, r + 3, 8 + kk, tau * 4096))
    a.stamp()
    a("s_mov_b32 s64, SPIN")
    a.label("L_att_qw")
    a("ds_read_b32 v20, v7 offset:%d" % F_Q)
    for kk in range(4):
        a("ds_read_b128 v[%d:%d], v6 offset:%d" % (64 + 4 * kk, 67 + 4 * kk, kk * 64))
    a("""
    s_waitcnt lgkmcnt(0)
    v_cmp_eq_u32 vcc, 0, v20
    s_cbranch_vccz L_att_qok
    s_sleep 1
    s_sub_u32 s64, s64, 1
    s_cbranch_scc1 L_end
    s_branch L_att_qw
    """)
    a.label("L_att_qok")
    a.stamp()
    a("s_setprio 3")
    a("v_readfirstlane_b32 s45, v20")
    for kk in range(4):
        for tau in range(2):
            r = 32 + (tau * 4 + kk) * 4
            c_ = "0" if kk == 0 else "v[%d:%d]" % (80 + 4 * tau, 83 + 4 * tau)
            a("v_mfma_f32_16x16x32_bf16 v[%d:%d], v[%d:%d], v[%d:%d], %s" % (80 + 4 * tau, 83 + 4 * tau, r, r + 3, 64 + 4 * kk, 67 + 4 * kk, c_))
    a.nop(8)
    for rnd in range(2):
        for i in range(4):
            a("v_cvt_pk_bf16_f32 v%d, v%d, v%d" % (88 + i, 80 + 2 * i, 81 + 2 * i))
        for i in range(4):
            a("v_lshlrev_b32 v%d, 16, v%d" % (80 + 2 * i, 88 + i))
            a("v_and_b32 v%d, 0xffff0000, v%d" % (81 + 2 * i, 88 + i))
        if rnd == 0:
            for i in range(8):
                a("v_mul_f32 v%d, s14, v%d" % (80 + i, 80 + i))
    a("""
    v_max3_f32 v92, v80, v81, v82
    v_max3_f32 v93, v83, v84, v85
    v_max3_f32 v92, v92, v86, v87
    v_max_f32 v92, v92, v93
    """)
    xreduce(a, "max", [92], [93])
    a("v_mul_f32 v92, s15, v92")
    for i in range(8):
        a("v_fma_f32 v%d, v%d, s15, -v92" % (80 + i, 80 + i))
    for i in range(8):
        a("v_exp_f32 v%d, v%d" % (80 + i, 80 + i))
    a.nop(1)
    for i in range(4):
        a("v_cvt_pk_bf16_f32 v%d, v%d, v%d" % (88 + i, 80 + 2 * i, 81 + 2 * i))
    a("ds_write_b128 v14, v[88:91]")
    a("""
    v_add_f32 v93, v80, v81
    v_add_f32 v94, v82, v83
    v_add_f32 v95, v84, v85
    v_add_f32 v96, v86, v87
    v_add_f32 v93, v93, v94
    v_add_f32 v95, v95, v96
    v_add_f32 v93, v93, v95
    """)
    xreduce(a, "add", [93], [96])
    a("""
    v_mov_b32 v94, 1
    v_mov_b32 v95, 1
    s_mov_b64 exec, 0x1111
    ds_write_b128 v16, v[92:95]
    s_mov_b64 exec, -1
    """)
    a.stamp()
    a("s_mov_b32 s64, SPIN")
    a.label("L_att_pw")
    a("s_sub_u32 s64, s64, 1")
    a("s_cbranch_scc1 L_end")
    for w in range(4):
        a("ds_read_b128 v[%d:%d], v17 offset:%d" % (32 + 4 * w, 35 + 4 * w, 64 * w))
    for w in range(4):
        a("ds_read_b128 v[%d:%d], v15 offset:%d" % (48 + 4 * w, 51 + 4 * w, 1024 * w))
    a("""
    s_waitcnt lgkmcnt(0)
    v_min_u32 v64, v34, v38
    v_min3_u32 v64, v64, v42, v46
    v_cmp_eq_u32 vcc, 0, v64
    s_cbranch_vccnz L_att_pw
    """)
    a.stamp()
    a("""
    v_max3_f32 v64, v32, v36, v40
    v_max_f32 v64, v64, v44
    """)
    for w in range(4):
        a("v_sub_f32 v%d, v%d, v64" % (68 + w, 32 + 4 * w))
    for w in range(4):
        a("v_exp_f32 v%d, v%d" % (68 + w, 68 + w))
    a.nop(1)
    a("v_mul_f32 v65, v68, v33")
    for w in range(1, 4):
        a("v_fmac_f32 v65, v%d, v%d" % (68 + w, 33 + 4 * w))
    a("""
    v_mov_b32 v66, v22
    v_mov_b32 v67, v23
    v_mov_b32 v74, v22
    v_mov_b32 v75, v23
    s_cmp_lg_u32 s62, 0
    s_cbranch_scc1 L_att_nost
    s_mov_b64 exec, 0x1111
    s_cmp_eq_u32 s45, 2
    s_cbranch_scc1 L_att_stf
    buffer_store_dwordx4 v[64:67], v19, s[56:59], s13 offen sc1
    s_branch L_att_st2
    """)
    a.label("L_att_stf")
    a("buffer_store_dwordx4 v[64:67], v19, s[56:59], s13 offen")
    a.label("L_att_st2")
    a("s_mov_b64 exec, -1")
    a("ds_write_b32 v7, v34 offset:%d" % F_APUB)
    a.label("L_att_nost")
    a.pad("PAD_A1", "L_att_x")
    for chi in range(4):
        lds_wait_ge(a, 7, 76, F_PROG, 56 + 8 * chi, sleep=1 if chi < 3 else 0)
        if chi == 3: a.stamp()
        for t in range(2):
            for h in range(2):
                r = 96 + t * 4 + h * 2
                a("ds_read_b64_tr_b16 v[%d:%d], v%d offset:%d" % (r, r + 1, 12 + t, chi * 8192 + h * 4096))
        for t in range(2):
            a("s_waitcnt lgkmcnt(%d)" % (2 - 2 * t))
            a("v_mfma_f32_16x16x32_bf16 v[%d:%d], v[%d:%d], v[%d:%d], 0" % (104 + 4 * t, 107 + 4 * t, 96 + 4 * t, 99 + 4 * t, 48 + 4 * chi, 51 + 4 * chi))
        a.nop(8)
        a("""
        v_cndmask_b32_e64 v112, v104, v106, s[8:9]
        v_cndmask_b32_e64 v113, v105, v107, s[8:9]
        v_cndmask_b32_e64 v114, v108, v110, s[8:9]
        v_cndmask_b32_e64 v115, v109, v111, s[8:9]
        v_cndmask_b32_e64 v112, v112, v114, s[10:11]
        v_cndmask_b32_e64 v113, v113, v115, s[10:11]
        """)
        if chi == 0:
            a("v_mul_f32 v72, v68, v112")
            a("v_mul_f32 v73, v68, v113")
        else:
            a("v_fmac_f32 v72, v%d, v112" % (68 + chi))
            a("v_fmac_f32 v73, v%d, v113" % (68 + chi))
    a("""
    s_cmp_eq_u32 s45, 2
    s_cbranch_scc1 L_att_of
    buffer_store_dwordx4 v[72:75], v18, s[56:59], s12 offen sc1
    s_branch L_att_o2
    """)
    a.label("L_att_of")
    a("buffer_store_dwordx4 v[72:75], v18, s[56:59], s12 offen")
    a.label("L_att_o2")
    a.stamp()
    a.stamp_flush(28)
    a("s_endpgm")

    a.nstamp = nst0
    a.page()
    a.label("L_o")
    a("""
    s_lshl_b32 s10, s4, 11
    s_lshr_b32 s6, s5, 3
    s_lshl_b32 s6, s6, 9
    s_add_u32 s10, s10, s6
    s_add_u32 s10, s10, 0x%x
    v_lshlrev_b32 v8, 4, v5
    s_lshl_b32 s6, s4, 4
    s_lshr_b32 s7, s5, 1
    s_add_u32 s6, s6, s7
    s_lshl_b32 s11, s6, 13
    s_add_u32 s11, s11, 0x%x
    s_add_u32 s12, s11, 4096
    v_lshlrev_b32 v2, 4, v0
    v_bfe_u32 v3, v0, 1, 1
    v_lshlrev_b32 v9, 5, v3
    v_bfe_u32 v3, v0, 2, 2
    v_lshl_or_b32 v9, v3, 3, v9
    v_and_b32 v6, 1, v0
    v_lshl_or_b32 v9, v6, 2, v9
    v_add_u32 v9, %d, v9
    v_lshrrev_b32 v10, 1, v4
    v_lshlrev_b32 v10, 6, v10
    v_lshl_or_b32 v10, v5, 4, v10
    v_add_u32 v10, %d, v10
    v_lshl_add_u32 v6, v5, 3, v3
    v_lshlrev_b32 v6, 9, v6
    v_add_u32 v6, %d, v6
    v_and_b32 v11, 3, v0
    """ % (INBS, INB2, L_OW + 7 * 64, L_OW, L_WO))
    for aa in range(4):
        a("v_xor_b32 v16, %d, v3" % aa)
        a("v_lshl_or_b32 v16, v16, 2, v11")
        a("v_lshl_add_u32 v%d, v16, 4, v6" % (12 + aa))
    a("""
    s_lshl_b32 s6, s6, 6
    s_and_b32 s7, s5, 1
    s_lshl_b32 s7, s7, 18
    s_add_u32 s6, s6, s7
    s_add_u32 s14, s6, 0x%x
    s_add_u32 s15, s14, 0x20000
    v_lshl_add_u32 v6, v3, 2, v5
    v_lshlrev_b32 v6, 13, v6
    v_lshl_or_b32 v6, v11, 4, v6
    s_mov_b32 s8, 0xaaaaaaaa
    s_mov_b32 s9, 0xaaaaaaaa
    v_mov_b32 v11, 1
    """ % INB3S)
    a("""
    v_and_b32 v18, 31, v0
    v_lshlrev_b32 v8, 4, v18
    v_and_b32 v16, 3, v0
    v_lshlrev_b32 v16, 5, v16
    v_and_b32 v18, 28, v0
    v_add3_u32 v16, v16, v18, %d
    v_lshlrev_b32 v17, 5, v5
    v_add_u32 v17, v17, v19
    """ .replace("%d", "v19").replace("v_and_b32 v18, 31, v0", "v_mov_b32 v19, %d\n    v_and_b32 v18, 31, v0" % L_AL, 1))
    make_tag(a)
    a.stamp()
    MA = [16 + 2 * k for k in range(8)]
    MB = [32, 34, 36, 38, 44, 46, 48, 50]
    MS = [52, 54]
    SV = [204, 208]
    for m in MA + MB + MS: a("s_mov_b64 s[%d:%d], -1" % (m, m + 1))
    if diag:
        a("v_mov_b32 v200, 0")
        a("v_mov_b32 v201, 0")
        a("s_mov_b32 s63, 1")
    a("s_mov_b32 s65, 0")
    a("s_mov_b32 s66, 0")
    def mcheck(base, M):
        for k in range(8):
            a("v_cmp_ne_u64 s[%d:%d], s[40:41], v[%d:%d]" % (M[k], M[k] + 1, base + 4 * k + 2, base + 4 * k + 3))
        for k in range(8):
            a("s_or_b64 s[60:61], s[%d:%d], %s" % (M[k], M[k] + 1, "s[60:61]" if k else "0"))
    def oissue(i):
        base, M = (128, MA) if i == 0 else (160, MB)
        a("s_mov_b64 exec, s[%d:%d]" % (MS[i], MS[i] + 1))
        a("buffer_load_dwordx4 v[%d:%d], v8, s[56:59], s10 offen sc1" % (SV[i], SV[i] + 3))
        for k in range(8):
            a("s_mov_b64 exec, s[%d:%d]" % (M[k], M[k] + 1))
            a("buffer_load_dwordx4 v[%d:%d], v2, s[56:59], s%d offen offset:%d sc1" % (base + 4 * k, base + 3 + 4 * k, 11 + k // 4, (k % 4) * 1024))
        a("s_mov_b64 exec, -1")
    def stats(i):
        lab = "L_o_ns%d" % i
        v = SV[i]
        a("s_cmp_lg_u32 s66, 0")
        a("s_cbranch_scc1 %s" % lab)
        a("v_cmp_ne_u64 vcc, s[40:41], v[%d:%d]" % (v + 2, v + 3))
        a("s_mov_b64 s[%d:%d], vcc" % (MS[i], MS[i] + 1))
        a("s_cbranch_vccnz %s" % lab)
        a("v_mov_b32 v56, v%d" % v)
        allreduce(a, "max", 56, 57)
        a("v_sub_f32 v56, v%d, v56" % v)
        a("v_exp_f32 v56, v56")
        a("s_mov_b32 s66, 1")
        a("v_mul_f32 v57, v56, v%d" % (v + 1))
        a("ds_write_b32 v16, v56")
        a("ds_read_b128 v[48:51], v17")
        a("ds_read_b128 v[52:55], v17 offset:16")
        allreduce(a, "add", 57, 58)
        a("v_mul_f32 v57, 0.5, v57")
        a("v_rcp_f32 v58, v57")
        a("s_mov_b64 s[%d:%d], 0" % (MS[1 - i], MS[1 - i] + 1))
        a("s_waitcnt lgkmcnt(0)")
        a.label(lab)
    lds_wait_ge(a, 7, 59, F_APUB, 1, sleep=3)
    lds_wait_ge(a, 7, 59, F_PROG, opt('ogate', 80), sleep=1)
    a.stamp()
    a("s_setprio 3")
    if opt("odel", 0): a("s_sleep %d" % opt("odel", 0))
    oissue(0)
    a("s_sleep %d" % opt('ostag', 8))
    oissue(1)
    def wo_pre():
        for al in range(2):
            for t in range(8):
                for h in range(2):
                    r = 64 + ((al * 8 + t) * 2 + h) * 2
                    a("ds_read_b64_tr_b16 v[%d:%d], v%d offset:%d" % (r, r + 1, 12 + (t >> 1), al * 256 + (t & 1) * 8 + h * 2048))
    def opp(lab):
        a("s_cmp_lg_u32 s65, 0")
        a("s_cbranch_scc1 %s" % lab)
        a("ds_read_b32 v59, v7 offset:%d" % F_PROG)
        a("s_waitcnt lgkmcnt(0)")
        a("v_cmp_gt_u32 vcc, 0x70, v59")
        a("s_cbranch_vccnz %s" % lab)
        wo_pre()
        a("s_mov_b32 s65, 1")
        a.label(lab)
    a("s_mov_b32 s64, SPIN")
    a.label("L_o_poll")
    opp("L_o_np")
    for i in range(2):
        a("s_waitcnt vmcnt(9)")
        stats(i)
        mcheck(128 + 32 * i, MA if i == 0 else MB)
        a("s_or_b64 s[60:61], s[%d:%d], s[60:61]" % (MS[i], MS[i] + 1))
        a.log(63, "s[60:61]", 200)
        a("s_cbranch_scc0 L_o_d%d" % i)
        oissue(i)
    a("s_sub_u32 s64, s64, 1")
    a("s_cbranch_scc1 L_end")
    a("s_branch L_o_poll")
    for nm, base in (("L_o_d0", 128), ("L_o_d1", 160)):
        a.label(nm)
        a("v_mul_f32 v60, v48, v%d" % base)
        a("v_mul_f32 v61, v48, v%d" % (base + 1))
        a("v_mul_f32 v62, v49, v%d" % (base + 4))
        a("v_mul_f32 v63, v49, v%d" % (base + 5))
        for k in range(2, 8):
            a("v_fmac_f32 v%d, v%d, v%d" % (60 + 2 * (k & 1), 48 + k, base + 4 * k))
            a("v_fmac_f32 v%d, v%d, v%d" % (61 + 2 * (k & 1), 48 + k, base + 4 * k + 1))
        if base == 128: a("s_branch L_o_dd")
    a.label("L_o_dd")
    a.stamp()
    a("v_add_f32 v60, v60, v62")
    a("v_add_f32 v61, v61, v63")
    xreduce(a, "add", [60, 61], [62, 63])
    for r in (60, 61):
        a("v_mul_f32 v62, v%d, v58" % r)
        a("v_fma_f32 v63, -v62, v57, v%d" % r)
        a("v_fma_f32 v%d, v63, v58, v62" % r)
    a("v_cvt_pk_bf16_f32 v60, v60, v61")
    a("ds_write_b32 v9, v60")
    for t in range(8):
        a("ds_read_b128 v[%d:%d], v10 offset:%d" % (16 + 4 * t, 19 + 4 * t, (7 - t) * 64))
    a("s_cmp_lg_u32 s65, 0")
    a("s_cbranch_scc1 L_o_have")
    lds_wait_ge(a, 7, 59, F_PROG, 112, sleep=0)
    wo_pre()
    a.label("L_o_have")
    a("""
    v_mov_b32 v194, s40
    v_mov_b32 v195, s41
    v_mov_b32 v198, s40
    v_mov_b32 v199, s41
    s_waitcnt lgkmcnt(0)
    """)
    a.stamp()
    for t in range(8):
        for al in range(2):
            r = 64 + (al * 8 + t) * 4
            c_ = "0" if t == 0 else "v[%d:%d]" % (48 + 4 * al, 51 + 4 * al)
            a("v_mfma_f32_16x16x32_bf16 v[%d:%d], v[%d:%d], v[%d:%d], %s" % (48 + 4 * al, 51 + 4 * al, r, r + 3, 16 + 4 * t, 19 + 4 * t, c_))
    a.nop(7)
    a("""
    v_cndmask_b32_e64 v192, v48, v50, s[8:9]
    v_cndmask_b32_e64 v193, v49, v51, s[8:9]
    v_cndmask_b32_e64 v196, v52, v54, s[8:9]
    v_cndmask_b32_e64 v197, v53, v55, s[8:9]
    buffer_store_dwordx4 v[192:195], v6, s[56:59], s14 offen sc1
    buffer_store_dwordx4 v[196:199], v6, s[56:59], s15 offen sc1
    ds_write_b32 v7, v11 offset:%d
    """ % F_OPUB)
    a.stamp()
    a.log_flush(200, 202, 1)
    a.stamp_flush(28)
    a("s_endpgm")

    a.nstamp = nst0
    a.page()
    a.label("L_f")
    a("""
    s_cmp_ge_u32 s5, 28
    s_cbranch_scc1 L_end
    s_mul_i32 s14, s4, 7
    s_lshr_b32 s7, s5, 2
    s_add_u32 s14, s14, s7
    s_and_b32 s15, s5, 3
    """)
    a("""
    s_lshl_b32 s6, s15, 8
    s_add_u32 s6, s6, %d
    v_lshlrev_b32 v13, 4, v5
    v_add_u32 v13, s6, v13
    v_lshrrev_b32 v3, 2, v4
    v_lshl_add_u32 v2, v5, 3, v3
    v_lshlrev_b32 v12, 6, v2
    v_bfe_u32 v6, v0, 1, 1
    v_and_b32 v14, 1, v5
    v_lshlrev_b32 v14, 1, v14
    v_xor_b32 v6, v6, v14
    v_lshl_or_b32 v12, v6, 4, v12
    v_and_b32 v6, 1, v0
    v_lshl_or_b32 v12, v6, 3, v12
    v_add_u32 v14, %d, v12
    v_xor_b32 v15, 32, v14
    """ % (L_XN, L_G))
    a("""
    v_lshlrev_b32 v2, 8, v2
    v_add_u32 v2, %d, v2
    v_and_b32 v12, 3, v0
    """ % L_WD)
    for aa in range(4):
        a("v_xor_b32 v16, %d, v3" % aa)
        a("v_lshl_or_b32 v16, v16, 2, v12")
        a("v_lshl_add_u32 v%d, v16, 4, v2" % (8 + aa))
    a("""
    s_lshl_b32 s11, s14, 11
    s_add_u32 s11, s11, 0x%x
    s_lshl_b32 s6, s15, 8
    s_add_u32 s10, s11, s6
    v_bfe_u32 v16, v0, 2, 1
    v_lshlrev_b32 v16, 10, v16
    v_lshl_or_b32 v16, v5, 6, v16
    v_lshl_or_b32 v16, v12, 4, v16
    v_lshlrev_b32 v2, 4, v0
    v_bfe_u32 v6, v0, 1, 1
    v_lshlrev_b32 v17, 5, v6
    v_lshl_or_b32 v17, v3, 3, v17
    v_and_b32 v6, 1, v0
    v_lshl_or_b32 v17, v6, 2, v17
    v_add_u32 v17, %d, v17
    v_lshrrev_b32 v18, 1, v4
    v_lshlrev_b32 v18, 6, v18
    v_lshl_or_b32 v18, v5, 4, v18
    v_add_u32 v18, %d, v18
    s_mul_i32 s12, s15, 57344
    s_lshl_b32 s6, s14, 6
    s_add_u32 s12, s12, s6
    s_add_u32 s12, s12, 0x%x
    v_lshl_add_u32 v19, v3, 2, v5
    v_mul_u32_u24 v19, 0xe00, v19
    v_lshl_or_b32 v19, v12, 4, v19
    s_mov_b32 s8, 0xaaaaaaaa
    s_mov_b32 s9, 0xaaaaaaaa
    v_bfe_u32 v6, v0, 1, 2
    """ % (INB4, L_HW + 7 * 64, L_HW, INB3D))
    make_tag(a)
    a("v_mov_b32 v42, s40")
    a("v_mov_b32 v43, s41")
    if opt("pwg", 0):
        a("buffer_load_dwordx4 v[20:23], v2, s[56:59], s11 offen sc1")
        a("buffer_load_dwordx4 v[24:27], v2, s[56:59], s11 offen offset:1024 sc1")
        a("s_waitcnt vmcnt(0)")
    a.stamp()
    lds_wait_ge(a, 7, 20, F_XN, 1, sleep=4)
    for k in range(4):
        a("ds_read_b128 v[%d:%d], v13 offset:%d" % (20 + 4 * k, 23 + 4 * k, k * 64))
    a("v_mov_b32 v36, 0")
    a("s_waitcnt lgkmcnt(0)")
    for u in range(4):
        a("v_cmp_eq_u32 vcc, %d, v6" % u)
        a.nop(2)
        for k in range(4):
            for i in range(4):
                a("v_cndmask_b32 v%d, v36, v%d, vcc" % (128 + (u * 4 + k) * 4 + i, 20 + 4 * k + i))
    lds_wait_ge(a, 7, 20, F_Q, 1, sleep=4)
    a("v_readfirstlane_b32 s45, v20")
    lds_wait_ge(a, 7, 20, F_PROG, 96, sleep=1)
    a.stamp()
    a("s_setprio 3")
    for u in range(4):
        for k in range(4):
            for h in range(2):
                r = 64 + ((u * 4 + k) * 2 + h) * 2
                a("ds_read_b64_tr_b16 v[%d:%d], v%d offset:%d" % (r, r + 1, 14 + (u & 1), (u >> 1) * 8192 + k * 2048 + h * 256))
        if u >= 1:
            a("s_waitcnt lgkmcnt(8)")
            for k in range(4):
                n = (u - 1) * 4 + k
                c_ = "0" if n == 0 else "v[36:39]"
                a("v_mfma_f32_16x16x32_bf16 v[36:39], v[%d:%d], v[%d:%d], %s" % (64 + n * 4, 67 + n * 4, 128 + n * 4, 131 + n * 4, c_))
    a("s_waitcnt lgkmcnt(0)")
    for k in range(4):
        n = 12 + k
        a("v_mfma_f32_16x16x32_bf16 v[36:39], v[%d:%d], v[%d:%d], v[36:39]" % (64 + n * 4, 67 + n * 4, 128 + n * 4, 131 + n * 4))
    a.nop(8)
    a("""
    v_cndmask_b32_e64 v40, v36, v38, s[8:9]
    v_cndmask_b32_e64 v41, v37, v39, s[8:9]
    s_mov_b32 exec_lo, 0x00ff00ff
    s_mov_b32 exec_hi, 0x00ff00ff
    s_cmp_eq_u32 s45, 2
    s_cbranch_scc1 L_f_pf
    buffer_store_dwordx4 v[40:43], v16, s[56:59], s10 offen sc1
    s_branch L_f_p2
    """)
    a.label("L_f_pf")
    a("buffer_store_dwordx4 v[40:43], v16, s[56:59], s10 offen")
    a.label("L_f_p2")
    a("s_mov_b64 exec, -1")
    a.stamp()
    a("s_mov_b32 s65, 0")
    def wd_pre():
        for t in range(8):
            for h in range(2):
                r = 64 + (t * 2 + h) * 2
                a("ds_read_b64_tr_b16 v[%d:%d], v%d offset:%d" % (r, r + 1, 8 + (t >> 1), (t & 1) * 8 + h * 1024))
    def gissue(base):
        a("buffer_load_dwordx4 v[%d:%d], v2, s[56:59], s11 offen sc1" % (base, base + 3))
        a("buffer_load_dwordx4 v[%d:%d], v2, s[56:59], s11 offen offset:1024 sc1" % (base + 4, base + 7))
    gissue(20)
    a("s_sleep 4")
    gissue(28)
    a("s_mov_b32 s64, SPIN")
    a.label("L_f_poll")
    a("""
    s_cmp_lg_u32 s65, 0
    s_cbranch_scc1 L_f_np
    ds_read_b32 v44, v7 offset:%d
    s_waitcnt lgkmcnt(0)
    v_cmp_gt_u32 vcc, 0x78, v44
    s_cbranch_vccnz L_f_np
    """ % F_PROG)
    wd_pre()
    a("s_mov_b32 s65, 1")
    a.label("L_f_np")
    a("s_waitcnt vmcnt(2)")
    tagcheck(a, [20, 24])
    a("s_cbranch_vccz L_f_d0")
    gissue(20)
    a("s_waitcnt vmcnt(2)")
    tagcheck(a, [28, 32])
    a("s_cbranch_vccz L_f_d1")
    gissue(28)
    a("s_sub_u32 s64, s64, 1")
    a("s_cbranch_scc1 L_end")
    a("s_branch L_f_poll")
    for nm, base in (("L_f_d0", 20), ("L_f_d1", 28)):
        a.label(nm)
        a("v_mov_b32 v44, v%d" % base)
        a("v_mov_b32 v45, v%d" % (base + 1))
        a("v_mov_b32 v46, v%d" % (base + 4))
        a("v_mov_b32 v47, v%d" % (base + 5))
        if base == 20: a("s_branch L_f_dd")
    a.label("L_f_dd")
    a.stamp()
    xreduce(a, "add", [44, 45, 46, 47], [48, 49, 50, 51])
    a("""
    s_mov_b32 s16, 0x3d372713
    s_mov_b32 s17, 0xc0135761
    v_cvt_pk_bf16_f32 v48, v44, v45
    v_cvt_pk_bf16_f32 v49, v46, v47
    v_lshlrev_b32 v44, 16, v48
    v_and_b32 v45, 0xffff0000, v48
    v_lshlrev_b32 v46, 16, v49
    v_and_b32 v47, 0xffff0000, v49
    v_mul_f32 v48, v44, v44
    v_mul_f32 v49, v45, v45
    v_mul_f32 v48, v48, v44
    v_mul_f32 v49, v49, v45
    v_fma_f32 v48, v48, s16, v44
    v_fma_f32 v49, v49, s16, v45
    v_mul_f32 v48, s17, v48
    v_mul_f32 v49, s17, v49
    v_exp_f32 v48, v48
    v_exp_f32 v49, v49
    s_nop 0
    v_add_f32 v48, 1.0, v48
    v_add_f32 v49, 1.0, v49
    v_rcp_f32 v48, v48
    v_rcp_f32 v49, v49
    s_nop 0
    v_mul_f32 v44, v44, v48
    v_mul_f32 v45, v45, v49
    v_cvt_pk_bf16_f32 v48, v44, v45
    v_lshlrev_b32 v44, 16, v48
    v_and_b32 v45, 0xffff0000, v48
    v_mul_f32 v44, v44, v46
    v_mul_f32 v45, v45, v47
    v_cvt_pk_bf16_f32 v48, v44, v45
    ds_write_b32 v17, v48
    """)
    for t in range(8):
        a("ds_read_b128 v[%d:%d], v18 offset:%d" % (128 + 4 * t, 131 + 4 * t, (7 - t) * 64))
    a("s_cmp_lg_u32 s65, 0")
    a("s_cbranch_scc1 L_f_have")
    lds_wait_ge(a, 7, 44, F_PROG, 120, sleep=0)
    wd_pre()
    a.label("L_f_have")
    a("s_waitcnt lgkmcnt(0)")
    a.stamp()
    for t in range(8):
        c_ = "0" if t == 0 else "v[36:39]"
        a("v_mfma_f32_16x16x32_bf16 v[36:39], v[%d:%d], v[%d:%d], %s" % (64 + 4 * t, 67 + 4 * t, 128 + 4 * t, 131 + 4 * t, c_))
    a.nop(8)
    a("""
    v_cndmask_b32_e64 v40, v36, v38, s[8:9]
    v_cndmask_b32_e64 v41, v37, v39, s[8:9]
    buffer_store_dwordx4 v[40:43], v19, s[56:59], s12 offen sc1
    """)
    a.stamp()
    a.stamp_flush(28)
    a.label("L_end")
    a("s_endpgm")

    out += a.l
    out.append('''.section .rodata,"a"
.p2align 6
.amdhsa_kernel %s_kernel
  .amdhsa_next_free_vgpr 216
  .amdhsa_next_free_sgpr 102
  .amdhsa_accum_offset 216
  .amdhsa_group_segment_fixed_size 0
  .amdhsa_kernarg_size 96
  .amdhsa_user_sgpr_count 2
  .amdhsa_user_sgpr_kernarg_segment_ptr 1
  .amdhsa_system_sgpr_workgroup_id_x 1
  .amdhsa_float_denorm_mode_32 3
.end_amdhsa_kernel''' % NAME)
    return "\n".join(out) + "\n"

if __name__ == "__main__":
    ap = argparse.ArgumentParser()
    ap.add_argument("-o", default="cdna_kernels/%s.s" % NAME)
    ap.add_argument("--diag", action="store_true")
    ap.add_argument("--slow", action="store_true")
    ap.add_argument("-W", type=int, default=16)
    ap.add_argument("--W0", type=int, default=24)
    ap.add_argument("-P", nargs="*", default=[])
    ap.add_argument("--onlyld", action="store_true")
    ap.add_argument("--kv", type=int, default=1)
    args = ap.parse_args()
    open(args.o, "w").write(gen(diag=args.diag, W=args.W, forceslow=args.slow, onlyld=args.onlyld, kvmode=args.kv, W0=args.W0, P={x.split('=')[0]: int(x.split('=')[1]) for x in args.P}))
    print("wrote", args.o)
```

```python
import sys, argparse

NAME = "recurrent_scan__sliding_block_cached__glu_gated_geglu__decode"
HEADER = open("cdna_kernels/%s.s.ref" % NAME).read().split("; Override launch")[0]

INBS = 0x1000
INB4 = 0x5000
INB1 = 0x200000
INB1S = 0x220000
INB3D = 0x41000
INB3S = 0x80000
INB2 = 0x100000
DIAG = 0x1000000
L_WQ = 0
L_K = 16384
L_V = 49152
L_G = 81920
L_U = 90112
L_WO = 98304
L_WD = 114688
L_M = 122880
L_XN = L_M
L_Q = L_M + 1024
L_P = L_M + 2048
L_Z = L_M + 6144
L_OW = L_Z
L_HW = L_Z + 1024
L_ST = L_Z + 2048
L_FL = L_Z + 2304
L_AL = L_Z + 2560
F_PROG = 0
F_XN = 4
F_Q = 8
F_SLOW = 12
F_TAG = 16
F_TAGV = 24
F_APUB = 28
F_OPUB = 32
F_QPUB = 36
LDS_BYTES = L_Z + 4096

LOG2E = 0x3fb8aa3b
SCALE = 0x3db504f3
ST0 = 76
OGATE = 72
OSTAG = 4

class Asm:
    def __init__(self, diag=False):
        self.l = []; self.diag = diag; self.nstamp = 0; self.uid = 0
    def __call__(self, s):
        for x in s.strip().split("\n"):
            x = x.strip()
            if x: self.l.append("    " + x)
    def label(self, n): self.l.append(n + ":")
    def nop(self, n=1): self("s_nop %d" % (n - 1))
    def comment(self, s): self.l.append("    ; " + s)
    def page(self): self.l.append(".p2align 12")
    def pad(self, name, target):
        self.label(name); self("s_cbranch_execz %s" % target)
    def newlabel(self, p):
        self.uid += 1; return "%s_%d" % (p, self.uid)
    def stamp(self):
        if not self.diag: return
        i = self.nstamp; assert i < 13, "too many stamps"
        self("s_memrealtime s[%d:%d]" % (ST0 + 2 * i, ST0 + 1 + 2 * i))
        self.nstamp += 1
    def log(self, sidx, smask, vlog, tmp=62):
        if not self.diag: return
        self("s_memrealtime s[6:7]")
        self("s_bcnt1_i32_b64 s%d, %s" % (tmp, smask))
        self("s_min_u32 m0, s%d, 63" % sidx)
        self("s_waitcnt lgkmcnt(0)")
        self("v_writelane_b32 v%d, s6, m0" % vlog)
        self("v_writelane_b32 v%d, s%d, m0" % (vlog + 1, tmp))
        self("s_add_u32 s%d, s%d, 1" % (sidx, sidx))
        self("s_cmp_lg_u64 %s, 0" % smask)
    def log_flush(self, vlog, vt, slot):
        if not self.diag: return
        self("s_mov_b64 exec, -1")
        self("s_lshl_b32 s64, s2, 12")
        self("s_add_u32 s64, s64, 0x%x" % (DIAG + 0x100000 + slot * 512))
        self("v_lshlrev_b32 v%d, 2, v0" % vt)
        self("buffer_store_dword v%d, v%d, s[56:59], s64 offen" % (vlog, vt))
        self("buffer_store_dword v%d, v%d, s[56:59], s64 offen offset:256" % (vlog + 1, vt))
    def stamp_flush(self, vtmp):
        if not self.diag: return
        n = self.nstamp
        self("s_waitcnt vmcnt(0) lgkmcnt(0)")
        self("s_mov_b64 exec, 1")
        self("s_lshl_b32 s64, s2, 10")
        self("s_lshl_b32 s65, s3, 7")
        self("s_add_u32 s64, s64, s65")
        self("s_add_u32 s64, s64, 0x%x" % DIAG)
        self("v_mov_b32 v%d, 0" % (vtmp + 2))
        for i in range(n):
            self("v_mov_b32 v%d, s%d" % (vtmp, ST0 + 2 * i))
            self("v_mov_b32 v%d, s%d" % (vtmp + 1, ST0 + 1 + 2 * i))
            self("buffer_store_dwordx2 v[%d:%d], v%d, s[56:59], s64 offen offset:%d" % (vtmp, vtmp + 1, vtmp + 2, i * 8))
            self.nop(2)
        self("v_mov_b32 v%d, %d" % (vtmp, n))
        self("buffer_store_dword v%d, v%d, s[56:59], s64 offen offset:120" % (vtmp, vtmp + 2))

def allreduce(a, op, v, t):
    for r in (1, 2, 4, 8):
        a.nop(2)
        a("v_%s_f32_dpp v%d, v%d, v%d row_ror:%d row_mask:0xf bank_mask:0xf" % (op, v, v, v, r))
    for sw in ("16", "32"):
        a("v_mov_b32 v%d, v%d" % (t, v))
        a.nop(2)
        a("v_permlane%s_swap_b32 v%d, v%d" % (sw, v, t))
        a("v_%s_f32 v%d, v%d, v%d" % (op, v, v, t))

def xreduce(a, op, regs, tmps):
    for sw in ("16", "32"):
        for r, t in zip(regs, tmps):
            a("v_mov_b32 v%d, v%d" % (t, r))
        a.nop(2 if len(regs) < 3 else 1)
        for r, t in zip(regs, tmps):
            a("v_permlane%s_swap_b32 v%d, v%d" % (sw, r, t))
        for r, t in zip(regs, tmps):
            a("v_%s_f32 v%d, v%d, v%d" % (op, r, r, t))

def bf16_round(a, dst, src, tmp):
    a("v_cvt_pk_bf16_f32 v%d, v%d, v%d" % (tmp, src, src))
    a("v_lshlrev_b32 v%d, 16, v%d" % (dst, tmp))

def layernorm(a, xr, f, t, xp):
    for i in range(4):
        a("v_lshlrev_b32 v%d, 16, v%d" % (f + 2 * i, xr + i))
        a("v_and_b32 v%d, 0xffff0000, v%d" % (f + 2 * i + 1, xr + i))
    a("v_add_f32 v%d, v%d, v%d" % (t, f, f + 1))
    a("v_add_f32 v%d, v%d, v%d" % (t + 1, f + 2, f + 3))
    a("v_add_f32 v%d, v%d, v%d" % (t + 2, f + 4, f + 5))
    a("v_add_f32 v%d, v%d, v%d" % (t + 3, f + 6, f + 7))
    a("v_add_f32 v%d, v%d, v%d" % (t, t, t + 1))
    a("v_add_f32 v%d, v%d, v%d" % (t + 2, t + 2, t + 3))
    a("v_add_f32 v%d, v%d, v%d" % (t, t, t + 2))
    allreduce(a, "add", t, t + 1)
    a("v_mul_f32 v%d, 0x3b000000, v%d" % (t, t))
    a("v_sub_f32 v%d, v%d, v%d" % (t + 2, f, t))
    a("v_mul_f32 v%d, v%d, v%d" % (t + 1, t + 2, t + 2))
    for i in range(1, 8):
        a("v_sub_f32 v%d, v%d, v%d" % (t + 2, f + i, t))
        a("v_fmac_f32 v%d, v%d, v%d" % (t + 1, t + 2, t + 2))
    allreduce(a, "add", t + 1, t + 2)
    a("v_mul_f32 v%d, 0x3b000000, v%d" % (t + 1, t + 1))
    a("v_cvt_pk_bf16_f32 v%d, v%d, v%d" % (t + 2, t, t + 1))
    a("v_lshlrev_b32 v%d, 16, v%d" % (t, t + 2))
    a("v_and_b32 v%d, 0xffff0000, v%d" % (t + 1, t + 2))
    a("v_add_f32 v%d, 0x3727c5ac, v%d" % (t + 1, t + 1))
    bf16_round(a, t + 1, t + 1, t + 2)
    a("v_sqrt_f32 v%d, v%d" % (t + 1, t + 1))
    a.nop(1)
    bf16_round(a, t + 1, t + 1, t + 2)
    a("v_rcp_f32 v%d, v%d" % (t + 2, t + 1))
    for i in range(8):
        a("v_sub_f32 v%d, v%d, v%d" % (f + i, f + i, t))
    for i in range(4):
        a("v_cvt_pk_bf16_f32 v%d, v%d, v%d" % (xp + i, f + 2 * i, f + 2 * i + 1))
    for i in range(4):
        a("v_lshlrev_b32 v%d, 16, v%d" % (f + 2 * i, xp + i))
        a("v_and_b32 v%d, 0xffff0000, v%d" % (f + 2 * i + 1, xp + i))
    for i in range(8):
        a("v_mul_f32 v%d, v%d, v%d" % (t + 3, f + i, t + 2))
        a("v_fma_f32 v%d, -v%d, v%d, v%d" % (t + 4, t + 3, t + 1, f + i))
        a("v_fma_f32 v%d, v%d, v%d, v%d" % (f + i, t + 4, t + 2, t + 3))
    for i in range(4):
        a("v_cvt_pk_bf16_f32 v%d, v%d, v%d" % (xp + i, f + 2 * i, f + 2 * i + 1))

def srd(a, d, base, nbytes):
    a("s_mov_b32 s%d, s%d" % (d, base))
    a("s_mov_b32 s%d, s%d" % (d + 1, base + 1))
    a("s_mov_b32 s%d, 0x%x" % (d + 2, nbytes))
    a("s_mov_b32 s%d, 0x20000" % (d + 3))

def fcoords(a):
    a("""
    s_and_b32 s14, s4, 3
    s_mul_i32 s14, s14, 14
    s_lshr_b32 s36, s4, 2
    s_lshl_b32 s7, s36, 3
    s_add_u32 s14, s14, s7
    s_lshr_b32 s7, s5, 2
    s_add_u32 s14, s14, s7
    s_and_b32 s15, s5, 3
    s_lshl_b32 s36, s36, 3
    s_add_u32 s36, s36, s5
    s_cmp_lt_u32 s36, 32
    s_cselect_b32 s36, 1, 0
    """)

def traddr128(a, d, base, t0, t1):
    a("""
    v_lshrrev_b32 v%d, 2, v4
    v_lshl_add_u32 v%d, v5, 3, v%d
    v_lshlrev_b32 v%d, 7, v%d
    v_bfe_u32 v%d, v0, 3, 2
    v_lshl_or_b32 v%d, v%d, 5, v%d
    v_and_b32 v%d, 3, v0
    v_lshl_or_b32 v%d, v%d, 3, v%d
    """ % (t0, t0, t0, t0, t0, t1, t0, t1, t0, t1, d, t1, t0))
    if base: a("v_add_u32 v%d, %d, v%d" % (d, base, d))
    for u in range(1, 4):
        a("v_xor_b32 v%d, %d, v%d" % (d + u, 32 * u, d))

def early_barrier(a):
    a("s_waitcnt lgkmcnt(0)")
    a("s_barrier")
    srd(a, 56, 38, 0x20000000)

def make_tag(a):
    a("""
    s_waitcnt lgkmcnt(0)
    s_add_u32 s40, s40, 16
    s_and_b32 s40, s40, -16
    s_add_u32 s41, s41, 0x9e3779b9
    """)

def get_tag(a, vt):
    if OWNTAG:
        make_tag(a)
        a("v_mov_b32 v%d, s40" % vt)
        a("v_mov_b32 v%d, s41" % (vt + 1))
        a("v_mov_b32 v%d, 1" % (vt + 2))
        return
    name = a.newlabel("L_gt")
    a("s_mov_b32 s64, SPIN")
    a.label(name)
    a("ds_read_b96 v[%d:%d], v7 offset:%d" % (vt, vt + 2, F_TAG))
    a("s_waitcnt lgkmcnt(0)")
    a("v_cmp_eq_u32 vcc, 0, v%d" % (vt + 2))
    a("s_cbranch_vccz %s_ok" % name)
    a("s_sleep 10")
    a("s_sub_u32 s64, s64, 1")
    a("s_cbranch_scc1 L_end")
    a("s_branch %s" % name)
    a.label(name + "_ok")
    a("v_readfirstlane_b32 s40, v%d" % vt)
    a("v_readfirstlane_b32 s41, v%d" % (vt + 1))
    a.nop(2)

def lds_wait_ge(a, vfl, vtmp, off, thr, sleep=1):
    name = a.newlabel("L_w")
    a("s_mov_b32 s64, SPIN")
    a.label(name)
    a("ds_read_b32 v%d, v%d offset:%d" % (vtmp, vfl, off))
    a("s_waitcnt lgkmcnt(0)")
    a("v_cmp_gt_u32 vcc, %d, v%d" % (thr, vtmp) if thr <= 64 else "v_cmp_gt_u32 vcc, 0x%x, v%d" % (thr, vtmp))
    a("s_cbranch_vccz %s_ok" % name)
    if sleep: a("s_sleep %d" % sleep)
    a("s_sub_u32 s64, s64, 1")
    a("s_cbranch_scc1 L_end")
    a("s_branch %s" % name)
    a.label(name + "_ok")

def tagcheck(a, regs, tag="s[40:41]"):
    a("v_cmp_ne_u64 vcc, %s, v[%d:%d]" % (tag, regs[0] + 2, regs[0] + 3))
    for r in regs[1:]:
        a("v_cmp_ne_u64 s[60:61], %s, v[%d:%d]" % (tag, r + 2, r + 3))
        a("s_or_b64 vcc, vcc, s[60:61]")

def gen(diag=False, W=16, forceslow=False, onlyld=False, kvmode=1, W0=24, P=None):
    P = P or {}
    global OWNTAG
    OWNTAG = P.get("owntag", 0)
    if OWNTAG: P["epf"] = 1
    def opt(k, d): return P.get(k, d)
    a = Asm(diag)
    out = []
    out.append(HEADER.rstrip("\n"))
    out.append("; @launch grid=(256,1,1) block=(512,1,1) lds=%d" % LDS_BYTES)
    out.append('.amdgcn_target "amdgcn-amd-amdhsa--gfx950"')
    out.append(".set SPIN, 0x40000")
    out.append(".text")
    out.append(".globl %s_kernel" % NAME)
    out.append(".p2align 8")
    out.append(".type %s_kernel,@function" % NAME)
    out.append("%s_kernel:" % NAME)

    a("""
    s_cmp_ge_u32 s2, 256
    s_cbranch_scc1 L_end0
    s_load_dwordx16 s[16:31], s[0:1], 0
    s_load_dwordx8 s[32:39], s[0:1], 64
    v_lshrrev_b32 v1, 6, v0
    v_lshlrev_b32 v2, 3, v0
    v_mov_b32 v8, 0
    v_mov_b32 v9, 0
    v_readfirstlane_b32 s3, v1
    v_add_u32 v2, %d, v2
    v_and_b32 v0, 63, v0
    ds_write_b64 v2, v[8:9]
    s_and_b32 s4, s2, 7
    s_lshr_b32 s5, s2, 3
    v_and_b32 v4, 15, v0
    v_lshrrev_b32 v5, 4, v0
    v_mov_b32 v7, %d
    """ % (L_Z, L_FL))
    a.stamp()
    nst0 = a.nstamp
    a("""
    s_cmp_eq_u32 s3, 0
    s_cbranch_scc1 L_ld
    """)
    if onlyld:
        a("s_branch L_end0")
    a("""
    s_cmp_eq_u32 s3, 1
    s_cbranch_scc1 L_qh
    s_mov_b32 s58, 0x20000000
    s_mov_b32 s59, 0x20000
    s_waitcnt lgkmcnt(0)
    s_load_dwordx2 s[40:41], s[38:39], 0
    s_mov_b32 s56, s38
    s_mov_b32 s57, s39
    s_getreg_b32 s44, hwreg(HW_REG_XCC_ID, 0, 4)
    s_barrier
    s_cmp_eq_u32 s3, 6
    s_cbranch_scc1 L_f
    s_cmp_eq_u32 s3, 7
    s_cbranch_scc1 L_o
    s_cmp_eq_u32 s3, 2
    s_cbranch_scc1 L_att
    s_mov_b64 exec, 0
    s_cmp_eq_u32 s3, 3
    s_cbranch_scc1 PAD_Q1
    s_cmp_eq_u32 s3, 4
    s_cbranch_scc1 PAD_Q2
    s_branch PAD_A1
    """)
    a.label("L_end0")
    a("s_endpgm")
    a.label("L_qh")
    a("""
    s_setprio 3
    v_lshlrev_b32 v2, 4, v0
    s_mov_b32 s50, 1024
    s_mov_b32 s51, 0x20000
    s_mov_b32 s58, 0x20000000
    s_mov_b32 s59, 0x20000
    s_waitcnt lgkmcnt(0)
    s_mov_b32 s48, s16
    s_mov_b32 s49, s17
    s_mov_b32 s56, s38
    s_mov_b32 s57, s39
    buffer_load_dwordx4 v[8:11], v2, s[48:51], 0 offen
    s_getreg_b32 s44, hwreg(HW_REG_XCC_ID, 0, 4)
    s_barrier
    s_branch L_q
    """)

    a.label("L_ld")
    a("s_setprio 2")
    a("""
    v_lshrrev_b32 v6, 3, v0
    v_bfe_u32 v3, v0, 4, 1
    v_lshlrev_b32 v3, 1, v3
    v_and_b32 v8, 7, v0
    v_xor_b32 v8, v8, v3
    v_lshlrev_b32 v8, 4, v8
    v_lshl_or_b32 v10, v6, 13, v8
    v_xor_b32 v21, 64, v10
    v_lshrrev_b32 v9, 5, v0
    s_lshr_b32 s6, s5, 3
    s_lshl_b32 s6, s6, 20
    s_lshl_b32 s7, s4, 10
    s_add_u32 s6, s6, s7
    s_and_b32 s7, s5, 7
    s_lshl_b32 s7, s7, 7
    s_add_u32 s6, s6, s7
    s_mov_b32 s46, 0x400000
    s_mov_b32 s47, 0x20000
    s_mov_b32 m0, %d
    s_movk_i32 s42, 1024
    s_movk_i32 s43, 4096
    s_mov_b32 s40, 0x20000
    s_mov_b32 s41, 0x10000
    """ % L_WQ)
    for b in range(4):
        a("v_add_u32 v2, %d, v5" % (4 * b))
        a("v_xor_b32 v2, v4, v2")
        a("v_lshlrev_b32 v2, 4, v2")
        a("v_lshl_or_b32 v%d, v5, 8, v2" % (12 + b))
    a("""
    s_lshl_b32 s8, s4, 24
    s_lshl_b32 s7, s5, %d
    s_add_u32 s8, s8, s7
    s_add_u32 s8, s8, 0xf00000
    s_mov_b32 s9, s8
    s_mov_b32 s50, 0x8000000
    s_mov_b32 s51, 0x20000
    s_waitcnt lgkmcnt(0)
    s_mov_b32 s44, s22
    s_mov_b32 s45, s23
    s_mov_b32 s48, s18
    s_mov_b32 s49, s19
    """ % ({0: 15, 1: 12}[kvmode]))
    a.stamp()

    def loader_setup2():
        a("v_mul_u32_u24 v11, %d, v6" % 3584)
        a("v_add_u32 v11, v11, v8")
        a("v_xor_b32 v22, 64, v11")
        for b in range(2):
            a("v_add_u32 v2, %d, v5" % (4 * b))
            a("v_lshlrev_b32 v2, 1, v2")
            a("v_xor_b32 v2, v4, v2")
            a("v_lshlrev_b32 v2, 4, v2")
            a("v_lshl_or_b32 v%d, v5, 8, v2" % (16 + b))
        a("v_and_b32 v3, 31, v0")
        for b in range(2):
            a("v_add_u32 v2, %d, v9" % (2 * b))
            a("v_lshlrev_b32 v2, 2, v2")
            a("v_xor_b32 v2, v3, v2")
            a("v_lshlrev_b32 v2, 4, v2")
            a("v_lshl_or_b32 v%d, v9, 10, v2" % (18 + b))
        a("v_lshlrev_b32 v2, 2, v5")
        a("v_xor_b32 v2, v4, v2")
        a("v_lshlrev_b32 v2, 4, v2")
        a("v_lshl_or_b32 v20, v5, 10, v2")
        srd(a, 52, 20, 0x8000000)
        a("s_bitcmp1_b32 s5, 2")
        a("s_cselect_b32 s60, s30, s28")
        a("s_cselect_b32 s61, s31, s29")
        a("s_mov_b32 s62, 0x%x" % (512 * 1792 * 2))
        a("s_mov_b32 s63, 0x20000")
        srd(a, 68, 24, 4096 * 512 * 2)
        srd(a, 72, 32, 1792 * 512 * 2)
        srd(a, 56, 38, 0x20000000)
        fcoords(a)
        a("""
        s_mul_i32 s10, s15, %d
        s_lshl_b32 s7, s14, 6
        s_and_b32 s7, s7, -128
        s_add_u32 s10, s10, s7
        s_movk_i32 s41, %d
        """ % (128 * 3584, 8 * 3584))
        a("""
        s_lshl_b32 s12, s4, 19
        s_lshr_b32 s7, s5, 1
        s_lshl_b32 s7, s7, 15
        s_add_u32 s12, s12, s7
        s_and_b32 s7, s5, 1
        s_lshl_b32 s7, s7, 9
        s_add_u32 s12, s12, s7
        """)
        a("""
        s_lshl_b32 s13, s14, 15
        s_lshl_b32 s7, s15, 8
        s_add_u32 s13, s13, s7
        """)

    def item(kind, i):
        def m0set(base, i): return "s_mov_b32 m0, %d" % base if i == 0 else "s_add_u32 m0, m0, s42"
        if kind == "wq":
            pre = [] if i == 0 else ["s_add_u32 m0, m0, s42", "s_add_u32 s6, s6, s41"]
            return pre + ["buffer_load_dwordx4 v%d, s[44:47], s6 offen nt lds" % (21 if i & 1 else 10)]
        if kind in ("K", "V"):
            base = L_K if kind == "K" else L_V
            sr = 8 if kind == "K" else 9
            pre = []
            if i % 4 == 0:
                pre = ["s_mov_b32 m0, %d" % base if i == 0 else "s_add_u32 m0, m0, s43", ("s_add_u32 s%d, s%d, %s" % (sr, sr, "s43" if kvmode == 0 else "s40")) if i else "s_nop 0"]
                if opt("kvx", 0) and i:
                    u = i // 4
                    pre[1] = "s_xor_b32 s%d, s%d, 0x%x" % (sr, sr, (u * 0x21000) ^ ((u - 1) * 0x21000))
            vr = 12 + (i % 4) if kind == "K" else 16 + (i % 2)
            return pre + ["buffer_load_dwordx4 v%d, s[%d:%d], s%d offen offset:%d nt lds" % (vr, 48 if kind == "K" else 52, 51 if kind == "K" else 55, sr, (i % 4) * 1024)]
        if kind == "G":
            pre = [m0set(L_G, i), "s_add_u32 s10, s10, s41" if i else "s_nop 0"]
            return pre + ["buffer_load_dwordx4 v%d, s[60:63], s10 offen nt lds" % (22 if i & 1 else 11)]
        if kind == "wo":
            pre = [m0set(L_WO, i), "s_add_u32 s12, s12, 0x800" if i else "s_nop 0"]
            return pre + ["buffer_load_dwordx4 v%d, s[68:71], s12 offen nt lds" % (18 + (i % 2))]
        if kind == "wd":
            pre = [m0set(L_WD, i), "s_add_u32 s13, s13, s43" if i else "s_nop 0"]
            return pre + ["buffer_load_dwordx4 v20, s[72:75], s13 offen nt lds"]

    def stream(full):
        seq = [("wq", i) for i in range(16)] + [("K", i) for i in range(32)] + [("V", i) for i in range(32)]
        if full:
            seq += [("G", i) for i in range(16)]
        seq += [("wo", i) for i in range(16)]
        if full:
            seq += [("wd", i) for i in range(8)]
        prog = {}
        for n, (k, i) in enumerate(seq):
            cnt = n + 1
            if k == "wq" and i in (7, 15): prog[cnt] = i + 1
            if k == "K" and i % 8 == 7: prog[cnt] = 16 + i + 1
            if k == "V" and i % 8 == 7: prog[cnt] = 48 + i + 1
            if k == "G" and i == 15: prog[cnt] = 96
            if k == "wo" and i == 15: prog[cnt] = 112
            if k == "wd" and i == 7: prog[cnt] = 120
        return seq, prog

    WL = opt("WL", W)
    def win(n):
        if n >= 80: return WL
        return max(W, W0 - max(0, n - W0) * opt("shrink", 1))
    seqF, progF = stream(True)
    seqS, progS = stream(False)
    NB = opt("nb", 6)
    if NB == 0: a("s_barrier")
    for i in range(16):
        for x in item("wq", i): a(x)
        if i == NB - 1: a("s_barrier")
    assert 16 <= W0 <= 48
    for n in range(16, W0):
        for x in item(*seqF[n]): a(x)
    a.stamp()
    loader_setup2()

    def publish(prog, cnt):
        a("v_mov_b32 v2, %d" % prog[cnt])
        a("ds_write_b32 v7, v2 offset:%d" % F_PROG)
        if prog[cnt] in (16, 48, 80, 96, 112, 120): a.stamp()
    def emit(seq, prog, n0, n1, done):
        for n in range(n0, n1):
            target = n - win(n) + 1
            for cnt in range(done + 1, target + 1):
                if cnt in prog and cnt < target:
                    a("s_waitcnt vmcnt(%d)" % (n - cnt))
                    publish(prog, cnt)
            if target > done:
                a("s_waitcnt vmcnt(%d)" % (n - target))
            for x in item(*seq[n]): a(x)
            if target > done and target in prog: publish(prog, target)
            done = max(done, target)
        return done
    def drain(seq, prog, done):
        N = len(seq)
        for cnt in range(done + 1, N + 1):
            if cnt in prog:
                a("s_waitcnt vmcnt(%d)" % (N - cnt))
                publish(prog, cnt)
    done = emit(seqF, progF, W0, 80, 0)
    nst1 = a.nstamp
    a("s_cmp_lg_u32 s36, 0")
    a("s_cbranch_scc1 L_ld_full")
    d2 = emit(seqS, progS, 80, len(seqS), done)
    drain(seqS, progS, d2)
    a.stamp_flush(28)
    a("s_endpgm")
    a.label("L_ld_full")
    a.nstamp = nst1
    d2 = emit(seqF, progF, 80, len(seqF), done)
    drain(seqF, progF, d2)
    a.stamp_flush(28)
    a("s_endpgm")

    a.nstamp = nst0
    a.page()
    a.label("L_q")
    a("""
    v_add_u32 v12, %d, v2
    s_lshr_b32 s6, s5, 3
    s_lshl_b32 s6, s6, 8
    s_add_u32 s6, s6, %d
    v_lshlrev_b32 v13, 4, v5
    v_add_u32 v13, s6, v13
    """ % (L_XN, L_XN))
    traddr128(a, 120, L_WQ, 3, 6)
    a("""
    s_lshl_b32 s14, s4, 14
    s_lshl_b32 s15, s5, 9
    s_add_u32 s15, s15, s14
    s_add_u32 s15, s15, 0x%x
    v_lshrrev_b32 v3, 1, v4
    v_lshlrev_b32 v3, 7, v3
    v_lshl_or_b32 v3, v5, 5, v3
    v_and_b32 v6, 1, v0
    v_lshl_or_b32 v3, v6, 4, v3
    s_mov_b32 s8, 0xaaaaaaaa
    s_mov_b32 s9, 0xaaaaaaaa
    s_mov_b32 s10, 0xcccccccc
    s_mov_b32 s11, 0xcccccccc
    s_mov_b32 s12, 0xf0f0f0f0
    s_mov_b32 s13, 0xf0f0f0f0
    v_mov_b32 v149, 1
    """ % INB1)
    a("""
    s_mov_b32 s52, s34
    s_mov_b32 s53, s35
    s_mov_b32 s54, 1024
    s_mov_b32 s55, 0x20000
    """)
    a("s_waitcnt vmcnt(0)")
    a.stamp()
    layernorm(a, 8, 80, 88, 96)
    a("ds_write_b128 v12, v[96:99]")
    a("ds_write_b32 v7, v149 offset:%d" % F_XN)
    a.pad("PAD_Q1", "L_att_x")
    for k in range(4):
        a("ds_read_b128 v[%d:%d], v13 offset:%d" % (100 + 4 * k, 103 + 4 * k, k * 64))
    a.stamp()
    for half in range(2):
        lds_wait_ge(a, 7, 80, F_PROG, 8 * (half + 1), sleep=0)
        for kk in range(2):
            k = half * 2 + kk
            for u in range(4):
                for h in range(2):
                    r = 16 + (kk * 8 + u * 2 + h) * 2 + half * 32
                    a("ds_read_b64_tr_b16 v[%d:%d], v%d offset:%d" % (r, r + 1, 120 + u, k * 4096 + h * 512))
        if half == 1: a("ds_read_b96 v[150:152], v7 offset:%d" % F_TAG)
        for kk in range(2):
            k = half * 2 + kk
            for u in range(4):
                if u % 2 == 0: a("s_waitcnt lgkmcnt(%d)" % (12 - 8 * kk - 2 * u + half))
                r = 16 + (kk * 8 + u * 2) * 2 + half * 32
                c_ = "0" if k == 0 else "v[%d:%d]" % (132 + 4 * u, 135 + 4 * u)
                a("v_mfma_f32_16x16x32_bf16 v[%d:%d], v[%d:%d], v[%d:%d], %s" % (132 + 4 * u, 135 + 4 * u, r, r + 3, 100 + 4 * k, 103 + 4 * k, c_))
    a.stamp()
    a("s_mov_b32 s64, SPIN")
    a.pad("PAD_Q2", "L_att_x")
    a.label("L_q_tw")
    a("""
    s_waitcnt lgkmcnt(0)
    v_cmp_eq_u32 vcc, 0, v152
    s_cbranch_vccz L_q_tok
    ds_read_b96 v[150:152], v7 offset:%d
    s_sub_u32 s64, s64, 1
    s_cbranch_scc1 L_end
    s_branch L_q_tw
    """ % F_TAG)
    a.label("L_q_tok")
    a("""
    v_or_b32 v158, s44, v150
    v_mov_b32 v159, v151
    v_readfirstlane_b32 s40, v150
    v_readfirstlane_b32 s41, v151
    """)
    for u in range(4):
        a("v_cndmask_b32_e64 v%d, v%d, v%d, s[8:9]" % (80 + 2 * u, 132 + 4 * u, 134 + 4 * u))
        a("v_cndmask_b32_e64 v%d, v%d, v%d, s[8:9]" % (81 + 2 * u, 133 + 4 * u, 135 + 4 * u))
    a("""
    v_cndmask_b32_e64 v80, v80, v82, s[10:11]
    v_cndmask_b32_e64 v81, v81, v83, s[10:11]
    v_cndmask_b32_e64 v84, v84, v86, s[10:11]
    v_cndmask_b32_e64 v85, v85, v87, s[10:11]
    s_mov_b32 exec_lo, 0x00ff00ff
    s_mov_b32 exec_hi, 0x00ff00ff
    v_cndmask_b32_e64 v156, v80, v84, s[12:13]
    v_cndmask_b32_e64 v157, v81, v85, s[12:13]
    %s
    ds_write_b32 v7, v149 offset:%d
    """ % ("s_nop 0" if forceslow else "buffer_store_dwordx4 v[156:159], v3, s[56:59], s15 offen", F_QPUB))
    a.stamp()
    a("s_setprio 0")
    a("s_mov_b32 s64, SPIN")
    a.label("L_q_w")
    a("""
    s_sleep 4
    ds_read_b64 v[80:81], v7 offset:%d
    s_sub_u32 s64, s64, 1
    s_cbranch_scc1 L_end
    s_waitcnt lgkmcnt(0)
    v_cmp_ne_u32 vcc, 0, v81
    s_cbranch_vccnz L_q_slow
    v_and_b32 v80, 7, v80
    v_cmp_ne_u32 vcc, 4, v80
    s_cbranch_vccnz L_q_w
    s_branch L_q_dd
    """ % F_Q)
    a.label("L_q_slow")
    a("""
    s_add_u32 s15, s15, 0x%x
    buffer_store_dwordx4 v[156:159], v3, s[56:59], s15 offen sc1
    """ % (INB1S - INB1))
    a.label("L_q_dd")
    a("s_mov_b64 exec, -1")
    a.stamp()
    a("s_lshr_b32 s6, s4, 2")
    a("s_lshl_b32 s6, s6, 3")
    a("s_add_u32 s6, s6, s5")
    a("s_cmp_ge_u32 s6, 32")
    a("s_cbranch_scc1 L_fin")
    if diag: a("s_branch L_q_done")
    a("s_endpgm")
    a.page()
    a.label("L_fin")
    a("""
    s_setprio 1
    s_and_b32 s6, s4, 3
    s_lshl_b32 s6, s6, 3
    s_add_u32 s6, s6, s5
    s_sub_u32 s6, s6, 24
    s_lshl_b32 s6, s6, 1
    s_lshr_b32 s7, s3, 2
    s_add_u32 s6, s6, s7
    s_mov_b32 s65, s6
    s_lshl_b32 s12, s6, 13
    s_add_u32 s12, s12, 0x%x
    s_add_u32 s13, s12, 4096
    s_mul_i32 s14, s6, 3584
    s_add_u32 s14, s14, 0x%x
    s_lshl_b32 s15, s6, 4
    v_and_b32 v3, 3, v0
    v_lshlrev_b32 v3, 2, v3
    v_add_u32 v3, s15, v3
    s_waitcnt vmcnt(0)
    buffer_load_dword v6, v3, s[48:51], 0 offen
    """ % (INB3S, INB3D))
    for i, M in enumerate([[16 + 2 * k for k in range(12)], [42, 44, 46, 66, 68, 70, 72, 74, 94, 96, 98, 100]]):
        for m in M: a("s_mov_b64 s[%d:%d], -1" % (m, m + 1))
        a("s_mov_b32 s%d, 0" % (M[11] + 1))
        a("v_mov_b32 v%d, 0" % (16 + 48 * i + 44))
        a("v_mov_b32 v%d, 0" % (16 + 48 * i + 45))
    if diag:
        a("v_mov_b32 v180, 0")
        a("v_mov_b32 v181, 0")
        a("s_mov_b32 s63, 1")
    lds_wait_ge(a, 7, 160, F_OPUB, 1, sleep=2)
    a("s_setprio 3")
    a.stamp()
    NS = 2
    FM = [[16 + 2 * k for k in range(12)], [42, 44, 46, 66, 68, 70, 72, 74, 94, 96, 98, 100]]
    bases = [16 + 48 * i for i in range(NS)]
    def fissue(i):
        base = bases[i]
        for k in range(12):
            a("s_mov_b64 exec, s[%d:%d]" % (FM[i][k], FM[i][k] + 1))
            a("buffer_load_dwordx4 v[%d:%d], v2, s[56:59], s%d offen offset:%d sc1" % (base + 4 * k, base + 3 + 4 * k, 12 + k // 4, (k % 4) * 1024))
        a("s_mov_b64 exec, -1")
    def fcheck(i, lab):
        base = bases[i]
        for k in range(12):
            a("v_cmp_ne_u64 s[%d:%d], s[40:41], v[%d:%d]" % (FM[i][k], FM[i][k] + 1, base + 4 * k + 2, base + 4 * k + 3))
        a("s_mov_b32 s%d, 0" % (FM[i][11] + 1))
        for k in range(12):
            a("s_or_b64 s[60:61], s[%d:%d], %s" % (FM[i][k], FM[i][k] + 1, "s[60:61]" if k else "0"))
        a.log(63, "s[60:61]", 180)
        a("s_cbranch_scc0 %s" % lab)
    a("s_mov_b32 s64, SPIN")
    if opt("fdel", 0): a("s_sleep %d" % opt("fdel", 0))
    for i in range(NS):
        fissue(i)
        if i < NS - 1: a("s_sleep %d" % opt("fstag", 8))
    a.label("L_f_poll3")
    for i in range(NS):
        a("s_waitcnt vmcnt(%d)" % (12 * (NS - 1)))
        fcheck(i, "L_fin_d%d" % i)
        fissue(i)
    a("s_sub_u32 s64, s64, 1")
    a("s_cbranch_scc1 L_end")
    a("s_branch L_f_poll3")
    for i, b in enumerate(bases):
        a.label("L_fin_d%d" % i)
        for e in range(2):
            a("v_add_f32 v%d, v%d, v%d" % (160 + e, b + e, b + 4 + e))
            a("v_add_f32 v%d, v%d, v%d" % (164 + e, b + 8 + e, b + 12 + e))
            a("v_add_f32 v%d, v%d, v%d" % (166 + e, b + 16 + e, b + 20 + e))
            a("v_add_f32 v%d, v%d, v%d" % (168 + e, b + 24 + e, b + 28 + e))
            a("v_add_f32 v%d, v%d, v%d" % (162 + e, b + 32 + e, b + 36 + e))
            a("v_add_f32 v%d, v%d, v%d" % (170 + e, b + 40 + e, b + 44 + e))
        if i < NS - 1: a("s_branch L_fin_dd")
    a.label("L_fin_dd")
    a.stamp()
    a("""
    v_add_f32 v160, v160, v164
    v_add_f32 v161, v161, v165
    v_add_f32 v166, v166, v168
    v_add_f32 v167, v167, v169
    v_add_f32 v162, v162, v170
    v_add_f32 v163, v163, v171
    v_add_f32 v160, v160, v166
    v_add_f32 v161, v161, v167
    """)
    for r in (4, 8):
        a.nop(1)
        for v in (162, 163, 160, 161):
            a("v_add_f32_dpp v%d, v%d, v%d row_ror:%d row_mask:0xf bank_mask:0xf" % (v, v, v, r))
    xreduce(a, "add", [160, 161, 162, 163], [164, 165, 166, 167])
    a("""
    v_cvt_pk_bf16_f32 v164, v160, v161
    v_cvt_pk_bf16_f32 v165, v162, v163
    v_lshlrev_b32 v160, 16, v164
    v_and_b32 v161, 0xffff0000, v164
    v_lshlrev_b32 v162, 16, v165
    v_and_b32 v163, 0xffff0000, v165
    v_mul_f32 v164, 0xbfb8aa3b, v162
    v_mul_f32 v165, 0xbfb8aa3b, v163
    v_exp_f32 v164, v164
    v_exp_f32 v165, v165
    s_nop 0
    v_add_f32 v164, 1.0, v164
    v_add_f32 v165, 1.0, v165
    v_rcp_f32 v166, v164
    v_rcp_f32 v167, v165
    s_nop 0
    v_mul_f32 v168, v162, v166
    v_mul_f32 v169, v163, v167
    v_fma_f32 v170, -v168, v164, v162
    v_fma_f32 v171, -v169, v165, v163
    v_fma_f32 v170, v170, v166, v168
    v_fma_f32 v171, v171, v167, v169
    v_cmp_class_f32 vcc, v170, 3
    v_cmp_class_f32 s[60:61], v171, 3
    s_nop 1
    v_cndmask_b32 v170, v170, v168, vcc
    v_cndmask_b32_e64 v171, v171, v169, s[60:61]
    v_cvt_pk_bf16_f32 v164, v170, v171
    v_lshlrev_b32 v170, 16, v164
    v_and_b32 v171, 0xffff0000, v164
    v_mul_f32 v170, v160, v170
    v_mul_f32 v171, v161, v171
    v_cvt_pk_bf16_f32 v164, v170, v171
    v_lshlrev_b32 v170, 16, v164
    v_and_b32 v171, 0xffff0000, v164
    v_lshlrev_b32 v164, 16, v6
    v_and_b32 v165, 0xffff0000, v6
    v_add_f32 v170, v164, v170
    v_add_f32 v171, v165, v171
    v_cvt_pk_bf16_f32 v164, v170, v171
    s_mov_b64 exec, 15
    buffer_store_dword v164, v3, s[52:55], 0 offen
    """)
    a.log_flush(180, 178, 2)
    a("""
    s_cmp_lg_u32 s65, 0
    s_cbranch_scc1 L_q_done
    s_mov_b64 exec, 1
    v_mov_b32 v166, s40
    v_mov_b32 v167, s41
    v_mov_b32 v168, 0
    buffer_store_dwordx2 v[166:167], v168, s[56:59], 0 offen
    """)
    a.label("L_q_done")
    a.stamp()
    a.stamp_flush(172)
    a("s_endpgm")

    a.nstamp = nst0
    a.page()
    a.label("L_att_x")
    a("s_mov_b64 exec, -1")
    a.label("L_att")
    a("s_sub_u32 s62, s3, 2")
    a("""
    s_lshl_b32 s6, s62, 13
    s_add_u32 s6, s6, %d
    v_lshlrev_b32 v2, 8, v4
    v_add_u32 v2, s6, v2
    """ % L_K)
    for kk in range(4):
        a("v_add_u32 v3, %d, v5" % (4 * kk))
        a("v_xor_b32 v3, v3, v4")
        a("v_lshl_add_u32 v%d, v3, 4, v2" % (8 + kk))
    a("""
    v_lshrrev_b32 v3, 2, v4
    v_lshlrev_b32 v6, 8, v3
    v_lshl_or_b32 v6, v5, 4, v6
    v_add_u32 v6, %d, v6
    v_lshl_add_u32 v2, v5, 2, v3
    v_lshlrev_b32 v2, 8, v2
    v_add_u32 v2, %d, v2
    v_and_b32 v12, 1, v0
    v_lshl_add_u32 v2, v12, 3, v2
    v_and_b32 v12, 1, v5
    v_lshl_add_u32 v12, v12, 2, v3
    v_lshlrev_b32 v12, 1, v12
    v_bfe_u32 v13, v0, 1, 1
    s_lshl_b32 s6, s62, 2
    v_add_u32 v13, s6, v13
    v_xor_b32 v12, v12, v13
    v_lshl_add_u32 v12, v12, 4, v2
    v_xor_b32 v13, 32, v12
    """ % (L_Q, L_V))
    a("""
    v_lshlrev_b32 v15, 4, v0
    v_add_u32 v15, %d, v15
    s_lshl_b32 s6, s62, 10
    v_add_u32 v14, s6, v15
    v_lshlrev_b32 v17, 4, v3
    v_add_u32 v17, %d, v17
    s_lshl_b32 s6, s62, 6
    v_add_u32 v16, s6, v17
    """ % (L_P, L_ST))
    a("""
    s_lshl_b32 s6, s4, 17
    s_lshl_b32 s7, s62, 13
    s_add_u32 s6, s6, s7
    s_lshl_b32 s7, s5, 8
    s_add_u32 s6, s6, s7
    s_add_u32 s12, s6, 0x%x
    v_lshlrev_b32 v18, 15, v3
    v_lshl_or_b32 v18, v5, 6, v18
    v_and_b32 v2, 3, v0
    v_lshl_or_b32 v18, v2, 4, v18
    s_lshl_b32 s6, s4, 11
    s_lshl_b32 s7, s5, 4
    s_add_u32 s6, s6, s7
    s_add_u32 s13, s6, 0x%x
    v_lshlrev_b32 v19, 9, v3
    s_mov_b32 s8, 0xaaaaaaaa
    s_mov_b32 s9, 0xaaaaaaaa
    s_mov_b32 s10, 0xcccccccc
    s_mov_b32 s11, 0xcccccccc
    s_mov_b32 s14, 0x%x
    s_mov_b32 s15, 0x%x
    s_lshl_b32 s63, s62, 3
    s_add_u32 s63, s63, 24
    """ % (INB2, INBS, SCALE, LOG2E))
    a("s_cmp_lg_u32 s62, 0")
    a("s_cbranch_scc1 L_att_gt")
    make_tag(a)
    a("""
    v_mov_b32 v22, s40
    v_mov_b32 v23, s41
    v_mov_b32 v24, 1
    ds_write_b96 v7, v[22:24] offset:%d
    s_branch L_att_nt
    """ % F_TAG)
    a.label("L_att_gt")
    get_tag(a, 22)
    a.label("L_att_nt")
    a("""
    s_lshl_b32 s16, s4, 14
    s_lshl_b32 s6, s62, 10
    s_add_u32 s16, s16, s6
    s_add_u32 s16, s16, 0x%x
    s_add_u32 s17, s16, 0x1000
    s_add_u32 s18, s16, 0x2000
    s_add_u32 s19, s16, 0x3000
    v_lshlrev_b32 v21, 4, v0
    s_lshl_b32 s6, s62, 8
    s_add_u32 s6, s6, %d
    v_lshlrev_b32 v25, 2, v0
    v_add_u32 v25, s6, v25
    s_or_b32 s46, s40, s44
    s_mov_b32 s47, s41
    s_mov_b32 s65, 0
    """ % (INB1, L_Q))
    QM = [[20, 22, 24, 26], [28, 30, 32, 34]]
    QB = [128, 144]
    for M in QM:
        for m in M: a("s_mov_b64 s[%d:%d], -1" % (m, m + 1))
    def qissue(i, sa=16):
        for k in range(4):
            a("s_mov_b64 exec, s[%d:%d]" % (QM[i][k], QM[i][k] + 1))
            a("buffer_load_dwordx4 v[%d:%d], v21, s[56:59], s%d offen sc1" % (QB[i] + 4 * k, QB[i] + 3 + 4 * k, sa + k))
        a("s_mov_b64 exec, -1")
    def qcheck(i):
        for k in range(4):
            a("v_cmp_ne_u64 s[%d:%d], s[46:47], v[%d:%d]" % (QM[i][k], QM[i][k] + 1, QB[i] + 2 + 4 * k, QB[i] + 3 + 4 * k))
        for k in range(4):
            a("s_or_b64 s[60:61], s[%d:%d], %s" % (QM[i][k], QM[i][k] + 1, "s[60:61]" if k else "0"))
    def kfrags():
        for tau in range(2):
            for kk in range(4):
                r = 32 + (tau * 4 + kk) * 4
                a("ds_read_b128 v[%d:%d], v%d offset:%d" % (r, r + 3, 8 + kk, tau * 4096))
    if diag:
        a("v_mov_b32 v176, 0")
        a("v_mov_b32 v177, 0")
        a("s_mov_b32 s66, 1")
    a.stamp()
    lds_wait_ge(a, 7, 20, F_QPUB, 1, sleep=2)
    a("s_setprio 2")
    if opt("qdel", 0): a("s_sleep %d" % opt("qdel", 0))
    qissue(0)
    a("s_mov_b32 s64, %d" % opt("qthr", 16))
    a("s_sleep %d" % opt("qstag", 10))
    qissue(1)
    a.label("L_q_poll")
    a("""
    s_cmp_lg_u32 s65, 0
    s_cbranch_scc1 L_q_nk
    ds_read_b32 v20, v7 offset:%d
    s_waitcnt lgkmcnt(0)
    v_cmp_gt_u32 vcc, s63, v20
    s_cbranch_vccnz L_q_nk
    """ % F_PROG)
    kfrags()
    a("s_mov_b32 s65, 1")
    a.label("L_q_nk")
    for i in range(2):
        a("s_waitcnt vmcnt(4)")
        qcheck(i)
        a.log(66, "s[60:61]", 176, 67)
        a("s_cbranch_scc0 L_q_d%d" % i)
        qissue(i)
    a("s_sub_u32 s64, s64, 1")
    a("s_cbranch_scc0 L_q_poll")
    a("s_branch L_a_slow")
    for i in (1, 0):
        a.label("L_q_d%d" % i)
        b = QB[i]
        a("v_add_f32 v26, v%d, v%d" % (b, b + 4))
        a("v_add_f32 v27, v%d, v%d" % (b + 1, b + 5))
        a("v_add_f32 v28, v%d, v%d" % (b + 8, b + 12))
        a("v_add_f32 v29, v%d, v%d" % (b + 9, b + 13))
        if i == 1: a("s_branch L_q_d")
    a.label("L_q_d")
    a("""
    v_add_f32 v26, v26, v28
    v_add_f32 v27, v27, v29
    v_cvt_pk_bf16_f32 v26, v26, v27
    ds_write_b32 v25, v26
    s_mov_b64 exec, 1
    ds_add_u32 v7, v24 offset:%d
    s_mov_b64 exec, -1
    """ % F_Q)
    a.stamp()
    a("s_cmp_lg_u32 s65, 0")
    a("s_cbranch_scc1 L_att_kok")
    a("s_mov_b32 s64, SPIN")
    a.label("L_att_kw")
    a("""
    ds_read_b32 v20, v7 offset:%d
    s_waitcnt lgkmcnt(0)
    v_cmp_gt_u32 vcc, s63, v20
    s_cbranch_vccz L_att_kgo
    s_sleep 1
    s_sub_u32 s64, s64, 1
    s_cbranch_scc1 L_end
    s_branch L_att_kw
    """ % F_PROG)
    a.label("L_att_kgo")
    kfrags()
    a.label("L_att_kok")
    a("s_mov_b32 s64, SPIN")
    a.label("L_att_qw")
    a("ds_read_b32 v20, v7 offset:%d" % F_Q)
    for kk in range(4):
        a("ds_read_b128 v[%d:%d], v6 offset:%d" % (64 + 4 * kk, 67 + 4 * kk, kk * 64))
    a("""
    s_waitcnt lgkmcnt(0)
    v_and_b32 v26, 7, v20
    v_cmp_ne_u32 vcc, 4, v26
    s_cbranch_vccz L_att_qok
    s_sub_u32 s64, s64, 1
    s_cbranch_scc1 L_end
    s_branch L_att_qw
    """)
    a.label("L_att_qok")
    a.stamp()
    a("s_setprio 3")
    a("v_readfirstlane_b32 s45, v20")
    for kk in range(4):
        for tau in range(2):
            r = 32 + (tau * 4 + kk) * 4
            c_ = "0" if kk == 0 else "v[%d:%d]" % (80 + 4 * tau, 83 + 4 * tau)
            a("v_mfma_f32_16x16x32_bf16 v[%d:%d], v[%d:%d], v[%d:%d], %s" % (80 + 4 * tau, 83 + 4 * tau, r, r + 3, 64 + 4 * kk, 67 + 4 * kk, c_))
    a.nop(8)
    for rnd in range(2):
        for i in range(4):
            a("v_cvt_pk_bf16_f32 v%d, v%d, v%d" % (88 + i, 80 + 2 * i, 81 + 2 * i))
        for i in range(4):
            a("v_lshlrev_b32 v%d, 16, v%d" % (80 + 2 * i, 88 + i))
            a("v_and_b32 v%d, 0xffff0000, v%d" % (81 + 2 * i, 88 + i))
        if rnd == 0:
            for i in range(8):
                a("v_mul_f32 v%d, s14, v%d" % (80 + i, 80 + i))
    a("""
    v_max3_f32 v92, v80, v81, v82
    v_max3_f32 v93, v83, v84, v85
    v_max3_f32 v92, v92, v86, v87
    v_max_f32 v92, v92, v93
    """)
    xreduce(a, "max", [92], [93])
    a("v_mul_f32 v92, s15, v92")
    for i in range(8):
        a("v_fma_f32 v%d, v%d, s15, -v92" % (80 + i, 80 + i))
    for i in range(8):
        a("v_exp_f32 v%d, v%d" % (80 + i, 80 + i))
    a.nop(1)
    for i in range(4):
        a("v_cvt_pk_bf16_f32 v%d, v%d, v%d" % (88 + i, 80 + 2 * i, 81 + 2 * i))
    a("ds_write_b128 v14, v[88:91]")
    a("""
    v_add_f32 v93, v80, v81
    v_add_f32 v94, v82, v83
    v_add_f32 v95, v84, v85
    v_add_f32 v96, v86, v87
    v_add_f32 v93, v93, v94
    v_add_f32 v95, v95, v96
    v_add_f32 v93, v93, v95
    """)
    xreduce(a, "add", [93], [96])
    a("""
    v_mov_b32 v94, 1
    v_mov_b32 v95, 1
    s_mov_b64 exec, 0x1111
    ds_write_b128 v16, v[92:95]
    s_mov_b64 exec, -1
    """)
    a.stamp()
    a("s_mov_b32 s64, SPIN")
    a.label("L_att_pw")
    a("s_sub_u32 s64, s64, 1")
    a("s_cbranch_scc1 L_end")
    for w in range(4):
        a("ds_read_b128 v[%d:%d], v17 offset:%d" % (32 + 4 * w, 35 + 4 * w, 64 * w))
    for w in range(4):
        a("ds_read_b128 v[%d:%d], v15 offset:%d" % (48 + 4 * w, 51 + 4 * w, 1024 * w))
    a("""
    s_waitcnt lgkmcnt(0)
    v_min_u32 v64, v34, v38
    v_min3_u32 v64, v64, v42, v46
    v_cmp_eq_u32 vcc, 0, v64
    s_cbranch_vccnz L_att_pw
    """)
    a.stamp()
    a("""
    v_max3_f32 v64, v32, v36, v40
    v_max_f32 v64, v64, v44
    """)
    for w in range(4):
        a("v_sub_f32 v%d, v%d, v64" % (68 + w, 32 + 4 * w))
    for w in range(4):
        a("v_exp_f32 v%d, v%d" % (68 + w, 68 + w))
    a.nop(1)
    a("v_mul_f32 v65, v68, v33")
    for w in range(1, 4):
        a("v_fmac_f32 v65, v%d, v%d" % (68 + w, 33 + 4 * w))
    a("""
    v_mov_b32 v66, v22
    v_mov_b32 v67, v23
    v_mov_b32 v74, v22
    v_mov_b32 v75, v23
    s_cmp_lg_u32 s62, 0
    s_cbranch_scc1 L_att_nost
    s_mov_b64 exec, 0x1111
    s_cmp_eq_u32 s45, 4
    s_cbranch_scc1 L_att_stf
    buffer_store_dwordx4 v[64:67], v19, s[56:59], s13 offen sc1
    s_branch L_att_st2
    """)
    a.label("L_att_stf")
    a("buffer_store_dwordx4 v[64:67], v19, s[56:59], s13 offen")
    a.label("L_att_st2")
    a("s_mov_b64 exec, -1")
    a("ds_write_b32 v7, v34 offset:%d" % F_APUB)
    a.label("L_att_nost")
    a.pad("PAD_A1", "L_att_x")
    def vread(chi):
        for t in range(2):
            for h in range(2):
                r = 96 + chi * 8 + t * 4 + h * 2
                a("ds_read_b64_tr_b16 v[%d:%d], v%d offset:%d" % (r, r + 1, 12 + t, chi * 8192 + h * 4096))
    def vmfma(chi, left):
        for t in range(2):
            a("s_waitcnt lgkmcnt(%d)" % (left + 2 - 2 * t))
            r = 96 + chi * 8 + 4 * t; d = 160 + chi * 8 + 4 * t
            a("v_mfma_f32_16x16x32_bf16 v[%d:%d], v[%d:%d], v[%d:%d], 0" % (d, d + 3, r, r + 3, 48 + 4 * chi, 51 + 4 * chi))
    def vsel(chi):
        d = 160 + chi * 8
        a("""
        v_cndmask_b32_e64 v%d, v%d, v%d, s[8:9]
        v_cndmask_b32_e64 v%d, v%d, v%d, s[8:9]
        v_cndmask_b32_e64 v%d, v%d, v%d, s[8:9]
        v_cndmask_b32_e64 v%d, v%d, v%d, s[8:9]
        v_cndmask_b32_e64 v%d, v%d, v%d, s[10:11]
        v_cndmask_b32_e64 v%d, v%d, v%d, s[10:11]
        """ % (d, d, d + 2, d + 1, d + 1, d + 3, d + 4, d + 4, d + 6, d + 5, d + 5, d + 7, d, d, d + 4, d + 1, d + 1, d + 5))
        if chi == 0:
            a("v_mul_f32 v72, v68, v%d" % d)
            a("v_mul_f32 v73, v68, v%d" % (d + 1))
        else:
            a("v_fmac_f32 v72, v%d, v%d" % (68 + chi, d))
            a("v_fmac_f32 v73, v%d, v%d" % (68 + chi, d + 1))
    lds_wait_ge(a, 7, 76, F_PROG, 72, sleep=1)
    for chi in range(3): vread(chi)
    a("ds_read_b32 v76, v7 offset:%d" % F_PROG)
    for chi in range(3): vmfma(chi, 9 - 4 * chi)
    a("s_waitcnt lgkmcnt(0)")
    a("v_cmp_gt_u32 vcc, 0x50, v76")
    a("s_cbranch_vccnz L_att_pvs")
    a.stamp()
    vread(3)
    vsel(0)
    vsel(1)
    vmfma(3, 0)
    vsel(2)
    a("s_branch L_att_pv3")
    a.label("L_att_pvs")
    a.nstamp -= 1
    a.nop(4)
    for chi in range(3): vsel(chi)
    lds_wait_ge(a, 7, 76, F_PROG, 80, sleep=0)
    a.stamp()
    vread(3)
    vmfma(3, 0)
    a.nop(8)
    a.label("L_att_pv3")
    a.nop(2)
    vsel(3)
    a("""
    s_cmp_eq_u32 s45, 4
    s_cbranch_scc1 L_att_of
    buffer_store_dwordx4 v[72:75], v18, s[56:59], s12 offen sc1
    s_branch L_att_o2
    """)
    a.label("L_att_of")
    a("buffer_store_dwordx4 v[72:75], v18, s[56:59], s12 offen")
    a.label("L_att_o2")
    a.stamp()
    if diag:
        a("s_cmp_lg_u32 s62, 0")
        a("s_cbranch_scc1 L_att_nl")
        a("s_waitcnt vmcnt(0)")
        a.log_flush(176, 178, 0)
        a.label("L_att_nl")
    a.stamp_flush(28)
    a("s_endpgm")
    a.label("L_a_slow")
    a("""
    ds_write_b32 v7, v24 offset:%d
    v_mov_b32 v24, 0x101
    s_waitcnt vmcnt(0)
    s_mov_b32 s64, 0
    """ % F_SLOW)
    for m in QM[0]: a("s_mov_b64 s[%d:%d], -1" % (m, m + 1))
    a.label("L_a_spoll")
    a("""
    s_mov_b32 s6, 0
    s_bitcmp1_b32 s64, 0
    s_cselect_b32 s6, 0, 0x%x
    """ % (INB1S - INB1))
    for k in range(4): a("s_add_u32 s%d, s%d, s6" % (28 + k, 16 + k))
    qissue(0, 28)
    a("s_add_u32 s64, s64, 1")
    a("s_cmp_gt_u32 s64, SPIN")
    a("s_cbranch_scc1 L_end")
    a("s_waitcnt vmcnt(0)")
    for k in range(4):
        m = QM[0][k]
        a("v_xor_b32 v26, s40, v%d" % (QB[0] + 2 + 4 * k))
        a("v_cmp_lt_u32 s[%d:%d], 15, v26" % (m, m + 1))
        a("v_cmp_ne_u32 vcc, s41, v%d" % (QB[0] + 3 + 4 * k))
        a("s_or_b64 s[%d:%d], s[%d:%d], vcc" % (m, m + 1, m, m + 1))
        a("s_or_b64 s[60:61], s[%d:%d], %s" % (m, m + 1, "s[60:61]" if k else "0"))
    a("s_cbranch_scc1 L_a_spoll")
    a("s_branch L_q_d0")

    a.nstamp = nst0
    a.page()
    a.label("L_o")
    a("""
    s_lshl_b32 s10, s4, 11
    s_lshr_b32 s6, s5, 3
    s_lshl_b32 s6, s6, 9
    s_add_u32 s10, s10, s6
    s_add_u32 s10, s10, 0x%x
    v_lshlrev_b32 v8, 4, v5
    s_lshl_b32 s6, s4, 4
    s_lshr_b32 s7, s5, 1
    s_add_u32 s6, s6, s7
    s_lshl_b32 s11, s6, 13
    s_add_u32 s11, s11, 0x%x
    s_add_u32 s12, s11, 4096
    v_lshlrev_b32 v2, 4, v0
    v_bfe_u32 v3, v0, 1, 1
    v_lshlrev_b32 v9, 5, v3
    v_bfe_u32 v3, v0, 2, 2
    v_lshl_or_b32 v9, v3, 3, v9
    v_and_b32 v6, 1, v0
    v_lshl_or_b32 v9, v6, 2, v9
    v_add_u32 v9, %d, v9
    v_lshrrev_b32 v10, 1, v4
    v_lshlrev_b32 v10, 6, v10
    v_lshl_or_b32 v10, v5, 4, v10
    v_add_u32 v10, %d, v10
    v_lshl_add_u32 v6, v5, 3, v3
    v_lshlrev_b32 v6, 9, v6
    v_add_u32 v6, %d, v6
    v_and_b32 v11, 3, v0
    """ % (INBS, INB2, L_OW + 7 * 64, L_OW, L_WO))
    for aa in range(4):
        a("v_xor_b32 v16, %d, v3" % aa)
        a("v_lshl_or_b32 v16, v16, 2, v11")
        a("v_lshl_add_u32 v%d, v16, 4, v6" % (12 + aa))
    a("""
    s_lshl_b32 s6, s6, 6
    s_and_b32 s7, s5, 1
    s_lshl_b32 s7, s7, 18
    s_add_u32 s6, s6, s7
    s_add_u32 s14, s6, 0x%x
    s_add_u32 s15, s14, 0x20000
    v_lshl_add_u32 v6, v3, 2, v5
    v_lshlrev_b32 v6, 13, v6
    v_lshl_or_b32 v6, v11, 4, v6
    s_mov_b32 s8, 0xaaaaaaaa
    s_mov_b32 s9, 0xaaaaaaaa
    v_mov_b32 v11, 1
    """ % INB3S)
    a("""
    v_and_b32 v18, 31, v0
    v_lshlrev_b32 v8, 4, v18
    v_and_b32 v16, 3, v0
    v_lshlrev_b32 v16, 5, v16
    v_and_b32 v18, 28, v0
    v_add3_u32 v16, v16, v18, %d
    v_lshlrev_b32 v17, 5, v5
    v_add_u32 v17, v17, v19
    """ .replace("%d", "v19").replace("v_and_b32 v18, 31, v0", "v_mov_b32 v19, %d\n    v_and_b32 v18, 31, v0" % L_AL, 1))
    get_tag(a, 56)
    a.stamp()
    MA = [16 + 2 * k for k in range(8)]
    MB = [32, 34, 36, 38, 44, 46, 48, 50]
    MS = [52, 54]
    SV = [204, 208]
    for m in MA + MB + MS: a("s_mov_b64 s[%d:%d], -1" % (m, m + 1))
    if diag:
        a("v_mov_b32 v200, 0")
        a("v_mov_b32 v201, 0")
        a("s_mov_b32 s63, 1")
    a("s_mov_b32 s65, 0")
    a("s_mov_b32 s66, 0")
    def mcheck(base, M):
        for k in range(8):
            a("v_cmp_ne_u64 s[%d:%d], s[40:41], v[%d:%d]" % (M[k], M[k] + 1, base + 4 * k + 2, base + 4 * k + 3))
        for k in range(8):
            a("s_or_b64 s[60:61], s[%d:%d], %s" % (M[k], M[k] + 1, "s[60:61]" if k else "0"))
    def oissue(i):
        base, M = (128, MA) if i == 0 else (160, MB)
        a("s_mov_b64 exec, s[%d:%d]" % (MS[i], MS[i] + 1))
        a("buffer_load_dwordx4 v[%d:%d], v8, s[56:59], s10 offen sc1" % (SV[i], SV[i] + 3))
        for k in range(8):
            a("s_mov_b64 exec, s[%d:%d]" % (M[k], M[k] + 1))
            a("buffer_load_dwordx4 v[%d:%d], v2, s[56:59], s%d offen offset:%d sc1" % (base + 4 * k, base + 3 + 4 * k, 11 + k // 4, (k % 4) * 1024))
        a("s_mov_b64 exec, -1")
    def stats(i):
        lab = "L_o_ns%d" % i
        v = SV[i]
        a("s_cmp_lg_u32 s66, 0")
        a("s_cbranch_scc1 %s" % lab)
        a("v_cmp_ne_u64 vcc, s[40:41], v[%d:%d]" % (v + 2, v + 3))
        a("s_mov_b64 s[%d:%d], vcc" % (MS[i], MS[i] + 1))
        a("s_cbranch_vccnz %s" % lab)
        a("v_mov_b32 v56, v%d" % v)
        allreduce(a, "max", 56, 57)
        a("v_sub_f32 v56, v%d, v56" % v)
        a("v_exp_f32 v56, v56")
        a("s_mov_b32 s66, 1")
        a("v_mul_f32 v57, v56, v%d" % (v + 1))
        a("ds_write_b32 v16, v56")
        a("ds_read_b128 v[48:51], v17")
        a("ds_read_b128 v[52:55], v17 offset:16")
        allreduce(a, "add", 57, 58)
        a("v_mul_f32 v57, 0.5, v57")
        a("v_rcp_f32 v58, v57")
        a("s_mov_b64 s[%d:%d], 0" % (MS[1 - i], MS[1 - i] + 1))
        a("s_waitcnt lgkmcnt(0)")
        a.label(lab)
    lds_wait_ge(a, 7, 59, F_APUB, 1, sleep=3)
    lds_wait_ge(a, 7, 59, F_PROG, opt('ogate', 80), sleep=1)
    a.stamp()
    a("s_setprio 3")
    if opt("odel", 0): a("s_sleep %d" % opt("odel", 0))
    oissue(0)
    a("s_sleep %d" % opt('ostag', 8))
    oissue(1)
    def wo_pre():
        for al in range(2):
            for t in range(8):
                for h in range(2):
                    r = 64 + ((al * 8 + t) * 2 + h) * 2
                    a("ds_read_b64_tr_b16 v[%d:%d], v%d offset:%d" % (r, r + 1, 12 + (t >> 1), al * 256 + (t & 1) * 8 + h * 2048))
    def opp(lab):
        a("s_cmp_lg_u32 s65, 0")
        a("s_cbranch_scc1 %s" % lab)
        a("ds_read_b32 v59, v7 offset:%d" % F_PROG)
        a("s_waitcnt lgkmcnt(0)")
        a("v_cmp_gt_u32 vcc, 0x70, v59")
        a("s_cbranch_vccnz %s" % lab)
        wo_pre()
        a("s_mov_b32 s65, 1")
        a.label(lab)
    a("s_mov_b32 s64, SPIN")
    a.label("L_o_poll")
    opp("L_o_np")
    for i in range(2):
        a("s_waitcnt vmcnt(9)")
        stats(i)
        mcheck(128 + 32 * i, MA if i == 0 else MB)
        a("s_or_b64 s[60:61], s[%d:%d], s[60:61]" % (MS[i], MS[i] + 1))
        a.log(63, "s[60:61]", 200)
        a("s_cbranch_scc0 L_o_d%d" % i)
        oissue(i)
    a("s_sub_u32 s64, s64, 1")
    a("s_cbranch_scc1 L_end")
    a("s_branch L_o_poll")
    for nm, base in (("L_o_d0", 128), ("L_o_d1", 160)):
        a.label(nm)
        a("v_mul_f32 v60, v48, v%d" % base)
        a("v_mul_f32 v61, v48, v%d" % (base + 1))
        a("v_mul_f32 v62, v49, v%d" % (base + 4))
        a("v_mul_f32 v63, v49, v%d" % (base + 5))
        for k in range(2, 8):
            a("v_fmac_f32 v%d, v%d, v%d" % (60 + 2 * (k & 1), 48 + k, base + 4 * k))
            a("v_fmac_f32 v%d, v%d, v%d" % (61 + 2 * (k & 1), 48 + k, base + 4 * k + 1))
        if base == 128: a("s_branch L_o_dd")
    a.label("L_o_dd")
    a.stamp()
    a("v_add_f32 v60, v60, v62")
    a("v_add_f32 v61, v61, v63")
    xreduce(a, "add", [60, 61], [62, 63])
    for r in (60, 61):
        a("v_mul_f32 v62, v%d, v58" % r)
        a("v_fma_f32 v63, -v62, v57, v%d" % r)
        a("v_fma_f32 v%d, v63, v58, v62" % r)
    a("v_cvt_pk_bf16_f32 v60, v60, v61")
    a("ds_write_b32 v9, v60")
    for t in range(8):
        a("ds_read_b128 v[%d:%d], v10 offset:%d" % (16 + 4 * t, 19 + 4 * t, (7 - t) * 64))
    a("s_cmp_lg_u32 s65, 0")
    a("s_cbranch_scc1 L_o_have")
    lds_wait_ge(a, 7, 59, F_PROG, 112, sleep=0)
    wo_pre()
    a.label("L_o_have")
    a("""
    v_mov_b32 v194, s40
    v_mov_b32 v195, s41
    v_mov_b32 v198, s40
    v_mov_b32 v199, s41
    s_waitcnt lgkmcnt(0)
    """)
    a.stamp()
    for t in range(8):
        for al in range(2):
            r = 64 + (al * 8 + t) * 4
            c_ = "0" if t == 0 else "v[%d:%d]" % (48 + 4 * al, 51 + 4 * al)
            a("v_mfma_f32_16x16x32_bf16 v[%d:%d], v[%d:%d], v[%d:%d], %s" % (48 + 4 * al, 51 + 4 * al, r, r + 3, 16 + 4 * t, 19 + 4 * t, c_))
    a.nop(7)
    a("""
    v_cndmask_b32_e64 v192, v48, v50, s[8:9]
    v_cndmask_b32_e64 v193, v49, v51, s[8:9]
    v_cndmask_b32_e64 v196, v52, v54, s[8:9]
    v_cndmask_b32_e64 v197, v53, v55, s[8:9]
    buffer_store_dwordx4 v[192:195], v6, s[56:59], s14 offen sc1
    buffer_store_dwordx4 v[196:199], v6, s[56:59], s15 offen sc1
    ds_write_b32 v7, v11 offset:%d
    """ % F_OPUB)
    a.stamp()
    a.log_flush(200, 202, 1)
    a.stamp_flush(28)
    a("s_endpgm")

    a.nstamp = nst0
    a.page()
    a.label("L_f")
    fcoords(a)
    a("s_cbranch_scc1 L_f_go")
    srd(a, 48, 16, 1024)
    srd(a, 52, 34, 1024)
    a("v_lshlrev_b32 v2, 4, v0")
    get_tag(a, 42)
    a("s_branch L_fin")
    a.label("L_f_go")
    a("""
    s_lshl_b32 s6, s15, 8
    s_add_u32 s6, s6, %d
    v_lshlrev_b32 v13, 4, v5
    v_add_u32 v13, s6, v13
    """ % L_XN)
    traddr128(a, 52, L_G, 3, 6)
    a("""
    v_lshrrev_b32 v3, 2, v4
    v_lshl_add_u32 v2, v5, 3, v3
    """)
    a("""
    v_lshlrev_b32 v2, 8, v2
    v_add_u32 v2, %d, v2
    v_and_b32 v12, 3, v0
    """ % L_WD)
    for aa in range(4):
        a("v_xor_b32 v16, %d, v3" % aa)
        a("v_lshl_or_b32 v16, v16, 2, v12")
        a("v_lshl_add_u32 v%d, v16, 4, v2" % (8 + aa))
    a("""
    s_lshl_b32 s11, s14, 11
    s_add_u32 s11, s11, 0x%x
    s_and_b32 s6, s5, 7
    s_lshl_b32 s6, s6, 8
    s_lshr_b32 s10, s14, 1
    s_lshl_b32 s10, s10, 12
    s_add_u32 s10, s10, s6
    s_add_u32 s10, s10, 0x%x
    v_bfe_u32 v16, v0, 2, 1
    v_lshlrev_b32 v16, 11, v16
    v_lshl_or_b32 v16, v5, 6, v16
    v_lshl_or_b32 v16, v12, 4, v16
    v_lshlrev_b32 v2, 4, v0
    v_bfe_u32 v6, v0, 1, 1
    v_lshlrev_b32 v17, 5, v6
    v_lshl_or_b32 v17, v3, 3, v17
    v_and_b32 v6, 1, v0
    v_lshl_or_b32 v17, v6, 2, v17
    v_add_u32 v17, %d, v17
    v_lshrrev_b32 v18, 1, v4
    v_lshlrev_b32 v18, 6, v18
    v_lshl_or_b32 v18, v5, 4, v18
    v_add_u32 v18, %d, v18
    s_mul_i32 s12, s15, 57344
    s_lshl_b32 s6, s14, 6
    s_add_u32 s12, s12, s6
    s_add_u32 s12, s12, 0x%x
    v_lshl_add_u32 v19, v3, 2, v5
    v_mul_u32_u24 v19, 0xe00, v19
    v_lshl_or_b32 v19, v12, 4, v19
    s_mov_b32 s8, 0xaaaaaaaa
    s_mov_b32 s9, 0xaaaaaaaa
    v_bfe_u32 v6, v0, 1, 2
    """ % (INB4, INB4, L_HW + 7 * 64, L_HW, INB3D))
    get_tag(a, 42)
    if opt("pwg", 0):
        a("buffer_load_dwordx4 v[20:23], v2, s[56:59], s11 offen sc1")
        a("buffer_load_dwordx4 v[24:27], v2, s[56:59], s11 offen offset:1024 sc1")
        a("s_waitcnt vmcnt(0)")
    a.stamp()
    lds_wait_ge(a, 7, 20, F_XN, 1, sleep=4)
    for k in range(4):
        a("ds_read_b128 v[%d:%d], v13 offset:%d" % (20 + 4 * k, 23 + 4 * k, k * 64))
    a("v_mov_b32 v36, 0")
    a("s_waitcnt lgkmcnt(0)")
    for u in range(4):
        a("v_cmp_eq_u32 vcc, %d, v6" % u)
        a.nop(2)
        for k in range(4):
            for i in range(4):
                a("v_cndmask_b32 v%d, v36, v%d, vcc" % (128 + (u * 4 + k) * 4 + i, 20 + 4 * k + i))
    a("s_mov_b32 s64, SPIN")
    a.label("L_f_qw")
    a("""
    ds_read_b32 v20, v7 offset:%d
    s_waitcnt lgkmcnt(0)
    v_and_b32 v21, 7, v20
    v_cmp_ne_u32 vcc, 4, v21
    s_cbranch_vccz L_f_qok
    s_sleep 4
    s_sub_u32 s64, s64, 1
    s_cbranch_scc1 L_end
    s_branch L_f_qw
    """ % F_Q)
    a.label("L_f_qok")
    a("v_readfirstlane_b32 s45, v20")
    lds_wait_ge(a, 7, 20, F_PROG, 96, sleep=1)
    a.stamp()
    a("s_setprio 3")
    for u in range(4):
        for k in range(4):
            for h in range(2):
                r = 64 + ((u * 4 + k) * 2 + h) * 2
                a("ds_read_b64_tr_b16 v[%d:%d], v%d offset:%d" % (r, r + 1, 52 + u, k * 4096 + h * 512))
        if u >= 1:
            a("s_waitcnt lgkmcnt(8)")
            for k in range(4):
                n = (u - 1) * 4 + k
                c_ = "0" if n == 0 else "v[36:39]"
                a("v_mfma_f32_16x16x32_bf16 v[36:39], v[%d:%d], v[%d:%d], %s" % (64 + n * 4, 67 + n * 4, 128 + n * 4, 131 + n * 4, c_))
    a("s_waitcnt lgkmcnt(0)")
    for k in range(4):
        n = 12 + k
        a("v_mfma_f32_16x16x32_bf16 v[36:39], v[%d:%d], v[%d:%d], v[36:39]" % (64 + n * 4, 67 + n * 4, 128 + n * 4, 131 + n * 4))
    a.nop(8)
    a("""
    v_cndmask_b32_e64 v40, v36, v38, s[8:9]
    v_cndmask_b32_e64 v41, v37, v39, s[8:9]
    s_mov_b32 exec_lo, 0x00ff00ff
    s_mov_b32 exec_hi, 0x00ff00ff
    s_cmp_eq_u32 s45, 4
    s_cbranch_scc1 L_f_pf
    buffer_store_dwordx4 v[40:43], v16, s[56:59], s10 offen sc1
    s_branch L_f_p2
    """)
    a.label("L_f_pf")
    a("buffer_store_dwordx4 v[40:43], v16, s[56:59], s10 offen")
    a.label("L_f_p2")
    a("s_mov_b64 exec, -1")
    a.stamp()
    a("s_mov_b32 s65, 0")
    def wd_pre():
        for t in range(8):
            for h in range(2):
                r = 64 + (t * 2 + h) * 2
                a("ds_read_b64_tr_b16 v[%d:%d], v%d offset:%d" % (r, r + 1, 8 + (t >> 1), (t & 1) * 8 + h * 1024))
    def gissue(base):
        a("buffer_load_dwordx4 v[%d:%d], v2, s[56:59], s11 offen sc1" % (base, base + 3))
        a("buffer_load_dwordx4 v[%d:%d], v2, s[56:59], s11 offen offset:1024 sc1" % (base + 4, base + 7))
    if opt("gdel", 0): a("s_sleep %d" % opt("gdel", 0))
    gissue(20)
    a("s_sleep %d" % opt("gstag", 4))
    gissue(28)
    a("s_mov_b32 s64, SPIN")
    a.label("L_f_poll")
    a("""
    s_cmp_lg_u32 s65, 0
    s_cbranch_scc1 L_f_np
    ds_read_b32 v44, v7 offset:%d
    s_waitcnt lgkmcnt(0)
    v_cmp_gt_u32 vcc, 0x78, v44
    s_cbranch_vccnz L_f_np
    """ % F_PROG)
    wd_pre()
    a("s_mov_b32 s65, 1")
    a.label("L_f_np")
    a("s_waitcnt vmcnt(2)")
    tagcheck(a, [20, 24])
    a("s_cbranch_vccz L_f_d0")
    gissue(20)
    a("s_waitcnt vmcnt(2)")
    tagcheck(a, [28, 32])
    a("s_cbranch_vccz L_f_d1")
    gissue(28)
    a("s_sub_u32 s64, s64, 1")
    a("s_cbranch_scc1 L_end")
    a("s_branch L_f_poll")
    for nm, base in (("L_f_d0", 20), ("L_f_d1", 28)):
        a.label(nm)
        a("v_mov_b32 v44, v%d" % base)
        a("v_mov_b32 v45, v%d" % (base + 1))
        a("v_mov_b32 v46, v%d" % (base + 4))
        a("v_mov_b32 v47, v%d" % (base + 5))
        if base == 20: a("s_branch L_f_dd")
    a.label("L_f_dd")
    a.stamp()
    xreduce(a, "add", [44, 45, 46, 47], [48, 49, 50, 51])
    a("""
    s_mov_b32 s16, 0x3d372713
    s_mov_b32 s17, 0xc0135761
    v_cvt_pk_bf16_f32 v48, v44, v45
    v_cvt_pk_bf16_f32 v49, v46, v47
    v_lshlrev_b32 v44, 16, v48
    v_and_b32 v45, 0xffff0000, v48
    v_lshlrev_b32 v46, 16, v49
    v_and_b32 v47, 0xffff0000, v49
    v_mul_f32 v48, v44, v44
    v_mul_f32 v49, v45, v45
    v_mul_f32 v48, v48, v44
    v_mul_f32 v49, v49, v45
    v_fma_f32 v48, v48, s16, v44
    v_fma_f32 v49, v49, s16, v45
    v_mul_f32 v48, s17, v48
    v_mul_f32 v49, s17, v49
    v_exp_f32 v48, v48
    v_exp_f32 v49, v49
    s_nop 0
    v_add_f32 v48, 1.0, v48
    v_add_f32 v49, 1.0, v49
    v_rcp_f32 v48, v48
    v_rcp_f32 v49, v49
    s_nop 0
    v_mul_f32 v44, v44, v48
    v_mul_f32 v45, v45, v49
    v_cvt_pk_bf16_f32 v48, v44, v45
    v_lshlrev_b32 v44, 16, v48
    v_and_b32 v45, 0xffff0000, v48
    v_mul_f32 v44, v44, v46
    v_mul_f32 v45, v45, v47
    v_cvt_pk_bf16_f32 v48, v44, v45
    ds_write_b32 v17, v48
    """)
    for t in range(8):
        a("ds_read_b128 v[%d:%d], v18 offset:%d" % (128 + 4 * t, 131 + 4 * t, (7 - t) * 64))
    a("s_cmp_lg_u32 s65, 0")
    a("s_cbranch_scc1 L_f_have")
    lds_wait_ge(a, 7, 44, F_PROG, 120, sleep=0)
    wd_pre()
    a.label("L_f_have")
    a("s_waitcnt lgkmcnt(0)")
    a.stamp()
    for t in range(8):
        c_ = "0" if t == 0 else "v[36:39]"
        a("v_mfma_f32_16x16x32_bf16 v[36:39], v[%d:%d], v[%d:%d], %s" % (64 + 4 * t, 67 + 4 * t, 128 + 4 * t, 131 + 4 * t, c_))
    a.nop(8)
    a("""
    v_cndmask_b32_e64 v40, v36, v38, s[8:9]
    v_cndmask_b32_e64 v41, v37, v39, s[8:9]
    buffer_store_dwordx4 v[40:43], v19, s[56:59], s12 offen sc1
    """)
    a.stamp()
    a.stamp_flush(28)
    a.label("L_end")
    a("s_endpgm")

    out += a.l
    out.append('''.section .rodata,"a"
.p2align 6
.amdhsa_kernel %s_kernel
  .amdhsa_next_free_vgpr 216
  .amdhsa_next_free_sgpr 102
  .amdhsa_accum_offset 216
  .amdhsa_group_segment_fixed_size 0
  .amdhsa_kernarg_size 96
  .amdhsa_user_sgpr_count 2
  .amdhsa_user_sgpr_kernarg_segment_ptr 1
  .amdhsa_system_sgpr_workgroup_id_x 1
  .amdhsa_float_denorm_mode_32 3
.end_amdhsa_kernel''' % NAME)
    return "\n".join(out) + "\n"

if __name__ == "__main__":
    ap = argparse.ArgumentParser()
    ap.add_argument("-o", default="cdna_kernels/%s.s" % NAME)
    ap.add_argument("--diag", action="store_true")
    ap.add_argument("--slow", action="store_true")
    ap.add_argument("-W", type=int, default=16)
    ap.add_argument("--W0", type=int, default=24)
    ap.add_argument("-P", nargs="*", default=[])
    ap.add_argument("--onlyld", action="store_true")
    ap.add_argument("--kv", type=int, default=1)
    args = ap.parse_args()
    open(args.o, "w").write(gen(diag=args.diag, W=args.W, forceslow=args.slow, onlyld=args.onlyld, kvmode=args.kv, W0=args.W0, P={x.split('=')[0]: int(x.split('=')[1]) for x in args.P}))
    print("wrote", args.o)
```

```python
import sys, argparse

NAME = "recurrent_scan__sliding_block_cached__glu_gated_geglu__decode"
HEADER = open("cdna_kernels/%s.s.ref" % NAME).read().split("; Override launch")[0]

INBS = 0x1000
INB4 = 0x5000
INB1 = 0x200000
INB1S = 0x220000
INB3D = 0x41000
INB3S = 0x80000
INB2 = 0x100000
DIAG = 0x1000000
L_WQ = 0
L_K = 16384
L_V = 49152
L_G = 81920
L_U = 90112
L_WO = 98304
L_WD = 114688
L_M = 122880
L_XN = L_M
L_Q = L_M + 1024
L_P = L_M + 2048
L_Z = L_M + 6144
L_OW = L_Z
L_HW = L_Z + 1024
L_ST = L_Z + 2048
L_FL = L_Z + 2304
L_AL = L_Z + 2560
F_PROG = 0
F_XN = 4
F_Q = 8
F_SLOW = 12
F_TAG = 16
F_TAGV = 24
F_APUB = 28
F_OPUB = 32
F_QPUB = 36
F_PZ = 40
F_P = 44
LDS_BYTES = L_Z + 4096

LOG2E = 0x3fb8aa3b
SCALE = 0x3db504f3
ST0 = 76
OGATE = 72
OSTAG = 4

class Asm:
    def __init__(self, diag=False):
        self.l = []; self.diag = diag; self.nstamp = 0; self.uid = 0
    def __call__(self, s):
        for x in s.strip().split("\n"):
            x = x.strip()
            if x: self.l.append("    " + x)
    def label(self, n): self.l.append(n + ":")
    def nop(self, n=1): self("s_nop %d" % (n - 1))
    def comment(self, s): self.l.append("    ; " + s)
    def page(self): self.l.append(".p2align 12")
    def pad(self, name, target):
        self.label(name); self("s_cbranch_execz %s" % target)
    def newlabel(self, p):
        self.uid += 1; return "%s_%d" % (p, self.uid)
    def stamp(self):
        if not self.diag: return
        i = self.nstamp; assert i < 13, "too many stamps"
        self("s_memrealtime s[%d:%d]" % (ST0 + 2 * i, ST0 + 1 + 2 * i))
        self.nstamp += 1
    def log(self, sidx, smask, vlog, tmp=62):
        if not self.diag: return
        self("s_memrealtime s[6:7]")
        self("s_bcnt1_i32_b64 s%d, %s" % (tmp, smask))
        self("s_min_u32 m0, s%d, 63" % sidx)
        self("s_waitcnt lgkmcnt(0)")
        self("v_writelane_b32 v%d, s6, m0" % vlog)
        self("v_writelane_b32 v%d, s%d, m0" % (vlog + 1, tmp))
        self("s_add_u32 s%d, s%d, 1" % (sidx, sidx))
        self("s_cmp_lg_u64 %s, 0" % smask)
    def log_flush(self, vlog, vt, slot):
        if not self.diag: return
        self("s_mov_b64 exec, -1")
        self("s_lshl_b32 s64, s2, 12")
        self("s_add_u32 s64, s64, 0x%x" % (DIAG + 0x100000 + slot * 512))
        self("v_lshlrev_b32 v%d, 2, v0" % vt)
        self("buffer_store_dword v%d, v%d, s[56:59], s64 offen" % (vlog, vt))
        self("buffer_store_dword v%d, v%d, s[56:59], s64 offen offset:256" % (vlog + 1, vt))
    def stamp_flush(self, vtmp):
        if not self.diag: return
        n = self.nstamp
        self("s_waitcnt vmcnt(0) lgkmcnt(0)")
        self("s_mov_b64 exec, 1")
        self("s_lshl_b32 s64, s2, 10")
        self("s_lshl_b32 s65, s3, 7")
        self("s_add_u32 s64, s64, s65")
        self("s_add_u32 s64, s64, 0x%x" % DIAG)
        self("v_mov_b32 v%d, 0" % (vtmp + 2))
        for i in range(n):
            self("v_mov_b32 v%d, s%d" % (vtmp, ST0 + 2 * i))
            self("v_mov_b32 v%d, s%d" % (vtmp + 1, ST0 + 1 + 2 * i))
            self("buffer_store_dwordx2 v[%d:%d], v%d, s[56:59], s64 offen offset:%d" % (vtmp, vtmp + 1, vtmp + 2, i * 8))
            self.nop(2)
        self("v_mov_b32 v%d, %d" % (vtmp, n))
        self("buffer_store_dword v%d, v%d, s[56:59], s64 offen offset:120" % (vtmp, vtmp + 2))

def allreduce(a, op, v, t):
    for r in (1, 2, 4, 8):
        a.nop(2)
        a("v_%s_f32_dpp v%d, v%d, v%d row_ror:%d row_mask:0xf bank_mask:0xf" % (op, v, v, v, r))
    for sw in ("16", "32"):
        a("v_mov_b32 v%d, v%d" % (t, v))
        a.nop(2)
        a("v_permlane%s_swap_b32 v%d, v%d" % (sw, v, t))
        a("v_%s_f32 v%d, v%d, v%d" % (op, v, v, t))

def xreduce(a, op, regs, tmps):
    for sw in ("16", "32"):
        for r, t in zip(regs, tmps):
            a("v_mov_b32 v%d, v%d" % (t, r))
        a.nop(2 if len(regs) < 3 else 1)
        for r, t in zip(regs, tmps):
            a("v_permlane%s_swap_b32 v%d, v%d" % (sw, r, t))
        for r, t in zip(regs, tmps):
            a("v_%s_f32 v%d, v%d, v%d" % (op, r, r, t))

def bf16_round(a, dst, src, tmp):
    a("v_cvt_pk_bf16_f32 v%d, v%d, v%d" % (tmp, src, src))
    a("v_lshlrev_b32 v%d, 16, v%d" % (dst, tmp))

def layernorm(a, xr, f, t, xp):
    for i in range(4):
        a("v_lshlrev_b32 v%d, 16, v%d" % (f + 2 * i, xr + i))
        a("v_and_b32 v%d, 0xffff0000, v%d" % (f + 2 * i + 1, xr + i))
    a("v_add_f32 v%d, v%d, v%d" % (t, f, f + 1))
    a("v_add_f32 v%d, v%d, v%d" % (t + 1, f + 2, f + 3))
    a("v_add_f32 v%d, v%d, v%d" % (t + 2, f + 4, f + 5))
    a("v_add_f32 v%d, v%d, v%d" % (t + 3, f + 6, f + 7))
    a("v_add_f32 v%d, v%d, v%d" % (t, t, t + 1))
    a("v_add_f32 v%d, v%d, v%d" % (t + 2, t + 2, t + 3))
    a("v_add_f32 v%d, v%d, v%d" % (t, t, t + 2))
    allreduce(a, "add", t, t + 1)
    a("v_mul_f32 v%d, 0x3b000000, v%d" % (t, t))
    a("v_sub_f32 v%d, v%d, v%d" % (t + 2, f, t))
    a("v_mul_f32 v%d, v%d, v%d" % (t + 1, t + 2, t + 2))
    for i in range(1, 8):
        a("v_sub_f32 v%d, v%d, v%d" % (t + 2, f + i, t))
        a("v_fmac_f32 v%d, v%d, v%d" % (t + 1, t + 2, t + 2))
    allreduce(a, "add", t + 1, t + 2)
    a("v_mul_f32 v%d, 0x3b000000, v%d" % (t + 1, t + 1))
    a("v_cvt_pk_bf16_f32 v%d, v%d, v%d" % (t + 2, t, t + 1))
    a("v_lshlrev_b32 v%d, 16, v%d" % (t, t + 2))
    a("v_and_b32 v%d, 0xffff0000, v%d" % (t + 1, t + 2))
    a("v_add_f32 v%d, 0x3727c5ac, v%d" % (t + 1, t + 1))
    bf16_round(a, t + 1, t + 1, t + 2)
    a("v_sqrt_f32 v%d, v%d" % (t + 1, t + 1))
    a.nop(1)
    bf16_round(a, t + 1, t + 1, t + 2)
    a("v_rcp_f32 v%d, v%d" % (t + 2, t + 1))
    for i in range(8):
        a("v_sub_f32 v%d, v%d, v%d" % (f + i, f + i, t))
    for i in range(4):
        a("v_cvt_pk_bf16_f32 v%d, v%d, v%d" % (xp + i, f + 2 * i, f + 2 * i + 1))
    for i in range(4):
        a("v_lshlrev_b32 v%d, 16, v%d" % (f + 2 * i, xp + i))
        a("v_and_b32 v%d, 0xffff0000, v%d" % (f + 2 * i + 1, xp + i))
    for i in range(8):
        a("v_mul_f32 v%d, v%d, v%d" % (t + 3, f + i, t + 2))
        a("v_fma_f32 v%d, -v%d, v%d, v%d" % (t + 4, t + 3, t + 1, f + i))
        a("v_fma_f32 v%d, v%d, v%d, v%d" % (f + i, t + 4, t + 2, t + 3))
    for i in range(4):
        a("v_cvt_pk_bf16_f32 v%d, v%d, v%d" % (xp + i, f + 2 * i, f + 2 * i + 1))

def srd(a, d, base, nbytes):
    a("s_mov_b32 s%d, s%d" % (d, base))
    a("s_mov_b32 s%d, s%d" % (d + 1, base + 1))
    a("s_mov_b32 s%d, 0x%x" % (d + 2, nbytes))
    a("s_mov_b32 s%d, 0x20000" % (d + 3))

def fcoords(a):
    a("""
    s_and_b32 s14, s4, 3
    s_mul_i32 s14, s14, 14
    s_lshr_b32 s36, s4, 2
    s_lshl_b32 s7, s36, 3
    s_add_u32 s14, s14, s7
    s_lshr_b32 s7, s5, 2
    s_add_u32 s14, s14, s7
    s_and_b32 s15, s5, 3
    s_lshl_b32 s36, s36, 3
    s_add_u32 s36, s36, s5
    s_cmp_lt_u32 s36, 32
    s_cselect_b32 s36, 1, 0
    """)

def touches(a, tw, vz=212):
    a("s_mov_b64 exec, 1")
    a("v_mov_b32 v%d, 0" % vz)
    n = 1
    if tw & 1:
        srd(a, 68, 20, 0x8000000)
        a("""
        s_lshl_b32 s6, s4, 24
        s_lshl_b32 s7, s5, 12
        s_add_u32 s6, s6, s7
        s_add_u32 s6, s6, 0xf00000
        buffer_load_dword v%d, v%d, s[68:71], s6 offen
        """ % (vz + 1, vz))
    if tw & 2:
        srd(a, 72, 24, 4096 * 512 * 2)
        a("""
        s_lshl_b32 s6, s4, 19
        s_lshr_b32 s7, s5, 1
        s_lshl_b32 s7, s7, 15
        s_add_u32 s6, s6, s7
        buffer_load_dword v%d, v%d, s[72:75], s6 offen
        """ % (vz + 1, vz))
    if tw & 4:
        fcoords(a)
        a("s_bitcmp1_b32 s5, 2")
        a("s_cselect_b32 s68, s30, s28")
        a("s_cselect_b32 s69, s31, s29")
        a("s_mov_b32 s70, 0x%x" % (512 * 1792 * 2))
        a("s_mov_b32 s71, 0x20000")
        srd(a, 72, 32, 1792 * 512 * 2)
        a("""
        s_mul_i32 s6, s15, %d
        s_lshl_b32 s7, s14, 6
        s_and_b32 s7, s7, -128
        s_add_u32 s6, s6, s7
        buffer_load_dword v%d, v%d, s[68:71], s6 offen
        s_lshl_b32 s6, s14, 15
        s_lshl_b32 s7, s15, 8
        s_add_u32 s6, s6, s7
        buffer_load_dword v%d, v%d, s[72:75], s6 offen
        """ % (128 * 3584, vz + 1, vz, vz + 1, vz))
    if tw & 8:
        a("""
        s_mov_b32 s6, 0x30000
        buffer_load_dword v%d, v%d, s[56:59], s6 offen
        s_mov_b32 s6, 0x240000
        buffer_load_dword v%d, v%d, s[56:59], s6 offen
        """ % (vz + 1, vz, vz + 1, vz))
    a("s_mov_b64 exec, -1")

def stouch(a, m):
    if m & 1:
        a("""
        s_lshl_b32 s6, s4, 24
        s_lshl_b32 s7, s5, 12
        s_add_u32 s6, s6, s7
        s_add_u32 s6, s6, 0xf00000
        s_load_dword s70, s[20:21], s6
        """)
    if m & 2:
        a("""
        s_lshl_b32 s6, s4, 19
        s_lshr_b32 s7, s5, 1
        s_lshl_b32 s7, s7, 15
        s_add_u32 s6, s6, s7
        s_load_dword s70, s[24:25], s6
        """)
    if m & 4:
        a("""
        s_and_b32 s6, s5, 3
        s_mul_i32 s6, s6, %d
        s_load_dword s70, s[28:29], s6
        s_load_dword s70, s[30:31], s6
        s_load_dword s70, s[32:33], s6
        """ % (128 * 3584))
    if m & 8:
        a("""
        s_mov_b32 s6, 0x240000
        s_load_dword s70, s[38:39], s6
        s_load_dword s70, s[34:35], 0
        """)

def traddr128(a, d, base, t0, t1):
    a("""
    v_lshrrev_b32 v%d, 2, v4
    v_lshl_add_u32 v%d, v5, 3, v%d
    v_lshlrev_b32 v%d, 7, v%d
    v_bfe_u32 v%d, v0, 3, 2
    v_lshl_or_b32 v%d, v%d, 5, v%d
    v_and_b32 v%d, 3, v0
    v_lshl_or_b32 v%d, v%d, 3, v%d
    """ % (t0, t0, t0, t0, t0, t1, t0, t1, t0, t1, d, t1, t0))
    if base: a("v_add_u32 v%d, %d, v%d" % (d, base, d))
    for u in range(1, 4):
        a("v_xor_b32 v%d, %d, v%d" % (d + u, 32 * u, d))

def early_barrier(a):
    a("s_waitcnt lgkmcnt(0)")
    a("s_barrier")
    srd(a, 56, 38, 0x20000000)

def make_tag(a):
    a("""
    s_waitcnt lgkmcnt(0)
    s_add_u32 s40, s40, 16
    s_and_b32 s40, s40, -16
    s_add_u32 s41, s41, 0x9e3779b9
    """)

def get_tag(a, vt):
    if OWNTAG:
        make_tag(a)
        a("v_mov_b32 v%d, s40" % vt)
        a("v_mov_b32 v%d, s41" % (vt + 1))
        a("v_mov_b32 v%d, 1" % (vt + 2))
        return
    name = a.newlabel("L_gt")
    a("s_mov_b32 s64, SPIN")
    a.label(name)
    a("ds_read_b96 v[%d:%d], v7 offset:%d" % (vt, vt + 2, F_TAG))
    a("s_waitcnt lgkmcnt(0)")
    a("v_cmp_eq_u32 vcc, 0, v%d" % (vt + 2))
    a("s_cbranch_vccz %s_ok" % name)
    a("s_sleep 10")
    a("s_sub_u32 s64, s64, 1")
    a("s_cbranch_scc1 L_end")
    a("s_branch %s" % name)
    a.label(name + "_ok")
    a("v_readfirstlane_b32 s40, v%d" % vt)
    a("v_readfirstlane_b32 s41, v%d" % (vt + 1))
    a.nop(2)

def lds_wait_ge(a, vfl, vtmp, off, thr, sleep=1):
    name = a.newlabel("L_w")
    a("s_mov_b32 s64, SPIN")
    a.label(name)
    a("ds_read_b32 v%d, v%d offset:%d" % (vtmp, vfl, off))
    a("s_waitcnt lgkmcnt(0)")
    a("v_cmp_gt_u32 vcc, %d, v%d" % (thr, vtmp) if thr <= 64 else "v_cmp_gt_u32 vcc, 0x%x, v%d" % (thr, vtmp))
    a("s_cbranch_vccz %s_ok" % name)
    if sleep: a("s_sleep %d" % sleep)
    a("s_sub_u32 s64, s64, 1")
    a("s_cbranch_scc1 L_end")
    a("s_branch %s" % name)
    a.label(name + "_ok")

def tagcheck(a, regs, tag="s[40:41]"):
    a("v_cmp_ne_u64 vcc, %s, v[%d:%d]" % (tag, regs[0] + 2, regs[0] + 3))
    for r in regs[1:]:
        a("v_cmp_ne_u64 s[60:61], %s, v[%d:%d]" % (tag, r + 2, r + 3))
        a("s_or_b64 vcc, vcc, s[60:61]")

def gen(diag=False, W=16, forceslow=False, onlyld=False, kvmode=1, W0=24, P=None):
    P = P or {}
    global OWNTAG
    OWNTAG = P.get("owntag", 0)
    if OWNTAG: P["epf"] = 1
    def opt(k, d): return P.get(k, d)
    a = Asm(diag)
    out = []
    out.append(HEADER.rstrip("\n"))
    out.append("; @launch grid=(256,1,1) block=(512,1,1) lds=%d" % LDS_BYTES)
    out.append('.amdgcn_target "amdgcn-amd-amdhsa--gfx950"')
    out.append(".set SPIN, 0x40000")
    out.append(".text")
    out.append(".globl %s_kernel" % NAME)
    out.append(".p2align 8")
    out.append(".type %s_kernel,@function" % NAME)
    out.append("%s_kernel:" % NAME)

    a("""
    s_cmp_ge_u32 s2, 256
    s_cbranch_scc1 L_end0
    s_load_dwordx16 s[16:31], s[0:1], 0
    s_load_dwordx8 s[32:39], s[0:1], 64
    v_lshrrev_b32 v1, 6, v0
    v_lshlrev_b32 v2, 3, v0
    v_mov_b32 v8, 0
    v_mov_b32 v9, 0
    v_readfirstlane_b32 s3, v1
    v_add_u32 v2, %d, v2
    v_and_b32 v0, 63, v0
    ds_write_b64 v2, v[8:9]
    s_and_b32 s4, s2, 7
    s_lshr_b32 s5, s2, 3
    v_and_b32 v4, 15, v0
    v_lshrrev_b32 v5, 4, v0
    v_mov_b32 v7, %d
    """ % (L_Z, L_FL))
    a.stamp()
    nst0 = a.nstamp
    a("""
    s_cmp_eq_u32 s3, 0
    s_cbranch_scc1 L_ld
    """)
    if onlyld:
        if opt("sw", 0):
            a("s_cmp_lg_u32 s3, 7")
            a("s_cbranch_scc1 L_end0")
            a("s_waitcnt lgkmcnt(0)")
            a("s_barrier")
            if opt("swd", 0): a("s_sleep %d" % opt("swd", 0))
            stouch(a, opt("sw", 0))
            a("s_waitcnt lgkmcnt(0)")
        if opt("tw", 0):
            a("s_cmp_lg_u32 s3, 7")
            a("s_cbranch_scc1 L_end0")
            a("s_waitcnt lgkmcnt(0)")
            srd(a, 56, 38, 0x20000000)
            touches(a, opt("tw", 0))
            a("s_barrier")
        a("s_branch L_end0")
    a("""
    s_cmp_eq_u32 s3, 1
    s_cbranch_scc1 L_qh
    s_mov_b32 s58, 0x20000000
    s_mov_b32 s59, 0x20000
    s_waitcnt lgkmcnt(0)
    s_load_dwordx2 s[40:41], s[38:39], 0
    s_mov_b32 s56, s38
    s_mov_b32 s57, s39
    s_getreg_b32 s44, hwreg(HW_REG_XCC_ID, 0, 4)
    s_barrier
    s_cmp_eq_u32 s3, 6
    s_cbranch_scc1 L_f
    s_cmp_eq_u32 s3, 7
    s_cbranch_scc1 L_o
    s_cmp_eq_u32 s3, 2
    s_cbranch_scc1 L_att
    s_mov_b64 exec, 0
    s_cmp_eq_u32 s3, 3
    s_cbranch_scc1 PAD_Q1
    s_cmp_eq_u32 s3, 4
    s_cbranch_scc1 PAD_Q2
    s_branch PAD_A1
    """)
    a.label("L_end0")
    a("s_endpgm")
    a.label("L_qh")
    a("""
    s_setprio 3
    v_lshlrev_b32 v2, 4, v0
    s_mov_b32 s50, 1024
    s_mov_b32 s51, 0x20000
    s_mov_b32 s58, 0x20000000
    s_mov_b32 s59, 0x20000
    s_waitcnt lgkmcnt(0)
    s_mov_b32 s48, s16
    s_mov_b32 s49, s17
    s_mov_b32 s56, s38
    s_mov_b32 s57, s39
    buffer_load_dwordx4 v[8:11], v2, s[48:51], 0 offen
    s_getreg_b32 s44, hwreg(HW_REG_XCC_ID, 0, 4)
    s_barrier
    s_branch L_q
    """)

    a.label("L_ld")
    a("s_setprio 2")
    a("""
    v_lshrrev_b32 v6, 3, v0
    v_bfe_u32 v3, v0, 4, 1
    v_lshlrev_b32 v3, 1, v3
    v_and_b32 v8, 7, v0
    v_xor_b32 v8, v8, v3
    v_lshlrev_b32 v8, 4, v8
    v_lshl_or_b32 v10, v6, 13, v8
    v_xor_b32 v21, 64, v10
    v_lshrrev_b32 v9, 5, v0
    s_lshr_b32 s6, s5, 3
    s_lshl_b32 s6, s6, 20
    s_lshl_b32 s7, s4, 10
    s_add_u32 s6, s6, s7
    s_and_b32 s7, s5, 7
    s_lshl_b32 s7, s7, 7
    s_add_u32 s6, s6, s7
    s_mov_b32 s46, 0x400000
    s_mov_b32 s47, 0x20000
    s_mov_b32 m0, %d
    s_movk_i32 s42, 1024
    s_movk_i32 s43, 4096
    s_mov_b32 s40, 0x20000
    s_mov_b32 s41, 0x10000
    """ % L_WQ)
    for b in range(4):
        a("v_add_u32 v2, %d, v5" % (4 * b))
        a("v_xor_b32 v2, v4, v2")
        a("v_lshlrev_b32 v2, 4, v2")
        a("v_lshl_or_b32 v%d, v5, 8, v2" % (12 + b))
    a("""
    s_lshl_b32 s8, s4, 24
    s_lshl_b32 s7, s5, %d
    s_add_u32 s8, s8, s7
    s_add_u32 s8, s8, 0xf00000
    s_mov_b32 s9, s8
    s_mov_b32 s50, 0x8000000
    s_mov_b32 s51, 0x20000
    s_waitcnt lgkmcnt(0)
    s_mov_b32 s44, s22
    s_mov_b32 s45, s23
    s_mov_b32 s48, s18
    s_mov_b32 s49, s19
    """ % ({0: 15, 1: 12}[kvmode]))
    a.stamp()

    def loader_setup2():
        a("v_mul_u32_u24 v11, %d, v6" % 3584)
        a("v_add_u32 v11, v11, v8")
        a("v_xor_b32 v22, 64, v11")
        for b in range(2):
            a("v_add_u32 v2, %d, v5" % (4 * b))
            a("v_lshlrev_b32 v2, 1, v2")
            a("v_xor_b32 v2, v4, v2")
            a("v_lshlrev_b32 v2, 4, v2")
            a("v_lshl_or_b32 v%d, v5, 8, v2" % (16 + b))
        a("v_and_b32 v3, 31, v0")
        for b in range(2):
            a("v_add_u32 v2, %d, v9" % (2 * b))
            a("v_lshlrev_b32 v2, 2, v2")
            a("v_xor_b32 v2, v3, v2")
            a("v_lshlrev_b32 v2, 4, v2")
            a("v_lshl_or_b32 v%d, v9, 10, v2" % (18 + b))
        a("v_lshlrev_b32 v2, 2, v5")
        a("v_xor_b32 v2, v4, v2")
        a("v_lshlrev_b32 v2, 4, v2")
        a("v_lshl_or_b32 v20, v5, 10, v2")
        srd(a, 52, 20, 0x8000000)
        a("s_bitcmp1_b32 s5, 2")
        a("s_cselect_b32 s60, s30, s28")
        a("s_cselect_b32 s61, s31, s29")
        a("s_mov_b32 s62, 0x%x" % (512 * 1792 * 2))
        a("s_mov_b32 s63, 0x20000")
        srd(a, 68, 24, 4096 * 512 * 2)
        srd(a, 72, 32, 1792 * 512 * 2)
        srd(a, 56, 38, 0x20000000)
        fcoords(a)
        a("""
        s_mul_i32 s10, s15, %d
        s_lshl_b32 s7, s14, 6
        s_and_b32 s7, s7, -128
        s_add_u32 s10, s10, s7
        s_movk_i32 s41, %d
        """ % (128 * 3584, 8 * 3584))
        a("""
        s_lshl_b32 s12, s4, 19
        s_lshr_b32 s7, s5, 1
        s_lshl_b32 s7, s7, 15
        s_add_u32 s12, s12, s7
        s_and_b32 s7, s5, 1
        s_lshl_b32 s7, s7, 9
        s_add_u32 s12, s12, s7
        """)
        a("""
        s_lshl_b32 s13, s14, 15
        s_lshl_b32 s7, s15, 8
        s_add_u32 s13, s13, s7
        """)

    def item(kind, i):
        def m0set(base, i): return "s_mov_b32 m0, %d" % base if i == 0 else "s_add_u32 m0, m0, s42"
        if kind == "wq":
            pre = [] if i == 0 else ["s_add_u32 m0, m0, s42", "s_add_u32 s6, s6, s41"]
            return pre + ["buffer_load_dwordx4 v%d, s[44:47], s6 offen nt lds" % (21 if i & 1 else 10)]
        if kind in ("K", "V"):
            base = L_K if kind == "K" else L_V
            sr = 8 if kind == "K" else 9
            pre = []
            if i % 4 == 0:
                pre = ["s_mov_b32 m0, %d" % (base + i * 1024) if i in (0, 16) else "s_add_u32 m0, m0, s43", ("s_add_u32 s%d, s%d, %s" % (sr, sr, "s43" if kvmode == 0 else "s40")) if i else "s_nop 0"]
                if opt("kvx", 0) and i:
                    u = i // 4
                    pre[1] = "s_xor_b32 s%d, s%d, 0x%x" % (sr, sr, (u * 0x21000) ^ ((u - 1) * 0x21000))
            vr = 12 + (i % 4) if kind == "K" else 16 + (i % 2)
            return pre + ["buffer_load_dwordx4 v%d, s[%d:%d], s%d offen offset:%d nt lds" % (vr, 48 if kind == "K" else 52, 51 if kind == "K" else 55, sr, (i % 4) * 1024)]
        if kind == "G":
            pre = [m0set(L_G, i), "s_add_u32 s10, s10, s41" if i else "s_nop 0"]
            return pre + ["buffer_load_dwordx4 v%d, s[60:63], s10 offen nt lds" % (22 if i & 1 else 11)]
        if kind == "wo":
            pre = [m0set(L_WO, i), "s_add_u32 s12, s12, 0x800" if i else "s_nop 0"]
            return pre + ["buffer_load_dwordx4 v%d, s[68:71], s12 offen nt lds" % (18 + (i % 2))]
        if kind == "wd":
            pre = [m0set(L_WD, i), "s_add_u32 s13, s13, s43" if i else "s_nop 0"]
            return pre + ["buffer_load_dwordx4 v20, s[72:75], s13 offen nt lds"]

    ORD = {0: "K V G wo wd", 1: "K G wd wo V", 2: "K G wo V wd", 3: "K G V wo wd", 4: "K G Va wo wd Vb", 5: "K G wd Va wo Vb", 6: "K Va G wd wo Vb", 7: "K G wo wd V"}[opt("ord", 0)].split()
    CNT = {"wq": 16, "K": 32, "V": 32, "G": 16, "wo": 16, "wd": 8}
    def expand(k):
        if k == "Va": return [("V", i) for i in range(16)]
        if k == "Vb": return [("V", i) for i in range(16, 32)]
        return [(k, i) for i in range(CNT[k])]
    seqfull = expand("wq")
    for k in ORD: seqfull += expand(k)
    PV = {it: n + 1 for n, it in enumerate(seqfull)}
    def mark(k, i):
        if k == "wq": return i in ((3, 7, 11, 15) if opt("q4", 0) else (7, 15))
        if k in ("K", "V"): return i % 8 == 7
        if k == "G": return i == 15 or (opt("g2", 0) and i == 7)
        return i == CNT[k] - 1
    TH_K0 = PV[("K", 7)]; TH_V3 = PV[("V", 23)]; TH_V = PV[("V", 31)]; TH_G = PV[("G", 15)]; TH_WO = PV[("wo", 15)]; TH_WD = PV[("wd", 7)]
    STAMPS = (16, PV[("K", 31)], TH_V, TH_G, TH_WO, TH_WD)
    def stream(full):
        seq = [it for it in seqfull if full or it[0] not in ("G", "wd")]
        prog = {}
        for n, (k, i) in enumerate(seq):
            if mark(k, i): prog[n + 1] = PV[(k, i)]
        return seq, prog

    WL = opt("WL", W)
    def win(n):
        if n >= 80: return WL
        if n < opt("wqn", 0): return max(opt("wqw", W), W0 - max(0, n - W0) * opt("shrink", 1))
        return max(W, W0 - max(0, n - W0) * opt("shrink", 1))
    seqF, progF = stream(True)
    seqS, progS = stream(False)
    NB = opt("nb", 6)
    if NB == 0: a("s_barrier")
    for i in range(16):
        for x in item("wq", i): a(x)
        if i == NB - 1: a("s_barrier")
    assert 16 <= W0 <= 48
    for n in range(16, W0):
        for x in item(*seqF[n]): a(x)
    a.stamp()
    loader_setup2()

    def publish(prog, cnt):
        a("v_mov_b32 v2, %d" % prog[cnt])
        a("ds_write_b32 v7, v2 offset:%d" % F_PROG)
        if prog[cnt] in STAMPS: a.stamp()
    def emit(seq, prog, n0, n1, done):
        for n in range(n0, n1):
            target = n - win(n) + 1
            for cnt in range(done + 1, target + 1):
                if cnt in prog and cnt < target:
                    a("s_waitcnt vmcnt(%d)" % (n - cnt))
                    publish(prog, cnt)
            if target > done:
                a("s_waitcnt vmcnt(%d)" % (n - target))
            for x in item(*seq[n]): a(x)
            if target > done and target in prog: publish(prog, target)
            done = max(done, target)
        return done
    def drain(seq, prog, done):
        N = len(seq)
        for cnt in range(done + 1, N + 1):
            if cnt in prog:
                a("s_waitcnt vmcnt(%d)" % (N - cnt))
                publish(prog, cnt)
    PZ = opt("pause", 0)
    def tail(seq, prog, done, np_, need):
        if not PZ:
            d2 = emit(seq, prog, 80, len(seq), done)
            drain(seq, prog, d2)
            return
        ahead = opt("pzah", 0)
        d2 = emit(seq, prog, 80, np_ + ahead, done)
        for cnt in range(d2 + 1, np_ + 1):
            if cnt in prog:
                a("s_waitcnt vmcnt(%d)" % (np_ + ahead - cnt))
                publish(prog, cnt)
        lab = a.newlabel("L_pz")
        a("s_mov_b32 s37, %d" % opt("pzmax", 24))
        a.label(lab)
        a("ds_read_b32 v3, v7 offset:%d" % F_PZ)
        a("s_waitcnt lgkmcnt(0)")
        a("v_cmp_gt_u32 vcc, %d, v3" % need)
        a("s_cbranch_vccz %s_ok" % lab)
        a("s_sub_u32 s37, s37, 1")
        a("s_cbranch_scc0 %s" % lab)
        a.label(lab + "_ok")
        for n in range(np_ + ahead, len(seq)):
            for x in item(*seq[n]): a(x)
        drain(seq, prog, np_)
    NC = 0
    while seqF[NC] == seqS[NC]: NC += 1
    done = emit(seqF, progF, W0, NC, 0)
    nst1 = a.nstamp
    a("s_cmp_lg_u32 s36, 0")
    a("s_cbranch_scc1 L_ld_full")
    drain(seqS, progS, emit(seqS, progS, NC, len(seqS), done))
    a.stamp_flush(28)
    a("s_endpgm")
    a.label("L_ld_full")
    a.nstamp = nst1
    drain(seqF, progF, emit(seqF, progF, NC, len(seqF), done))
    a.stamp_flush(28)
    a("s_endpgm")

    a.nstamp = nst0
    a.page()
    a.label("L_q")
    a("""
    v_add_u32 v12, %d, v2
    s_lshr_b32 s6, s5, 3
    s_lshl_b32 s6, s6, 8
    s_add_u32 s6, s6, %d
    v_lshlrev_b32 v13, 4, v5
    v_add_u32 v13, s6, v13
    """ % (L_XN, L_XN))
    traddr128(a, 120, L_WQ, 3, 6)
    a("""
    s_lshl_b32 s14, s4, 14
    s_lshl_b32 s15, s5, 9
    s_add_u32 s15, s15, s14
    s_add_u32 s15, s15, 0x%x
    v_lshrrev_b32 v3, 1, v4
    v_lshlrev_b32 v3, 7, v3
    v_lshl_or_b32 v3, v5, 5, v3
    v_and_b32 v6, 1, v0
    v_lshl_or_b32 v3, v6, 4, v3
    s_mov_b32 s8, 0xaaaaaaaa
    s_mov_b32 s9, 0xaaaaaaaa
    s_mov_b32 s10, 0xcccccccc
    s_mov_b32 s11, 0xcccccccc
    s_mov_b32 s12, 0xf0f0f0f0
    s_mov_b32 s13, 0xf0f0f0f0
    v_mov_b32 v149, 1
    """ % INB1)
    a("""
    s_mov_b32 s52, s34
    s_mov_b32 s53, s35
    s_mov_b32 s54, 1024
    s_mov_b32 s55, 0x20000
    """)
    PT = opt("pt", 0)
    if PT & 1:
        a("""
        s_mov_b32 exec_lo, 0x00ff00ff
        s_mov_b32 exec_hi, 0x00ff00ff
        buffer_load_dwordx4 v[160:163], v3, s[56:59], s15 offen sc1
        s_mov_b64 exec, -1
        s_waitcnt vmcnt(1)
        """)
    else:
        a("s_waitcnt vmcnt(0)")
    a.stamp()
    layernorm(a, 8, 80, 88, 96)
    a("ds_write_b128 v12, v[96:99]")
    a("ds_write_b32 v7, v149 offset:%d" % F_XN)
    a.pad("PAD_Q1", "L_att_x")
    for k in range(4):
        a("ds_read_b128 v[%d:%d], v13 offset:%d" % (100 + 4 * k, 103 + 4 * k, k * 64))
    a.stamp()
    for k in range(4 if opt("q4", 0) else 0):
        lds_wait_ge(a, 7, 80, F_PROG, 4 * (k + 1), sleep=0)
        for u in range(4):
            for h in range(2):
                r = 16 + k * 16 + (u * 2 + h) * 2
                a("ds_read_b64_tr_b16 v[%d:%d], v%d offset:%d" % (r, r + 1, 120 + u, k * 4096 + h * 512))
        if k == 3: a("ds_read_b96 v[150:152], v7 offset:%d" % F_TAG)
        for u in range(4):
            a("s_waitcnt lgkmcnt(%d)" % (6 - 2 * u + (k == 3)))
            r = 16 + k * 16 + u * 4
            c_ = "0" if k == 0 else "v[%d:%d]" % (132 + 4 * u, 135 + 4 * u)
            a("v_mfma_f32_16x16x32_bf16 v[%d:%d], v[%d:%d], v[%d:%d], %s" % (132 + 4 * u, 135 + 4 * u, r, r + 3, 100 + 4 * k, 103 + 4 * k, c_))
    for half in range(0 if opt("q4", 0) else 2):
        lds_wait_ge(a, 7, 80, F_PROG, 8 * (half + 1), sleep=0)
        for kk in range(2):
            k = half * 2 + kk
            for u in range(4):
                for h in range(2):
                    r = 16 + (kk * 8 + u * 2 + h) * 2 + half * 32
                    a("ds_read_b64_tr_b16 v[%d:%d], v%d offset:%d" % (r, r + 1, 120 + u, k * 4096 + h * 512))
        if half == 1: a("ds_read_b96 v[150:152], v7 offset:%d" % F_TAG)
        for kk in range(2):
            k = half * 2 + kk
            for u in range(4):
                if u % 2 == 0: a("s_waitcnt lgkmcnt(%d)" % (12 - 8 * kk - 2 * u + half))
                r = 16 + (kk * 8 + u * 2) * 2 + half * 32
                c_ = "0" if k == 0 else "v[%d:%d]" % (132 + 4 * u, 135 + 4 * u)
                a("v_mfma_f32_16x16x32_bf16 v[%d:%d], v[%d:%d], v[%d:%d], %s" % (132 + 4 * u, 135 + 4 * u, r, r + 3, 100 + 4 * k, 103 + 4 * k, c_))
    a.stamp()
    a("s_mov_b32 s64, SPIN")
    a.pad("PAD_Q2", "L_att_x")
    a.label("L_q_tw")
    a("""
    s_waitcnt lgkmcnt(0)
    v_cmp_eq_u32 vcc, 0, v152
    s_cbranch_vccz L_q_tok
    ds_read_b96 v[150:152], v7 offset:%d
    s_sub_u32 s64, s64, 1
    s_cbranch_scc1 L_end
    s_branch L_q_tw
    """ % F_TAG)
    a.label("L_q_tok")
    a("""
    v_or_b32 v158, s44, v150
    v_mov_b32 v159, v151
    v_readfirstlane_b32 s40, v150
    v_readfirstlane_b32 s41, v151
    """)
    for u in range(4):
        a("v_cndmask_b32_e64 v%d, v%d, v%d, s[8:9]" % (80 + 2 * u, 132 + 4 * u, 134 + 4 * u))
        a("v_cndmask_b32_e64 v%d, v%d, v%d, s[8:9]" % (81 + 2 * u, 133 + 4 * u, 135 + 4 * u))
    a("""
    v_cndmask_b32_e64 v80, v80, v82, s[10:11]
    v_cndmask_b32_e64 v81, v81, v83, s[10:11]
    v_cndmask_b32_e64 v84, v84, v86, s[10:11]
    v_cndmask_b32_e64 v85, v85, v87, s[10:11]
    s_mov_b32 exec_lo, 0x00ff00ff
    s_mov_b32 exec_hi, 0x00ff00ff
    v_cndmask_b32_e64 v156, v80, v84, s[12:13]
    v_cndmask_b32_e64 v157, v81, v85, s[12:13]
    %s
    ds_write_b32 v7, v149 offset:%d
    """ % ("s_nop 0" if forceslow else "buffer_store_dwordx4 v[156:159], v3, s[56:59], s15 offen", F_QPUB))
    a.stamp()
    a("s_setprio 0")
    a("s_mov_b32 s64, SPIN")
    a.label("L_q_w")
    a("""
    s_sleep 4
    ds_read_b64 v[80:81], v7 offset:%d
    s_sub_u32 s64, s64, 1
    s_cbranch_scc1 L_end
    s_waitcnt lgkmcnt(0)
    v_cmp_ne_u32 vcc, 0, v81
    s_cbranch_vccnz L_q_slow
    v_and_b32 v80, 7, v80
    v_cmp_ne_u32 vcc, 4, v80
    s_cbranch_vccnz L_q_w
    s_branch L_q_dd
    """ % F_Q)
    a.label("L_q_slow")
    a("""
    s_add_u32 s15, s15, 0x%x
    buffer_store_dwordx4 v[156:159], v3, s[56:59], s15 offen sc1
    """ % (INB1S - INB1))
    a.label("L_q_dd")
    a("s_mov_b64 exec, -1")
    a.stamp()
    a("s_lshr_b32 s6, s4, 2")
    a("s_lshl_b32 s6, s6, 3")
    a("s_add_u32 s6, s6, s5")
    a("s_cmp_ge_u32 s6, 32")
    a("s_cbranch_scc1 L_fin")
    if diag: a("s_branch L_q_done")
    a("s_endpgm")
    a.page()
    a.label("L_fin")
    if opt("skip", 0) & 32: a("s_endpgm")
    a("""
    s_setprio 1
    s_and_b32 s6, s4, 3
    s_lshl_b32 s6, s6, 3
    s_add_u32 s6, s6, s5
    s_sub_u32 s6, s6, 24
    s_lshl_b32 s6, s6, 1
    s_lshr_b32 s7, s3, 2
    s_add_u32 s6, s6, s7
    s_mov_b32 s65, s6
    s_lshl_b32 s12, s6, 13
    s_add_u32 s12, s12, 0x%x
    s_add_u32 s13, s12, 4096
    s_mul_i32 s14, s6, 3584
    s_add_u32 s14, s14, 0x%x
    s_lshl_b32 s15, s6, 4
    v_and_b32 v3, 3, v0
    v_lshlrev_b32 v3, 2, v3
    v_add_u32 v3, s15, v3
    s_waitcnt vmcnt(0)
    buffer_load_dword v6, v3, s[48:51], 0 offen
    """ % (INB3S, INB3D))
    for i, M in enumerate([[16 + 2 * k for k in range(12)], [42, 44, 46, 66, 68, 70, 72, 74, 94, 96, 98, 100]]):
        for m in M: a("s_mov_b64 s[%d:%d], -1" % (m, m + 1))
        a("s_mov_b32 s%d, 0" % (M[11] + 1))
        a("v_mov_b32 v%d, 0" % (16 + 48 * i + 44))
        a("v_mov_b32 v%d, 0" % (16 + 48 * i + 45))
    if diag:
        a("v_mov_b32 v180, 0")
        a("v_mov_b32 v181, 0")
        a("s_mov_b32 s63, 1")
    lds_wait_ge(a, 7, 160, F_OPUB, 1, sleep=2)
    a("s_setprio 3")
    a.stamp()
    NS = 2
    SK = opt("skip", 0)
    FM = [[16 + 2 * k for k in range(12)], [42, 44, 46, 66, 68, 70, 72, 74, 94, 96, 98, 100]]
    bases = [16 + 48 * i for i in range(NS)]
    def fissue(i):
        base = bases[i]
        for k in range(12):
            a("s_mov_b64 exec, s[%d:%d]" % (FM[i][k], FM[i][k] + 1))
            a("buffer_load_dwordx4 v[%d:%d], v2, s[56:59], s%d offen offset:%d sc1" % (base + 4 * k, base + 3 + 4 * k, 12 + k // 4, (k % 4) * 1024))
        a("s_mov_b64 exec, -1")
    def fcheck(i, lab):
        base = bases[i]
        for k in range(12):
            a("v_cmp_ne_u64 s[%d:%d], s[40:41], v[%d:%d]" % (FM[i][k], FM[i][k] + 1, base + 4 * k + 2, base + 4 * k + 3))
        a("s_mov_b32 s%d, 0" % (FM[i][11] + 1))
        for k in range(12):
            if (SK & 1 and k >= 8) or (SK & 2 and k < 8): a("s_mov_b64 s[%d:%d], 0" % (FM[i][k], FM[i][k] + 1))
        for k in range(12):
            a("s_or_b64 s[60:61], s[%d:%d], %s" % (FM[i][k], FM[i][k] + 1, "s[60:61]" if k else "0"))
        a.log(63, "s[60:61]", 180)
        a("s_cbranch_scc0 %s" % lab)
    a("s_mov_b32 s64, SPIN")
    if opt("fdel", 0): a("s_sleep %d" % opt("fdel", 0))
    for i in range(NS):
        fissue(i)
        if i < NS - 1: a("s_sleep %d" % opt("fstag", 8))
    a.label("L_f_poll3")
    for i in range(NS):
        a("s_waitcnt vmcnt(%d)" % (12 * (NS - 1)))
        fcheck(i, "L_fin_d%d" % i)
        fissue(i)
    a("s_sub_u32 s64, s64, 1")
    a("s_cbranch_scc1 L_end")
    a("s_branch L_f_poll3")
    for i, b in enumerate(bases):
        a.label("L_fin_d%d" % i)
        for e in range(2):
            a("v_add_f32 v%d, v%d, v%d" % (160 + e, b + e, b + 4 + e))
            a("v_add_f32 v%d, v%d, v%d" % (164 + e, b + 8 + e, b + 12 + e))
            a("v_add_f32 v%d, v%d, v%d" % (166 + e, b + 16 + e, b + 20 + e))
            a("v_add_f32 v%d, v%d, v%d" % (168 + e, b + 24 + e, b + 28 + e))
            a("v_add_f32 v%d, v%d, v%d" % (162 + e, b + 32 + e, b + 36 + e))
            a("v_add_f32 v%d, v%d, v%d" % (170 + e, b + 40 + e, b + 44 + e))
        if i < NS - 1: a("s_branch L_fin_dd")
    a.label("L_fin_dd")
    a.stamp()
    a("""
    v_add_f32 v160, v160, v164
    v_add_f32 v161, v161, v165
    v_add_f32 v166, v166, v168
    v_add_f32 v167, v167, v169
    v_add_f32 v162, v162, v170
    v_add_f32 v163, v163, v171
    v_add_f32 v160, v160, v166
    v_add_f32 v161, v161, v167
    """)
    for r in (4, 8):
        a.nop(1)
        for v in (162, 163, 160, 161):
            a("v_add_f32_dpp v%d, v%d, v%d row_ror:%d row_mask:0xf bank_mask:0xf" % (v, v, v, r))
    xreduce(a, "add", [160, 161, 162, 163], [164, 165, 166, 167])
    a("""
    v_cvt_pk_bf16_f32 v164, v160, v161
    v_cvt_pk_bf16_f32 v165, v162, v163
    v_lshlrev_b32 v160, 16, v164
    v_and_b32 v161, 0xffff0000, v164
    v_lshlrev_b32 v162, 16, v165
    v_and_b32 v163, 0xffff0000, v165
    v_mul_f32 v164, 0xbfb8aa3b, v162
    v_mul_f32 v165, 0xbfb8aa3b, v163
    v_exp_f32 v164, v164
    v_exp_f32 v165, v165
    s_nop 0
    v_add_f32 v164, 1.0, v164
    v_add_f32 v165, 1.0, v165
    v_rcp_f32 v166, v164
    v_rcp_f32 v167, v165
    s_nop 0
    v_mul_f32 v168, v162, v166
    v_mul_f32 v169, v163, v167
    v_fma_f32 v170, -v168, v164, v162
    v_fma_f32 v171, -v169, v165, v163
    v_fma_f32 v170, v170, v166, v168
    v_fma_f32 v171, v171, v167, v169
    v_cmp_class_f32 vcc, v170, 3
    v_cmp_class_f32 s[60:61], v171, 3
    s_nop 1
    v_cndmask_b32 v170, v170, v168, vcc
    v_cndmask_b32_e64 v171, v171, v169, s[60:61]
    v_cvt_pk_bf16_f32 v164, v170, v171
    v_lshlrev_b32 v170, 16, v164
    v_and_b32 v171, 0xffff0000, v164
    v_mul_f32 v170, v160, v170
    v_mul_f32 v171, v161, v171
    v_cvt_pk_bf16_f32 v164, v170, v171
    v_lshlrev_b32 v170, 16, v164
    v_and_b32 v171, 0xffff0000, v164
    v_lshlrev_b32 v164, 16, v6
    v_and_b32 v165, 0xffff0000, v6
    v_add_f32 v170, v164, v170
    v_add_f32 v171, v165, v171
    v_cvt_pk_bf16_f32 v164, v170, v171
    s_mov_b64 exec, 15
    buffer_store_dword v164, v3, s[52:55], 0 offen
    """)
    a.log_flush(180, 178, 2)
    a("""
    s_cmp_lg_u32 s65, 0
    s_cbranch_scc1 L_q_done
    s_mov_b64 exec, 1
    v_mov_b32 v166, s40
    v_mov_b32 v167, s41
    v_mov_b32 v168, 0
    buffer_store_dwordx2 v[166:167], v168, s[56:59], 0 offen
    """)
    a.label("L_q_done")
    a.stamp()
    a.stamp_flush(172)
    a("s_endpgm")

    a.nstamp = nst0
    a.page()
    a.label("L_att_x")
    a("s_mov_b64 exec, -1")
    a.label("L_att")
    a("s_sub_u32 s62, s3, 2")
    a("""
    s_lshl_b32 s6, s62, 13
    s_add_u32 s6, s6, %d
    v_lshlrev_b32 v2, 8, v4
    v_add_u32 v2, s6, v2
    """ % L_K)
    for kk in range(4):
        a("v_add_u32 v3, %d, v5" % (4 * kk))
        a("v_xor_b32 v3, v3, v4")
        a("v_lshl_add_u32 v%d, v3, 4, v2" % (8 + kk))
    a("""
    v_lshrrev_b32 v3, 2, v4
    v_lshlrev_b32 v6, 8, v3
    v_lshl_or_b32 v6, v5, 4, v6
    v_add_u32 v6, %d, v6
    v_lshl_add_u32 v2, v5, 2, v3
    v_lshlrev_b32 v2, 8, v2
    v_add_u32 v2, %d, v2
    v_and_b32 v12, 1, v0
    v_lshl_add_u32 v2, v12, 3, v2
    v_and_b32 v12, 1, v5
    v_lshl_add_u32 v12, v12, 2, v3
    v_lshlrev_b32 v12, 1, v12
    v_bfe_u32 v13, v0, 1, 1
    s_lshl_b32 s6, s62, 2
    v_add_u32 v13, s6, v13
    v_xor_b32 v12, v12, v13
    v_lshl_add_u32 v12, v12, 4, v2
    v_xor_b32 v13, 32, v12
    """ % (L_Q, L_V))
    a("""
    v_lshlrev_b32 v15, 4, v0
    v_add_u32 v15, %d, v15
    s_lshl_b32 s6, s62, 10
    v_add_u32 v14, s6, v15
    v_lshlrev_b32 v17, 4, v3
    v_add_u32 v17, %d, v17
    s_lshl_b32 s6, s62, 6
    v_add_u32 v16, s6, v17
    """ % (L_P, L_ST))
    a("""
    s_lshl_b32 s6, s4, 17
    s_lshl_b32 s7, s62, 13
    s_add_u32 s6, s6, s7
    s_lshl_b32 s7, s5, 8
    s_add_u32 s6, s6, s7
    s_add_u32 s12, s6, 0x%x
    v_lshlrev_b32 v18, 15, v3
    v_lshl_or_b32 v18, v5, 6, v18
    v_and_b32 v2, 3, v0
    v_lshl_or_b32 v18, v2, 4, v18
    s_lshl_b32 s6, s4, 11
    s_lshl_b32 s7, s5, 4
    s_add_u32 s6, s6, s7
    s_add_u32 s13, s6, 0x%x
    v_lshlrev_b32 v19, 9, v3
    s_mov_b32 s8, 0xaaaaaaaa
    s_mov_b32 s9, 0xaaaaaaaa
    s_mov_b32 s10, 0xcccccccc
    s_mov_b32 s11, 0xcccccccc
    s_mov_b32 s14, 0x%x
    s_mov_b32 s15, 0x%x
    s_lshl_b32 s63, s62, 3
    s_add_u32 s63, s63, %d
    """ % (INB2, INBS, SCALE, LOG2E, TH_K0))
    if PT & 2:
        a("buffer_load_dwordx4 v[196:199], v18, s[56:59], s12 offen sc1")
    a("s_cmp_lg_u32 s62, 0")
    a("s_cbranch_scc1 L_att_gt")
    if PT & 2:
        a("s_mov_b64 exec, 0x1111")
        a("buffer_load_dwordx4 v[200:203], v19, s[56:59], s13 offen sc1")
        a("s_mov_b64 exec, -1")
    make_tag(a)
    a("""
    v_mov_b32 v22, s40
    v_mov_b32 v23, s41
    v_mov_b32 v24, 1
    ds_write_b96 v7, v[22:24] offset:%d
    s_branch L_att_nt
    """ % F_TAG)
    a.label("L_att_gt")
    get_tag(a, 22)
    a.label("L_att_nt")
    a("""
    s_lshl_b32 s16, s4, 14
    s_lshl_b32 s6, s62, 10
    s_add_u32 s16, s16, s6
    s_add_u32 s16, s16, 0x%x
    s_add_u32 s17, s16, 0x1000
    s_add_u32 s18, s16, 0x2000
    s_add_u32 s19, s16, 0x3000
    v_lshlrev_b32 v21, 4, v0
    s_lshl_b32 s6, s62, 8
    s_add_u32 s6, s6, %d
    v_lshlrev_b32 v25, 2, v0
    v_add_u32 v25, s6, v25
    s_or_b32 s46, s40, s44
    s_mov_b32 s47, s41
    s_mov_b32 s65, 0
    """ % (INB1, L_Q))
    if opt("fz", 0):
        for r in range(212, 216): a("v_mov_b32 v%d, 0x3f803f80" % r)
    QM = [[20, 22, 24, 26], [28, 30, 32, 34]]
    QB = [128, 144]
    for M in QM:
        for m in M: a("s_mov_b64 s[%d:%d], -1" % (m, m + 1))
    def qissue(i, sa=16):
        for k in range(4):
            a("s_mov_b64 exec, s[%d:%d]" % (QM[i][k], QM[i][k] + 1))
            a("buffer_load_dwordx4 v[%d:%d], v21, s[56:59], s%d offen sc1" % (QB[i] + 4 * k, QB[i] + 3 + 4 * k, sa + k))
        a("s_mov_b64 exec, -1")
    def qcheck(i):
        for k in range(4):
            a("v_cmp_ne_u64 s[%d:%d], s[46:47], v[%d:%d]" % (QM[i][k], QM[i][k] + 1, QB[i] + 2 + 4 * k, QB[i] + 3 + 4 * k))
            if opt("skip", 0) & 8: a("s_mov_b64 s[%d:%d], 0" % (QM[i][k], QM[i][k] + 1))
        for k in range(4):
            a("s_or_b64 s[60:61], s[%d:%d], %s" % (QM[i][k], QM[i][k] + 1, "s[60:61]" if k else "0"))
    def kfrags():
        for tau in range(2):
            for kk in range(4):
                r = 32 + (tau * 4 + kk) * 4
                a("ds_read_b128 v[%d:%d], v%d offset:%d" % (r, r + 3, 8 + kk, tau * 4096))
    if diag:
        a("v_mov_b32 v208, 0")
        a("v_mov_b32 v209, 0")
        a("s_mov_b32 s66, 1")
    a.stamp()
    lds_wait_ge(a, 7, 20, F_QPUB, 1, sleep=2)
    a("s_setprio 2")
    if opt("qdel", 0): a("s_sleep %d" % opt("qdel", 0))
    Q1 = opt("q1", 0)
    qissue(0)
    a("s_mov_b32 s64, %d" % opt("qthr", 16))
    if not Q1:
        a("s_sleep %d" % opt("qstag", 10))
        qissue(1)
    a.label("L_q_poll")
    a("""
    s_cmp_lg_u32 s65, 0
    s_cbranch_scc1 L_q_nk
    ds_read_b32 v20, v7 offset:%d
    s_waitcnt lgkmcnt(0)
    v_cmp_gt_u32 vcc, s63, v20
    s_cbranch_vccnz L_q_nk
    """ % F_PROG)
    kfrags()
    a("s_mov_b32 s65, 1")
    a.label("L_q_nk")
    for i in range(1 if Q1 else 2):
        a("s_waitcnt vmcnt(%d)" % (0 if Q1 else 4))
        qcheck(i)
        a.log(66, "s[60:61]", 208, 67)
        a("s_cbranch_scc0 L_q_d%d" % i)
        qissue(i)
    a("s_sub_u32 s64, s64, 1")
    a("s_cbranch_scc0 L_q_poll")
    a("s_branch L_a_slow")
    for i in (1, 0):
        a.label("L_q_d%d" % i)
        b = QB[i]
        a("v_add_f32 v26, v%d, v%d" % (b, b + 4))
        a("v_add_f32 v27, v%d, v%d" % (b + 1, b + 5))
        a("v_add_f32 v28, v%d, v%d" % (b + 8, b + 12))
        a("v_add_f32 v29, v%d, v%d" % (b + 9, b + 13))
        if i == 1: a("s_branch L_q_d")
    a.label("L_q_d")
    a("""
    v_add_f32 v26, v26, v28
    v_add_f32 v27, v27, v29
    v_cvt_pk_bf16_f32 v26, v26, v27
    ds_write_b32 v25, v26
    s_mov_b64 exec, 1
    ds_add_u32 v7, v24 offset:%d
    s_mov_b64 exec, -1
    """ % F_Q)
    a.stamp()
    a("s_cmp_lg_u32 s65, 0")
    a("s_cbranch_scc1 L_att_kok")
    a("s_mov_b32 s64, SPIN")
    a.label("L_att_kw")
    a("""
    ds_read_b32 v20, v7 offset:%d
    s_waitcnt lgkmcnt(0)
    v_cmp_gt_u32 vcc, s63, v20
    s_cbranch_vccz L_att_kgo
    s_sleep 1
    s_sub_u32 s64, s64, 1
    s_cbranch_scc1 L_end
    s_branch L_att_kw
    """ % F_PROG)
    a.label("L_att_kgo")
    kfrags()
    a.label("L_att_kok")
    a("s_mov_b32 s64, SPIN")
    VP = opt("vp", 0)
    def vread(chi):
        for t in range(2):
            for h in range(2):
                r = 96 + chi * 8 + t * 4 + h * 2
                a("ds_read_b64_tr_b16 v[%d:%d], v%d offset:%d" % (r, r + 1, 12 + t, chi * 8192 + h * 4096))
    a.label("L_att_qw")
    if VP:
        a("ds_read_b96 v[28:30], v7 offset:%d" % F_PROG)
    else:
        a("ds_read_b32 v20, v7 offset:%d" % F_Q)
    for kk in range(4):
        a("ds_read_b128 v[%d:%d], v6 offset:%d" % (64 + 4 * kk, 67 + 4 * kk, kk * 64))
    a("""
    s_waitcnt lgkmcnt(0)
    v_and_b32 v26, 7, v%d
    v_cmp_ne_u32 vcc, 4, v26
    s_cbranch_vccz L_att_qok
    s_sub_u32 s64, s64, 1
    s_cbranch_scc1 L_end
    s_branch L_att_qw
    """ % (30 if VP else 20))
    a.label("L_att_qok")
    if opt("skip", 0) & 256: a("s_endpgm")
    a.stamp()
    a("s_setprio 3")
    a("v_readfirstlane_b32 s45, v%d" % (30 if VP else 20))
    if VP: a("v_cmp_gt_u32 vcc, 0x%x, v28" % TH_V)
    for kk in range(4):
        for tau in range(2):
            r = 32 + (tau * 4 + kk) * 4
            c_ = "0" if kk == 0 else "v[%d:%d]" % (80 + 4 * tau, 83 + 4 * tau)
            a("v_mfma_f32_16x16x32_bf16 v[%d:%d], v[%d:%d], v[%d:%d], %s" % (80 + 4 * tau, 83 + 4 * tau, r, r + 3, 64 + 4 * kk, 67 + 4 * kk, c_))
    if VP:
        a("s_cbranch_vccnz L_att_nv1")
        for chi in range(4): vread(chi)
        a("s_mov_b32 s65, 2")
        a.label("L_att_nv1")
    a.nop(8)
    if opt("cv", 0):
        for i in range(8): a("v_cvt_pk_bf16_f32 v%d, 0, v%d" % (80 + i, 80 + i))
        for i in range(8): a("v_mul_f32 v%d, s14, v%d" % (80 + i, 80 + i))
        for i in range(8): a("v_cvt_pk_bf16_f32 v%d, 0, v%d" % (80 + i, 80 + i))
    else:
      for rnd in range(2):
        for i in range(4):
            a("v_cvt_pk_bf16_f32 v%d, v%d, v%d" % (88 + i, 80 + 2 * i, 81 + 2 * i))
        for i in range(4):
            a("v_lshlrev_b32 v%d, 16, v%d" % (80 + 2 * i, 88 + i))
            a("v_and_b32 v%d, 0xffff0000, v%d" % (81 + 2 * i, 88 + i))
        if rnd == 0:
            for i in range(8):
                a("v_mul_f32 v%d, s14, v%d" % (80 + i, 80 + i))
    FZ = opt("fz", 0)
    def stats_pub(sfx):
        a("""
        s_mov_b64 exec, 0x1111
        s_cmp_eq_u32 s45, 4
        s_cbranch_scc1 L_att_stf%s
        buffer_store_dwordx4 v[64:67], v19, s[56:59], s13 offen sc1
        s_branch L_att_st2%s
        """ % (sfx, sfx))
        a.label("L_att_stf" + sfx)
        a("buffer_store_dwordx4 v[64:67], v19, s[56:59], s13 offen")
        a.label("L_att_st2" + sfx)
        a("s_mov_b64 exec, -1")
        a("ds_write_b32 v7, v29 offset:%d" % F_APUB)
    def zmfma(chi, left=None):
        for t in range(2):
            if left is not None: a("s_waitcnt lgkmcnt(%d)" % (left + 2 - 2 * t))
            r = 96 + chi * 8 + 4 * t; d = 160 + 4 * t
            a("v_mfma_f32_16x16x32_bf16 v[%d:%d], v[%d:%d], v[%d:%d], %s" % (d, d + 3, r, r + 3, 48 + 4 * chi, 51 + 4 * chi, "v[%d:%d]" % (d, d + 3) if chi else "0"))
    if FZ:
        assert VP
        a("""
        v_max3_f32 v92, |v80|, |v81|, |v82|
        v_max3_f32 v93, |v83|, |v84|, |v85|
        v_max3_f32 v92, v92, |v86|, |v87|
        v_max_f32 v92, v92, v93
        v_cmp_nge_f32 vcc, 0x%x, v92
        v_mov_b32 v31, 1
        """ % opt("fzthr", 0x42000000))
        for i in range(8): a("v_mul_f32 v%d, s15, v%d" % (80 + i, 80 + i))
        a("s_cbranch_vccnz L_att_fb")
        a.label("L_att_z")
        for i in range(8): a("v_exp_f32 v%d, v%d" % (80 + i, 80 + i))
        a("v_mov_b32 v64, 0")
        for i in range(4): a("v_cvt_pk_bf16_f32 v%d, v%d, v%d" % (88 + i, 80 + 2 * i, 81 + 2 * i))
        a("""
        ds_write_b128 v14, v[88:91]
        s_mov_b64 exec, 1
        ds_add_u32 v7, v31 offset:%d
        s_mov_b64 exec, -1
        v_mov_b32 v66, v22
        v_mov_b32 v67, v23
        v_mov_b32 v74, v22
        v_mov_b32 v75, v23
        """ % F_P)
        a.stamp()
        a("s_mov_b32 s64, SPIN")
        a.label("L_att_pw")
        a("ds_read2_b32 v[28:29], v7 offset0:%d offset1:%d" % (F_PROG // 4, F_P // 4))
        for w in range(4):
            a("ds_read_b128 v[%d:%d], v15 offset:%d" % (48 + 4 * w, 51 + 4 * w, 1024 * w))
        a("""
        s_sub_u32 s64, s64, 1
        s_cbranch_scc1 L_end
        s_cmp_eq_u32 s65, 2
        s_waitcnt lgkmcnt(0)
        s_cbranch_scc1 L_att_nv2
        v_cmp_gt_u32 vcc, 0x%x, v28
        s_cbranch_vccnz L_att_nv2
        """ % TH_V)
        for chi in range(4): vread(chi)
        a("s_mov_b32 s65, 2")
        a.label("L_att_nv2")
        a("""
        v_and_b32 v30, 7, v29
        v_cmp_ne_u32 vcc, 4, v30
        s_cbranch_vccnz L_att_pw
        """)
        a.stamp()
        a("""
        v_cmp_ne_u32 vcc, 4, v29
        s_cbranch_vccnz L_att_gen
        s_cmp_lg_u32 s62, 0
        s_cbranch_scc1 L_att_nl0
        """)
        for chi in range(4):
            a("v_mfma_f32_16x16x32_bf16 v[68:71], v[212:215], v[%d:%d], %s" % (48 + 4 * chi, 51 + 4 * chi, "v[68:71]" if chi else "0"))
        a.label("L_att_nl0")
        a.pad("PAD_A1", "L_att_x")
        a("s_cmp_lg_u32 s65, 2")
        a("s_cbranch_scc1 L_att_nv3")
        a("s_waitcnt lgkmcnt(0)")
        for chi in range(4): zmfma(chi)
        a.label("L_att_nv3")
        a("""
        s_cmp_lg_u32 s62, 0
        s_cbranch_scc1 L_att_nost
        s_nop 7
        v_mov_b32 v65, v68
        """)
        stats_pub("")
        a.label("L_att_nost")
        a("s_cmp_eq_u32 s65, 2")
        a("s_cbranch_scc1 L_att_sel")
        lds_wait_ge(a, 7, 76, F_PROG, TH_V3, sleep=1)
        for chi in range(3): vread(chi)
        a("ds_read_b32 v76, v7 offset:%d" % F_PROG)
        for chi in range(3): zmfma(chi, 9 - 4 * chi)
        a("s_waitcnt lgkmcnt(0)")
        a("v_cmp_gt_u32 vcc, 0x%x, v76" % TH_V)
        a("s_cbranch_vccz L_att_pv3")
        lds_wait_ge(a, 7, 76, F_PROG, TH_V, sleep=0)
        a.label("L_att_pv3")
        vread(3)
        zmfma(3, 0)
        a.label("L_att_sel")
        a.stamp()
        a.nop(8)
        a.nop(2)
        a("""
        v_cndmask_b32_e64 v160, v160, v162, s[8:9]
        v_cndmask_b32_e64 v161, v161, v163, s[8:9]
        v_cndmask_b32_e64 v164, v164, v166, s[8:9]
        v_cndmask_b32_e64 v165, v165, v167, s[8:9]
        v_cndmask_b32_e64 v72, v160, v164, s[10:11]
        v_cndmask_b32_e64 v73, v161, v165, s[10:11]
        """)
        a.label("L_att_pub")
    else:
        a("""
        v_max3_f32 v92, v80, v81, v82
        v_max3_f32 v93, v83, v84, v85
        v_max3_f32 v92, v92, v86, v87
        v_max_f32 v92, v92, v93
        """)
        xreduce(a, "max", [92], [93])
        a("v_mul_f32 v92, s15, v92")
        for i in range(8):
            a("v_fma_f32 v%d, v%d, s15, -v92" % (80 + i, 80 + i))
        for i in range(8):
            a("v_exp_f32 v%d, v%d" % (80 + i, 80 + i))
        a.nop(1)
        for i in range(4):
            a("v_cvt_pk_bf16_f32 v%d, v%d, v%d" % (88 + i, 80 + 2 * i, 81 + 2 * i))
        a("ds_write_b128 v14, v[88:91]")
        a("""
        v_add_f32 v93, v80, v81
        v_add_f32 v94, v82, v83
        v_add_f32 v95, v84, v85
        v_add_f32 v31, v86, v87
        v_add_f32 v93, v93, v94
        v_add_f32 v95, v95, v31
        v_add_f32 v93, v93, v95
        """)
        xreduce(a, "add", [93], [31])
        a("""
        v_mov_b32 v94, 1
        v_mov_b32 v95, 1
        s_mov_b64 exec, 0x1111
        ds_write_b128 v16, v[92:95]
        s_mov_b64 exec, -1
        """)
        a.stamp()
        if VP:
            a("""
            s_cmp_eq_u32 s65, 2
            s_cbranch_scc1 L_att_nv2
            ds_read_b32 v28, v7 offset:%d
            s_waitcnt lgkmcnt(0)
            v_cmp_gt_u32 vcc, 0x%x, v28
            s_cbranch_vccnz L_att_nv2
            """ % (F_PROG, TH_V))
            for chi in range(4): vread(chi)
            a("s_mov_b32 s65, 2")
            a.label("L_att_nv2")
        a("s_mov_b32 s64, SPIN")
        a.label("L_att_pw")
        a("s_sub_u32 s64, s64, 1")
        a("s_cbranch_scc1 L_end")
        for w in range(4):
            a("ds_read_b128 v[%d:%d], v17 offset:%d" % (32 + 4 * w, 35 + 4 * w, 64 * w))
        for w in range(4):
            a("ds_read_b128 v[%d:%d], v15 offset:%d" % (48 + 4 * w, 51 + 4 * w, 1024 * w))
        a("""
        s_waitcnt lgkmcnt(0)
        v_min_u32 v64, v34, v38
        v_min3_u32 v64, v64, v42, v46
        v_cmp_eq_u32 vcc, 0, v64
        s_cbranch_vccnz L_att_pw
        """)
        a.stamp()
        if VP:
            a("s_cmp_lg_u32 s65, 2")
            a("s_cbranch_scc1 L_att_nv3")
            for chi in range(4):
                for t in range(2):
                    r = 96 + chi * 8 + 4 * t; d = 160 + chi * 8 + 4 * t
                    a("v_mfma_f32_16x16x32_bf16 v[%d:%d], v[%d:%d], v[%d:%d], 0" % (d, d + 3, r, r + 3, 48 + 4 * chi, 51 + 4 * chi))
            a.label("L_att_nv3")
        a("""
        v_max3_f32 v64, v32, v36, v40
        v_max_f32 v64, v64, v44
        """)
        for w in range(4):
            a("v_sub_f32 v%d, v%d, v64" % (68 + w, 32 + 4 * w))
        for w in range(4):
            a("v_exp_f32 v%d, v%d" % (68 + w, 68 + w))
        a.nop(1)
        a("v_mul_f32 v65, v68, v33")
        for w in range(1, 4):
            a("v_fmac_f32 v65, v%d, v%d" % (68 + w, 33 + 4 * w))
        a("""
        v_mov_b32 v66, v22
        v_mov_b32 v67, v23
        v_mov_b32 v74, v22
        v_mov_b32 v75, v23
        s_cmp_lg_u32 s62, 0
        s_cbranch_scc1 L_att_nost
        s_mov_b64 exec, 0x1111
        s_cmp_eq_u32 s45, 4
        s_cbranch_scc1 L_att_stf
        buffer_store_dwordx4 v[64:67], v19, s[56:59], s13 offen sc1
        s_branch L_att_st2
        """)
        a.label("L_att_stf")
        a("buffer_store_dwordx4 v[64:67], v19, s[56:59], s13 offen")
        a.label("L_att_st2")
        a("s_mov_b64 exec, -1")
        a("ds_write_b32 v7, v34 offset:%d" % F_APUB)
        a.label("L_att_nost")
        a.pad("PAD_A1", "L_att_x")
        def vmfma(chi, left):
            for t in range(2):
                a("s_waitcnt lgkmcnt(%d)" % (left + 2 - 2 * t))
                r = 96 + chi * 8 + 4 * t; d = 160 + chi * 8 + 4 * t
                a("v_mfma_f32_16x16x32_bf16 v[%d:%d], v[%d:%d], v[%d:%d], 0" % (d, d + 3, r, r + 3, 48 + 4 * chi, 51 + 4 * chi))
        def vsel(chi):
            d = 160 + chi * 8
            a("""
            v_cndmask_b32_e64 v%d, v%d, v%d, s[8:9]
            v_cndmask_b32_e64 v%d, v%d, v%d, s[8:9]
            v_cndmask_b32_e64 v%d, v%d, v%d, s[8:9]
            v_cndmask_b32_e64 v%d, v%d, v%d, s[8:9]
            v_cndmask_b32_e64 v%d, v%d, v%d, s[10:11]
            v_cndmask_b32_e64 v%d, v%d, v%d, s[10:11]
            """ % (d, d, d + 2, d + 1, d + 1, d + 3, d + 4, d + 4, d + 6, d + 5, d + 5, d + 7, d, d, d + 4, d + 1, d + 1, d + 5))
            if chi == 0:
                a("v_mul_f32 v72, v68, v%d" % d)
                a("v_mul_f32 v73, v68, v%d" % (d + 1))
            else:
                a("v_fmac_f32 v72, v%d, v%d" % (68 + chi, d))
                a("v_fmac_f32 v73, v%d, v%d" % (68 + chi, d + 1))
        if VP:
            a("s_cmp_lg_u32 s65, 2")
            a("s_cbranch_scc1 L_att_nv4")
            a.stamp()
            a.nstamp -= 1
            for chi in range(3): vsel(chi)
            a("s_branch L_att_pv3")
            a.label("L_att_nv4")
        lds_wait_ge(a, 7, 76, F_PROG, TH_V3, sleep=1)
        for chi in range(3): vread(chi)
        a("ds_read_b32 v76, v7 offset:%d" % F_PROG)
        for chi in range(3): vmfma(chi, 9 - 4 * chi)
        a("s_waitcnt lgkmcnt(0)")
        a("v_cmp_gt_u32 vcc, 0x%x, v76" % TH_V)
        a("s_cbranch_vccnz L_att_pvs")
        a.stamp()
        vread(3)
        vsel(0)
        vsel(1)
        vmfma(3, 0)
        vsel(2)
        a("s_branch L_att_pv3")
        a.label("L_att_pvs")
        a.nstamp -= 1
        a.nop(4)
        for chi in range(3): vsel(chi)
        lds_wait_ge(a, 7, 76, F_PROG, TH_V, sleep=0)
        a.stamp()
        vread(3)
        vmfma(3, 0)
        a.nop(8)
        a.label("L_att_pv3")
        a.nop(2)
        vsel(3)
    a("""
    s_cmp_eq_u32 s45, 4
    s_cbranch_scc1 L_att_of
    buffer_store_dwordx4 v[72:75], v18, s[56:59], s12 offen sc1
    s_branch L_att_o2
    """)
    a.label("L_att_of")
    a("buffer_store_dwordx4 v[72:75], v18, s[56:59], s12 offen")
    a.label("L_att_o2")
    if PZ:
        a("v_mov_b32 v24, 1")
        a("s_mov_b64 exec, 1")
        a("ds_add_u32 v7, v24 offset:%d" % F_PZ)
        a("s_mov_b64 exec, -1")
    a.stamp()
    if diag:
        a("s_cmp_lg_u32 s62, 0")
        a("s_cbranch_scc1 L_att_nl")
        a("s_waitcnt vmcnt(0)")
        a.log_flush(208, 210, 0)
        a.label("L_att_nl")
    a.stamp_flush(28)
    a("s_endpgm")
    if FZ:
        a.label("L_att_fb")
        a("""
        v_max3_f32 v92, v80, v81, v82
        v_max3_f32 v93, v83, v84, v85
        v_max3_f32 v92, v92, v86, v87
        v_max_f32 v92, v92, v93
        """)
        xreduce(a, "max", [92], [93])
        for i in range(8): a("v_sub_f32 v%d, v%d, v92" % (80 + i, 80 + i))
        a("""
        s_mov_b64 exec, 0x1111
        ds_write_b32 v16, v92
        s_mov_b64 exec, -1
        v_mov_b32 v31, 0x101
        s_branch L_att_z
        """)
        a.label("L_att_gen")
        for w in range(4):
            a("ds_read_b32 v%d, v17 offset:%d" % (32 + 4 * w, 64 * w))
        for chi in range(4):
            a("v_mfma_f32_16x16x32_bf16 v[%d:%d], v[212:215], v[%d:%d], 0" % (192 + 4 * chi, 195 + 4 * chi, 48 + 4 * chi, 51 + 4 * chi))
        lds_wait_ge(a, 7, 76, F_PROG, TH_V, sleep=1)
        for chi in range(4): vread(chi)
        a("s_waitcnt lgkmcnt(0)")
        for chi in range(4):
            for t in range(2):
                r = 96 + chi * 8 + 4 * t; d = 160 + chi * 8 + 4 * t
                a("v_mfma_f32_16x16x32_bf16 v[%d:%d], v[%d:%d], v[%d:%d], 0" % (d, d + 3, r, r + 3, 48 + 4 * chi, 51 + 4 * chi))
        a("""
        v_max3_f32 v64, v32, v36, v40
        v_max_f32 v64, v64, v44
        """)
        for w in range(4): a("v_sub_f32 v%d, v%d, v64" % (68 + w, 32 + 4 * w))
        for w in range(4): a("v_exp_f32 v%d, v%d" % (68 + w, 68 + w))
        a.nop(1)
        a("v_mul_f32 v65, v68, v192")
        for w in range(1, 4): a("v_fmac_f32 v65, v%d, v%d" % (68 + w, 192 + 4 * w))
        a("s_cmp_lg_u32 s62, 0")
        a("s_cbranch_scc1 L_att_nostg")
        stats_pub("g")
        a.label("L_att_nostg")
        a.nop(8)
        for chi in range(4):
            d = 160 + chi * 8
            a("""
            v_cndmask_b32_e64 v%d, v%d, v%d, s[8:9]
            v_cndmask_b32_e64 v%d, v%d, v%d, s[8:9]
            v_cndmask_b32_e64 v%d, v%d, v%d, s[8:9]
            v_cndmask_b32_e64 v%d, v%d, v%d, s[8:9]
            v_cndmask_b32_e64 v%d, v%d, v%d, s[10:11]
            v_cndmask_b32_e64 v%d, v%d, v%d, s[10:11]
            """ % (d, d, d + 2, d + 1, d + 1, d + 3, d + 4, d + 4, d + 6, d + 5, d + 5, d + 7, d, d, d + 4, d + 1, d + 1, d + 5))
            if chi == 0:
                a("v_mul_f32 v72, v68, v%d" % d)
                a("v_mul_f32 v73, v68, v%d" % (d + 1))
            else:
                a("v_fmac_f32 v72, v%d, v%d" % (68 + chi, d))
                a("v_fmac_f32 v73, v%d, v%d" % (68 + chi, d + 1))
        a("s_branch L_att_pub")
    a.label("L_a_slow")
    a("""
    ds_write_b32 v7, v24 offset:%d
    v_mov_b32 v24, 0x101
    s_waitcnt vmcnt(0)
    s_mov_b32 s64, 0
    """ % F_SLOW)
    for m in QM[0]: a("s_mov_b64 s[%d:%d], -1" % (m, m + 1))
    a.label("L_a_spoll")
    a("""
    s_mov_b32 s6, 0
    s_bitcmp1_b32 s64, 0
    s_cselect_b32 s6, 0, 0x%x
    """ % (INB1S - INB1))
    for k in range(4): a("s_add_u32 s%d, s%d, s6" % (28 + k, 16 + k))
    qissue(0, 28)
    a("s_add_u32 s64, s64, 1")
    a("s_cmp_gt_u32 s64, SPIN")
    a("s_cbranch_scc1 L_end")
    a("s_waitcnt vmcnt(0)")
    for k in range(4):
        m = QM[0][k]
        a("v_xor_b32 v26, s40, v%d" % (QB[0] + 2 + 4 * k))
        a("v_cmp_lt_u32 s[%d:%d], 15, v26" % (m, m + 1))
        a("v_cmp_ne_u32 vcc, s41, v%d" % (QB[0] + 3 + 4 * k))
        a("s_or_b64 s[%d:%d], s[%d:%d], vcc" % (m, m + 1, m, m + 1))
        a("s_or_b64 s[60:61], s[%d:%d], %s" % (m, m + 1, "s[60:61]" if k else "0"))
    a("s_cbranch_scc1 L_a_spoll")
    a("s_branch L_q_d0")

    a.nstamp = nst0
    a.page()
    a.label("L_o")
    if opt("skip", 0) & 64: a("s_endpgm")
    if opt("tw", 0): touches(a, opt("tw", 0))
    if opt("sw", 0):
        if opt("swd", 0): a("s_sleep %d" % opt("swd", 0))
        stouch(a, opt("sw", 0))
    ST = opt("st", 0); SG = opt("sg", 64)
    if ST & 1:
        a("""
        s_lshl_b32 s6, s4, 14
        s_lshl_b32 s7, s5, 9
        s_add_u32 s6, s6, s7
        s_add_u32 s6, s6, 0x%x
        """ % INB1)
        for o in range(0, 512, SG): a("s_load_dword s70, s[56:57], s6 offset:%d" % o)
    if ST & 2:
        if opt("sdel", 0): a("s_sleep %d" % opt("sdel", 0))
        a("""
        s_lshl_b32 s6, s4, 17
        s_lshl_b32 s7, s5, 8
        s_add_u32 s6, s6, s7
        s_add_u32 s6, s6, 0x%x
        s_lshl_b32 s10, s4, 11
        s_lshl_b32 s7, s5, 4
        s_add_u32 s10, s10, s7
        s_add_u32 s10, s10, 0x%x
        """ % (INB2, INBS))
        for h in range(4): a("s_load_dword s70, s[56:57], s10 offset:%d" % (h * 512))
        for b in range(16):
            for o in range(0, 256, SG): a("s_load_dword s70, s[56:57], s6 offset:%d" % (b * 8192 + o))
    a("""
    s_lshl_b32 s10, s4, 11
    s_lshr_b32 s6, s5, 3
    s_lshl_b32 s6, s6, 9
    s_add_u32 s10, s10, s6
    s_add_u32 s10, s10, 0x%x
    v_lshlrev_b32 v8, 4, v5
    s_lshl_b32 s6, s4, 4
    s_lshr_b32 s7, s5, 1
    s_add_u32 s6, s6, s7
    s_lshl_b32 s11, s6, 13
    s_add_u32 s11, s11, 0x%x
    s_add_u32 s12, s11, 4096
    v_lshlrev_b32 v2, 4, v0
    v_bfe_u32 v3, v0, 1, 1
    v_lshlrev_b32 v9, 5, v3
    v_bfe_u32 v3, v0, 2, 2
    v_lshl_or_b32 v9, v3, 3, v9
    v_and_b32 v6, 1, v0
    v_lshl_or_b32 v9, v6, 2, v9
    v_add_u32 v9, %d, v9
    v_lshrrev_b32 v10, 1, v4
    v_lshlrev_b32 v10, 6, v10
    v_lshl_or_b32 v10, v5, 4, v10
    v_add_u32 v10, %d, v10
    v_lshl_add_u32 v6, v5, 3, v3
    v_lshlrev_b32 v6, 9, v6
    v_add_u32 v6, %d, v6
    v_and_b32 v11, 3, v0
    """ % (INBS, INB2, L_OW + 7 * 64, L_OW, L_WO))
    for aa in range(4):
        a("v_xor_b32 v16, %d, v3" % aa)
        a("v_lshl_or_b32 v16, v16, 2, v11")
        a("v_lshl_add_u32 v%d, v16, 4, v6" % (12 + aa))
    a("""
    s_lshl_b32 s6, s6, 6
    s_and_b32 s7, s5, 1
    s_lshl_b32 s7, s7, 18
    s_add_u32 s6, s6, s7
    s_add_u32 s14, s6, 0x%x
    s_add_u32 s15, s14, 0x20000
    v_lshl_add_u32 v6, v3, 2, v5
    v_lshlrev_b32 v6, 13, v6
    v_lshl_or_b32 v6, v11, 4, v6
    s_mov_b32 s8, 0xaaaaaaaa
    s_mov_b32 s9, 0xaaaaaaaa
    v_mov_b32 v11, 1
    """ % INB3S)
    a("""
    v_and_b32 v18, 31, v0
    v_lshlrev_b32 v8, 4, v18
    v_and_b32 v16, 3, v0
    v_lshlrev_b32 v16, 5, v16
    v_and_b32 v18, 28, v0
    v_add3_u32 v16, v16, v18, %d
    v_lshlrev_b32 v17, 5, v5
    v_add_u32 v17, v17, v19
    """ .replace("%d", "v19").replace("v_and_b32 v18, 31, v0", "v_mov_b32 v19, %d\n    v_and_b32 v18, 31, v0" % L_AL, 1))
    get_tag(a, 56)
    a.stamp()
    MA = [16 + 2 * k for k in range(8)]
    MB = [32, 34, 36, 38, 44, 46, 48, 50]
    MS = [52, 54]
    SV = [204, 208]
    for m in MA + MB + MS: a("s_mov_b64 s[%d:%d], -1" % (m, m + 1))
    if diag:
        a("v_mov_b32 v200, 0")
        a("v_mov_b32 v201, 0")
        a("s_mov_b32 s63, 1")
    a("s_mov_b32 s65, 0")
    a("s_mov_b32 s66, 0")
    def mcheck(base, M):
        for k in range(8):
            a("v_cmp_ne_u64 s[%d:%d], s[40:41], v[%d:%d]" % (M[k], M[k] + 1, base + 4 * k + 2, base + 4 * k + 3))
            if opt("skip", 0) & 4: a("s_mov_b64 s[%d:%d], 0" % (M[k], M[k] + 1))
        for k in range(8):
            a("s_or_b64 s[60:61], s[%d:%d], %s" % (M[k], M[k] + 1, "s[60:61]" if k else "0"))
    def oissue(i):
        base, M = (128, MA) if i == 0 else (160, MB)
        a("s_mov_b64 exec, s[%d:%d]" % (MS[i], MS[i] + 1))
        a("buffer_load_dwordx4 v[%d:%d], v8, s[56:59], s10 offen sc1" % (SV[i], SV[i] + 3))
        for k in range(8):
            a("s_mov_b64 exec, s[%d:%d]" % (M[k], M[k] + 1))
            a("buffer_load_dwordx4 v[%d:%d], v2, s[56:59], s%d offen offset:%d sc1" % (base + 4 * k, base + 3 + 4 * k, 11 + k // 4, (k % 4) * 1024))
        a("s_mov_b64 exec, -1")
    def stats(i):
        lab = "L_o_ns%d" % i
        v = SV[i]
        a("s_cmp_lg_u32 s66, 0")
        a("s_cbranch_scc1 %s" % lab)
        a("v_cmp_ne_u64 vcc, s[40:41], v[%d:%d]" % (v + 2, v + 3))
        a("s_mov_b64 s[%d:%d], vcc" % (MS[i], MS[i] + 1))
        a("s_cbranch_vccnz %s" % lab)
        a("v_mov_b32 v56, v%d" % v)
        allreduce(a, "max", 56, 57)
        a("v_sub_f32 v56, v%d, v56" % v)
        a("v_exp_f32 v56, v56")
        a("s_mov_b32 s66, 1")
        a("v_mul_f32 v57, v56, v%d" % (v + 1))
        a("ds_write_b32 v16, v56")
        a("ds_read_b128 v[48:51], v17")
        a("ds_read_b128 v[52:55], v17 offset:16")
        allreduce(a, "add", 57, 58)
        a("v_mul_f32 v57, 0.5, v57")
        a("v_rcp_f32 v58, v57")
        a("s_mov_b64 s[%d:%d], 0" % (MS[1 - i], MS[1 - i] + 1))
        a("s_waitcnt lgkmcnt(0)")
        a.label(lab)
    lds_wait_ge(a, 7, 59, F_APUB, 1, sleep=3)
    lds_wait_ge(a, 7, 59, F_PROG, opt('ogate', TH_V), sleep=1)
    a.stamp()
    a("s_setprio 3")
    if opt("odn", 0):
        a("""
        s_lshr_b32 s6, s4, 2
        s_lshl_b32 s6, s6, 3
        s_add_u32 s6, s6, s5
        s_cmp_lt_u32 s6, 32
        s_cbranch_scc1 L_o_nd
        s_sleep %d
        """ % opt("odn", 0))
        a.label("L_o_nd")
    if opt("odel", 0): a("s_sleep %d" % opt("odel", 0))
    O1 = opt("o1", 0)
    oissue(0)
    if opt("ow2", 0):
        lds_wait_ge(a, 7, 59, F_PROG, opt("ow2", 0), sleep=1)
    if not O1:
        if not opt("ow2", 0): a("s_sleep %d" % opt('ostag', 8))
        oissue(1)
    def wo_pre():
        for al in range(2):
            for t in range(8):
                for h in range(2):
                    r = 64 + ((al * 8 + t) * 2 + h) * 2
                    a("ds_read_b64_tr_b16 v[%d:%d], v%d offset:%d" % (r, r + 1, 12 + (t >> 1), al * 256 + (t & 1) * 8 + h * 2048))
    def opp(lab):
        a("s_cmp_lg_u32 s65, 0")
        a("s_cbranch_scc1 %s" % lab)
        a("ds_read_b32 v59, v7 offset:%d" % F_PROG)
        a("s_waitcnt lgkmcnt(0)")
        a("v_cmp_gt_u32 vcc, 0x%x, v59" % TH_WO)
        a("s_cbranch_vccnz %s" % lab)
        wo_pre()
        a("s_mov_b32 s65, 1")
        a.label(lab)
    a("s_mov_b32 s64, SPIN")
    a.label("L_o_poll")
    opp("L_o_np")
    for i in range(1 if O1 else 2):
        a("s_waitcnt vmcnt(%d)" % (0 if O1 else 9))
        stats(i)
        mcheck(128 + 32 * i, MA if i == 0 else MB)
        a("s_or_b64 s[60:61], s[%d:%d], s[60:61]" % (MS[i], MS[i] + 1))
        a.log(63, "s[60:61]", 200)
        a("s_cbranch_scc0 L_o_d%d" % i)
        if opt("osl", 0): a("s_sleep %d" % opt("osl", 0))
        oissue(i)
    a("s_sub_u32 s64, s64, 1")
    a("s_cbranch_scc1 L_end")
    a("s_branch L_o_poll")
    for nm, base in (("L_o_d0", 128), ("L_o_d1", 160)):
        a.label(nm)
        a("v_mul_f32 v60, v48, v%d" % base)
        a("v_mul_f32 v61, v48, v%d" % (base + 1))
        a("v_mul_f32 v62, v49, v%d" % (base + 4))
        a("v_mul_f32 v63, v49, v%d" % (base + 5))
        for k in range(2, 8):
            a("v_fmac_f32 v%d, v%d, v%d" % (60 + 2 * (k & 1), 48 + k, base + 4 * k))
            a("v_fmac_f32 v%d, v%d, v%d" % (61 + 2 * (k & 1), 48 + k, base + 4 * k + 1))
        if base == 128: a("s_branch L_o_dd")
    a.label("L_o_dd")
    a.stamp()
    a("v_add_f32 v60, v60, v62")
    a("v_add_f32 v61, v61, v63")
    xreduce(a, "add", [60, 61], [62, 63])
    for r in (60, 61):
        a("v_mul_f32 v62, v%d, v58" % r)
        a("v_fma_f32 v63, -v62, v57, v%d" % r)
        a("v_fma_f32 v%d, v63, v58, v62" % r)
    a("v_cvt_pk_bf16_f32 v60, v60, v61")
    a("ds_write_b32 v9, v60")
    for t in range(8):
        a("ds_read_b128 v[%d:%d], v10 offset:%d" % (16 + 4 * t, 19 + 4 * t, (7 - t) * 64))
    a("s_cmp_lg_u32 s65, 0")
    a("s_cbranch_scc1 L_o_have")
    lds_wait_ge(a, 7, 59, F_PROG, TH_WO, sleep=0)
    wo_pre()
    a.label("L_o_have")
    a("""
    v_mov_b32 v194, s40
    v_mov_b32 v195, s41
    v_mov_b32 v198, s40
    v_mov_b32 v199, s41
    s_waitcnt lgkmcnt(0)
    """)
    a.stamp()
    for t in range(8):
        for al in range(2):
            r = 64 + (al * 8 + t) * 4
            c_ = "0" if t == 0 else "v[%d:%d]" % (48 + 4 * al, 51 + 4 * al)
            a("v_mfma_f32_16x16x32_bf16 v[%d:%d], v[%d:%d], v[%d:%d], %s" % (48 + 4 * al, 51 + 4 * al, r, r + 3, 16 + 4 * t, 19 + 4 * t, c_))
    a.nop(7)
    a("""
    v_cndmask_b32_e64 v192, v48, v50, s[8:9]
    v_cndmask_b32_e64 v193, v49, v51, s[8:9]
    v_cndmask_b32_e64 v196, v52, v54, s[8:9]
    v_cndmask_b32_e64 v197, v53, v55, s[8:9]
    buffer_store_dwordx4 v[192:195], v6, s[56:59], s14 offen sc1
    buffer_store_dwordx4 v[196:199], v6, s[56:59], s15 offen sc1
    ds_write_b32 v7, v11 offset:%d
    """ % F_OPUB)
    a.stamp()
    a.log_flush(200, 202, 1)
    a.stamp_flush(28)
    a("s_endpgm")

    a.nstamp = nst0
    a.page()
    a.label("L_f")
    if opt("skip", 0) & 128: a("s_endpgm")
    fcoords(a)
    a("s_cbranch_scc1 L_f_go")
    srd(a, 48, 16, 1024)
    srd(a, 52, 34, 1024)
    a("v_lshlrev_b32 v2, 4, v0")
    get_tag(a, 42)
    a("s_branch L_fin")
    a.label("L_f_go")
    a("""
    s_lshl_b32 s6, s15, 8
    s_add_u32 s6, s6, %d
    v_lshlrev_b32 v13, 4, v5
    v_add_u32 v13, s6, v13
    """ % L_XN)
    traddr128(a, 52, L_G, 3, 6)
    a("""
    v_lshrrev_b32 v3, 2, v4
    v_lshl_add_u32 v2, v5, 3, v3
    """)
    a("""
    v_lshlrev_b32 v2, 8, v2
    v_add_u32 v2, %d, v2
    v_and_b32 v12, 3, v0
    """ % L_WD)
    for aa in range(4):
        a("v_xor_b32 v16, %d, v3" % aa)
        a("v_lshl_or_b32 v16, v16, 2, v12")
        a("v_lshl_add_u32 v%d, v16, 4, v2" % (8 + aa))
    a("""
    s_lshl_b32 s11, s14, 11
    s_add_u32 s11, s11, 0x%x
    s_and_b32 s6, s5, 7
    s_lshl_b32 s6, s6, 8
    s_lshr_b32 s10, s14, 1
    s_lshl_b32 s10, s10, 12
    s_add_u32 s10, s10, s6
    s_add_u32 s10, s10, 0x%x
    v_bfe_u32 v16, v0, 2, 1
    v_lshlrev_b32 v16, 11, v16
    v_lshl_or_b32 v16, v5, 6, v16
    v_lshl_or_b32 v16, v12, 4, v16
    v_lshlrev_b32 v2, 4, v0
    v_bfe_u32 v6, v0, 1, 1
    v_lshlrev_b32 v17, 5, v6
    v_lshl_or_b32 v17, v3, 3, v17
    v_and_b32 v6, 1, v0
    v_lshl_or_b32 v17, v6, 2, v17
    v_add_u32 v17, %d, v17
    v_lshrrev_b32 v18, 1, v4
    v_lshlrev_b32 v18, 6, v18
    v_lshl_or_b32 v18, v5, 4, v18
    v_add_u32 v18, %d, v18
    s_mul_i32 s12, s15, 57344
    s_lshl_b32 s6, s14, 6
    s_add_u32 s12, s12, s6
    s_add_u32 s12, s12, 0x%x
    v_lshl_add_u32 v19, v3, 2, v5
    v_mul_u32_u24 v19, 0xe00, v19
    v_lshl_or_b32 v19, v12, 4, v19
    s_mov_b32 s8, 0xaaaaaaaa
    s_mov_b32 s9, 0xaaaaaaaa
    v_bfe_u32 v6, v0, 1, 2
    """ % (INB4, INB4, L_HW + 7 * 64, L_HW, INB3D))
    if ST & 4:
        if opt("sdel", 0): a("s_sleep %d" % opt("sdel", 0))
        for b in range(2):
            for o in range(0, 256, SG): a("s_load_dword s70, s[56:57], s10 offset:%d" % (b * 2048 + o))
    if PT & 4:
        a("""
        s_mov_b32 exec_lo, 0x00ff00ff
        s_mov_b32 exec_hi, 0x00ff00ff
        buffer_load_dwordx4 v[196:199], v16, s[56:59], s10 offen sc1
        s_mov_b64 exec, -1
        """)
    get_tag(a, 42)
    if opt("pwg", 0):
        a("buffer_load_dwordx4 v[20:23], v2, s[56:59], s11 offen sc1")
        a("buffer_load_dwordx4 v[24:27], v2, s[56:59], s11 offen offset:1024 sc1")
        a("s_waitcnt vmcnt(0)")
    a.stamp()
    lds_wait_ge(a, 7, 20, F_XN, 1, sleep=4)
    for k in range(4):
        a("ds_read_b128 v[%d:%d], v13 offset:%d" % (20 + 4 * k, 23 + 4 * k, k * 64))
    a("v_mov_b32 v36, 0")
    a("s_waitcnt lgkmcnt(0)")
    for u in range(4):
        a("v_cmp_eq_u32 vcc, %d, v6" % u)
        a.nop(2)
        for k in range(4):
            for i in range(4):
                a("v_cndmask_b32 v%d, v36, v%d, vcc" % (128 + (u * 4 + k) * 4 + i, 20 + 4 * k + i))
    a("s_mov_b32 s64, SPIN")
    a.label("L_f_qw")
    a("""
    ds_read_b32 v20, v7 offset:%d
    s_waitcnt lgkmcnt(0)
    v_and_b32 v21, 7, v20
    v_cmp_ne_u32 vcc, 4, v21
    s_cbranch_vccz L_f_qok
    s_sleep 4
    s_sub_u32 s64, s64, 1
    s_cbranch_scc1 L_end
    s_branch L_f_qw
    """ % F_Q)
    a.label("L_f_qok")
    a("v_readfirstlane_b32 s45, v20")
    if opt("g2", 0):
        for half in range(2):
            lds_wait_ge(a, 7, 20, F_PROG, PV[("G", 7)] if half == 0 else TH_G, sleep=1 - half)
            if half: a.stamp()
            else: a("s_setprio 3")
            for u in range(4):
                for k in (2 * half, 2 * half + 1):
                    for h in range(2):
                        r = 64 + ((u * 4 + k) * 2 + h) * 2
                        a("ds_read_b64_tr_b16 v[%d:%d], v%d offset:%d" % (r, r + 1, 52 + u, k * 4096 + h * 512))
            for u in range(4):
                for k in (2 * half, 2 * half + 1):
                    a("s_waitcnt lgkmcnt(%d)" % (14 - 4 * u - 2 * (k & 1)))
                    n = u * 4 + k
                    c_ = "0" if n == 0 else "v[36:39]"
                    a("v_mfma_f32_16x16x32_bf16 v[36:39], v[%d:%d], v[%d:%d], %s" % (64 + n * 4, 67 + n * 4, 128 + n * 4, 131 + n * 4, c_))
    else:
        lds_wait_ge(a, 7, 20, F_PROG, TH_G, sleep=1)
        a.stamp()
        a("s_setprio 3")
        for u in range(4):
            for k in range(4):
                for h in range(2):
                    r = 64 + ((u * 4 + k) * 2 + h) * 2
                    a("ds_read_b64_tr_b16 v[%d:%d], v%d offset:%d" % (r, r + 1, 52 + u, k * 4096 + h * 512))
            if u >= 1:
                a("s_waitcnt lgkmcnt(8)")
                for k in range(4):
                    n = (u - 1) * 4 + k
                    c_ = "0" if n == 0 else "v[36:39]"
                    a("v_mfma_f32_16x16x32_bf16 v[36:39], v[%d:%d], v[%d:%d], %s" % (64 + n * 4, 67 + n * 4, 128 + n * 4, 131 + n * 4, c_))
        a("s_waitcnt lgkmcnt(0)")
        for k in range(4):
            n = 12 + k
            a("v_mfma_f32_16x16x32_bf16 v[36:39], v[%d:%d], v[%d:%d], v[36:39]" % (64 + n * 4, 67 + n * 4, 128 + n * 4, 131 + n * 4))
    a.nop(8)
    a("""
    v_cndmask_b32_e64 v40, v36, v38, s[8:9]
    v_cndmask_b32_e64 v41, v37, v39, s[8:9]
    s_mov_b32 exec_lo, 0x00ff00ff
    s_mov_b32 exec_hi, 0x00ff00ff
    s_cmp_eq_u32 s45, 4
    s_cbranch_scc1 L_f_pf
    buffer_store_dwordx4 v[40:43], v16, s[56:59], s10 offen sc1
    s_branch L_f_p2
    """)
    a.label("L_f_pf")
    a("buffer_store_dwordx4 v[40:43], v16, s[56:59], s10 offen")
    a.label("L_f_p2")
    if PZ:
        a("s_mov_b64 exec, 1")
        a("ds_add_u32 v7, v44 offset:%d" % F_PZ)
    a("s_mov_b64 exec, -1")
    a.stamp()
    a("s_mov_b32 s65, 0")
    def wd_pre():
        for t in range(8):
            for h in range(2):
                r = 64 + (t * 2 + h) * 2
                a("ds_read_b64_tr_b16 v[%d:%d], v%d offset:%d" % (r, r + 1, 8 + (t >> 1), (t & 1) * 8 + h * 1024))
    def gissue(base):
        a("buffer_load_dwordx4 v[%d:%d], v2, s[56:59], s11 offen sc1" % (base, base + 3))
        a("buffer_load_dwordx4 v[%d:%d], v2, s[56:59], s11 offen offset:1024 sc1" % (base + 4, base + 7))
    if opt("gdel", 0): a("s_sleep %d" % opt("gdel", 0))
    gissue(20)
    a("s_sleep %d" % opt("gstag", 4))
    gissue(28)
    a("s_mov_b32 s64, SPIN")
    a.label("L_f_poll")
    a("""
    s_cmp_lg_u32 s65, 0
    s_cbranch_scc1 L_f_np
    ds_read_b32 v44, v7 offset:%d
    s_waitcnt lgkmcnt(0)
    v_cmp_gt_u32 vcc, 0x%x, v44
    s_cbranch_vccnz L_f_np
    """ % (F_PROG, TH_WD))
    wd_pre()
    a("s_mov_b32 s65, 1")
    a.label("L_f_np")
    a("s_waitcnt vmcnt(2)")
    tagcheck(a, [20, 24])
    if opt("skip", 0) & 16: a("s_branch L_f_d0")
    a("s_cbranch_vccz L_f_d0")
    if opt("gsl", 0): a("s_sleep %d" % opt("gsl", 0))
    gissue(20)
    a("s_waitcnt vmcnt(2)")
    tagcheck(a, [28, 32])
    a("s_cbranch_vccz L_f_d1")
    if opt("gsl", 0): a("s_sleep %d" % opt("gsl", 0))
    gissue(28)
    a("s_sub_u32 s64, s64, 1")
    a("s_cbranch_scc1 L_end")
    a("s_branch L_f_poll")
    for nm, base in (("L_f_d0", 20), ("L_f_d1", 28)):
        a.label(nm)
        a("v_mov_b32 v44, v%d" % base)
        a("v_mov_b32 v45, v%d" % (base + 1))
        a("v_mov_b32 v46, v%d" % (base + 4))
        a("v_mov_b32 v47, v%d" % (base + 5))
        if base == 20: a("s_branch L_f_dd")
    a.label("L_f_dd")
    a.stamp()
    xreduce(a, "add", [44, 45, 46, 47], [48, 49, 50, 51])
    a("""
    s_mov_b32 s16, 0x3d372713
    s_mov_b32 s17, 0xc0135761
    v_cvt_pk_bf16_f32 v48, v44, v45
    v_cvt_pk_bf16_f32 v49, v46, v47
    v_lshlrev_b32 v44, 16, v48
    v_and_b32 v45, 0xffff0000, v48
    v_lshlrev_b32 v46, 16, v49
    v_and_b32 v47, 0xffff0000, v49
    v_mul_f32 v48, v44, v44
    v_mul_f32 v49, v45, v45
    v_mul_f32 v48, v48, v44
    v_mul_f32 v49, v49, v45
    v_fma_f32 v48, v48, s16, v44
    v_fma_f32 v49, v49, s16, v45
    v_mul_f32 v48, s17, v48
    v_mul_f32 v49, s17, v49
    v_exp_f32 v48, v48
    v_exp_f32 v49, v49
    s_nop 0
    v_add_f32 v48, 1.0, v48
    v_add_f32 v49, 1.0, v49
    v_rcp_f32 v48, v48
    v_rcp_f32 v49, v49
    s_nop 0
    v_mul_f32 v44, v44, v48
    v_mul_f32 v45, v45, v49
    v_cvt_pk_bf16_f32 v48, v44, v45
    v_lshlrev_b32 v44, 16, v48
    v_and_b32 v45, 0xffff0000, v48
    v_mul_f32 v44, v44, v46
    v_mul_f32 v45, v45, v47
    v_cvt_pk_bf16_f32 v48, v44, v45
    ds_write_b32 v17, v48
    """)
    for t in range(8):
        a("ds_read_b128 v[%d:%d], v18 offset:%d" % (128 + 4 * t, 131 + 4 * t, (7 - t) * 64))
    a("s_cmp_lg_u32 s65, 0")
    a("s_cbranch_scc1 L_f_have")
    lds_wait_ge(a, 7, 44, F_PROG, TH_WD, sleep=1 if opt("ord", 0) else 0)
    wd_pre()
    a.label("L_f_have")
    a("s_waitcnt lgkmcnt(0)")
    a.stamp()
    for t in range(8):
        c_ = "0" if t == 0 else "v[36:39]"
        a("v_mfma_f32_16x16x32_bf16 v[36:39], v[%d:%d], v[%d:%d], %s" % (64 + 4 * t, 67 + 4 * t, 128 + 4 * t, 131 + 4 * t, c_))
    a.nop(8)
    a("""
    v_cndmask_b32_e64 v40, v36, v38, s[8:9]
    v_cndmask_b32_e64 v41, v37, v39, s[8:9]
    buffer_store_dwordx4 v[40:43], v19, s[56:59], s12 offen sc1
    """)
    a.stamp()
    a.stamp_flush(28)
    a.label("L_end")
    a("s_endpgm")

    out += a.l
    out.append('''.section .rodata,"a"
.p2align 6
.amdhsa_kernel %s_kernel
  .amdhsa_next_free_vgpr 216
  .amdhsa_next_free_sgpr 102
  .amdhsa_accum_offset 216
  .amdhsa_group_segment_fixed_size 0
  .amdhsa_kernarg_size 96
  .amdhsa_user_sgpr_count 2
  .amdhsa_user_sgpr_kernarg_segment_ptr 1
  .amdhsa_system_sgpr_workgroup_id_x 1
  .amdhsa_float_denorm_mode_32 3
.end_amdhsa_kernel''' % NAME)
    return "\n".join(out) + "\n"

if __name__ == "__main__":
    ap = argparse.ArgumentParser()
    ap.add_argument("-o", default="cdna_kernels/%s.s" % NAME)
    ap.add_argument("--diag", action="store_true")
    ap.add_argument("--slow", action="store_true")
    ap.add_argument("-W", type=int, default=16)
    ap.add_argument("--W0", type=int, default=24)
    ap.add_argument("-P", nargs="*", default=[])
    ap.add_argument("--onlyld", action="store_true")
    ap.add_argument("--kv", type=int, default=1)
    args = ap.parse_args()
    open(args.o, "w").write(gen(diag=args.diag, W=args.W, forceslow=args.slow, onlyld=args.onlyld, kvmode=args.kv, W0=args.W0, P={x.split('=')[0]: int(x.split('=')[1]) for x in args.P}))
    print("wrote", args.o)
```

```python
import sys, argparse

NAME = "recurrent_scan__sliding_block_cached__glu_gated_geglu__decode"
HEADER = open("cdna_kernels/%s.s.ref" % NAME).read().split("; Override launch")[0]

INBS = 0x1000
INB4 = 0x5000
INB1 = 0x200000
INB1S = 0x220000
INB3D = 0x41000
INB3S = 0x80000
INB2 = 0x100000
DIAG = 0x1000000
L_WQ = 0
L_K = 16384
L_V = 49152
L_G = 81920
L_U = 90112
L_WO = 98304
L_WD = 114688
L_M = 122880
L_XN = L_M
L_Q = L_M + 1024
L_P = L_M + 2048
L_Z = L_M + 6144
L_OW = L_Z
L_HW = L_Z + 1024
L_ST = L_Z + 2048
L_FL = L_Z + 2304
L_AL = L_Z + 2560
F_PROG = 0
F_XN = 4
F_Q = 8
F_SLOW = 12
F_TAG = 16
F_TAGV = 24
F_APUB = 28
F_OPUB = 32
F_QPUB = 36
F_PZ = 40
F_P = 44
LDS_BYTES = L_Z + 4096

LOG2E = 0x3fb8aa3b
SCALE = 0x3db504f3
ST0 = 76
OGATE = 72
OSTAG = 4

class Asm:
    def __init__(self, diag=False):
        self.l = []; self.diag = diag; self.nstamp = 0; self.uid = 0
    def __call__(self, s):
        for x in s.strip().split("\n"):
            x = x.strip()
            if x: self.l.append("    " + x)
    def label(self, n): self.l.append(n + ":")
    def nop(self, n=1): self("s_nop %d" % (n - 1))
    def comment(self, s): self.l.append("    ; " + s)
    def page(self): self.l.append(".p2align 12")
    def pad(self, name, target):
        self.label(name); self("s_cbranch_execz %s" % target)
    def newlabel(self, p):
        self.uid += 1; return "%s_%d" % (p, self.uid)
    def stamp(self):
        if not self.diag: return
        i = self.nstamp; assert i < 13, "too many stamps"
        self("s_memrealtime s[%d:%d]" % (ST0 + 2 * i, ST0 + 1 + 2 * i))
        self.nstamp += 1
    def log(self, sidx, smask, vlog, tmp=62):
        if not self.diag: return
        self("s_memrealtime s[6:7]")
        self("s_bcnt1_i32_b64 s%d, %s" % (tmp, smask))
        self("s_min_u32 m0, s%d, 63" % sidx)
        self("s_waitcnt lgkmcnt(0)")
        self("v_writelane_b32 v%d, s6, m0" % vlog)
        self("v_writelane_b32 v%d, s%d, m0" % (vlog + 1, tmp))
        self("s_add_u32 s%d, s%d, 1" % (sidx, sidx))
        self("s_cmp_lg_u64 %s, 0" % smask)
    def log_flush(self, vlog, vt, slot):
        if not self.diag: return
        self("s_mov_b64 exec, -1")
        self("s_lshl_b32 s64, s2, 12")
        self("s_add_u32 s64, s64, 0x%x" % (DIAG + 0x100000 + slot * 512))
        self("v_lshlrev_b32 v%d, 2, v0" % vt)
        self("buffer_store_dword v%d, v%d, s[56:59], s64 offen" % (vlog, vt))
        self("buffer_store_dword v%d, v%d, s[56:59], s64 offen offset:256" % (vlog + 1, vt))
    def stamp_flush(self, vtmp):
        if not self.diag: return
        n = self.nstamp
        self("s_waitcnt vmcnt(0) lgkmcnt(0)")
        self("s_mov_b64 exec, 1")
        self("s_lshl_b32 s64, s2, 10")
        self("s_lshl_b32 s65, s3, 7")
        self("s_add_u32 s64, s64, s65")
        self("s_add_u32 s64, s64, 0x%x" % DIAG)
        self("v_mov_b32 v%d, 0" % (vtmp + 2))
        for i in range(n):
            self("v_mov_b32 v%d, s%d" % (vtmp, ST0 + 2 * i))
            self("v_mov_b32 v%d, s%d" % (vtmp + 1, ST0 + 1 + 2 * i))
            self("buffer_store_dwordx2 v[%d:%d], v%d, s[56:59], s64 offen offset:%d" % (vtmp, vtmp + 1, vtmp + 2, i * 8))
            self.nop(2)
        self("v_mov_b32 v%d, %d" % (vtmp, n))
        self("buffer_store_dword v%d, v%d, s[56:59], s64 offen offset:120" % (vtmp, vtmp + 2))

def allreduce(a, op, v, t):
    for r in (1, 2, 4, 8):
        a.nop(2)
        a("v_%s_f32_dpp v%d, v%d, v%d row_ror:%d row_mask:0xf bank_mask:0xf" % (op, v, v, v, r))
    for sw in ("16", "32"):
        a("v_mov_b32 v%d, v%d" % (t, v))
        a.nop(2)
        a("v_permlane%s_swap_b32 v%d, v%d" % (sw, v, t))
        a("v_%s_f32 v%d, v%d, v%d" % (op, v, v, t))

def xreduce(a, op, regs, tmps):
    for sw in ("16", "32"):
        for r, t in zip(regs, tmps):
            a("v_mov_b32 v%d, v%d" % (t, r))
        a.nop(2 if len(regs) < 3 else 1)
        for r, t in zip(regs, tmps):
            a("v_permlane%s_swap_b32 v%d, v%d" % (sw, r, t))
        for r, t in zip(regs, tmps):
            a("v_%s_f32 v%d, v%d, v%d" % (op, r, r, t))

def bf16_round(a, dst, src, tmp):
    a("v_cvt_pk_bf16_f32 v%d, v%d, v%d" % (tmp, src, src))
    a("v_lshlrev_b32 v%d, 16, v%d" % (dst, tmp))

def layernorm(a, xr, f, t, xp):
    for i in range(4):
        a("v_lshlrev_b32 v%d, 16, v%d" % (f + 2 * i, xr + i))
        a("v_and_b32 v%d, 0xffff0000, v%d" % (f + 2 * i + 1, xr + i))
    a("v_add_f32 v%d, v%d, v%d" % (t, f, f + 1))
    a("v_add_f32 v%d, v%d, v%d" % (t + 1, f + 2, f + 3))
    a("v_add_f32 v%d, v%d, v%d" % (t + 2, f + 4, f + 5))
    a("v_add_f32 v%d, v%d, v%d" % (t + 3, f + 6, f + 7))
    a("v_add_f32 v%d, v%d, v%d" % (t, t, t + 1))
    a("v_add_f32 v%d, v%d, v%d" % (t + 2, t + 2, t + 3))
    a("v_add_f32 v%d, v%d, v%d" % (t, t, t + 2))
    allreduce(a, "add", t, t + 1)
    a("v_mul_f32 v%d, 0x3b000000, v%d" % (t, t))
    a("v_sub_f32 v%d, v%d, v%d" % (t + 2, f, t))
    a("v_mul_f32 v%d, v%d, v%d" % (t + 1, t + 2, t + 2))
    for i in range(1, 8):
        a("v_sub_f32 v%d, v%d, v%d" % (t + 2, f + i, t))
        a("v_fmac_f32 v%d, v%d, v%d" % (t + 1, t + 2, t + 2))
    allreduce(a, "add", t + 1, t + 2)
    a("v_mul_f32 v%d, 0x3b000000, v%d" % (t + 1, t + 1))
    a("v_cvt_pk_bf16_f32 v%d, v%d, v%d" % (t + 2, t, t + 1))
    a("v_lshlrev_b32 v%d, 16, v%d" % (t, t + 2))
    a("v_and_b32 v%d, 0xffff0000, v%d" % (t + 1, t + 2))
    a("v_add_f32 v%d, 0x3727c5ac, v%d" % (t + 1, t + 1))
    bf16_round(a, t + 1, t + 1, t + 2)
    a("v_sqrt_f32 v%d, v%d" % (t + 1, t + 1))
    a.nop(1)
    bf16_round(a, t + 1, t + 1, t + 2)
    a("v_rcp_f32 v%d, v%d" % (t + 2, t + 1))
    for i in range(8):
        a("v_sub_f32 v%d, v%d, v%d" % (f + i, f + i, t))
    for i in range(4):
        a("v_cvt_pk_bf16_f32 v%d, v%d, v%d" % (xp + i, f + 2 * i, f + 2 * i + 1))
    for i in range(4):
        a("v_lshlrev_b32 v%d, 16, v%d" % (f + 2 * i, xp + i))
        a("v_and_b32 v%d, 0xffff0000, v%d" % (f + 2 * i + 1, xp + i))
    for i in range(8):
        a("v_mul_f32 v%d, v%d, v%d" % (t + 3, f + i, t + 2))
        a("v_fma_f32 v%d, -v%d, v%d, v%d" % (t + 4, t + 3, t + 1, f + i))
        a("v_fma_f32 v%d, v%d, v%d, v%d" % (f + i, t + 4, t + 2, t + 3))
    for i in range(4):
        a("v_cvt_pk_bf16_f32 v%d, v%d, v%d" % (xp + i, f + 2 * i, f + 2 * i + 1))

def srd(a, d, base, nbytes):
    a("s_mov_b32 s%d, s%d" % (d, base))
    a("s_mov_b32 s%d, s%d" % (d + 1, base + 1))
    a("s_mov_b32 s%d, 0x%x" % (d + 2, nbytes))
    a("s_mov_b32 s%d, 0x20000" % (d + 3))

def fcoords(a):
    a("""
    s_and_b32 s14, s4, 3
    s_mul_i32 s14, s14, 14
    s_lshr_b32 s36, s4, 2
    s_lshl_b32 s7, s36, 3
    s_add_u32 s14, s14, s7
    s_lshr_b32 s7, s5, 2
    s_add_u32 s14, s14, s7
    s_and_b32 s15, s5, 3
    s_lshl_b32 s36, s36, 3
    s_add_u32 s36, s36, s5
    s_cmp_lt_u32 s36, 32
    s_cselect_b32 s36, 1, 0
    """)

def touches(a, tw, vz=212):
    a("s_mov_b64 exec, 1")
    a("v_mov_b32 v%d, 0" % vz)
    n = 1
    if tw & 1:
        srd(a, 68, 20, 0x8000000)
        a("""
        s_lshl_b32 s6, s4, 24
        s_lshl_b32 s7, s5, 12
        s_add_u32 s6, s6, s7
        s_add_u32 s6, s6, 0xf00000
        buffer_load_dword v%d, v%d, s[68:71], s6 offen
        """ % (vz + 1, vz))
    if tw & 2:
        srd(a, 72, 24, 4096 * 512 * 2)
        a("""
        s_lshl_b32 s6, s4, 19
        s_lshr_b32 s7, s5, 1
        s_lshl_b32 s7, s7, 15
        s_add_u32 s6, s6, s7
        buffer_load_dword v%d, v%d, s[72:75], s6 offen
        """ % (vz + 1, vz))
    if tw & 4:
        fcoords(a)
        a("s_bitcmp1_b32 s5, 2")
        a("s_cselect_b32 s68, s30, s28")
        a("s_cselect_b32 s69, s31, s29")
        a("s_mov_b32 s70, 0x%x" % (512 * 1792 * 2))
        a("s_mov_b32 s71, 0x20000")
        srd(a, 72, 32, 1792 * 512 * 2)
        a("""
        s_mul_i32 s6, s15, %d
        s_lshl_b32 s7, s14, 6
        s_and_b32 s7, s7, -128
        s_add_u32 s6, s6, s7
        buffer_load_dword v%d, v%d, s[68:71], s6 offen
        s_lshl_b32 s6, s14, 15
        s_lshl_b32 s7, s15, 8
        s_add_u32 s6, s6, s7
        buffer_load_dword v%d, v%d, s[72:75], s6 offen
        """ % (128 * 3584, vz + 1, vz, vz + 1, vz))
    if tw & 8:
        a("""
        s_mov_b32 s6, 0x30000
        buffer_load_dword v%d, v%d, s[56:59], s6 offen
        s_mov_b32 s6, 0x240000
        buffer_load_dword v%d, v%d, s[56:59], s6 offen
        """ % (vz + 1, vz, vz + 1, vz))
    a("s_mov_b64 exec, -1")

def stouch(a, m):
    if m & 1:
        a("""
        s_lshl_b32 s6, s4, 24
        s_lshl_b32 s7, s5, 12
        s_add_u32 s6, s6, s7
        s_add_u32 s6, s6, 0xf00000
        s_load_dword s70, s[20:21], s6
        """)
    if m & 2:
        a("""
        s_lshl_b32 s6, s4, 19
        s_lshr_b32 s7, s5, 1
        s_lshl_b32 s7, s7, 15
        s_add_u32 s6, s6, s7
        s_load_dword s70, s[24:25], s6
        """)
    if m & 4:
        a("""
        s_and_b32 s6, s5, 3
        s_mul_i32 s6, s6, %d
        s_load_dword s70, s[28:29], s6
        s_load_dword s70, s[30:31], s6
        s_load_dword s70, s[32:33], s6
        """ % (128 * 3584))
    if m & 8:
        a("""
        s_mov_b32 s6, 0x240000
        s_load_dword s70, s[38:39], s6
        s_load_dword s70, s[34:35], 0
        """)

def traddr128(a, d, base, t0, t1):
    a("""
    v_lshrrev_b32 v%d, 2, v4
    v_lshl_add_u32 v%d, v5, 3, v%d
    v_lshlrev_b32 v%d, 7, v%d
    v_bfe_u32 v%d, v0, 3, 2
    v_lshl_or_b32 v%d, v%d, 5, v%d
    v_and_b32 v%d, 3, v0
    v_lshl_or_b32 v%d, v%d, 3, v%d
    """ % (t0, t0, t0, t0, t0, t1, t0, t1, t0, t1, d, t1, t0))
    if base: a("v_add_u32 v%d, %d, v%d" % (d, base, d))
    for u in range(1, 4):
        a("v_xor_b32 v%d, %d, v%d" % (d + u, 32 * u, d))

def early_barrier(a):
    a("s_waitcnt lgkmcnt(0)")
    a("s_barrier")
    srd(a, 56, 38, 0x20000000)

def make_tag(a):
    a("""
    s_waitcnt lgkmcnt(0)
    s_add_u32 s40, s40, 16
    s_and_b32 s40, s40, -16
    s_add_u32 s41, s41, 0x9e3779b9
    """)

def get_tag(a, vt):
    if OWNTAG:
        make_tag(a)
        a("v_mov_b32 v%d, s40" % vt)
        a("v_mov_b32 v%d, s41" % (vt + 1))
        a("v_mov_b32 v%d, 1" % (vt + 2))
        return
    name = a.newlabel("L_gt")
    a("s_mov_b32 s64, SPIN")
    a.label(name)
    a("ds_read_b96 v[%d:%d], v7 offset:%d" % (vt, vt + 2, F_TAG))
    a("s_waitcnt lgkmcnt(0)")
    a("v_cmp_eq_u32 vcc, 0, v%d" % (vt + 2))
    a("s_cbranch_vccz %s_ok" % name)
    a("s_sleep 10")
    a("s_sub_u32 s64, s64, 1")
    a("s_cbranch_scc1 L_end")
    a("s_branch %s" % name)
    a.label(name + "_ok")
    a("v_readfirstlane_b32 s40, v%d" % vt)
    a("v_readfirstlane_b32 s41, v%d" % (vt + 1))
    a.nop(2)

def lds_wait_ge(a, vfl, vtmp, off, thr, sleep=1):
    name = a.newlabel("L_w")
    a("s_mov_b32 s64, SPIN")
    a.label(name)
    a("ds_read_b32 v%d, v%d offset:%d" % (vtmp, vfl, off))
    a("s_waitcnt lgkmcnt(0)")
    a("v_cmp_gt_u32 vcc, %d, v%d" % (thr, vtmp) if thr <= 64 else "v_cmp_gt_u32 vcc, 0x%x, v%d" % (thr, vtmp))
    a("s_cbranch_vccz %s_ok" % name)
    if sleep: a("s_sleep %d" % sleep)
    a("s_sub_u32 s64, s64, 1")
    a("s_cbranch_scc1 L_end")
    a("s_branch %s" % name)
    a.label(name + "_ok")

def tagcheck(a, regs, tag="s[40:41]"):
    a("v_cmp_ne_u64 vcc, %s, v[%d:%d]" % (tag, regs[0] + 2, regs[0] + 3))
    for r in regs[1:]:
        a("v_cmp_ne_u64 s[60:61], %s, v[%d:%d]" % (tag, r + 2, r + 3))
        a("s_or_b64 vcc, vcc, s[60:61]")

def gen(diag=False, W=16, forceslow=False, onlyld=False, kvmode=1, W0=24, P=None):
    P = P or {}
    global OWNTAG
    OWNTAG = P.get("owntag", 0)
    if OWNTAG: P["epf"] = 1
    def opt(k, d): return P.get(k, d)
    a = Asm(diag)
    out = []
    out.append(HEADER.rstrip("\n"))
    out.append("; @launch grid=(256,1,1) block=(512,1,1) lds=%d" % LDS_BYTES)
    out.append('.amdgcn_target "amdgcn-amd-amdhsa--gfx950"')
    out.append(".set SPIN, 0x40000")
    out.append(".text")
    out.append(".globl %s_kernel" % NAME)
    out.append(".p2align 8")
    out.append(".type %s_kernel,@function" % NAME)
    out.append("%s_kernel:" % NAME)

    a("""
    s_cmp_ge_u32 s2, 256
    s_cbranch_scc1 L_end0
    s_load_dwordx16 s[16:31], s[0:1], 0
    s_load_dwordx8 s[32:39], s[0:1], 64
    v_lshrrev_b32 v1, 6, v0
    v_lshlrev_b32 v2, 3, v0
    v_mov_b32 v8, 0
    v_mov_b32 v9, 0
    v_readfirstlane_b32 s3, v1
    v_add_u32 v2, %d, v2
    v_and_b32 v0, 63, v0
    ds_write_b64 v2, v[8:9]
    s_and_b32 s4, s2, 7
    s_lshr_b32 s5, s2, 3
    v_and_b32 v4, 15, v0
    v_lshrrev_b32 v5, 4, v0
    v_mov_b32 v7, %d
    """ % (L_Z, L_FL))
    a.stamp()
    nst0 = a.nstamp
    a("""
    s_cmp_eq_u32 s3, 0
    s_cbranch_scc1 L_ld
    """)
    if onlyld:
        if opt("sw", 0):
            a("s_cmp_lg_u32 s3, 7")
            a("s_cbranch_scc1 L_end0")
            a("s_waitcnt lgkmcnt(0)")
            a("s_barrier")
            if opt("swd", 0): a("s_sleep %d" % opt("swd", 0))
            stouch(a, opt("sw", 0))
            a("s_waitcnt lgkmcnt(0)")
        if opt("tw", 0):
            a("s_cmp_lg_u32 s3, 7")
            a("s_cbranch_scc1 L_end0")
            a("s_waitcnt lgkmcnt(0)")
            srd(a, 56, 38, 0x20000000)
            touches(a, opt("tw", 0))
            a("s_barrier")
        a("s_branch L_end0")
    a("""
    s_cmp_eq_u32 s3, 1
    s_cbranch_scc1 L_qh
    s_mov_b32 s58, 0x20000000
    s_mov_b32 s59, 0x20000
    s_waitcnt lgkmcnt(0)
    s_load_dwordx2 s[40:41], s[38:39], 0
    s_mov_b32 s56, s38
    s_mov_b32 s57, s39
    s_getreg_b32 s44, hwreg(HW_REG_XCC_ID, 0, 4)
    s_barrier
    s_cmp_eq_u32 s3, 6
    s_cbranch_scc1 L_f
    s_cmp_eq_u32 s3, 7
    s_cbranch_scc1 L_o
    s_cmp_eq_u32 s3, 2
    s_cbranch_scc1 L_att
    s_mov_b64 exec, 0
    s_cmp_eq_u32 s3, 3
    s_cbranch_scc1 PAD_Q1
    s_cmp_eq_u32 s3, 4
    s_cbranch_scc1 PAD_Q2
    s_branch PAD_A1
    """)
    a.label("L_end0")
    a("s_endpgm")
    a.label("L_qh")
    a("""
    s_setprio 3
    v_lshlrev_b32 v2, 4, v0
    s_mov_b32 s50, 1024
    s_mov_b32 s51, 0x20000
    s_mov_b32 s58, 0x20000000
    s_mov_b32 s59, 0x20000
    s_waitcnt lgkmcnt(0)
    s_mov_b32 s48, s16
    s_mov_b32 s49, s17
    s_mov_b32 s56, s38
    s_mov_b32 s57, s39
    buffer_load_dwordx4 v[8:11], v2, s[48:51], 0 offen
    s_getreg_b32 s44, hwreg(HW_REG_XCC_ID, 0, 4)
    s_barrier
    s_branch L_q
    """)

    a.label("L_ld")
    a("s_setprio 2")
    a("""
    v_lshrrev_b32 v6, 3, v0
    v_bfe_u32 v3, v0, 4, 1
    v_lshlrev_b32 v3, 1, v3
    v_and_b32 v8, 7, v0
    v_xor_b32 v8, v8, v3
    v_lshlrev_b32 v8, 4, v8
    v_lshl_or_b32 v10, v6, 13, v8
    v_xor_b32 v21, 64, v10
    v_lshrrev_b32 v9, 5, v0
    s_lshr_b32 s6, s5, 3
    s_lshl_b32 s6, s6, 20
    s_lshl_b32 s7, s4, 10
    s_add_u32 s6, s6, s7
    s_and_b32 s7, s5, 7
    s_lshl_b32 s7, s7, 7
    s_add_u32 s6, s6, s7
    s_mov_b32 s46, 0x400000
    s_mov_b32 s47, 0x20000
    s_mov_b32 m0, %d
    s_movk_i32 s42, 1024
    s_movk_i32 s43, 4096
    s_mov_b32 s40, 0x20000
    s_mov_b32 s41, 0x10000
    """ % L_WQ)
    for b in range(4):
        a("v_add_u32 v2, %d, v5" % (4 * b))
        a("v_xor_b32 v2, v4, v2")
        a("v_lshlrev_b32 v2, 4, v2")
        a("v_lshl_or_b32 v%d, v5, 8, v2" % (12 + b))
    a("""
    s_lshl_b32 s8, s4, 24
    s_lshl_b32 s7, s5, %d
    s_add_u32 s8, s8, s7
    s_add_u32 s8, s8, 0xf00000
    s_mov_b32 s9, s8
    s_mov_b32 s50, 0x8000000
    s_mov_b32 s51, 0x20000
    s_waitcnt lgkmcnt(0)
    s_mov_b32 s44, s22
    s_mov_b32 s45, s23
    s_mov_b32 s48, s18
    s_mov_b32 s49, s19
    """ % ({0: 15, 1: 12}[kvmode]))
    a.stamp()

    def loader_setup2():
        a("v_mul_u32_u24 v11, %d, v6" % 3584)
        a("v_add_u32 v11, v11, v8")
        a("v_xor_b32 v22, 64, v11")
        for b in range(2):
            a("v_add_u32 v2, %d, v5" % (4 * b))
            a("v_lshlrev_b32 v2, 1, v2")
            a("v_xor_b32 v2, v4, v2")
            a("v_lshlrev_b32 v2, 4, v2")
            a("v_lshl_or_b32 v%d, v5, 8, v2" % (16 + b))
        a("v_and_b32 v3, 31, v0")
        for b in range(2):
            a("v_add_u32 v2, %d, v9" % (2 * b))
            a("v_lshlrev_b32 v2, 2, v2")
            a("v_xor_b32 v2, v3, v2")
            a("v_lshlrev_b32 v2, 4, v2")
            a("v_lshl_or_b32 v%d, v9, 10, v2" % (18 + b))
        a("v_lshlrev_b32 v2, 2, v5")
        a("v_xor_b32 v2, v4, v2")
        a("v_lshlrev_b32 v2, 4, v2")
        a("v_lshl_or_b32 v20, v5, 10, v2")
        srd(a, 52, 20, 0x8000000)
        a("s_bitcmp1_b32 s5, 2")
        a("s_cselect_b32 s60, s30, s28")
        a("s_cselect_b32 s61, s31, s29")
        a("s_mov_b32 s62, 0x%x" % (512 * 1792 * 2))
        a("s_mov_b32 s63, 0x20000")
        srd(a, 68, 24, 4096 * 512 * 2)
        srd(a, 72, 32, 1792 * 512 * 2)
        srd(a, 56, 38, 0x20000000)
        fcoords(a)
        a("""
        s_mul_i32 s10, s15, %d
        s_lshl_b32 s7, s14, 6
        s_and_b32 s7, s7, -128
        s_add_u32 s10, s10, s7
        s_movk_i32 s41, %d
        """ % (128 * 3584, 8 * 3584))
        a("""
        s_lshl_b32 s12, s4, 19
        s_lshr_b32 s7, s5, 1
        s_lshl_b32 s7, s7, 15
        s_add_u32 s12, s12, s7
        s_and_b32 s7, s5, 1
        s_lshl_b32 s7, s7, 9
        s_add_u32 s12, s12, s7
        """)
        a("""
        s_lshl_b32 s13, s14, 15
        s_lshl_b32 s7, s15, 8
        s_add_u32 s13, s13, s7
        """)

    def item(kind, i):
        def m0set(base, i): return "s_mov_b32 m0, %d" % base if i == 0 else "s_add_u32 m0, m0, s42"
        if kind == "wq":
            pre = [] if i == 0 else ["s_add_u32 m0, m0, s42", "s_add_u32 s6, s6, s41"]
            return pre + ["buffer_load_dwordx4 v%d, s[44:47], s6 offen nt lds" % (21 if i & 1 else 10)]
        if kind in ("K", "V"):
            base = L_K if kind == "K" else L_V
            sr = 8 if kind == "K" else 9
            pre = []
            if i % 4 == 0:
                pre = ["s_mov_b32 m0, %d" % (base + i * 1024) if i in (0, 16) else "s_add_u32 m0, m0, s43", ("s_add_u32 s%d, s%d, %s" % (sr, sr, "s43" if kvmode == 0 else "s40")) if i else "s_nop 0"]
                if opt("kvx", 0) and i:
                    u = i // 4
                    pre[1] = "s_xor_b32 s%d, s%d, 0x%x" % (sr, sr, (u * 0x21000) ^ ((u - 1) * 0x21000))
            vr = 12 + (i % 4) if kind == "K" else 16 + (i % 2)
            return pre + ["buffer_load_dwordx4 v%d, s[%d:%d], s%d offen offset:%d nt lds" % (vr, 48 if kind == "K" else 52, 51 if kind == "K" else 55, sr, (i % 4) * 1024)]
        if kind == "G":
            pre = [m0set(L_G, i), "s_add_u32 s10, s10, s41" if i else "s_nop 0"]
            return pre + ["buffer_load_dwordx4 v%d, s[60:63], s10 offen nt lds" % (22 if i & 1 else 11)]
        if kind == "wo":
            pre = [m0set(L_WO, i), "s_add_u32 s12, s12, 0x800" if i else "s_nop 0"]
            return pre + ["buffer_load_dwordx4 v%d, s[68:71], s12 offen nt lds" % (18 + (i % 2))]
        if kind == "wd":
            pre = [m0set(L_WD, i), "s_add_u32 s13, s13, s43" if i else "s_nop 0"]
            return pre + ["buffer_load_dwordx4 v20, s[72:75], s13 offen nt lds"]

    ORD = {0: "K V G wo wd", 1: "K G wd wo V", 2: "K G wo V wd", 3: "K G V wo wd", 4: "K G Va wo wd Vb", 5: "K G wd Va wo Vb", 6: "K Va G wd wo Vb", 7: "K G wo wd V"}[opt("ord", 0)].split()
    CNT = {"wq": 16, "K": 32, "V": 32, "G": 16, "wo": 16, "wd": 8}
    def expand(k):
        if k == "Va": return [("V", i) for i in range(16)]
        if k == "Vb": return [("V", i) for i in range(16, 32)]
        return [(k, i) for i in range(CNT[k])]
    seqfull = expand("wq")
    for k in ORD: seqfull += expand(k)
    PV = {it: n + 1 for n, it in enumerate(seqfull)}
    def mark(k, i):
        if k == "wq": return i in ((3, 7, 11, 15) if opt("q4", 0) else (7, 15))
        if k in ("K", "V"): return i % 8 == 7
        if k == "G": return i == 15 or (opt("g2", 0) and i == 7)
        return i == CNT[k] - 1
    TH_K0 = PV[("K", 7)]; TH_V3 = PV[("V", 23)]; TH_V = PV[("V", 31)]; TH_G = PV[("G", 15)]; TH_WO = PV[("wo", 15)]; TH_WD = PV[("wd", 7)]
    STAMPS = (16, PV[("K", 31)], TH_V, TH_G, TH_WO, TH_WD)
    def stream(full):
        seq = [it for it in seqfull if full or it[0] not in ("G", "wd")]
        prog = {}
        for n, (k, i) in enumerate(seq):
            if mark(k, i): prog[n + 1] = PV[(k, i)]
        return seq, prog

    WL = opt("WL", W)
    def win(n):
        if n >= 80: return WL
        if n < opt("wqn", 0): return max(opt("wqw", W), W0 - max(0, n - W0) * opt("shrink", 1))
        return max(W, W0 - max(0, n - W0) * opt("shrink", 1))
    seqF, progF = stream(True)
    seqS, progS = stream(False)
    NB = opt("nb", 6)
    if NB == 0: a("s_barrier")
    for i in range(16):
        for x in item("wq", i): a(x)
        if i == NB - 1: a("s_barrier")
    assert 16 <= W0 <= 48
    for n in range(16, W0):
        for x in item(*seqF[n]): a(x)
    a.stamp()
    loader_setup2()

    def publish(prog, cnt):
        a("v_mov_b32 v2, %d" % prog[cnt])
        a("ds_write_b32 v7, v2 offset:%d" % F_PROG)
        if prog[cnt] in STAMPS: a.stamp()
    def emit(seq, prog, n0, n1, done):
        for n in range(n0, n1):
            target = n - win(n) + 1
            for cnt in range(done + 1, target + 1):
                if cnt in prog and cnt < target:
                    a("s_waitcnt vmcnt(%d)" % (n - cnt))
                    publish(prog, cnt)
            if target > done:
                a("s_waitcnt vmcnt(%d)" % (n - target))
            for x in item(*seq[n]): a(x)
            if target > done and target in prog: publish(prog, target)
            done = max(done, target)
        return done
    def drain(seq, prog, done):
        N = len(seq)
        for cnt in range(done + 1, N + 1):
            if cnt in prog:
                a("s_waitcnt vmcnt(%d)" % (N - cnt))
                publish(prog, cnt)
    PZ = opt("pause", 0)
    def tail(seq, prog, done, np_, need):
        if not PZ:
            d2 = emit(seq, prog, 80, len(seq), done)
            drain(seq, prog, d2)
            return
        ahead = opt("pzah", 0)
        d2 = emit(seq, prog, 80, np_ + ahead, done)
        for cnt in range(d2 + 1, np_ + 1):
            if cnt in prog:
                a("s_waitcnt vmcnt(%d)" % (np_ + ahead - cnt))
                publish(prog, cnt)
        lab = a.newlabel("L_pz")
        a("s_mov_b32 s37, %d" % opt("pzmax", 24))
        a.label(lab)
        a("ds_read_b32 v3, v7 offset:%d" % F_PZ)
        a("s_waitcnt lgkmcnt(0)")
        a("v_cmp_gt_u32 vcc, %d, v3" % need)
        a("s_cbranch_vccz %s_ok" % lab)
        a("s_sub_u32 s37, s37, 1")
        a("s_cbranch_scc0 %s" % lab)
        a.label(lab + "_ok")
        for n in range(np_ + ahead, len(seq)):
            for x in item(*seq[n]): a(x)
        drain(seq, prog, np_)
    NC = 0
    while seqF[NC] == seqS[NC]: NC += 1
    done = emit(seqF, progF, W0, NC, 0)
    nst1 = a.nstamp
    a("s_cmp_lg_u32 s36, 0")
    a("s_cbranch_scc1 L_ld_full")
    drain(seqS, progS, emit(seqS, progS, NC, len(seqS), done))
    a.stamp_flush(28)
    a("s_endpgm")
    a.label("L_ld_full")
    a.nstamp = nst1
    drain(seqF, progF, emit(seqF, progF, NC, len(seqF), done))
    a.stamp_flush(28)
    a("s_endpgm")

    a.nstamp = nst0
    a.page()
    a.label("L_q")
    a("""
    v_add_u32 v12, %d, v2
    s_lshr_b32 s6, s5, 3
    s_lshl_b32 s6, s6, 8
    s_add_u32 s6, s6, %d
    v_lshlrev_b32 v13, 4, v5
    v_add_u32 v13, s6, v13
    """ % (L_XN, L_XN))
    traddr128(a, 120, L_WQ, 3, 6)
    a("""
    s_lshl_b32 s14, s4, 14
    s_lshl_b32 s15, s5, 9
    s_add_u32 s15, s15, s14
    s_add_u32 s15, s15, 0x%x
    v_lshrrev_b32 v3, 1, v4
    v_lshlrev_b32 v3, 7, v3
    v_lshl_or_b32 v3, v5, 5, v3
    v_and_b32 v6, 1, v0
    v_lshl_or_b32 v3, v6, 4, v3
    s_mov_b32 s8, 0xaaaaaaaa
    s_mov_b32 s9, 0xaaaaaaaa
    s_mov_b32 s10, 0xcccccccc
    s_mov_b32 s11, 0xcccccccc
    s_mov_b32 s12, 0xf0f0f0f0
    s_mov_b32 s13, 0xf0f0f0f0
    v_mov_b32 v149, 1
    """ % INB1)
    a("""
    s_mov_b32 s52, s34
    s_mov_b32 s53, s35
    s_mov_b32 s54, 1024
    s_mov_b32 s55, 0x20000
    """)
    PT = opt("pt", 0)
    if PT & 1:
        a("""
        s_mov_b32 exec_lo, 0x00ff00ff
        s_mov_b32 exec_hi, 0x00ff00ff
        buffer_load_dwordx4 v[160:163], v3, s[56:59], s15 offen sc1
        s_mov_b64 exec, -1
        s_waitcnt vmcnt(1)
        """)
    else:
        a("s_waitcnt vmcnt(0)")
    a.stamp()
    layernorm(a, 8, 80, 88, 96)
    a("ds_write_b128 v12, v[96:99]")
    a("ds_write_b32 v7, v149 offset:%d" % F_XN)
    a.pad("PAD_Q1", "L_att_x")
    for k in range(4):
        a("ds_read_b128 v[%d:%d], v13 offset:%d" % (100 + 4 * k, 103 + 4 * k, k * 64))
    a.stamp()
    for k in range(4 if opt("q4", 0) else 0):
        lds_wait_ge(a, 7, 80, F_PROG, 4 * (k + 1), sleep=0)
        for u in range(4):
            for h in range(2):
                r = 16 + k * 16 + (u * 2 + h) * 2
                a("ds_read_b64_tr_b16 v[%d:%d], v%d offset:%d" % (r, r + 1, 120 + u, k * 4096 + h * 512))
        if k == 3: a("ds_read_b96 v[150:152], v7 offset:%d" % F_TAG)
        for u in range(4):
            a("s_waitcnt lgkmcnt(%d)" % (6 - 2 * u + (k == 3)))
            r = 16 + k * 16 + u * 4
            c_ = "0" if k == 0 else "v[%d:%d]" % (132 + 4 * u, 135 + 4 * u)
            a("v_mfma_f32_16x16x32_bf16 v[%d:%d], v[%d:%d], v[%d:%d], %s" % (132 + 4 * u, 135 + 4 * u, r, r + 3, 100 + 4 * k, 103 + 4 * k, c_))
    for half in range(0 if opt("q4", 0) else 2):
        lds_wait_ge(a, 7, 80, F_PROG, 8 * (half + 1), sleep=0)
        for kk in range(2):
            k = half * 2 + kk
            for u in range(4):
                for h in range(2):
                    r = 16 + (kk * 8 + u * 2 + h) * 2 + half * 32
                    a("ds_read_b64_tr_b16 v[%d:%d], v%d offset:%d" % (r, r + 1, 120 + u, k * 4096 + h * 512))
        if half == 1: a("ds_read_b96 v[150:152], v7 offset:%d" % F_TAG)
        for kk in range(2):
            k = half * 2 + kk
            for u in range(4):
                if u % 2 == 0: a("s_waitcnt lgkmcnt(%d)" % (12 - 8 * kk - 2 * u + half))
                r = 16 + (kk * 8 + u * 2) * 2 + half * 32
                c_ = "0" if k == 0 else "v[%d:%d]" % (132 + 4 * u, 135 + 4 * u)
                a("v_mfma_f32_16x16x32_bf16 v[%d:%d], v[%d:%d], v[%d:%d], %s" % (132 + 4 * u, 135 + 4 * u, r, r + 3, 100 + 4 * k, 103 + 4 * k, c_))
    a.stamp()
    a("s_mov_b32 s64, SPIN")
    a.pad("PAD_Q2", "L_att_x")
    a.label("L_q_tw")
    a("""
    s_waitcnt lgkmcnt(0)
    v_cmp_eq_u32 vcc, 0, v152
    s_cbranch_vccz L_q_tok
    ds_read_b96 v[150:152], v7 offset:%d
    s_sub_u32 s64, s64, 1
    s_cbranch_scc1 L_end
    s_branch L_q_tw
    """ % F_TAG)
    a.label("L_q_tok")
    a("""
    v_or_b32 v158, s44, v150
    v_mov_b32 v159, v151
    v_readfirstlane_b32 s40, v150
    v_readfirstlane_b32 s41, v151
    """)
    for u in range(4):
        a("v_cndmask_b32_e64 v%d, v%d, v%d, s[8:9]" % (80 + 2 * u, 132 + 4 * u, 134 + 4 * u))
        a("v_cndmask_b32_e64 v%d, v%d, v%d, s[8:9]" % (81 + 2 * u, 133 + 4 * u, 135 + 4 * u))
    a("""
    v_cndmask_b32_e64 v80, v80, v82, s[10:11]
    v_cndmask_b32_e64 v81, v81, v83, s[10:11]
    v_cndmask_b32_e64 v84, v84, v86, s[10:11]
    v_cndmask_b32_e64 v85, v85, v87, s[10:11]
    s_mov_b32 exec_lo, 0x00ff00ff
    s_mov_b32 exec_hi, 0x00ff00ff
    v_cndmask_b32_e64 v156, v80, v84, s[12:13]
    v_cndmask_b32_e64 v157, v81, v85, s[12:13]
    %s
    ds_write_b32 v7, v149 offset:%d
    """ % ("s_nop 0" if forceslow else "buffer_store_dwordx4 v[156:159], v3, s[56:59], s15 offen", F_QPUB))
    a.stamp()
    a("s_setprio 0")
    a("s_mov_b32 s64, SPIN")
    a.label("L_q_w")
    a("""
    s_sleep 4
    ds_read_b64 v[80:81], v7 offset:%d
    s_sub_u32 s64, s64, 1
    s_cbranch_scc1 L_end
    s_waitcnt lgkmcnt(0)
    v_cmp_ne_u32 vcc, 0, v81
    s_cbranch_vccnz L_q_slow
    v_and_b32 v80, 7, v80
    v_cmp_ne_u32 vcc, 4, v80
    s_cbranch_vccnz L_q_w
    s_branch L_q_dd
    """ % F_Q)
    a.label("L_q_slow")
    a("""
    s_add_u32 s15, s15, 0x%x
    buffer_store_dwordx4 v[156:159], v3, s[56:59], s15 offen sc1
    """ % (INB1S - INB1))
    a.label("L_q_dd")
    a("s_mov_b64 exec, -1")
    a.stamp()
    a("s_lshr_b32 s6, s4, 2")
    a("s_lshl_b32 s6, s6, 3")
    a("s_add_u32 s6, s6, s5")
    a("s_cmp_ge_u32 s6, 32")
    a("s_cbranch_scc1 L_fin")
    if diag: a("s_branch L_q_done")
    a("s_endpgm")
    a.page()
    a.label("L_fin")
    if opt("skip", 0) & 32: a("s_endpgm")
    a("""
    s_setprio 1
    s_and_b32 s6, s4, 3
    s_lshl_b32 s6, s6, 3
    s_add_u32 s6, s6, s5
    s_sub_u32 s6, s6, 24
    s_lshl_b32 s6, s6, 1
    s_lshr_b32 s7, s3, 2
    s_add_u32 s6, s6, s7
    s_mov_b32 s65, s6
    s_lshl_b32 s12, s6, 13
    s_add_u32 s12, s12, 0x%x
    s_add_u32 s13, s12, 4096
    s_mul_i32 s14, s6, 3584
    s_add_u32 s14, s14, 0x%x
    s_lshl_b32 s15, s6, 4
    v_and_b32 v3, 3, v0
    v_lshlrev_b32 v3, 2, v3
    v_add_u32 v3, s15, v3
    s_waitcnt vmcnt(0)
    buffer_load_dword v6, v3, s[48:51], 0 offen
    """ % (INB3S, INB3D))
    for i, M in enumerate([[16 + 2 * k for k in range(12)], [42, 44, 46, 66, 68, 70, 72, 74, 94, 96, 98, 100]]):
        for m in M: a("s_mov_b64 s[%d:%d], -1" % (m, m + 1))
        a("s_mov_b32 s%d, 0" % (M[11] + 1))
        a("v_mov_b32 v%d, 0" % (16 + 48 * i + 44))
        a("v_mov_b32 v%d, 0" % (16 + 48 * i + 45))
    if diag:
        a("v_mov_b32 v180, 0")
        a("v_mov_b32 v181, 0")
        a("s_mov_b32 s63, 1")
    lds_wait_ge(a, 7, 160, F_OPUB, 1, sleep=2)
    a("s_setprio 3")
    a.stamp()
    NS = 2
    SK = opt("skip", 0)
    FM = [[16 + 2 * k for k in range(12)], [42, 44, 46, 66, 68, 70, 72, 74, 94, 96, 98, 100]]
    bases = [16 + 48 * i for i in range(NS)]
    def fissue(i):
        base = bases[i]
        for k in range(12):
            a("s_mov_b64 exec, s[%d:%d]" % (FM[i][k], FM[i][k] + 1))
            a("buffer_load_dwordx4 v[%d:%d], v2, s[56:59], s%d offen offset:%d sc1" % (base + 4 * k, base + 3 + 4 * k, 12 + k // 4, (k % 4) * 1024))
        a("s_mov_b64 exec, -1")
    def fcheck(i, lab):
        base = bases[i]
        for k in range(12):
            a("v_cmp_ne_u64 s[%d:%d], s[40:41], v[%d:%d]" % (FM[i][k], FM[i][k] + 1, base + 4 * k + 2, base + 4 * k + 3))
        a("s_mov_b32 s%d, 0" % (FM[i][11] + 1))
        for k in range(12):
            if (SK & 1 and k >= 8) or (SK & 2 and k < 8): a("s_mov_b64 s[%d:%d], 0" % (FM[i][k], FM[i][k] + 1))
        for k in range(12):
            a("s_or_b64 s[60:61], s[%d:%d], %s" % (FM[i][k], FM[i][k] + 1, "s[60:61]" if k else "0"))
        a.log(63, "s[60:61]", 180)
        a("s_cbranch_scc0 %s" % lab)
    a("s_mov_b32 s64, SPIN")
    if opt("fdel", 0): a("s_sleep %d" % opt("fdel", 0))
    for i in range(NS):
        fissue(i)
        if i < NS - 1: a("s_sleep %d" % opt("fstag", 8))
    a.label("L_f_poll3")
    for i in range(NS):
        a("s_waitcnt vmcnt(%d)" % (12 * (NS - 1)))
        fcheck(i, "L_fin_d%d" % i)
        fissue(i)
    a("s_sub_u32 s64, s64, 1")
    a("s_cbranch_scc1 L_end")
    a("s_branch L_f_poll3")
    for i, b in enumerate(bases):
        a.label("L_fin_d%d" % i)
        for e in range(2):
            a("v_add_f32 v%d, v%d, v%d" % (160 + e, b + e, b + 4 + e))
            a("v_add_f32 v%d, v%d, v%d" % (164 + e, b + 8 + e, b + 12 + e))
            a("v_add_f32 v%d, v%d, v%d" % (166 + e, b + 16 + e, b + 20 + e))
            a("v_add_f32 v%d, v%d, v%d" % (168 + e, b + 24 + e, b + 28 + e))
            a("v_add_f32 v%d, v%d, v%d" % (162 + e, b + 32 + e, b + 36 + e))
            a("v_add_f32 v%d, v%d, v%d" % (170 + e, b + 40 + e, b + 44 + e))
        if i < NS - 1: a("s_branch L_fin_dd")
    a.label("L_fin_dd")
    a.stamp()
    a("""
    v_add_f32 v160, v160, v164
    v_add_f32 v161, v161, v165
    v_add_f32 v166, v166, v168
    v_add_f32 v167, v167, v169
    v_add_f32 v162, v162, v170
    v_add_f32 v163, v163, v171
    v_add_f32 v160, v160, v166
    v_add_f32 v161, v161, v167
    """)
    for r in (4, 8):
        a.nop(1)
        for v in (162, 163, 160, 161):
            a("v_add_f32_dpp v%d, v%d, v%d row_ror:%d row_mask:0xf bank_mask:0xf" % (v, v, v, r))
    xreduce(a, "add", [160, 161, 162, 163], [164, 165, 166, 167])
    a("""
    v_cvt_pk_bf16_f32 v164, v160, v161
    v_cvt_pk_bf16_f32 v165, v162, v163
    v_lshlrev_b32 v160, 16, v164
    v_and_b32 v161, 0xffff0000, v164
    v_lshlrev_b32 v162, 16, v165
    v_and_b32 v163, 0xffff0000, v165
    v_mul_f32 v164, 0xbfb8aa3b, v162
    v_mul_f32 v165, 0xbfb8aa3b, v163
    v_exp_f32 v164, v164
    v_exp_f32 v165, v165
    s_nop 0
    v_add_f32 v164, 1.0, v164
    v_add_f32 v165, 1.0, v165
    v_rcp_f32 v166, v164
    v_rcp_f32 v167, v165
    s_nop 0
    v_mul_f32 v168, v162, v166
    v_mul_f32 v169, v163, v167
    v_fma_f32 v170, -v168, v164, v162
    v_fma_f32 v171, -v169, v165, v163
    v_fma_f32 v170, v170, v166, v168
    v_fma_f32 v171, v171, v167, v169
    v_cmp_class_f32 vcc, v170, 3
    v_cmp_class_f32 s[60:61], v171, 3
    s_nop 1
    v_cndmask_b32 v170, v170, v168, vcc
    v_cndmask_b32_e64 v171, v171, v169, s[60:61]
    v_cvt_pk_bf16_f32 v164, v170, v171
    v_lshlrev_b32 v170, 16, v164
    v_and_b32 v171, 0xffff0000, v164
    v_mul_f32 v170, v160, v170
    v_mul_f32 v171, v161, v171
    v_cvt_pk_bf16_f32 v164, v170, v171
    v_lshlrev_b32 v170, 16, v164
    v_and_b32 v171, 0xffff0000, v164
    v_lshlrev_b32 v164, 16, v6
    v_and_b32 v165, 0xffff0000, v6
    v_add_f32 v170, v164, v170
    v_add_f32 v171, v165, v171
    v_cvt_pk_bf16_f32 v164, v170, v171
    s_mov_b64 exec, 15
    buffer_store_dword v164, v3, s[52:55], 0 offen
    """)
    a.log_flush(180, 178, 2)
    a("""
    s_cmp_lg_u32 s65, 0
    s_cbranch_scc1 L_q_done
    s_mov_b64 exec, 1
    v_mov_b32 v166, s40
    v_mov_b32 v167, s41
    v_mov_b32 v168, 0
    buffer_store_dwordx2 v[166:167], v168, s[56:59], 0 offen
    """)
    a.label("L_q_done")
    a.stamp()
    a.stamp_flush(172)
    a("s_endpgm")

    a.nstamp = nst0
    a.page()
    a.label("L_att_x")
    a("s_mov_b64 exec, -1")
    a.label("L_att")
    a("s_sub_u32 s62, s3, 2")
    a("""
    s_lshl_b32 s6, s62, 13
    s_add_u32 s6, s6, %d
    v_lshlrev_b32 v2, 8, v4
    v_add_u32 v2, s6, v2
    """ % L_K)
    for kk in range(4):
        a("v_add_u32 v3, %d, v5" % (4 * kk))
        a("v_xor_b32 v3, v3, v4")
        a("v_lshl_add_u32 v%d, v3, 4, v2" % (8 + kk))
    a("""
    v_lshrrev_b32 v3, 2, v4
    v_lshlrev_b32 v6, 8, v3
    v_lshl_or_b32 v6, v5, 4, v6
    v_add_u32 v6, %d, v6
    v_lshl_add_u32 v2, v5, 2, v3
    v_lshlrev_b32 v2, 8, v2
    v_add_u32 v2, %d, v2
    v_and_b32 v12, 1, v0
    v_lshl_add_u32 v2, v12, 3, v2
    v_and_b32 v12, 1, v5
    v_lshl_add_u32 v12, v12, 2, v3
    v_lshlrev_b32 v12, 1, v12
    v_bfe_u32 v13, v0, 1, 1
    s_lshl_b32 s6, s62, 2
    v_add_u32 v13, s6, v13
    v_xor_b32 v12, v12, v13
    v_lshl_add_u32 v12, v12, 4, v2
    v_xor_b32 v13, 32, v12
    """ % (L_Q, L_V))
    a("""
    v_lshlrev_b32 v15, 4, v0
    v_add_u32 v15, %d, v15
    s_lshl_b32 s6, s62, 10
    v_add_u32 v14, s6, v15
    v_lshlrev_b32 v17, 4, v3
    v_add_u32 v17, %d, v17
    s_lshl_b32 s6, s62, 6
    v_add_u32 v16, s6, v17
    """ % (L_P, L_ST))
    a("""
    s_lshl_b32 s6, s4, 17
    s_lshl_b32 s7, s62, 13
    s_add_u32 s6, s6, s7
    s_lshl_b32 s7, s5, 8
    s_add_u32 s6, s6, s7
    s_add_u32 s12, s6, 0x%x
    v_lshlrev_b32 v18, 15, v3
    v_lshl_or_b32 v18, v5, 6, v18
    v_and_b32 v2, 3, v0
    v_lshl_or_b32 v18, v2, 4, v18
    s_lshl_b32 s6, s4, 11
    s_lshl_b32 s7, s5, 4
    s_add_u32 s6, s6, s7
    s_add_u32 s13, s6, 0x%x
    v_lshlrev_b32 v19, 9, v3
    s_mov_b32 s8, 0xaaaaaaaa
    s_mov_b32 s9, 0xaaaaaaaa
    s_mov_b32 s10, 0xcccccccc
    s_mov_b32 s11, 0xcccccccc
    s_mov_b32 s14, 0x%x
    s_mov_b32 s15, 0x%x
    s_lshl_b32 s63, s62, 3
    s_add_u32 s63, s63, %d
    """ % (INB2, INBS, SCALE, LOG2E, TH_K0))
    if PT & 2:
        a("buffer_load_dwordx4 v[196:199], v18, s[56:59], s12 offen sc1")
    a("s_cmp_lg_u32 s62, 0")
    a("s_cbranch_scc1 L_att_gt")
    if PT & 2:
        a("s_mov_b64 exec, 0x1111")
        a("buffer_load_dwordx4 v[200:203], v19, s[56:59], s13 offen sc1")
        a("s_mov_b64 exec, -1")
    make_tag(a)
    a("""
    v_mov_b32 v22, s40
    v_mov_b32 v23, s41
    v_mov_b32 v24, 1
    ds_write_b96 v7, v[22:24] offset:%d
    s_branch L_att_nt
    """ % F_TAG)
    a.label("L_att_gt")
    get_tag(a, 22)
    a.label("L_att_nt")
    a("""
    s_lshl_b32 s16, s4, 14
    s_lshl_b32 s6, s62, 10
    s_add_u32 s16, s16, s6
    s_add_u32 s16, s16, 0x%x
    s_add_u32 s17, s16, 0x1000
    s_add_u32 s18, s16, 0x2000
    s_add_u32 s19, s16, 0x3000
    v_lshlrev_b32 v21, 4, v0
    s_lshl_b32 s6, s62, 8
    s_add_u32 s6, s6, %d
    v_lshlrev_b32 v25, 2, v0
    v_add_u32 v25, s6, v25
    s_or_b32 s46, s40, s44
    s_mov_b32 s47, s41
    s_mov_b32 s65, 0
    """ % (INB1, L_Q))
    if opt("fz", 0):
        for r in range(212, 216): a("v_mov_b32 v%d, 0x3f803f80" % r)
    QM = [[20, 22, 24, 26], [28, 30, 32, 34]]
    QB = [128, 144]
    for M in QM:
        for m in M: a("s_mov_b64 s[%d:%d], -1" % (m, m + 1))
    def qissue(i, sa=16):
        for k in range(4):
            a("s_mov_b64 exec, s[%d:%d]" % (QM[i][k], QM[i][k] + 1))
            a("buffer_load_dwordx4 v[%d:%d], v21, s[56:59], s%d offen sc1" % (QB[i] + 4 * k, QB[i] + 3 + 4 * k, sa + k))
        a("s_mov_b64 exec, -1")
    def qcheck(i):
        for k in range(4):
            a("v_cmp_ne_u64 s[%d:%d], s[46:47], v[%d:%d]" % (QM[i][k], QM[i][k] + 1, QB[i] + 2 + 4 * k, QB[i] + 3 + 4 * k))
            if opt("skip", 0) & 8: a("s_mov_b64 s[%d:%d], 0" % (QM[i][k], QM[i][k] + 1))
        for k in range(4):
            a("s_or_b64 s[60:61], s[%d:%d], %s" % (QM[i][k], QM[i][k] + 1, "s[60:61]" if k else "0"))
    def kfrags():
        for tau in range(2):
            for kk in range(4):
                r = 32 + (tau * 4 + kk) * 4
                a("ds_read_b128 v[%d:%d], v%d offset:%d" % (r, r + 3, 8 + kk, tau * 4096))
    if diag:
        a("v_mov_b32 v208, 0")
        a("v_mov_b32 v209, 0")
        a("s_mov_b32 s66, 1")
    a.stamp()
    lds_wait_ge(a, 7, 20, F_QPUB, 1, sleep=2)
    a("s_setprio 2")
    if opt("qdel", 0): a("s_sleep %d" % opt("qdel", 0))
    Q1 = opt("q1", 0)
    qissue(0)
    a("s_mov_b32 s64, %d" % opt("qthr", 16))
    if not Q1:
        a("s_sleep %d" % opt("qstag", 10))
        qissue(1)
    a.label("L_q_poll")
    a("""
    s_cmp_lg_u32 s65, 0
    s_cbranch_scc1 L_q_nk
    ds_read_b32 v20, v7 offset:%d
    s_waitcnt lgkmcnt(0)
    v_cmp_gt_u32 vcc, s63, v20
    s_cbranch_vccnz L_q_nk
    """ % F_PROG)
    kfrags()
    a("s_mov_b32 s65, 1")
    a.label("L_q_nk")
    for i in range(1 if Q1 else 2):
        a("s_waitcnt vmcnt(%d)" % (0 if Q1 else 4))
        qcheck(i)
        a.log(66, "s[60:61]", 208, 67)
        a("s_cbranch_scc0 L_q_d%d" % i)
        qissue(i)
    a("s_sub_u32 s64, s64, 1")
    a("s_cbranch_scc0 L_q_poll")
    a("s_branch L_a_slow")
    for i in (1, 0):
        a.label("L_q_d%d" % i)
        b = QB[i]
        a("v_add_f32 v26, v%d, v%d" % (b, b + 4))
        a("v_add_f32 v27, v%d, v%d" % (b + 1, b + 5))
        a("v_add_f32 v28, v%d, v%d" % (b + 8, b + 12))
        a("v_add_f32 v29, v%d, v%d" % (b + 9, b + 13))
        if i == 1: a("s_branch L_q_d")
    a.label("L_q_d")
    a("""
    v_add_f32 v26, v26, v28
    v_add_f32 v27, v27, v29
    v_cvt_pk_bf16_f32 v26, v26, v27
    ds_write_b32 v25, v26
    s_mov_b64 exec, 1
    ds_add_u32 v7, v24 offset:%d
    s_mov_b64 exec, -1
    """ % F_Q)
    a.stamp()
    a("s_cmp_lg_u32 s65, 0")
    a("s_cbranch_scc1 L_att_kok")
    a("s_mov_b32 s64, SPIN")
    a.label("L_att_kw")
    a("""
    ds_read_b32 v20, v7 offset:%d
    s_waitcnt lgkmcnt(0)
    v_cmp_gt_u32 vcc, s63, v20
    s_cbranch_vccz L_att_kgo
    s_sleep 1
    s_sub_u32 s64, s64, 1
    s_cbranch_scc1 L_end
    s_branch L_att_kw
    """ % F_PROG)
    a.label("L_att_kgo")
    kfrags()
    a.label("L_att_kok")
    a("s_mov_b32 s64, SPIN")
    VP = opt("vp", 0)
    def vread(chi):
        for t in range(2):
            for h in range(2):
                r = 96 + chi * 8 + t * 4 + h * 2
                a("ds_read_b64_tr_b16 v[%d:%d], v%d offset:%d" % (r, r + 1, 12 + t, chi * 8192 + h * 4096))
    a.label("L_att_qw")
    if VP:
        a("ds_read_b96 v[28:30], v7 offset:%d" % F_PROG)
    else:
        a("ds_read_b32 v20, v7 offset:%d" % F_Q)
    for kk in range(4):
        a("ds_read_b128 v[%d:%d], v6 offset:%d" % (64 + 4 * kk, 67 + 4 * kk, kk * 64))
    a("""
    s_waitcnt lgkmcnt(0)
    v_and_b32 v26, 7, v%d
    v_cmp_ne_u32 vcc, 4, v26
    s_cbranch_vccz L_att_qok
    s_sub_u32 s64, s64, 1
    s_cbranch_scc1 L_end
    s_branch L_att_qw
    """ % (30 if VP else 20))
    a.label("L_att_qok")
    if opt("skip", 0) & 256: a("s_endpgm")
    a.stamp()
    a("s_setprio 3")
    a("v_readfirstlane_b32 s45, v%d" % (30 if VP else 20))
    if VP: a("v_cmp_gt_u32 vcc, 0x%x, v28" % TH_V)
    for kk in range(4):
        for tau in range(2):
            r = 32 + (tau * 4 + kk) * 4
            c_ = "0" if kk == 0 else "v[%d:%d]" % (80 + 4 * tau, 83 + 4 * tau)
            a("v_mfma_f32_16x16x32_bf16 v[%d:%d], v[%d:%d], v[%d:%d], %s" % (80 + 4 * tau, 83 + 4 * tau, r, r + 3, 64 + 4 * kk, 67 + 4 * kk, c_))
    if VP:
        a("s_cbranch_vccnz L_att_nv1")
        for chi in range(4): vread(chi)
        a("s_mov_b32 s65, 2")
        a.label("L_att_nv1")
    a.nop(8)
    if opt("cv", 0):
        for i in range(8): a("v_cvt_pk_bf16_f32 v%d, 0, v%d" % (80 + i, 80 + i))
        for i in range(8): a("v_mul_f32 v%d, s14, v%d" % (80 + i, 80 + i))
        for i in range(8): a("v_cvt_pk_bf16_f32 v%d, 0, v%d" % (80 + i, 80 + i))
    else:
      for rnd in range(2):
        for i in range(4):
            a("v_cvt_pk_bf16_f32 v%d, v%d, v%d" % (88 + i, 80 + 2 * i, 81 + 2 * i))
        for i in range(4):
            a("v_lshlrev_b32 v%d, 16, v%d" % (80 + 2 * i, 88 + i))
            a("v_and_b32 v%d, 0xffff0000, v%d" % (81 + 2 * i, 88 + i))
        if rnd == 0:
            for i in range(8):
                a("v_mul_f32 v%d, s14, v%d" % (80 + i, 80 + i))
    FZ = opt("fz", 0)
    def stats_pub(sfx):
        a("""
        s_mov_b64 exec, 0x1111
        s_cmp_eq_u32 s45, 4
        s_cbranch_scc1 L_att_stf%s
        buffer_store_dwordx4 v[64:67], v19, s[56:59], s13 offen sc1
        s_branch L_att_st2%s
        """ % (sfx, sfx))
        a.label("L_att_stf" + sfx)
        a("buffer_store_dwordx4 v[64:67], v19, s[56:59], s13 offen")
        a.label("L_att_st2" + sfx)
        a("s_mov_b64 exec, -1")
        a("ds_write_b32 v7, v29 offset:%d" % F_APUB)
    def zmfma(chi, left=None):
        for t in range(2):
            if left is not None: a("s_waitcnt lgkmcnt(%d)" % (left + 2 - 2 * t))
            r = 96 + chi * 8 + 4 * t; d = 160 + 4 * t
            a("v_mfma_f32_16x16x32_bf16 v[%d:%d], v[%d:%d], v[%d:%d], %s" % (d, d + 3, r, r + 3, 48 + 4 * chi, 51 + 4 * chi, "v[%d:%d]" % (d, d + 3) if chi else "0"))
    if FZ:
        assert VP
        a("""
        v_max3_f32 v92, |v80|, |v81|, |v82|
        v_max3_f32 v93, |v83|, |v84|, |v85|
        v_max3_f32 v92, v92, |v86|, |v87|
        v_max_f32 v92, v92, v93
        v_cmp_nge_f32 vcc, 0x%x, v92
        v_mov_b32 v31, 1
        """ % opt("fzthr", 0x42000000))
        for i in range(8): a("v_mul_f32 v%d, s15, v%d" % (80 + i, 80 + i))
        a("s_cbranch_vccnz L_att_fb")
        a.label("L_att_z")
        for i in range(8): a("v_exp_f32 v%d, v%d" % (80 + i, 80 + i))
        a("v_mov_b32 v64, 0")
        for i in range(4): a("v_cvt_pk_bf16_f32 v%d, v%d, v%d" % (88 + i, 80 + 2 * i, 81 + 2 * i))
        a("""
        ds_write_b128 v14, v[88:91]
        s_mov_b64 exec, 1
        ds_add_u32 v7, v31 offset:%d
        s_mov_b64 exec, -1
        v_mov_b32 v66, v22
        v_mov_b32 v67, v23
        v_mov_b32 v74, v22
        v_mov_b32 v75, v23
        """ % F_P)
        a.stamp()
        a("s_mov_b32 s64, SPIN")
        a.label("L_att_pw")
        a("ds_read2_b32 v[28:29], v7 offset0:%d offset1:%d" % (F_PROG // 4, F_P // 4))
        for w in range(4):
            a("ds_read_b128 v[%d:%d], v15 offset:%d" % (48 + 4 * w, 51 + 4 * w, 1024 * w))
        a("""
        s_sub_u32 s64, s64, 1
        s_cbranch_scc1 L_end
        s_cmp_eq_u32 s65, 2
        s_waitcnt lgkmcnt(0)
        s_cbranch_scc1 L_att_nv2
        v_cmp_gt_u32 vcc, 0x%x, v28
        s_cbranch_vccnz L_att_nv2
        """ % TH_V)
        for chi in range(4): vread(chi)
        a("s_mov_b32 s65, 2")
        a.label("L_att_nv2")
        a("""
        v_and_b32 v30, 7, v29
        v_cmp_ne_u32 vcc, 4, v30
        s_cbranch_vccnz L_att_pw
        """)
        a.stamp()
        a("""
        v_cmp_ne_u32 vcc, 4, v29
        s_cbranch_vccnz L_att_gen
        s_cmp_lg_u32 s62, 0
        s_cbranch_scc1 L_att_nl0
        """)
        for chi in range(4):
            a("v_mfma_f32_16x16x32_bf16 v[68:71], v[212:215], v[%d:%d], %s" % (48 + 4 * chi, 51 + 4 * chi, "v[68:71]" if chi else "0"))
        a.label("L_att_nl0")
        a.pad("PAD_A1", "L_att_x")
        a("s_cmp_lg_u32 s65, 2")
        a("s_cbranch_scc1 L_att_nv3")
        a("s_waitcnt lgkmcnt(0)")
        for chi in range(4): zmfma(chi)
        a.label("L_att_nv3")
        a("""
        s_cmp_lg_u32 s62, 0
        s_cbranch_scc1 L_att_nost
        s_nop 7
        v_mov_b32 v65, v68
        """)
        stats_pub("")
        a.label("L_att_nost")
        a("s_cmp_eq_u32 s65, 2")
        a("s_cbranch_scc1 L_att_sel")
        lds_wait_ge(a, 7, 76, F_PROG, TH_V3, sleep=1)
        for chi in range(3): vread(chi)
        a("ds_read_b32 v76, v7 offset:%d" % F_PROG)
        for chi in range(3): zmfma(chi, 9 - 4 * chi)
        a("s_waitcnt lgkmcnt(0)")
        a("v_cmp_gt_u32 vcc, 0x%x, v76" % TH_V)
        a("s_cbranch_vccz L_att_pv3")
        lds_wait_ge(a, 7, 76, F_PROG, TH_V, sleep=0)
        a.label("L_att_pv3")
        vread(3)
        zmfma(3, 0)
        a.label("L_att_sel")
        a.stamp()
        a.nop(8)
        a.nop(2)
        a("""
        v_cndmask_b32_e64 v160, v160, v162, s[8:9]
        v_cndmask_b32_e64 v161, v161, v163, s[8:9]
        v_cndmask_b32_e64 v164, v164, v166, s[8:9]
        v_cndmask_b32_e64 v165, v165, v167, s[8:9]
        v_cndmask_b32_e64 v72, v160, v164, s[10:11]
        v_cndmask_b32_e64 v73, v161, v165, s[10:11]
        """)
        a.label("L_att_pub")
    else:
        a("""
        v_max3_f32 v92, v80, v81, v82
        v_max3_f32 v93, v83, v84, v85
        v_max3_f32 v92, v92, v86, v87
        v_max_f32 v92, v92, v93
        """)
        xreduce(a, "max", [92], [93])
        a("v_mul_f32 v92, s15, v92")
        for i in range(8):
            a("v_fma_f32 v%d, v%d, s15, -v92" % (80 + i, 80 + i))
        for i in range(8):
            a("v_exp_f32 v%d, v%d" % (80 + i, 80 + i))
        a.nop(1)
        for i in range(4):
            a("v_cvt_pk_bf16_f32 v%d, v%d, v%d" % (88 + i, 80 + 2 * i, 81 + 2 * i))
        a("ds_write_b128 v14, v[88:91]")
        a("""
        v_add_f32 v93, v80, v81
        v_add_f32 v94, v82, v83
        v_add_f32 v95, v84, v85
        v_add_f32 v31, v86, v87
        v_add_f32 v93, v93, v94
        v_add_f32 v95, v95, v31
        v_add_f32 v93, v93, v95
        """)
        xreduce(a, "add", [93], [31])
        a("""
        v_mov_b32 v94, 1
        v_mov_b32 v95, 1
        s_mov_b64 exec, 0x1111
        ds_write_b128 v16, v[92:95]
        s_mov_b64 exec, -1
        """)
        a.stamp()
        if VP:
            a("""
            s_cmp_eq_u32 s65, 2
            s_cbranch_scc1 L_att_nv2
            ds_read_b32 v28, v7 offset:%d
            s_waitcnt lgkmcnt(0)
            v_cmp_gt_u32 vcc, 0x%x, v28
            s_cbranch_vccnz L_att_nv2
            """ % (F_PROG, TH_V))
            for chi in range(4): vread(chi)
            a("s_mov_b32 s65, 2")
            a.label("L_att_nv2")
        a("s_mov_b32 s64, SPIN")
        a.label("L_att_pw")
        a("s_sub_u32 s64, s64, 1")
        a("s_cbranch_scc1 L_end")
        for w in range(4):
            a("ds_read_b128 v[%d:%d], v17 offset:%d" % (32 + 4 * w, 35 + 4 * w, 64 * w))
        for w in range(4):
            a("ds_read_b128 v[%d:%d], v15 offset:%d" % (48 + 4 * w, 51 + 4 * w, 1024 * w))
        a("""
        s_waitcnt lgkmcnt(0)
        v_min_u32 v64, v34, v38
        v_min3_u32 v64, v64, v42, v46
        v_cmp_eq_u32 vcc, 0, v64
        s_cbranch_vccnz L_att_pw
        """)
        a.stamp()
        if VP:
            a("s_cmp_lg_u32 s65, 2")
            a("s_cbranch_scc1 L_att_nv3")
            for chi in range(4):
                for t in range(2):
                    r = 96 + chi * 8 + 4 * t; d = 160 + chi * 8 + 4 * t
                    a("v_mfma_f32_16x16x32_bf16 v[%d:%d], v[%d:%d], v[%d:%d], 0" % (d, d + 3, r, r + 3, 48 + 4 * chi, 51 + 4 * chi))
            a.label("L_att_nv3")
        a("""
        v_max3_f32 v64, v32, v36, v40
        v_max_f32 v64, v64, v44
        """)
        for w in range(4):
            a("v_sub_f32 v%d, v%d, v64" % (68 + w, 32 + 4 * w))
        for w in range(4):
            a("v_exp_f32 v%d, v%d" % (68 + w, 68 + w))
        a.nop(1)
        a("v_mul_f32 v65, v68, v33")
        for w in range(1, 4):
            a("v_fmac_f32 v65, v%d, v%d" % (68 + w, 33 + 4 * w))
        a("""
        v_mov_b32 v66, v22
        v_mov_b32 v67, v23
        v_mov_b32 v74, v22
        v_mov_b32 v75, v23
        s_cmp_lg_u32 s62, 0
        s_cbranch_scc1 L_att_nost
        s_mov_b64 exec, 0x1111
        s_cmp_eq_u32 s45, 4
        s_cbranch_scc1 L_att_stf
        buffer_store_dwordx4 v[64:67], v19, s[56:59], s13 offen sc1
        s_branch L_att_st2
        """)
        a.label("L_att_stf")
        a("buffer_store_dwordx4 v[64:67], v19, s[56:59], s13 offen")
        a.label("L_att_st2")
        a("s_mov_b64 exec, -1")
        a("ds_write_b32 v7, v34 offset:%d" % F_APUB)
        a.label("L_att_nost")
        a.pad("PAD_A1", "L_att_x")
        def vmfma(chi, left):
            for t in range(2):
                a("s_waitcnt lgkmcnt(%d)" % (left + 2 - 2 * t))
                r = 96 + chi * 8 + 4 * t; d = 160 + chi * 8 + 4 * t
                a("v_mfma_f32_16x16x32_bf16 v[%d:%d], v[%d:%d], v[%d:%d], 0" % (d, d + 3, r, r + 3, 48 + 4 * chi, 51 + 4 * chi))
        def vsel(chi):
            d = 160 + chi * 8
            a("""
            v_cndmask_b32_e64 v%d, v%d, v%d, s[8:9]
            v_cndmask_b32_e64 v%d, v%d, v%d, s[8:9]
            v_cndmask_b32_e64 v%d, v%d, v%d, s[8:9]
            v_cndmask_b32_e64 v%d, v%d, v%d, s[8:9]
            v_cndmask_b32_e64 v%d, v%d, v%d, s[10:11]
            v_cndmask_b32_e64 v%d, v%d, v%d, s[10:11]
            """ % (d, d, d + 2, d + 1, d + 1, d + 3, d + 4, d + 4, d + 6, d + 5, d + 5, d + 7, d, d, d + 4, d + 1, d + 1, d + 5))
            if chi == 0:
                a("v_mul_f32 v72, v68, v%d" % d)
                a("v_mul_f32 v73, v68, v%d" % (d + 1))
            else:
                a("v_fmac_f32 v72, v%d, v%d" % (68 + chi, d))
                a("v_fmac_f32 v73, v%d, v%d" % (68 + chi, d + 1))
        if VP:
            a("s_cmp_lg_u32 s65, 2")
            a("s_cbranch_scc1 L_att_nv4")
            a.stamp()
            a.nstamp -= 1
            for chi in range(3): vsel(chi)
            a("s_branch L_att_pv3")
            a.label("L_att_nv4")
        lds_wait_ge(a, 7, 76, F_PROG, TH_V3, sleep=1)
        for chi in range(3): vread(chi)
        a("ds_read_b32 v76, v7 offset:%d" % F_PROG)
        for chi in range(3): vmfma(chi, 9 - 4 * chi)
        a("s_waitcnt lgkmcnt(0)")
        a("v_cmp_gt_u32 vcc, 0x%x, v76" % TH_V)
        a("s_cbranch_vccnz L_att_pvs")
        a.stamp()
        vread(3)
        vsel(0)
        vsel(1)
        vmfma(3, 0)
        vsel(2)
        a("s_branch L_att_pv3")
        a.label("L_att_pvs")
        a.nstamp -= 1
        a.nop(4)
        for chi in range(3): vsel(chi)
        lds_wait_ge(a, 7, 76, F_PROG, TH_V, sleep=0)
        a.stamp()
        vread(3)
        vmfma(3, 0)
        a.nop(8)
        a.label("L_att_pv3")
        a.nop(2)
        vsel(3)
    a("""
    s_cmp_eq_u32 s45, 4
    s_cbranch_scc1 L_att_of
    buffer_store_dwordx4 v[72:75], v18, s[56:59], s12 offen sc1
    s_branch L_att_o2
    """)
    a.label("L_att_of")
    a("buffer_store_dwordx4 v[72:75], v18, s[56:59], s12 offen")
    a.label("L_att_o2")
    if PZ:
        a("v_mov_b32 v24, 1")
        a("s_mov_b64 exec, 1")
        a("ds_add_u32 v7, v24 offset:%d" % F_PZ)
        a("s_mov_b64 exec, -1")
    a.stamp()
    if diag:
        a("s_cmp_lg_u32 s62, 0")
        a("s_cbranch_scc1 L_att_nl")
        a("s_waitcnt vmcnt(0)")
        a.log_flush(208, 210, 0)
        a.label("L_att_nl")
    a.stamp_flush(28)
    a("s_endpgm")
    if FZ:
        a.label("L_att_fb")
        a("""
        v_max3_f32 v92, v80, v81, v82
        v_max3_f32 v93, v83, v84, v85
        v_max3_f32 v92, v92, v86, v87
        v_max_f32 v92, v92, v93
        """)
        xreduce(a, "max", [92], [93])
        for i in range(8): a("v_sub_f32 v%d, v%d, v92" % (80 + i, 80 + i))
        a("""
        s_mov_b64 exec, 0x1111
        ds_write_b32 v16, v92
        s_mov_b64 exec, -1
        v_mov_b32 v31, 0x101
        s_branch L_att_z
        """)
        a.label("L_att_gen")
        for w in range(4):
            a("ds_read_b32 v%d, v17 offset:%d" % (32 + 4 * w, 64 * w))
        for chi in range(4):
            a("v_mfma_f32_16x16x32_bf16 v[%d:%d], v[212:215], v[%d:%d], 0" % (192 + 4 * chi, 195 + 4 * chi, 48 + 4 * chi, 51 + 4 * chi))
        lds_wait_ge(a, 7, 76, F_PROG, TH_V, sleep=1)
        for chi in range(4): vread(chi)
        a("s_waitcnt lgkmcnt(0)")
        for chi in range(4):
            for t in range(2):
                r = 96 + chi * 8 + 4 * t; d = 160 + chi * 8 + 4 * t
                a("v_mfma_f32_16x16x32_bf16 v[%d:%d], v[%d:%d], v[%d:%d], 0" % (d, d + 3, r, r + 3, 48 + 4 * chi, 51 + 4 * chi))
        a("""
        v_max3_f32 v64, v32, v36, v40
        v_max_f32 v64, v64, v44
        """)
        for w in range(4): a("v_sub_f32 v%d, v%d, v64" % (68 + w, 32 + 4 * w))
        for w in range(4): a("v_exp_f32 v%d, v%d" % (68 + w, 68 + w))
        a.nop(1)
        a("v_mul_f32 v65, v68, v192")
        for w in range(1, 4): a("v_fmac_f32 v65, v%d, v%d" % (68 + w, 192 + 4 * w))
        a("s_cmp_lg_u32 s62, 0")
        a("s_cbranch_scc1 L_att_nostg")
        stats_pub("g")
        a.label("L_att_nostg")
        a.nop(8)
        for chi in range(4):
            d = 160 + chi * 8
            a("""
            v_cndmask_b32_e64 v%d, v%d, v%d, s[8:9]
            v_cndmask_b32_e64 v%d, v%d, v%d, s[8:9]
            v_cndmask_b32_e64 v%d, v%d, v%d, s[8:9]
            v_cndmask_b32_e64 v%d, v%d, v%d, s[8:9]
            v_cndmask_b32_e64 v%d, v%d, v%d, s[10:11]
            v_cndmask_b32_e64 v%d, v%d, v%d, s[10:11]
            """ % (d, d, d + 2, d + 1, d + 1, d + 3, d + 4, d + 4, d + 6, d + 5, d + 5, d + 7, d, d, d + 4, d + 1, d + 1, d + 5))
            if chi == 0:
                a("v_mul_f32 v72, v68, v%d" % d)
                a("v_mul_f32 v73, v68, v%d" % (d + 1))
            else:
                a("v_fmac_f32 v72, v%d, v%d" % (68 + chi, d))
                a("v_fmac_f32 v73, v%d, v%d" % (68 + chi, d + 1))
        a("s_branch L_att_pub")
    a.label("L_a_slow")
    a("""
    ds_write_b32 v7, v24 offset:%d
    v_mov_b32 v24, 0x101
    s_waitcnt vmcnt(0)
    s_mov_b32 s64, 0
    """ % F_SLOW)
    for m in QM[0]: a("s_mov_b64 s[%d:%d], -1" % (m, m + 1))
    a.label("L_a_spoll")
    a("""
    s_mov_b32 s6, 0
    s_bitcmp1_b32 s64, 0
    s_cselect_b32 s6, 0, 0x%x
    """ % (INB1S - INB1))
    for k in range(4): a("s_add_u32 s%d, s%d, s6" % (28 + k, 16 + k))
    qissue(0, 28)
    a("s_add_u32 s64, s64, 1")
    a("s_cmp_gt_u32 s64, SPIN")
    a("s_cbranch_scc1 L_end")
    a("s_waitcnt vmcnt(0)")
    for k in range(4):
        m = QM[0][k]
        a("v_xor_b32 v26, s40, v%d" % (QB[0] + 2 + 4 * k))
        a("v_cmp_lt_u32 s[%d:%d], 15, v26" % (m, m + 1))
        a("v_cmp_ne_u32 vcc, s41, v%d" % (QB[0] + 3 + 4 * k))
        a("s_or_b64 s[%d:%d], s[%d:%d], vcc" % (m, m + 1, m, m + 1))
        a("s_or_b64 s[60:61], s[%d:%d], %s" % (m, m + 1, "s[60:61]" if k else "0"))
    a("s_cbranch_scc1 L_a_spoll")
    a("s_branch L_q_d0")

    a.nstamp = nst0
    a.page()
    a.label("L_o")
    if opt("skip", 0) & 64: a("s_endpgm")
    if opt("tw", 0): touches(a, opt("tw", 0))
    if opt("sw", 0):
        if opt("swd", 0): a("s_sleep %d" % opt("swd", 0))
        stouch(a, opt("sw", 0))
    ST = opt("st", 0); SG = opt("sg", 64)
    if ST & 1:
        a("""
        s_lshl_b32 s6, s4, 14
        s_lshl_b32 s7, s5, 9
        s_add_u32 s6, s6, s7
        s_add_u32 s6, s6, 0x%x
        """ % INB1)
        for o in range(0, 512, SG): a("s_load_dword s70, s[56:57], s6 offset:%d" % o)
    if ST & 2:
        if opt("sdel", 0): a("s_sleep %d" % opt("sdel", 0))
        a("""
        s_lshl_b32 s6, s4, 17
        s_lshl_b32 s7, s5, 8
        s_add_u32 s6, s6, s7
        s_add_u32 s6, s6, 0x%x
        s_lshl_b32 s10, s4, 11
        s_lshl_b32 s7, s5, 4
        s_add_u32 s10, s10, s7
        s_add_u32 s10, s10, 0x%x
        """ % (INB2, INBS))
        for h in range(4): a("s_load_dword s70, s[56:57], s10 offset:%d" % (h * 512))
        for b in range(16):
            for o in range(0, 256, SG): a("s_load_dword s70, s[56:57], s6 offset:%d" % (b * 8192 + o))
    a("""
    s_lshl_b32 s10, s4, 11
    s_lshr_b32 s6, s5, 3
    s_lshl_b32 s6, s6, 9
    s_add_u32 s10, s10, s6
    s_add_u32 s10, s10, 0x%x
    v_lshlrev_b32 v8, 4, v5
    s_lshl_b32 s6, s4, 4
    s_lshr_b32 s7, s5, 1
    s_add_u32 s6, s6, s7
    s_lshl_b32 s11, s6, 13
    s_add_u32 s11, s11, 0x%x
    s_add_u32 s12, s11, 4096
    v_lshlrev_b32 v2, 4, v0
    v_bfe_u32 v3, v0, 1, 1
    v_lshlrev_b32 v9, 5, v3
    v_bfe_u32 v3, v0, 2, 2
    v_lshl_or_b32 v9, v3, 3, v9
    v_and_b32 v6, 1, v0
    v_lshl_or_b32 v9, v6, 2, v9
    v_add_u32 v9, %d, v9
    v_lshrrev_b32 v10, 1, v4
    v_lshlrev_b32 v10, 6, v10
    v_lshl_or_b32 v10, v5, 4, v10
    v_add_u32 v10, %d, v10
    v_lshl_add_u32 v6, v5, 3, v3
    v_lshlrev_b32 v6, 9, v6
    v_add_u32 v6, %d, v6
    v_and_b32 v11, 3, v0
    """ % (INBS, INB2, L_OW + 7 * 64, L_OW, L_WO))
    for aa in range(4):
        a("v_xor_b32 v16, %d, v3" % aa)
        a("v_lshl_or_b32 v16, v16, 2, v11")
        a("v_lshl_add_u32 v%d, v16, 4, v6" % (12 + aa))
    a("""
    s_lshl_b32 s6, s6, 6
    s_and_b32 s7, s5, 1
    s_lshl_b32 s7, s7, 18
    s_add_u32 s6, s6, s7
    s_add_u32 s14, s6, 0x%x
    s_add_u32 s15, s14, 0x20000
    v_lshl_add_u32 v6, v3, 2, v5
    v_lshlrev_b32 v6, 13, v6
    v_lshl_or_b32 v6, v11, 4, v6
    s_mov_b32 s8, 0xaaaaaaaa
    s_mov_b32 s9, 0xaaaaaaaa
    v_mov_b32 v11, 1
    """ % INB3S)
    a("""
    v_and_b32 v18, 31, v0
    v_lshlrev_b32 v8, 4, v18
    v_and_b32 v16, 3, v0
    v_lshlrev_b32 v16, 5, v16
    v_and_b32 v18, 28, v0
    v_add3_u32 v16, v16, v18, %d
    v_lshlrev_b32 v17, 5, v5
    v_add_u32 v17, v17, v19
    """ .replace("%d", "v19").replace("v_and_b32 v18, 31, v0", "v_mov_b32 v19, %d\n    v_and_b32 v18, 31, v0" % L_AL, 1))
    get_tag(a, 56)
    a.stamp()
    MA = [16 + 2 * k for k in range(8)]
    MB = [32, 34, 36, 38, 44, 46, 48, 50]
    MS = [52, 54]
    SV = [204, 208]
    for m in MA + MB + MS: a("s_mov_b64 s[%d:%d], -1" % (m, m + 1))
    if diag:
        a("v_mov_b32 v200, 0")
        a("v_mov_b32 v201, 0")
        a("s_mov_b32 s63, 1")
    a("s_mov_b32 s65, 0")
    a("s_mov_b32 s66, 0")
    def mcheck(base, M):
        for k in range(8):
            a("v_cmp_ne_u64 s[%d:%d], s[40:41], v[%d:%d]" % (M[k], M[k] + 1, base + 4 * k + 2, base + 4 * k + 3))
            if opt("skip", 0) & 4: a("s_mov_b64 s[%d:%d], 0" % (M[k], M[k] + 1))
        for k in range(8):
            a("s_or_b64 s[60:61], s[%d:%d], %s" % (M[k], M[k] + 1, "s[60:61]" if k else "0"))
    def oissue(i):
        base, M = (128, MA) if i == 0 else (160, MB)
        a("s_mov_b64 exec, s[%d:%d]" % (MS[i], MS[i] + 1))
        a("buffer_load_dwordx4 v[%d:%d], v8, s[56:59], s10 offen sc1" % (SV[i], SV[i] + 3))
        for k in range(8):
            a("s_mov_b64 exec, s[%d:%d]" % (M[k], M[k] + 1))
            a("buffer_load_dwordx4 v[%d:%d], v2, s[56:59], s%d offen offset:%d sc1" % (base + 4 * k, base + 3 + 4 * k, 11 + k // 4, (k % 4) * 1024))
        a("s_mov_b64 exec, -1")
    def stats(i):
        lab = "L_o_ns%d" % i
        v = SV[i]
        a("s_cmp_lg_u32 s66, 0")
        a("s_cbranch_scc1 %s" % lab)
        a("v_cmp_ne_u64 vcc, s[40:41], v[%d:%d]" % (v + 2, v + 3))
        a("s_mov_b64 s[%d:%d], vcc" % (MS[i], MS[i] + 1))
        a("s_cbranch_vccnz %s" % lab)
        a("v_mov_b32 v56, v%d" % v)
        allreduce(a, "max", 56, 57)
        a("v_sub_f32 v56, v%d, v56" % v)
        a("v_exp_f32 v56, v56")
        a("s_mov_b32 s66, 1")
        a("v_mul_f32 v57, v56, v%d" % (v + 1))
        a("ds_write_b32 v16, v56")
        a("ds_read_b128 v[48:51], v17")
        a("ds_read_b128 v[52:55], v17 offset:16")
        allreduce(a, "add", 57, 58)
        a("v_mul_f32 v57, 0.5, v57")
        a("v_rcp_f32 v58, v57")
        a("s_mov_b64 s[%d:%d], 0" % (MS[1 - i], MS[1 - i] + 1))
        a("s_waitcnt lgkmcnt(0)")
        a.label(lab)
    lds_wait_ge(a, 7, 59, F_APUB, 1, sleep=3)
    lds_wait_ge(a, 7, 59, F_PROG, opt('ogate', TH_V), sleep=1)
    a.stamp()
    a("s_setprio 3")
    if opt("odn", 0):
        a("""
        s_lshr_b32 s6, s4, 2
        s_lshl_b32 s6, s6, 3
        s_add_u32 s6, s6, s5
        s_cmp_lt_u32 s6, 32
        s_cbranch_scc1 L_o_nd
        s_sleep %d
        """ % opt("odn", 0))
        a.label("L_o_nd")
    if opt("odel", 0): a("s_sleep %d" % opt("odel", 0))
    O1 = opt("o1", 0)
    oissue(0)
    if not O1:
        a("s_sleep %d" % opt('ostag', 8))
        oissue(1)
    def wo_pre():
        for al in range(2):
            for t in range(8):
                for h in range(2):
                    r = 64 + ((al * 8 + t) * 2 + h) * 2
                    a("ds_read_b64_tr_b16 v[%d:%d], v%d offset:%d" % (r, r + 1, 12 + (t >> 1), al * 256 + (t & 1) * 8 + h * 2048))
    def opp(lab):
        a("s_cmp_lg_u32 s65, 0")
        a("s_cbranch_scc1 %s" % lab)
        a("ds_read_b32 v59, v7 offset:%d" % F_PROG)
        a("s_waitcnt lgkmcnt(0)")
        a("v_cmp_gt_u32 vcc, 0x%x, v59" % TH_WO)
        a("s_cbranch_vccnz %s" % lab)
        wo_pre()
        a("s_mov_b32 s65, 1")
        a.label(lab)
    a("s_mov_b32 s64, SPIN")
    a.label("L_o_poll")
    opp("L_o_np")
    for i in range(1 if O1 else 2):
        a("s_waitcnt vmcnt(%d)" % (0 if O1 else 9))
        stats(i)
        mcheck(128 + 32 * i, MA if i == 0 else MB)
        a("s_or_b64 s[60:61], s[%d:%d], s[60:61]" % (MS[i], MS[i] + 1))
        a.log(63, "s[60:61]", 200)
        a("s_cbranch_scc0 L_o_d%d" % i)
        oissue(i)
    a("s_sub_u32 s64, s64, 1")
    a("s_cbranch_scc1 L_end")
    a("s_branch L_o_poll")
    for nm, base in (("L_o_d0", 128), ("L_o_d1", 160)):
        a.label(nm)
        a("v_mul_f32 v60, v48, v%d" % base)
        a("v_mul_f32 v61, v48, v%d" % (base + 1))
        a("v_mul_f32 v62, v49, v%d" % (base + 4))
        a("v_mul_f32 v63, v49, v%d" % (base + 5))
        for k in range(2, 8):
            a("v_fmac_f32 v%d, v%d, v%d" % (60 + 2 * (k & 1), 48 + k, base + 4 * k))
            a("v_fmac_f32 v%d, v%d, v%d" % (61 + 2 * (k & 1), 48 + k, base + 4 * k + 1))
        if base == 128: a("s_branch L_o_dd")
    a.label("L_o_dd")
    a.stamp()
    a("v_add_f32 v60, v60, v62")
    a("v_add_f32 v61, v61, v63")
    xreduce(a, "add", [60, 61], [62, 63])
    for r in (60, 61):
        a("v_mul_f32 v62, v%d, v58" % r)
        a("v_fma_f32 v63, -v62, v57, v%d" % r)
        a("v_fma_f32 v%d, v63, v58, v62" % r)
    a("v_cvt_pk_bf16_f32 v60, v60, v61")
    a("ds_write_b32 v9, v60")
    for t in range(8):
        a("ds_read_b128 v[%d:%d], v10 offset:%d" % (16 + 4 * t, 19 + 4 * t, (7 - t) * 64))
    a("s_cmp_lg_u32 s65, 0")
    a("s_cbranch_scc1 L_o_have")
    lds_wait_ge(a, 7, 59, F_PROG, TH_WO, sleep=0)
    wo_pre()
    a.label("L_o_have")
    a("""
    v_mov_b32 v194, s40
    v_mov_b32 v195, s41
    v_mov_b32 v198, s40
    v_mov_b32 v199, s41
    s_waitcnt lgkmcnt(0)
    """)
    a.stamp()
    for t in range(8):
        for al in range(2):
            r = 64 + (al * 8 + t) * 4
            c_ = "0" if t == 0 else "v[%d:%d]" % (48 + 4 * al, 51 + 4 * al)
            a("v_mfma_f32_16x16x32_bf16 v[%d:%d], v[%d:%d], v[%d:%d], %s" % (48 + 4 * al, 51 + 4 * al, r, r + 3, 16 + 4 * t, 19 + 4 * t, c_))
    a.nop(7)
    a("""
    v_cndmask_b32_e64 v192, v48, v50, s[8:9]
    v_cndmask_b32_e64 v193, v49, v51, s[8:9]
    v_cndmask_b32_e64 v196, v52, v54, s[8:9]
    v_cndmask_b32_e64 v197, v53, v55, s[8:9]
    buffer_store_dwordx4 v[192:195], v6, s[56:59], s14 offen sc1
    buffer_store_dwordx4 v[196:199], v6, s[56:59], s15 offen sc1
    ds_write_b32 v7, v11 offset:%d
    """ % F_OPUB)
    a.stamp()
    a.log_flush(200, 202, 1)
    a.stamp_flush(28)
    a("s_endpgm")

    a.nstamp = nst0
    a.page()
    a.label("L_f")
    if opt("skip", 0) & 128: a("s_endpgm")
    fcoords(a)
    a("s_cbranch_scc1 L_f_go")
    srd(a, 48, 16, 1024)
    srd(a, 52, 34, 1024)
    a("v_lshlrev_b32 v2, 4, v0")
    get_tag(a, 42)
    a("s_branch L_fin")
    a.label("L_f_go")
    a("""
    s_lshl_b32 s6, s15, 8
    s_add_u32 s6, s6, %d
    v_lshlrev_b32 v13, 4, v5
    v_add_u32 v13, s6, v13
    """ % L_XN)
    traddr128(a, 52, L_G, 3, 6)
    a("""
    v_lshrrev_b32 v3, 2, v4
    v_lshl_add_u32 v2, v5, 3, v3
    """)
    a("""
    v_lshlrev_b32 v2, 8, v2
    v_add_u32 v2, %d, v2
    v_and_b32 v12, 3, v0
    """ % L_WD)
    for aa in range(4):
        a("v_xor_b32 v16, %d, v3" % aa)
        a("v_lshl_or_b32 v16, v16, 2, v12")
        a("v_lshl_add_u32 v%d, v16, 4, v2" % (8 + aa))
    a("""
    s_lshl_b32 s11, s14, 11
    s_add_u32 s11, s11, 0x%x
    s_and_b32 s6, s5, 7
    s_lshl_b32 s6, s6, 8
    s_lshr_b32 s10, s14, 1
    s_lshl_b32 s10, s10, 12
    s_add_u32 s10, s10, s6
    s_add_u32 s10, s10, 0x%x
    v_bfe_u32 v16, v0, 2, 1
    v_lshlrev_b32 v16, 11, v16
    v_lshl_or_b32 v16, v5, 6, v16
    v_lshl_or_b32 v16, v12, 4, v16
    v_lshlrev_b32 v2, 4, v0
    v_bfe_u32 v6, v0, 1, 1
    v_lshlrev_b32 v17, 5, v6
    v_lshl_or_b32 v17, v3, 3, v17
    v_and_b32 v6, 1, v0
    v_lshl_or_b32 v17, v6, 2, v17
    v_add_u32 v17, %d, v17
    v_lshrrev_b32 v18, 1, v4
    v_lshlrev_b32 v18, 6, v18
    v_lshl_or_b32 v18, v5, 4, v18
    v_add_u32 v18, %d, v18
    s_mul_i32 s12, s15, 57344
    s_lshl_b32 s6, s14, 6
    s_add_u32 s12, s12, s6
    s_add_u32 s12, s12, 0x%x
    v_lshl_add_u32 v19, v3, 2, v5
    v_mul_u32_u24 v19, 0xe00, v19
    v_lshl_or_b32 v19, v12, 4, v19
    s_mov_b32 s8, 0xaaaaaaaa
    s_mov_b32 s9, 0xaaaaaaaa
    v_bfe_u32 v6, v0, 1, 2
    """ % (INB4, INB4, L_HW + 7 * 64, L_HW, INB3D))
    if ST & 4:
        if opt("sdel", 0): a("s_sleep %d" % opt("sdel", 0))
        for b in range(2):
            for o in range(0, 256, SG): a("s_load_dword s70, s[56:57], s10 offset:%d" % (b * 2048 + o))
    if PT & 4:
        a("""
        s_mov_b32 exec_lo, 0x00ff00ff
        s_mov_b32 exec_hi, 0x00ff00ff
        buffer_load_dwordx4 v[196:199], v16, s[56:59], s10 offen sc1
        s_mov_b64 exec, -1
        """)
    get_tag(a, 42)
    if opt("pwg", 0):
        a("buffer_load_dwordx4 v[20:23], v2, s[56:59], s11 offen sc1")
        a("buffer_load_dwordx4 v[24:27], v2, s[56:59], s11 offen offset:1024 sc1")
        a("s_waitcnt vmcnt(0)")
    a.stamp()
    lds_wait_ge(a, 7, 20, F_XN, 1, sleep=4)
    for k in range(4):
        a("ds_read_b128 v[%d:%d], v13 offset:%d" % (20 + 4 * k, 23 + 4 * k, k * 64))
    a("v_mov_b32 v36, 0")
    a("s_waitcnt lgkmcnt(0)")
    for u in range(4):
        a("v_cmp_eq_u32 vcc, %d, v6" % u)
        a.nop(2)
        for k in range(4):
            for i in range(4):
                a("v_cndmask_b32 v%d, v36, v%d, vcc" % (128 + (u * 4 + k) * 4 + i, 20 + 4 * k + i))
    a("s_mov_b32 s64, SPIN")
    a.label("L_f_qw")
    a("""
    ds_read_b32 v20, v7 offset:%d
    s_waitcnt lgkmcnt(0)
    v_and_b32 v21, 7, v20
    v_cmp_ne_u32 vcc, 4, v21
    s_cbranch_vccz L_f_qok
    s_sleep 4
    s_sub_u32 s64, s64, 1
    s_cbranch_scc1 L_end
    s_branch L_f_qw
    """ % F_Q)
    a.label("L_f_qok")
    a("v_readfirstlane_b32 s45, v20")
    if opt("g2", 0):
        for half in range(2):
            lds_wait_ge(a, 7, 20, F_PROG, PV[("G", 7)] if half == 0 else TH_G, sleep=1 - half)
            if half: a.stamp()
            else: a("s_setprio 3")
            for u in range(4):
                for k in (2 * half, 2 * half + 1):
                    for h in range(2):
                        r = 64 + ((u * 4 + k) * 2 + h) * 2
                        a("ds_read_b64_tr_b16 v[%d:%d], v%d offset:%d" % (r, r + 1, 52 + u, k * 4096 + h * 512))
            for u in range(4):
                for k in (2 * half, 2 * half + 1):
                    a("s_waitcnt lgkmcnt(%d)" % (14 - 4 * u - 2 * (k & 1)))
                    n = u * 4 + k
                    c_ = "0" if n == 0 else "v[36:39]"
                    a("v_mfma_f32_16x16x32_bf16 v[36:39], v[%d:%d], v[%d:%d], %s" % (64 + n * 4, 67 + n * 4, 128 + n * 4, 131 + n * 4, c_))
    else:
        lds_wait_ge(a, 7, 20, F_PROG, TH_G, sleep=1)
        a.stamp()
        a("s_setprio 3")
        for u in range(4):
            for k in range(4):
                for h in range(2):
                    r = 64 + ((u * 4 + k) * 2 + h) * 2
                    a("ds_read_b64_tr_b16 v[%d:%d], v%d offset:%d" % (r, r + 1, 52 + u, k * 4096 + h * 512))
            if u >= 1:
                a("s_waitcnt lgkmcnt(8)")
                for k in range(4):
                    n = (u - 1) * 4 + k
                    c_ = "0" if n == 0 else "v[36:39]"
                    a("v_mfma_f32_16x16x32_bf16 v[36:39], v[%d:%d], v[%d:%d], %s" % (64 + n * 4, 67 + n * 4, 128 + n * 4, 131 + n * 4, c_))
        a("s_waitcnt lgkmcnt(0)")
        for k in range(4):
            n = 12 + k
            a("v_mfma_f32_16x16x32_bf16 v[36:39], v[%d:%d], v[%d:%d], v[36:39]" % (64 + n * 4, 67 + n * 4, 128 + n * 4, 131 + n * 4))
    a.nop(8)
    a("""
    v_cndmask_b32_e64 v40, v36, v38, s[8:9]
    v_cndmask_b32_e64 v41, v37, v39, s[8:9]
    s_mov_b32 exec_lo, 0x00ff00ff
    s_mov_b32 exec_hi, 0x00ff00ff
    s_cmp_eq_u32 s45, 4
    s_cbranch_scc1 L_f_pf
    buffer_store_dwordx4 v[40:43], v16, s[56:59], s10 offen sc1
    s_branch L_f_p2
    """)
    a.label("L_f_pf")
    a("buffer_store_dwordx4 v[40:43], v16, s[56:59], s10 offen")
    a.label("L_f_p2")
    if PZ:
        a("s_mov_b64 exec, 1")
        a("ds_add_u32 v7, v44 offset:%d" % F_PZ)
    a("s_mov_b64 exec, -1")
    a.stamp()
    a("s_mov_b32 s65, 0")
    def wd_pre():
        for t in range(8):
            for h in range(2):
                r = 64 + (t * 2 + h) * 2
                a("ds_read_b64_tr_b16 v[%d:%d], v%d offset:%d" % (r, r + 1, 8 + (t >> 1), (t & 1) * 8 + h * 1024))
    def gissue(base):
        a("buffer_load_dwordx4 v[%d:%d], v2, s[56:59], s11 offen sc1" % (base, base + 3))
        a("buffer_load_dwordx4 v[%d:%d], v2, s[56:59], s11 offen offset:1024 sc1" % (base + 4, base + 7))
    if opt("gdel", 0): a("s_sleep %d" % opt("gdel", 0))
    gissue(20)
    a("s_sleep %d" % opt("gstag", 4))
    gissue(28)
    a("s_mov_b32 s64, SPIN")
    a.label("L_f_poll")
    a("""
    s_cmp_lg_u32 s65, 0
    s_cbranch_scc1 L_f_np
    ds_read_b32 v44, v7 offset:%d
    s_waitcnt lgkmcnt(0)
    v_cmp_gt_u32 vcc, 0x%x, v44
    s_cbranch_vccnz L_f_np
    """ % (F_PROG, TH_WD))
    wd_pre()
    a("s_mov_b32 s65, 1")
    a.label("L_f_np")
    a("s_waitcnt vmcnt(2)")
    tagcheck(a, [20, 24])
    if opt("skip", 0) & 16: a("s_branch L_f_d0")
    a("s_cbranch_vccz L_f_d0")
    if opt("gsl", 0): a("s_sleep %d" % opt("gsl", 0))
    gissue(20)
    a("s_waitcnt vmcnt(2)")
    tagcheck(a, [28, 32])
    a("s_cbranch_vccz L_f_d1")
    if opt("gsl", 0): a("s_sleep %d" % opt("gsl", 0))
    gissue(28)
    a("s_sub_u32 s64, s64, 1")
    a("s_cbranch_scc1 L_end")
    a("s_branch L_f_poll")
    for nm, base in (("L_f_d0", 20), ("L_f_d1", 28)):
        a.label(nm)
        a("v_mov_b32 v44, v%d" % base)
        a("v_mov_b32 v45, v%d" % (base + 1))
        a("v_mov_b32 v46, v%d" % (base + 4))
        a("v_mov_b32 v47, v%d" % (base + 5))
        if base == 20: a("s_branch L_f_dd")
    a.label("L_f_dd")
    a.stamp()
    xreduce(a, "add", [44, 45, 46, 47], [48, 49, 50, 51])
    a("""
    s_mov_b32 s16, 0x3d372713
    s_mov_b32 s17, 0xc0135761
    v_cvt_pk_bf16_f32 v48, v44, v45
    v_cvt_pk_bf16_f32 v49, v46, v47
    v_lshlrev_b32 v44, 16, v48
    v_and_b32 v45, 0xffff0000, v48
    v_lshlrev_b32 v46, 16, v49
    v_and_b32 v47, 0xffff0000, v49
    v_mul_f32 v48, v44, v44
    v_mul_f32 v49, v45, v45
    v_mul_f32 v48, v48, v44
    v_mul_f32 v49, v49, v45
    v_fma_f32 v48, v48, s16, v44
    v_fma_f32 v49, v49, s16, v45
    v_mul_f32 v48, s17, v48
    v_mul_f32 v49, s17, v49
    v_exp_f32 v48, v48
    v_exp_f32 v49, v49
    s_nop 0
    v_add_f32 v48, 1.0, v48
    v_add_f32 v49, 1.0, v49
    v_rcp_f32 v48, v48
    v_rcp_f32 v49, v49
    s_nop 0
    v_mul_f32 v44, v44, v48
    v_mul_f32 v45, v45, v49
    v_cvt_pk_bf16_f32 v48, v44, v45
    v_lshlrev_b32 v44, 16, v48
    v_and_b32 v45, 0xffff0000, v48
    v_mul_f32 v44, v44, v46
    v_mul_f32 v45, v45, v47
    v_cvt_pk_bf16_f32 v48, v44, v45
    ds_write_b32 v17, v48
    """)
    for t in range(8):
        a("ds_read_b128 v[%d:%d], v18 offset:%d" % (128 + 4 * t, 131 + 4 * t, (7 - t) * 64))
    a("s_cmp_lg_u32 s65, 0")
    a("s_cbranch_scc1 L_f_have")
    lds_wait_ge(a, 7, 44, F_PROG, TH_WD, sleep=1 if opt("ord", 0) else 0)
    wd_pre()
    a.label("L_f_have")
    a("s_waitcnt lgkmcnt(0)")
    a.stamp()
    for t in range(8):
        c_ = "0" if t == 0 else "v[36:39]"
        a("v_mfma_f32_16x16x32_bf16 v[36:39], v[%d:%d], v[%d:%d], %s" % (64 + 4 * t, 67 + 4 * t, 128 + 4 * t, 131 + 4 * t, c_))
    a.nop(8)
    a("""
    v_cndmask_b32_e64 v40, v36, v38, s[8:9]
    v_cndmask_b32_e64 v41, v37, v39, s[8:9]
    buffer_store_dwordx4 v[40:43], v19, s[56:59], s12 offen sc1
    """)
    a.stamp()
    a.stamp_flush(28)
    a.label("L_end")
    a("s_endpgm")

    out += a.l
    out.append('''.section .rodata,"a"
.p2align 6
.amdhsa_kernel %s_kernel
  .amdhsa_next_free_vgpr 216
  .amdhsa_next_free_sgpr 102
  .amdhsa_accum_offset 216
  .amdhsa_group_segment_fixed_size 0
  .amdhsa_kernarg_size 96
  .amdhsa_user_sgpr_count 2
  .amdhsa_user_sgpr_kernarg_segment_ptr 1
  .amdhsa_system_sgpr_workgroup_id_x 1
  .amdhsa_float_denorm_mode_32 3
.end_amdhsa_kernel''' % NAME)
    return "\n".join(out) + "\n"

if __name__ == "__main__":
    ap = argparse.ArgumentParser()
    ap.add_argument("-o", default="cdna_kernels/%s.s" % NAME)
    ap.add_argument("--diag", action="store_true")
    ap.add_argument("--slow", action="store_true")
    ap.add_argument("-W", type=int, default=16)
    ap.add_argument("--W0", type=int, default=24)
    ap.add_argument("-P", nargs="*", default=[])
    ap.add_argument("--onlyld", action="store_true")
    ap.add_argument("--kv", type=int, default=1)
    args = ap.parse_args()
    open(args.o, "w").write(gen(diag=args.diag, W=args.W, forceslow=args.slow, onlyld=args.onlyld, kvmode=args.kv, W0=args.W0, P={x.split('=')[0]: int(x.split('=')[1]) for x in args.P}))
    print("wrote", args.o)
```

```python
import sys, argparse

NAME = "recurrent_scan__sliding_block_cached__glu_gated_geglu__decode"
HEADER = open("cdna_kernels/%s.s.ref" % NAME).read().split("; Override launch")[0]

INBS = 0x1000
INB4 = 0x5000
INB1 = 0x200000
INB1S = 0x220000
INB3D = 0x41000
INB3S = 0x80000
INB2 = 0x100000
DIAG = 0x1000000
L_WQ = 0
L_K = 16384
L_V = 49152
L_G = 81920
L_U = 90112
L_WO = 98304
L_WD = 114688
L_M = 122880
L_XN = L_M
L_Q = L_M + 1024
L_P = L_M + 2048
L_Z = L_M + 6144
L_OW = L_Z
L_HW = L_Z + 1024
L_ST = L_Z + 2048
L_FL = L_Z + 2304
L_AL = L_Z + 2560
F_PROG = 0
F_XN = 4
F_Q = 8
F_SLOW = 12
F_TAG = 16
F_TAGV = 24
F_APUB = 28
F_OPUB = 32
F_QPUB = 36
F_PZ = 40
F_P = 44
LDS_BYTES = L_Z + 4096

LOG2E = 0x3fb8aa3b
SCALE = 0x3db504f3
ST0 = 76
OGATE = 72
OSTAG = 4

class Asm:
    def __init__(self, diag=False):
        self.l = []; self.diag = diag; self.nstamp = 0; self.uid = 0
    def __call__(self, s):
        for x in s.strip().split("\n"):
            x = x.strip()
            if x: self.l.append("    " + x)
    def label(self, n): self.l.append(n + ":")
    def nop(self, n=1): self("s_nop %d" % (n - 1))
    def comment(self, s): self.l.append("    ; " + s)
    def page(self): self.l.append(".p2align 12")
    def pad(self, name, target):
        self.label(name); self("s_cbranch_execz %s" % target)
    def newlabel(self, p):
        self.uid += 1; return "%s_%d" % (p, self.uid)
    def stamp(self):
        if not self.diag: return
        i = self.nstamp; assert i < 13, "too many stamps"
        self("s_memrealtime s[%d:%d]" % (ST0 + 2 * i, ST0 + 1 + 2 * i))
        self.nstamp += 1
    def log(self, sidx, smask, vlog, tmp=62):
        if not self.diag: return
        self("s_memrealtime s[6:7]")
        self("s_bcnt1_i32_b64 s%d, %s" % (tmp, smask))
        self("s_min_u32 m0, s%d, 63" % sidx)
        self("s_waitcnt lgkmcnt(0)")
        self("v_writelane_b32 v%d, s6, m0" % vlog)
        self("v_writelane_b32 v%d, s%d, m0" % (vlog + 1, tmp))
        self("s_add_u32 s%d, s%d, 1" % (sidx, sidx))
        self("s_cmp_lg_u64 %s, 0" % smask)
    def log_flush(self, vlog, vt, slot):
        if not self.diag: return
        self("s_mov_b64 exec, -1")
        self("s_lshl_b32 s64, s2, 12")
        self("s_add_u32 s64, s64, 0x%x" % (DIAG + 0x100000 + slot * 512))
        self("v_lshlrev_b32 v%d, 2, v0" % vt)
        self("buffer_store_dword v%d, v%d, s[56:59], s64 offen" % (vlog, vt))
        self("buffer_store_dword v%d, v%d, s[56:59], s64 offen offset:256" % (vlog + 1, vt))
    def dbg_flush(self, vtmp, ents):
        self("s_load_dwordx2 s[60:61], s[0:1], 80")
        self("s_mov_b32 s62, 256")
        self("s_mov_b32 s63, 0x20000")
        self("s_waitcnt lgkmcnt(0)")
        for op, i, slot in ents:
            if op == "min": self("v_not_b32 v%d, s%d" % (vtmp, ST0 + 2 * i))
            elif op == "max": self("v_mov_b32 v%d, s%d" % (vtmp, ST0 + 2 * i))
            elif op == "max1":
                self("s_cmp_eq_u32 s3, 1")
                self("s_cselect_b32 s65, s%d, 0" % (ST0 + 2 * i))
                self("v_mov_b32 v%d, s65" % vtmp)
            else:
                self("s_sub_u32 s65, s%d, s%d" % (ST0 + 2 * i, ST0))
                self("v_mov_b32 v%d, s65" % vtmp)
            self("buffer_atomic_%s v%d, v%d, s[60:63], 0 offen offset:%d sc1" % ("add" if op == "sum" else "umax", vtmp, vtmp + 2, slot * 4))
            self.nop(2)
    def stamp_flush(self, vtmp, dbg=None):
        if not self.diag: return
        self._sf(vtmp)
        if dbg and DBGD: self.dbg_flush(vtmp, dbg)
    def _sf(self, vtmp):
        n = self.nstamp
        self("s_waitcnt vmcnt(0) lgkmcnt(0)")
        self("s_mov_b64 exec, 1")
        self("s_lshl_b32 s64, s2, 10")
        self("s_lshl_b32 s65, s3, 7")
        self("s_add_u32 s64, s64, s65")
        self("s_add_u32 s64, s64, 0x%x" % DIAG)
        self("v_mov_b32 v%d, 0" % (vtmp + 2))
        for i in range(n):
            self("v_mov_b32 v%d, s%d" % (vtmp, ST0 + 2 * i))
            self("v_mov_b32 v%d, s%d" % (vtmp + 1, ST0 + 1 + 2 * i))
            self("buffer_store_dwordx2 v[%d:%d], v%d, s[56:59], s64 offen offset:%d" % (vtmp, vtmp + 1, vtmp + 2, i * 8))
            self.nop(2)
        self("v_mov_b32 v%d, %d" % (vtmp, n))
        self("buffer_store_dword v%d, v%d, s[56:59], s64 offen offset:120" % (vtmp, vtmp + 2))

def allreduce(a, op, v, t):
    for r in (1, 2, 4, 8):
        a.nop(2)
        a("v_%s_f32_dpp v%d, v%d, v%d row_ror:%d row_mask:0xf bank_mask:0xf" % (op, v, v, v, r))
    for sw in ("16", "32"):
        a("v_mov_b32 v%d, v%d" % (t, v))
        a.nop(2)
        a("v_permlane%s_swap_b32 v%d, v%d" % (sw, v, t))
        a("v_%s_f32 v%d, v%d, v%d" % (op, v, v, t))

def xreduce(a, op, regs, tmps):
    for sw in ("16", "32"):
        for r, t in zip(regs, tmps):
            a("v_mov_b32 v%d, v%d" % (t, r))
        a.nop(2 if len(regs) < 3 else 1)
        for r, t in zip(regs, tmps):
            a("v_permlane%s_swap_b32 v%d, v%d" % (sw, r, t))
        for r, t in zip(regs, tmps):
            a("v_%s_f32 v%d, v%d, v%d" % (op, r, r, t))

def bf16_round(a, dst, src, tmp):
    a("v_cvt_pk_bf16_f32 v%d, v%d, v%d" % (tmp, src, src))
    a("v_lshlrev_b32 v%d, 16, v%d" % (dst, tmp))

def layernorm(a, xr, f, t, xp):
    for i in range(4):
        a("v_lshlrev_b32 v%d, 16, v%d" % (f + 2 * i, xr + i))
        a("v_and_b32 v%d, 0xffff0000, v%d" % (f + 2 * i + 1, xr + i))
    a("v_add_f32 v%d, v%d, v%d" % (t, f, f + 1))
    a("v_add_f32 v%d, v%d, v%d" % (t + 1, f + 2, f + 3))
    a("v_add_f32 v%d, v%d, v%d" % (t + 2, f + 4, f + 5))
    a("v_add_f32 v%d, v%d, v%d" % (t + 3, f + 6, f + 7))
    a("v_add_f32 v%d, v%d, v%d" % (t, t, t + 1))
    a("v_add_f32 v%d, v%d, v%d" % (t + 2, t + 2, t + 3))
    a("v_add_f32 v%d, v%d, v%d" % (t, t, t + 2))
    allreduce(a, "add", t, t + 1)
    a("v_mul_f32 v%d, 0x3b000000, v%d" % (t, t))
    a("v_sub_f32 v%d, v%d, v%d" % (t + 2, f, t))
    a("v_mul_f32 v%d, v%d, v%d" % (t + 1, t + 2, t + 2))
    for i in range(1, 8):
        a("v_sub_f32 v%d, v%d, v%d" % (t + 2, f + i, t))
        a("v_fmac_f32 v%d, v%d, v%d" % (t + 1, t + 2, t + 2))
    allreduce(a, "add", t + 1, t + 2)
    a("v_mul_f32 v%d, 0x3b000000, v%d" % (t + 1, t + 1))
    a("v_cvt_pk_bf16_f32 v%d, v%d, v%d" % (t + 2, t, t + 1))
    a("v_lshlrev_b32 v%d, 16, v%d" % (t, t + 2))
    a("v_and_b32 v%d, 0xffff0000, v%d" % (t + 1, t + 2))
    a("v_add_f32 v%d, 0x3727c5ac, v%d" % (t + 1, t + 1))
    bf16_round(a, t + 1, t + 1, t + 2)
    a("v_sqrt_f32 v%d, v%d" % (t + 1, t + 1))
    a.nop(1)
    bf16_round(a, t + 1, t + 1, t + 2)
    a("v_rcp_f32 v%d, v%d" % (t + 2, t + 1))
    for i in range(8):
        a("v_sub_f32 v%d, v%d, v%d" % (f + i, f + i, t))
    for i in range(4):
        a("v_cvt_pk_bf16_f32 v%d, v%d, v%d" % (xp + i, f + 2 * i, f + 2 * i + 1))
    for i in range(4):
        a("v_lshlrev_b32 v%d, 16, v%d" % (f + 2 * i, xp + i))
        a("v_and_b32 v%d, 0xffff0000, v%d" % (f + 2 * i + 1, xp + i))
    for i in range(8):
        a("v_mul_f32 v%d, v%d, v%d" % (t + 3, f + i, t + 2))
        a("v_fma_f32 v%d, -v%d, v%d, v%d" % (t + 4, t + 3, t + 1, f + i))
        a("v_fma_f32 v%d, v%d, v%d, v%d" % (f + i, t + 4, t + 2, t + 3))
    for i in range(4):
        a("v_cvt_pk_bf16_f32 v%d, v%d, v%d" % (xp + i, f + 2 * i, f + 2 * i + 1))

def srd(a, d, base, nbytes):
    a("s_mov_b32 s%d, s%d" % (d, base))
    a("s_mov_b32 s%d, s%d" % (d + 1, base + 1))
    a("s_mov_b32 s%d, 0x%x" % (d + 2, nbytes))
    a("s_mov_b32 s%d, 0x20000" % (d + 3))

def fcoords(a):
    a("""
    s_and_b32 s14, s4, 3
    s_mul_i32 s14, s14, 14
    s_lshr_b32 s36, s4, 2
    s_lshl_b32 s7, s36, 3
    s_add_u32 s14, s14, s7
    s_lshr_b32 s7, s5, 2
    s_add_u32 s14, s14, s7
    s_and_b32 s15, s5, 3
    s_lshl_b32 s36, s36, 3
    s_add_u32 s36, s36, s5
    s_cmp_lt_u32 s36, 32
    s_cselect_b32 s36, 1, 0
    """)

def touches(a, tw, vz=212):
    a("s_mov_b64 exec, 1")
    a("v_mov_b32 v%d, 0" % vz)
    n = 1
    if tw & 1:
        srd(a, 68, 20, 0x8000000)
        a("""
        s_lshl_b32 s6, s4, 24
        s_lshl_b32 s7, s5, 12
        s_add_u32 s6, s6, s7
        s_add_u32 s6, s6, 0xf00000
        buffer_load_dword v%d, v%d, s[68:71], s6 offen
        """ % (vz + 1, vz))
    if tw & 2:
        srd(a, 72, 24, 4096 * 512 * 2)
        a("""
        s_lshl_b32 s6, s4, 19
        s_lshr_b32 s7, s5, 1
        s_lshl_b32 s7, s7, 15
        s_add_u32 s6, s6, s7
        buffer_load_dword v%d, v%d, s[72:75], s6 offen
        """ % (vz + 1, vz))
    if tw & 4:
        fcoords(a)
        a("s_bitcmp1_b32 s5, 2")
        a("s_cselect_b32 s68, s30, s28")
        a("s_cselect_b32 s69, s31, s29")
        a("s_mov_b32 s70, 0x%x" % (512 * 1792 * 2))
        a("s_mov_b32 s71, 0x20000")
        srd(a, 72, 32, 1792 * 512 * 2)
        a("""
        s_mul_i32 s6, s15, %d
        s_lshl_b32 s7, s14, 6
        s_and_b32 s7, s7, -128
        s_add_u32 s6, s6, s7
        buffer_load_dword v%d, v%d, s[68:71], s6 offen
        s_lshl_b32 s6, s14, 15
        s_lshl_b32 s7, s15, 8
        s_add_u32 s6, s6, s7
        buffer_load_dword v%d, v%d, s[72:75], s6 offen
        """ % (128 * 3584, vz + 1, vz, vz + 1, vz))
    if tw & 8:
        a("""
        s_mov_b32 s6, 0x30000
        buffer_load_dword v%d, v%d, s[56:59], s6 offen
        s_mov_b32 s6, 0x240000
        buffer_load_dword v%d, v%d, s[56:59], s6 offen
        """ % (vz + 1, vz, vz + 1, vz))
    a("s_mov_b64 exec, -1")

def stouch(a, m):
    if m & 1:
        a("""
        s_lshl_b32 s6, s4, 24
        s_lshl_b32 s7, s5, 12
        s_add_u32 s6, s6, s7
        s_add_u32 s6, s6, 0xf00000
        s_load_dword s70, s[20:21], s6
        """)
    if m & 2:
        a("""
        s_lshl_b32 s6, s4, 19
        s_lshr_b32 s7, s5, 1
        s_lshl_b32 s7, s7, 15
        s_add_u32 s6, s6, s7
        s_load_dword s70, s[24:25], s6
        """)
    if m & 4:
        a("""
        s_and_b32 s6, s5, 3
        s_mul_i32 s6, s6, %d
        s_load_dword s70, s[28:29], s6
        s_load_dword s70, s[30:31], s6
        s_load_dword s70, s[32:33], s6
        """ % (128 * 3584))
    if m & 8:
        a("""
        s_mov_b32 s6, 0x240000
        s_load_dword s70, s[38:39], s6
        s_load_dword s70, s[34:35], 0
        """)

def traddr128(a, d, base, t0, t1):
    a("""
    v_lshrrev_b32 v%d, 2, v4
    v_lshl_add_u32 v%d, v5, 3, v%d
    v_lshlrev_b32 v%d, 7, v%d
    v_bfe_u32 v%d, v0, 3, 2
    v_lshl_or_b32 v%d, v%d, 5, v%d
    v_and_b32 v%d, 3, v0
    v_lshl_or_b32 v%d, v%d, 3, v%d
    """ % (t0, t0, t0, t0, t0, t1, t0, t1, t0, t1, d, t1, t0))
    if base: a("v_add_u32 v%d, %d, v%d" % (d, base, d))
    for u in range(1, 4):
        a("v_xor_b32 v%d, %d, v%d" % (d + u, 32 * u, d))

def early_barrier(a):
    a("s_waitcnt lgkmcnt(0)")
    a("s_barrier")
    srd(a, 56, 38, 0x20000000)

def make_tag(a):
    a("""
    s_waitcnt lgkmcnt(0)
    s_add_u32 s40, s40, 16
    s_and_b32 s40, s40, -16
    s_add_u32 s41, s41, 0x9e3779b9
    """)

def get_tag(a, vt):
    if OWNTAG:
        make_tag(a)
        a("v_mov_b32 v%d, s40" % vt)
        a("v_mov_b32 v%d, s41" % (vt + 1))
        a("v_mov_b32 v%d, 1" % (vt + 2))
        return
    name = a.newlabel("L_gt")
    a("s_mov_b32 s64, SPIN")
    a.label(name)
    a("ds_read_b96 v[%d:%d], v7 offset:%d" % (vt, vt + 2, F_TAG))
    a("s_waitcnt lgkmcnt(0)")
    a("v_cmp_eq_u32 vcc, 0, v%d" % (vt + 2))
    a("s_cbranch_vccz %s_ok" % name)
    a("s_sleep 10")
    a("s_sub_u32 s64, s64, 1")
    a("s_cbranch_scc1 L_end")
    a("s_branch %s" % name)
    a.label(name + "_ok")
    a("v_readfirstlane_b32 s40, v%d" % vt)
    a("v_readfirstlane_b32 s41, v%d" % (vt + 1))
    a.nop(2)

def lds_wait_ge(a, vfl, vtmp, off, thr, sleep=1):
    name = a.newlabel("L_w")
    a("s_mov_b32 s64, SPIN")
    a.label(name)
    a("ds_read_b32 v%d, v%d offset:%d" % (vtmp, vfl, off))
    a("s_waitcnt lgkmcnt(0)")
    a("v_cmp_gt_u32 vcc, %d, v%d" % (thr, vtmp) if thr <= 64 else "v_cmp_gt_u32 vcc, 0x%x, v%d" % (thr, vtmp))
    a("s_cbranch_vccz %s_ok" % name)
    if sleep: a("s_sleep %d" % sleep)
    a("s_sub_u32 s64, s64, 1")
    a("s_cbranch_scc1 L_end")
    a("s_branch %s" % name)
    a.label(name + "_ok")

def tagcheck(a, regs, tag="s[40:41]"):
    a("v_cmp_ne_u64 vcc, %s, v[%d:%d]" % (tag, regs[0] + 2, regs[0] + 3))
    for r in regs[1:]:
        a("v_cmp_ne_u64 s[60:61], %s, v[%d:%d]" % (tag, r + 2, r + 3))
        a("s_or_b64 vcc, vcc, s[60:61]")

def gen(diag=False, W=16, forceslow=False, onlyld=False, kvmode=1, W0=24, P=None):
    P = P or {}
    global OWNTAG, DBGD
    DBGD = P.get("dbgd", 0)
    OWNTAG = P.get("owntag", 0)
    if OWNTAG: P["epf"] = 1
    def opt(k, d): return P.get(k, d)
    a = Asm(diag)
    out = []
    out.append(HEADER.rstrip("\n"))
    out.append("; @launch grid=(256,1,1) block=(512,1,1) lds=%d" % LDS_BYTES)
    out.append('.amdgcn_target "amdgcn-amd-amdhsa--gfx950"')
    out.append(".set SPIN, 0x40000")
    out.append(".text")
    out.append(".globl %s_kernel" % NAME)
    out.append(".p2align 8")
    out.append(".type %s_kernel,@function" % NAME)
    out.append("%s_kernel:" % NAME)

    a("""
    s_cmp_ge_u32 s2, 256
    s_cbranch_scc1 L_end0
    s_load_dwordx16 s[16:31], s[0:1], 0
    s_load_dwordx8 s[32:39], s[0:1], 64
    v_lshrrev_b32 v1, 6, v0
    v_lshlrev_b32 v2, 3, v0
    v_mov_b32 v8, 0
    v_mov_b32 v9, 0
    v_readfirstlane_b32 s3, v1
    v_add_u32 v2, %d, v2
    v_and_b32 v0, 63, v0
    ds_write_b64 v2, v[8:9]
    s_and_b32 s4, s2, 7
    s_lshr_b32 s5, s2, 3
    v_and_b32 v4, 15, v0
    v_lshrrev_b32 v5, 4, v0
    v_mov_b32 v7, %d
    """ % (L_Z, L_FL))
    a.stamp()
    nst0 = a.nstamp
    a("""
    s_cmp_eq_u32 s3, 0
    s_cbranch_scc1 L_ld
    """)
    if onlyld:
        if opt("sw", 0):
            a("s_cmp_lg_u32 s3, 7")
            a("s_cbranch_scc1 L_end0")
            a("s_waitcnt lgkmcnt(0)")
            a("s_barrier")
            if opt("swd", 0): a("s_sleep %d" % opt("swd", 0))
            stouch(a, opt("sw", 0))
            a("s_waitcnt lgkmcnt(0)")
        if opt("tw", 0):
            a("s_cmp_lg_u32 s3, 7")
            a("s_cbranch_scc1 L_end0")
            a("s_waitcnt lgkmcnt(0)")
            srd(a, 56, 38, 0x20000000)
            touches(a, opt("tw", 0))
            a("s_barrier")
        a("s_branch L_end0")
    a("""
    s_cmp_eq_u32 s3, 1
    s_cbranch_scc1 L_qh
    s_mov_b32 s58, 0x20000000
    s_mov_b32 s59, 0x20000
    s_waitcnt lgkmcnt(0)
    s_load_dwordx2 s[40:41], s[38:39], 0
    s_mov_b32 s56, s38
    s_mov_b32 s57, s39
    s_getreg_b32 s44, hwreg(HW_REG_XCC_ID, 0, 4)
    s_barrier
    s_cmp_eq_u32 s3, 6
    s_cbranch_scc1 L_f
    s_cmp_eq_u32 s3, 7
    s_cbranch_scc1 L_o
    s_cmp_eq_u32 s3, 2
    s_cbranch_scc1 L_att
    s_mov_b64 exec, 0
    s_cmp_eq_u32 s3, 3
    s_cbranch_scc1 PAD_Q1
    s_cmp_eq_u32 s3, 4
    s_cbranch_scc1 PAD_Q2
    s_branch PAD_A1
    """)
    a.label("L_end0")
    a("s_endpgm")
    a.label("L_qh")
    a("""
    s_setprio 3
    v_lshlrev_b32 v2, 4, v0
    s_mov_b32 s50, 1024
    s_mov_b32 s51, 0x20000
    s_mov_b32 s58, 0x20000000
    s_mov_b32 s59, 0x20000
    s_waitcnt lgkmcnt(0)
    s_mov_b32 s48, s16
    s_mov_b32 s49, s17
    s_mov_b32 s56, s38
    s_mov_b32 s57, s39
    buffer_load_dwordx4 v[8:11], v2, s[48:51], 0 offen
    s_getreg_b32 s44, hwreg(HW_REG_XCC_ID, 0, 4)
    s_barrier
    s_branch L_q
    """)

    a.label("L_ld")
    a("s_setprio 2")
    a("""
    v_lshrrev_b32 v6, 3, v0
    v_bfe_u32 v3, v0, 4, 1
    v_lshlrev_b32 v3, 1, v3
    v_and_b32 v8, 7, v0
    v_xor_b32 v8, v8, v3
    v_lshlrev_b32 v8, 4, v8
    v_lshl_or_b32 v10, v6, 13, v8
    v_xor_b32 v21, 64, v10
    v_lshrrev_b32 v9, 5, v0
    s_lshr_b32 s6, s5, 3
    s_lshl_b32 s6, s6, 20
    s_lshl_b32 s7, s4, 10
    s_add_u32 s6, s6, s7
    s_and_b32 s7, s5, 7
    s_lshl_b32 s7, s7, 7
    s_add_u32 s6, s6, s7
    s_mov_b32 s46, 0x400000
    s_mov_b32 s47, 0x20000
    s_mov_b32 m0, %d
    s_movk_i32 s42, 1024
    s_movk_i32 s43, 4096
    s_mov_b32 s40, 0x20000
    s_mov_b32 s41, 0x10000
    """ % L_WQ)
    for b in range(4):
        a("v_add_u32 v2, %d, v5" % (4 * b))
        a("v_xor_b32 v2, v4, v2")
        a("v_lshlrev_b32 v2, 4, v2")
        a("v_lshl_or_b32 v%d, v5, 8, v2" % (12 + b))
    a("""
    s_lshl_b32 s8, s4, 24
    s_lshl_b32 s7, s5, %d
    s_add_u32 s8, s8, s7
    s_add_u32 s8, s8, 0xf00000
    s_mov_b32 s9, s8
    s_mov_b32 s50, 0x8000000
    s_mov_b32 s51, 0x20000
    s_waitcnt lgkmcnt(0)
    s_mov_b32 s44, s22
    s_mov_b32 s45, s23
    s_mov_b32 s48, s18
    s_mov_b32 s49, s19
    """ % ({0: 15, 1: 12}[kvmode]))
    a.stamp()

    def loader_setup2():
        a("v_mul_u32_u24 v11, %d, v6" % 3584)
        a("v_add_u32 v11, v11, v8")
        a("v_xor_b32 v22, 64, v11")
        for b in range(2):
            a("v_add_u32 v2, %d, v5" % (4 * b))
            a("v_lshlrev_b32 v2, 1, v2")
            a("v_xor_b32 v2, v4, v2")
            a("v_lshlrev_b32 v2, 4, v2")
            a("v_lshl_or_b32 v%d, v5, 8, v2" % (16 + b))
        a("v_and_b32 v3, 31, v0")
        for b in range(2):
            a("v_add_u32 v2, %d, v9" % (2 * b))
            a("v_lshlrev_b32 v2, 2, v2")
            a("v_xor_b32 v2, v3, v2")
            a("v_lshlrev_b32 v2, 4, v2")
            a("v_lshl_or_b32 v%d, v9, 10, v2" % (18 + b))
        a("v_lshlrev_b32 v2, 2, v5")
        a("v_xor_b32 v2, v4, v2")
        a("v_lshlrev_b32 v2, 4, v2")
        a("v_lshl_or_b32 v20, v5, 10, v2")
        srd(a, 52, 20, 0x8000000)
        a("s_bitcmp1_b32 s5, 2")
        a("s_cselect_b32 s60, s30, s28")
        a("s_cselect_b32 s61, s31, s29")
        a("s_mov_b32 s62, 0x%x" % (512 * 1792 * 2))
        a("s_mov_b32 s63, 0x20000")
        srd(a, 68, 24, 4096 * 512 * 2)
        srd(a, 72, 32, 1792 * 512 * 2)
        srd(a, 56, 38, 0x20000000)
        fcoords(a)
        a("""
        s_mul_i32 s10, s15, %d
        s_lshl_b32 s7, s14, 6
        s_and_b32 s7, s7, -128
        s_add_u32 s10, s10, s7
        s_movk_i32 s41, %d
        """ % (128 * 3584, 8 * 3584))
        a("""
        s_lshl_b32 s12, s4, 19
        s_lshr_b32 s7, s5, 1
        s_lshl_b32 s7, s7, 15
        s_add_u32 s12, s12, s7
        s_and_b32 s7, s5, 1
        s_lshl_b32 s7, s7, 9
        s_add_u32 s12, s12, s7
        """)
        a("""
        s_lshl_b32 s13, s14, 15
        s_lshl_b32 s7, s15, 8
        s_add_u32 s13, s13, s7
        """)

    def item(kind, i):
        def m0set(base, i): return "s_mov_b32 m0, %d" % base if i == 0 else "s_add_u32 m0, m0, s42"
        if kind == "wq":
            pre = [] if i == 0 else ["s_add_u32 m0, m0, s42", "s_add_u32 s6, s6, s41"]
            return pre + ["buffer_load_dwordx4 v%d, s[44:47], s6 offen nt lds" % (21 if i & 1 else 10)]
        if kind in ("K", "V"):
            base = L_K if kind == "K" else L_V
            sr = 8 if kind == "K" else 9
            pre = []
            if i % 4 == 0:
                pre = ["s_mov_b32 m0, %d" % (base + i * 1024) if i in (0, 16) else "s_add_u32 m0, m0, s43", ("s_add_u32 s%d, s%d, %s" % (sr, sr, "s43" if kvmode == 0 else "s40")) if i else "s_nop 0"]
                if opt("kvx", 0) and i:
                    u = i // 4
                    pre[1] = "s_xor_b32 s%d, s%d, 0x%x" % (sr, sr, (u * 0x21000) ^ ((u - 1) * 0x21000))
            vr = 12 + (i % 4) if kind == "K" else 16 + (i % 2)
            return pre + ["buffer_load_dwordx4 v%d, s[%d:%d], s%d offen offset:%d nt lds" % (vr, 48 if kind == "K" else 52, 51 if kind == "K" else 55, sr, (i % 4) * 1024)]
        if kind == "G":
            pre = [m0set(L_G, i), "s_add_u32 s10, s10, s41" if i else "s_nop 0"]
            return pre + ["buffer_load_dwordx4 v%d, s[60:63], s10 offen nt lds" % (22 if i & 1 else 11)]
        if kind == "wo":
            pre = [m0set(L_WO, i), "s_add_u32 s12, s12, 0x800" if i else "s_nop 0"]
            return pre + ["buffer_load_dwordx4 v%d, s[68:71], s12 offen nt lds" % (18 + (i % 2))]
        if kind == "wd":
            pre = [m0set(L_WD, i), "s_add_u32 s13, s13, s43" if i else "s_nop 0"]
            return pre + ["buffer_load_dwordx4 v20, s[72:75], s13 offen nt lds"]

    ORD = {0: "K V G wo wd", 1: "K G wd wo V", 2: "K G wo V wd", 3: "K G V wo wd", 4: "K G Va wo wd Vb", 5: "K G wd Va wo Vb", 6: "K Va G wd wo Vb", 7: "K G wo wd V"}[opt("ord", 0)].split()
    CNT = {"wq": 16, "K": 32, "V": 32, "G": 16, "wo": 16, "wd": 8}
    def expand(k):
        if k == "Va": return [("V", i) for i in range(16)]
        if k == "Vb": return [("V", i) for i in range(16, 32)]
        return [(k, i) for i in range(CNT[k])]
    seqfull = expand("wq")
    for k in ORD: seqfull += expand(k)
    PV = {it: n + 1 for n, it in enumerate(seqfull)}
    def mark(k, i):
        if k == "wq": return i in ((3, 7, 11, 15) if opt("q4", 0) else (7, 15))
        if k in ("K", "V"): return i % 8 == 7
        if k == "G": return i == 15 or (opt("g2", 0) and i == 7)
        return i == CNT[k] - 1
    TH_K0 = PV[("K", 7)]; TH_V3 = PV[("V", 23)]; TH_V = PV[("V", 31)]; TH_G = PV[("G", 15)]; TH_WO = PV[("wo", 15)]; TH_WD = PV[("wd", 7)]
    STAMPS = (16, PV[("K", 31)], TH_V, TH_G, TH_WO, TH_WD)
    def stream(full):
        seq = [it for it in seqfull if full or it[0] not in ("G", "wd")]
        prog = {}
        for n, (k, i) in enumerate(seq):
            if mark(k, i): prog[n + 1] = PV[(k, i)]
        return seq, prog

    WL = opt("WL", W)
    def win(n):
        if n >= 80: return WL
        if n < opt("wqn", 0): return max(opt("wqw", W), W0 - max(0, n - W0) * opt("shrink", 1))
        return max(W, W0 - max(0, n - W0) * opt("shrink", 1))
    seqF, progF = stream(True)
    seqS, progS = stream(False)
    NB = opt("nb", 6)
    if NB == 0: a("s_barrier")
    for i in range(16):
        for x in item("wq", i): a(x)
        if i == NB - 1: a("s_barrier")
    assert 16 <= W0 <= 48
    for n in range(16, W0):
        for x in item(*seqF[n]): a(x)
    a.stamp()
    loader_setup2()

    def publish(prog, cnt):
        a("v_mov_b32 v2, %d" % prog[cnt])
        a("ds_write_b32 v7, v2 offset:%d" % F_PROG)
        if prog[cnt] in STAMPS: a.stamp()
    def emit(seq, prog, n0, n1, done):
        for n in range(n0, n1):
            target = n - win(n) + 1
            for cnt in range(done + 1, target + 1):
                if cnt in prog and cnt < target:
                    a("s_waitcnt vmcnt(%d)" % (n - cnt))
                    publish(prog, cnt)
            if target > done:
                a("s_waitcnt vmcnt(%d)" % (n - target))
            for x in item(*seq[n]): a(x)
            if target > done and target in prog: publish(prog, target)
            done = max(done, target)
        return done
    def drain(seq, prog, done):
        N = len(seq)
        for cnt in range(done + 1, N + 1):
            if cnt in prog:
                a("s_waitcnt vmcnt(%d)" % (N - cnt))
                publish(prog, cnt)
    PZ = opt("pause", 0)
    def tail(seq, prog, done, np_, need):
        if not PZ:
            d2 = emit(seq, prog, 80, len(seq), done)
            drain(seq, prog, d2)
            return
        ahead = opt("pzah", 0)
        d2 = emit(seq, prog, 80, np_ + ahead, done)
        for cnt in range(d2 + 1, np_ + 1):
            if cnt in prog:
                a("s_waitcnt vmcnt(%d)" % (np_ + ahead - cnt))
                publish(prog, cnt)
        lab = a.newlabel("L_pz")
        a("s_mov_b32 s37, %d" % opt("pzmax", 24))
        a.label(lab)
        a("ds_read_b32 v3, v7 offset:%d" % F_PZ)
        a("s_waitcnt lgkmcnt(0)")
        a("v_cmp_gt_u32 vcc, %d, v3" % need)
        a("s_cbranch_vccz %s_ok" % lab)
        a("s_sub_u32 s37, s37, 1")
        a("s_cbranch_scc0 %s" % lab)
        a.label(lab + "_ok")
        for n in range(np_ + ahead, len(seq)):
            for x in item(*seq[n]): a(x)
        drain(seq, prog, np_)
    NC = 0
    while seqF[NC] == seqS[NC]: NC += 1
    done = emit(seqF, progF, W0, NC, 0)
    nst1 = a.nstamp
    a("s_cmp_lg_u32 s36, 0")
    a("s_cbranch_scc1 L_ld_full")
    drain(seqS, progS, emit(seqS, progS, NC, len(seqS), done))
    a.stamp_flush(28)
    a("s_endpgm")
    a.label("L_ld_full")
    a.nstamp = nst1
    drain(seqF, progF, emit(seqF, progF, NC, len(seqF), done))
    a.stamp_flush(28, [("min", 0, 0), ("max", 0, 1)] + [("max", 3 + i, 2 + i) for i in range(6)] + [("sum", 3 + i, 8 + i) for i in range(6)])
    a("s_endpgm")

    a.nstamp = nst0
    a.page()
    a.label("L_q")
    a("""
    v_add_u32 v12, %d, v2
    s_lshr_b32 s6, s5, 3
    s_lshl_b32 s6, s6, 8
    s_add_u32 s6, s6, %d
    v_lshlrev_b32 v13, 4, v5
    v_add_u32 v13, s6, v13
    """ % (L_XN, L_XN))
    traddr128(a, 120, L_WQ, 3, 6)
    a("""
    s_lshl_b32 s14, s4, 14
    s_lshl_b32 s15, s5, 9
    s_add_u32 s15, s15, s14
    s_add_u32 s15, s15, 0x%x
    v_lshrrev_b32 v3, 1, v4
    v_lshlrev_b32 v3, 7, v3
    v_lshl_or_b32 v3, v5, 5, v3
    v_and_b32 v6, 1, v0
    v_lshl_or_b32 v3, v6, 4, v3
    s_mov_b32 s8, 0xaaaaaaaa
    s_mov_b32 s9, 0xaaaaaaaa
    s_mov_b32 s10, 0xcccccccc
    s_mov_b32 s11, 0xcccccccc
    s_mov_b32 s12, 0xf0f0f0f0
    s_mov_b32 s13, 0xf0f0f0f0
    v_mov_b32 v149, 1
    """ % INB1)
    a("""
    s_mov_b32 s52, s34
    s_mov_b32 s53, s35
    s_mov_b32 s54, 1024
    s_mov_b32 s55, 0x20000
    """)
    PT = opt("pt", 0)
    if PT & 1:
        a("""
        s_mov_b32 exec_lo, 0x00ff00ff
        s_mov_b32 exec_hi, 0x00ff00ff
        buffer_load_dwordx4 v[160:163], v3, s[56:59], s15 offen sc1
        s_mov_b64 exec, -1
        s_waitcnt vmcnt(1)
        """)
    else:
        a("s_waitcnt vmcnt(0)")
    a.stamp()
    layernorm(a, 8, 80, 88, 96)
    a("ds_write_b128 v12, v[96:99]")
    a("ds_write_b32 v7, v149 offset:%d" % F_XN)
    a.pad("PAD_Q1", "L_att_x")
    for k in range(4):
        a("ds_read_b128 v[%d:%d], v13 offset:%d" % (100 + 4 * k, 103 + 4 * k, k * 64))
    a.stamp()
    for k in range(4 if opt("q4", 0) else 0):
        lds_wait_ge(a, 7, 80, F_PROG, 4 * (k + 1), sleep=0)
        for u in range(4):
            for h in range(2):
                r = 16 + k * 16 + (u * 2 + h) * 2
                a("ds_read_b64_tr_b16 v[%d:%d], v%d offset:%d" % (r, r + 1, 120 + u, k * 4096 + h * 512))
        if k == 3: a("ds_read_b96 v[150:152], v7 offset:%d" % F_TAG)
        for u in range(4):
            a("s_waitcnt lgkmcnt(%d)" % (6 - 2 * u + (k == 3)))
            r = 16 + k * 16 + u * 4
            c_ = "0" if k == 0 else "v[%d:%d]" % (132 + 4 * u, 135 + 4 * u)
            a("v_mfma_f32_16x16x32_bf16 v[%d:%d], v[%d:%d], v[%d:%d], %s" % (132 + 4 * u, 135 + 4 * u, r, r + 3, 100 + 4 * k, 103 + 4 * k, c_))
    for half in range(0 if opt("q4", 0) else 2):
        lds_wait_ge(a, 7, 80, F_PROG, 8 * (half + 1), sleep=0)
        for kk in range(2):
            k = half * 2 + kk
            for u in range(4):
                for h in range(2):
                    r = 16 + (kk * 8 + u * 2 + h) * 2 + half * 32
                    a("ds_read_b64_tr_b16 v[%d:%d], v%d offset:%d" % (r, r + 1, 120 + u, k * 4096 + h * 512))
        if half == 1: a("ds_read_b96 v[150:152], v7 offset:%d" % F_TAG)
        for kk in range(2):
            k = half * 2 + kk
            for u in range(4):
                if u % 2 == 0: a("s_waitcnt lgkmcnt(%d)" % (12 - 8 * kk - 2 * u + half))
                r = 16 + (kk * 8 + u * 2) * 2 + half * 32
                c_ = "0" if k == 0 else "v[%d:%d]" % (132 + 4 * u, 135 + 4 * u)
                a("v_mfma_f32_16x16x32_bf16 v[%d:%d], v[%d:%d], v[%d:%d], %s" % (132 + 4 * u, 135 + 4 * u, r, r + 3, 100 + 4 * k, 103 + 4 * k, c_))
    a.stamp()
    a("s_mov_b32 s64, SPIN")
    a.pad("PAD_Q2", "L_att_x")
    a.label("L_q_tw")
    a("""
    s_waitcnt lgkmcnt(0)
    v_cmp_eq_u32 vcc, 0, v152
    s_cbranch_vccz L_q_tok
    ds_read_b96 v[150:152], v7 offset:%d
    s_sub_u32 s64, s64, 1
    s_cbranch_scc1 L_end
    s_branch L_q_tw
    """ % F_TAG)
    a.label("L_q_tok")
    a("""
    v_or_b32 v158, s44, v150
    v_mov_b32 v159, v151
    v_readfirstlane_b32 s40, v150
    v_readfirstlane_b32 s41, v151
    """)
    for u in range(4):
        a("v_cndmask_b32_e64 v%d, v%d, v%d, s[8:9]" % (80 + 2 * u, 132 + 4 * u, 134 + 4 * u))
        a("v_cndmask_b32_e64 v%d, v%d, v%d, s[8:9]" % (81 + 2 * u, 133 + 4 * u, 135 + 4 * u))
    a("""
    v_cndmask_b32_e64 v80, v80, v82, s[10:11]
    v_cndmask_b32_e64 v81, v81, v83, s[10:11]
    v_cndmask_b32_e64 v84, v84, v86, s[10:11]
    v_cndmask_b32_e64 v85, v85, v87, s[10:11]
    s_mov_b32 exec_lo, 0x00ff00ff
    s_mov_b32 exec_hi, 0x00ff00ff
    v_cndmask_b32_e64 v156, v80, v84, s[12:13]
    v_cndmask_b32_e64 v157, v81, v85, s[12:13]
    %s
    ds_write_b32 v7, v149 offset:%d
    """ % ("s_nop 0" if forceslow else "buffer_store_dwordx4 v[156:159], v3, s[56:59], s15 offen", F_QPUB))
    a.stamp()
    a("s_setprio 0")
    a("s_mov_b32 s64, SPIN")
    a.label("L_q_w")
    a("""
    s_sleep 4
    ds_read_b64 v[80:81], v7 offset:%d
    s_sub_u32 s64, s64, 1
    s_cbranch_scc1 L_end
    s_waitcnt lgkmcnt(0)
    v_cmp_ne_u32 vcc, 0, v81
    s_cbranch_vccnz L_q_slow
    v_and_b32 v80, 7, v80
    v_cmp_ne_u32 vcc, 4, v80
    s_cbranch_vccnz L_q_w
    s_branch L_q_dd
    """ % F_Q)
    a.label("L_q_slow")
    a("""
    s_add_u32 s15, s15, 0x%x
    buffer_store_dwordx4 v[156:159], v3, s[56:59], s15 offen sc1
    """ % (INB1S - INB1))
    a.label("L_q_dd")
    a("s_mov_b64 exec, -1")
    a.stamp()
    a("s_lshr_b32 s6, s4, 2")
    a("s_lshl_b32 s6, s6, 3")
    a("s_add_u32 s6, s6, s5")
    a("s_cmp_ge_u32 s6, 32")
    a("s_cbranch_scc1 L_fin")
    if diag: a("s_branch L_q_done")
    a("s_endpgm")
    a.page()
    a.label("L_fin")
    if opt("skip", 0) & 32: a("s_endpgm")
    a("""
    s_setprio 1
    s_and_b32 s6, s4, 3
    s_lshl_b32 s6, s6, 3
    s_add_u32 s6, s6, s5
    s_sub_u32 s6, s6, 24
    s_lshl_b32 s6, s6, 1
    s_lshr_b32 s7, s3, 2
    s_add_u32 s6, s6, s7
    s_mov_b32 s65, s6
    s_lshl_b32 s12, s6, 13
    s_add_u32 s12, s12, 0x%x
    s_add_u32 s13, s12, 4096
    s_mul_i32 s14, s6, 3584
    s_add_u32 s14, s14, 0x%x
    s_lshl_b32 s15, s6, 4
    v_and_b32 v3, 3, v0
    v_lshlrev_b32 v3, 2, v3
    v_add_u32 v3, s15, v3
    s_waitcnt vmcnt(0)
    buffer_load_dword v6, v3, s[48:51], 0 offen
    """ % (INB3S, INB3D))
    for i, M in enumerate([[16 + 2 * k for k in range(12)], [42, 44, 46, 66, 68, 70, 72, 74, 94, 96, 98, 100]]):
        for m in M: a("s_mov_b64 s[%d:%d], -1" % (m, m + 1))
        a("s_mov_b32 s%d, 0" % (M[11] + 1))
        a("v_mov_b32 v%d, 0" % (16 + 48 * i + 44))
        a("v_mov_b32 v%d, 0" % (16 + 48 * i + 45))
    if diag:
        a("v_mov_b32 v180, 0")
        a("v_mov_b32 v181, 0")
        a("s_mov_b32 s63, 1")
    lds_wait_ge(a, 7, 160, F_OPUB, 1, sleep=2)
    a("s_setprio 3")
    a.stamp()
    NS = 2
    SK = opt("skip", 0)
    FM = [[16 + 2 * k for k in range(12)], [42, 44, 46, 66, 68, 70, 72, 74, 94, 96, 98, 100]]
    bases = [16 + 48 * i for i in range(NS)]
    def fissue(i):
        base = bases[i]
        for k in range(12):
            a("s_mov_b64 exec, s[%d:%d]" % (FM[i][k], FM[i][k] + 1))
            a("buffer_load_dwordx4 v[%d:%d], v2, s[56:59], s%d offen offset:%d sc1" % (base + 4 * k, base + 3 + 4 * k, 12 + k // 4, (k % 4) * 1024))
        a("s_mov_b64 exec, -1")
    def fcheck(i, lab):
        base = bases[i]
        for k in range(12):
            a("v_cmp_ne_u64 s[%d:%d], s[40:41], v[%d:%d]" % (FM[i][k], FM[i][k] + 1, base + 4 * k + 2, base + 4 * k + 3))
        a("s_mov_b32 s%d, 0" % (FM[i][11] + 1))
        for k in range(12):
            if (SK & 1 and k >= 8) or (SK & 2 and k < 8): a("s_mov_b64 s[%d:%d], 0" % (FM[i][k], FM[i][k] + 1))
        for k in range(12):
            a("s_or_b64 s[60:61], s[%d:%d], %s" % (FM[i][k], FM[i][k] + 1, "s[60:61]" if k else "0"))
        a.log(63, "s[60:61]", 180)
        a("s_cbranch_scc0 %s" % lab)
    a("s_mov_b32 s64, SPIN")
    if opt("fdel", 0): a("s_sleep %d" % opt("fdel", 0))
    for i in range(NS):
        fissue(i)
        if i < NS - 1: a("s_sleep %d" % opt("fstag", 8))
    a.label("L_f_poll3")
    for i in range(NS):
        a("s_waitcnt vmcnt(%d)" % (12 * (NS - 1)))
        fcheck(i, "L_fin_d%d" % i)
        fissue(i)
    a("s_sub_u32 s64, s64, 1")
    a("s_cbranch_scc1 L_end")
    a("s_branch L_f_poll3")
    for i, b in enumerate(bases):
        a.label("L_fin_d%d" % i)
        for e in range(2):
            a("v_add_f32 v%d, v%d, v%d" % (160 + e, b + e, b + 4 + e))
            a("v_add_f32 v%d, v%d, v%d" % (164 + e, b + 8 + e, b + 12 + e))
            a("v_add_f32 v%d, v%d, v%d" % (166 + e, b + 16 + e, b + 20 + e))
            a("v_add_f32 v%d, v%d, v%d" % (168 + e, b + 24 + e, b + 28 + e))
            a("v_add_f32 v%d, v%d, v%d" % (162 + e, b + 32 + e, b + 36 + e))
            a("v_add_f32 v%d, v%d, v%d" % (170 + e, b + 40 + e, b + 44 + e))
        if i < NS - 1: a("s_branch L_fin_dd")
    a.label("L_fin_dd")
    a.stamp()
    a("""
    v_add_f32 v160, v160, v164
    v_add_f32 v161, v161, v165
    v_add_f32 v166, v166, v168
    v_add_f32 v167, v167, v169
    v_add_f32 v162, v162, v170
    v_add_f32 v163, v163, v171
    v_add_f32 v160, v160, v166
    v_add_f32 v161, v161, v167
    """)
    for r in (4, 8):
        a.nop(1)
        for v in (162, 163, 160, 161):
            a("v_add_f32_dpp v%d, v%d, v%d row_ror:%d row_mask:0xf bank_mask:0xf" % (v, v, v, r))
    xreduce(a, "add", [160, 161, 162, 163], [164, 165, 166, 167])
    a("""
    v_cvt_pk_bf16_f32 v164, v160, v161
    v_cvt_pk_bf16_f32 v165, v162, v163
    v_lshlrev_b32 v160, 16, v164
    v_and_b32 v161, 0xffff0000, v164
    v_lshlrev_b32 v162, 16, v165
    v_and_b32 v163, 0xffff0000, v165
    v_mul_f32 v164, 0xbfb8aa3b, v162
    v_mul_f32 v165, 0xbfb8aa3b, v163
    v_exp_f32 v164, v164
    v_exp_f32 v165, v165
    s_nop 0
    v_add_f32 v164, 1.0, v164
    v_add_f32 v165, 1.0, v165
    v_rcp_f32 v166, v164
    v_rcp_f32 v167, v165
    s_nop 0
    v_mul_f32 v168, v162, v166
    v_mul_f32 v169, v163, v167
    v_fma_f32 v170, -v168, v164, v162
    v_fma_f32 v171, -v169, v165, v163
    v_fma_f32 v170, v170, v166, v168
    v_fma_f32 v171, v171, v167, v169
    v_cmp_class_f32 vcc, v170, 3
    v_cmp_class_f32 s[60:61], v171, 3
    s_nop 1
    v_cndmask_b32 v170, v170, v168, vcc
    v_cndmask_b32_e64 v171, v171, v169, s[60:61]
    v_cvt_pk_bf16_f32 v164, v170, v171
    v_lshlrev_b32 v170, 16, v164
    v_and_b32 v171, 0xffff0000, v164
    v_mul_f32 v170, v160, v170
    v_mul_f32 v171, v161, v171
    v_cvt_pk_bf16_f32 v164, v170, v171
    v_lshlrev_b32 v170, 16, v164
    v_and_b32 v171, 0xffff0000, v164
    v_lshlrev_b32 v164, 16, v6
    v_and_b32 v165, 0xffff0000, v6
    v_add_f32 v170, v164, v170
    v_add_f32 v171, v165, v171
    v_cvt_pk_bf16_f32 v164, v170, v171
    s_mov_b64 exec, 15
    buffer_store_dword v164, v3, s[52:55], 0 offen
    """)
    a.log_flush(180, 178, 2)
    a("""
    s_cmp_lg_u32 s65, 0
    s_cbranch_scc1 L_q_done
    s_mov_b64 exec, 1
    v_mov_b32 v166, s40
    v_mov_b32 v167, s41
    v_mov_b32 v168, 0
    buffer_store_dwordx2 v[166:167], v168, s[56:59], 0 offen
    """)
    a.label("L_q_done")
    a.stamp()
    a.stamp_flush(172, [("max", 8, 14), ("max1", 5, 15)])
    a("s_endpgm")

    a.nstamp = nst0
    a.page()
    a.label("L_att_x")
    a("s_mov_b64 exec, -1")
    a.label("L_att")
    a("s_sub_u32 s62, s3, 2")
    a("""
    s_lshl_b32 s6, s62, 13
    s_add_u32 s6, s6, %d
    v_lshlrev_b32 v2, 8, v4
    v_add_u32 v2, s6, v2
    """ % L_K)
    for kk in range(4):
        a("v_add_u32 v3, %d, v5" % (4 * kk))
        a("v_xor_b32 v3, v3, v4")
        a("v_lshl_add_u32 v%d, v3, 4, v2" % (8 + kk))
    a("""
    v_lshrrev_b32 v3, 2, v4
    v_lshlrev_b32 v6, 8, v3
    v_lshl_or_b32 v6, v5, 4, v6
    v_add_u32 v6, %d, v6
    v_lshl_add_u32 v2, v5, 2, v3
    v_lshlrev_b32 v2, 8, v2
    v_add_u32 v2, %d, v2
    v_and_b32 v12, 1, v0
    v_lshl_add_u32 v2, v12, 3, v2
    v_and_b32 v12, 1, v5
    v_lshl_add_u32 v12, v12, 2, v3
    v_lshlrev_b32 v12, 1, v12
    v_bfe_u32 v13, v0, 1, 1
    s_lshl_b32 s6, s62, 2
    v_add_u32 v13, s6, v13
    v_xor_b32 v12, v12, v13
    v_lshl_add_u32 v12, v12, 4, v2
    v_xor_b32 v13, 32, v12
    """ % (L_Q, L_V))
    a("""
    v_lshlrev_b32 v15, 4, v0
    v_add_u32 v15, %d, v15
    s_lshl_b32 s6, s62, 10
    v_add_u32 v14, s6, v15
    v_lshlrev_b32 v17, 4, v3
    v_add_u32 v17, %d, v17
    s_lshl_b32 s6, s62, 6
    v_add_u32 v16, s6, v17
    """ % (L_P, L_ST))
    a("""
    s_lshl_b32 s6, s4, 17
    s_lshl_b32 s7, s62, 13
    s_add_u32 s6, s6, s7
    s_lshl_b32 s7, s5, 8
    s_add_u32 s6, s6, s7
    s_add_u32 s12, s6, 0x%x
    v_lshlrev_b32 v18, 15, v3
    v_lshl_or_b32 v18, v5, 6, v18
    v_and_b32 v2, 3, v0
    v_lshl_or_b32 v18, v2, 4, v18
    s_lshl_b32 s6, s4, 11
    s_lshl_b32 s7, s5, 4
    s_add_u32 s6, s6, s7
    s_add_u32 s13, s6, 0x%x
    v_lshlrev_b32 v19, 9, v3
    s_mov_b32 s8, 0xaaaaaaaa
    s_mov_b32 s9, 0xaaaaaaaa
    s_mov_b32 s10, 0xcccccccc
    s_mov_b32 s11, 0xcccccccc
    s_mov_b32 s14, 0x%x
    s_mov_b32 s15, 0x%x
    s_lshl_b32 s63, s62, 3
    s_add_u32 s63, s63, %d
    """ % (INB2, INBS, SCALE, LOG2E, TH_K0))
    if PT & 2:
        a("buffer_load_dwordx4 v[196:199], v18, s[56:59], s12 offen sc1")
    a("s_cmp_lg_u32 s62, 0")
    a("s_cbranch_scc1 L_att_gt")
    if PT & 2:
        a("s_mov_b64 exec, 0x1111")
        a("buffer_load_dwordx4 v[200:203], v19, s[56:59], s13 offen sc1")
        a("s_mov_b64 exec, -1")
    make_tag(a)
    a("""
    v_mov_b32 v22, s40
    v_mov_b32 v23, s41
    v_mov_b32 v24, 1
    ds_write_b96 v7, v[22:24] offset:%d
    s_branch L_att_nt
    """ % F_TAG)
    a.label("L_att_gt")
    get_tag(a, 22)
    a.label("L_att_nt")
    a("""
    s_lshl_b32 s16, s4, 14
    s_lshl_b32 s6, s62, 10
    s_add_u32 s16, s16, s6
    s_add_u32 s16, s16, 0x%x
    s_add_u32 s17, s16, 0x1000
    s_add_u32 s18, s16, 0x2000
    s_add_u32 s19, s16, 0x3000
    v_lshlrev_b32 v21, 4, v0
    s_lshl_b32 s6, s62, 8
    s_add_u32 s6, s6, %d
    v_lshlrev_b32 v25, 2, v0
    v_add_u32 v25, s6, v25
    s_or_b32 s46, s40, s44
    s_mov_b32 s47, s41
    s_mov_b32 s65, 0
    """ % (INB1, L_Q))
    if opt("fz", 0):
        for r in range(212, 216): a("v_mov_b32 v%d, 0x3f803f80" % r)
    QM = [[20, 22, 24, 26], [28, 30, 32, 34]]
    QB = [128, 144]
    for M in QM:
        for m in M: a("s_mov_b64 s[%d:%d], -1" % (m, m + 1))
    def qissue(i, sa=16):
        for k in range(4):
            a("s_mov_b64 exec, s[%d:%d]" % (QM[i][k], QM[i][k] + 1))
            a("buffer_load_dwordx4 v[%d:%d], v21, s[56:59], s%d offen sc1" % (QB[i] + 4 * k, QB[i] + 3 + 4 * k, sa + k))
        a("s_mov_b64 exec, -1")
    def qcheck(i):
        for k in range(4):
            a("v_cmp_ne_u64 s[%d:%d], s[46:47], v[%d:%d]" % (QM[i][k], QM[i][k] + 1, QB[i] + 2 + 4 * k, QB[i] + 3 + 4 * k))
            if opt("skip", 0) & 8: a("s_mov_b64 s[%d:%d], 0" % (QM[i][k], QM[i][k] + 1))
        for k in range(4):
            a("s_or_b64 s[60:61], s[%d:%d], %s" % (QM[i][k], QM[i][k] + 1, "s[60:61]" if k else "0"))
    def kfrags():
        for tau in range(2):
            for kk in range(4):
                r = 32 + (tau * 4 + kk) * 4
                a("ds_read_b128 v[%d:%d], v%d offset:%d" % (r, r + 3, 8 + kk, tau * 4096))
    if diag:
        a("v_mov_b32 v208, 0")
        a("v_mov_b32 v209, 0")
        a("s_mov_b32 s66, 1")
    a.stamp()
    lds_wait_ge(a, 7, 20, F_QPUB, 1, sleep=2)
    a("s_setprio 2")
    if opt("qdel", 0): a("s_sleep %d" % opt("qdel", 0))
    Q1 = opt("q1", 0)
    qissue(0)
    a("s_mov_b32 s64, %d" % opt("qthr", 16))
    if not Q1:
        a("s_sleep %d" % opt("qstag", 10))
        qissue(1)
    a.label("L_q_poll")
    a("""
    s_cmp_lg_u32 s65, 0
    s_cbranch_scc1 L_q_nk
    ds_read_b32 v20, v7 offset:%d
    s_waitcnt lgkmcnt(0)
    v_cmp_gt_u32 vcc, s63, v20
    s_cbranch_vccnz L_q_nk
    """ % F_PROG)
    kfrags()
    a("s_mov_b32 s65, 1")
    a.label("L_q_nk")
    for i in range(1 if Q1 else 2):
        a("s_waitcnt vmcnt(%d)" % (0 if Q1 else 4))
        qcheck(i)
        a.log(66, "s[60:61]", 208, 67)
        a("s_cbranch_scc0 L_q_d%d" % i)
        qissue(i)
    a("s_sub_u32 s64, s64, 1")
    a("s_cbranch_scc0 L_q_poll")
    a("s_branch L_a_slow")
    for i in (1, 0):
        a.label("L_q_d%d" % i)
        b = QB[i]
        a("v_add_f32 v26, v%d, v%d" % (b, b + 4))
        a("v_add_f32 v27, v%d, v%d" % (b + 1, b + 5))
        a("v_add_f32 v28, v%d, v%d" % (b + 8, b + 12))
        a("v_add_f32 v29, v%d, v%d" % (b + 9, b + 13))
        if i == 1: a("s_branch L_q_d")
    a.label("L_q_d")
    a("""
    v_add_f32 v26, v26, v28
    v_add_f32 v27, v27, v29
    v_cvt_pk_bf16_f32 v26, v26, v27
    ds_write_b32 v25, v26
    s_mov_b64 exec, 1
    ds_add_u32 v7, v24 offset:%d
    s_mov_b64 exec, -1
    """ % F_Q)
    a.stamp()
    a("s_cmp_lg_u32 s65, 0")
    a("s_cbranch_scc1 L_att_kok")
    a("s_mov_b32 s64, SPIN")
    a.label("L_att_kw")
    a("""
    ds_read_b32 v20, v7 offset:%d
    s_waitcnt lgkmcnt(0)
    v_cmp_gt_u32 vcc, s63, v20
    s_cbranch_vccz L_att_kgo
    s_sleep 1
    s_sub_u32 s64, s64, 1
    s_cbranch_scc1 L_end
    s_branch L_att_kw
    """ % F_PROG)
    a.label("L_att_kgo")
    kfrags()
    a.label("L_att_kok")
    a("s_mov_b32 s64, SPIN")
    VP = opt("vp", 0)
    def vread(chi):
        for t in range(2):
            for h in range(2):
                r = 96 + chi * 8 + t * 4 + h * 2
                a("ds_read_b64_tr_b16 v[%d:%d], v%d offset:%d" % (r, r + 1, 12 + t, chi * 8192 + h * 4096))
    a.label("L_att_qw")
    if VP:
        a("ds_read_b96 v[28:30], v7 offset:%d" % F_PROG)
    else:
        a("ds_read_b32 v20, v7 offset:%d" % F_Q)
    for kk in range(4):
        a("ds_read_b128 v[%d:%d], v6 offset:%d" % (64 + 4 * kk, 67 + 4 * kk, kk * 64))
    a("""
    s_waitcnt lgkmcnt(0)
    v_and_b32 v26, 7, v%d
    v_cmp_ne_u32 vcc, 4, v26
    s_cbranch_vccz L_att_qok
    s_sub_u32 s64, s64, 1
    s_cbranch_scc1 L_end
    s_branch L_att_qw
    """ % (30 if VP else 20))
    a.label("L_att_qok")
    if opt("skip", 0) & 256: a("s_endpgm")
    a.stamp()
    a("s_setprio 3")
    a("v_readfirstlane_b32 s45, v%d" % (30 if VP else 20))
    if VP: a("v_cmp_gt_u32 vcc, 0x%x, v28" % TH_V)
    for kk in range(4):
        for tau in range(2):
            r = 32 + (tau * 4 + kk) * 4
            c_ = "0" if kk == 0 else "v[%d:%d]" % (80 + 4 * tau, 83 + 4 * tau)
            a("v_mfma_f32_16x16x32_bf16 v[%d:%d], v[%d:%d], v[%d:%d], %s" % (80 + 4 * tau, 83 + 4 * tau, r, r + 3, 64 + 4 * kk, 67 + 4 * kk, c_))
    if VP:
        a("s_cbranch_vccnz L_att_nv1")
        for chi in range(4): vread(chi)
        a("s_mov_b32 s65, 2")
        a.label("L_att_nv1")
    a.nop(8)
    if opt("cv", 0):
        for i in range(8): a("v_cvt_pk_bf16_f32 v%d, 0, v%d" % (80 + i, 80 + i))
        for i in range(8): a("v_mul_f32 v%d, s14, v%d" % (80 + i, 80 + i))
        for i in range(8): a("v_cvt_pk_bf16_f32 v%d, 0, v%d" % (80 + i, 80 + i))
    else:
      for rnd in range(2):
        for i in range(4):
            a("v_cvt_pk_bf16_f32 v%d, v%d, v%d" % (88 + i, 80 + 2 * i, 81 + 2 * i))
        for i in range(4):
            a("v_lshlrev_b32 v%d, 16, v%d" % (80 + 2 * i, 88 + i))
            a("v_and_b32 v%d, 0xffff0000, v%d" % (81 + 2 * i, 88 + i))
        if rnd == 0:
            for i in range(8):
                a("v_mul_f32 v%d, s14, v%d" % (80 + i, 80 + i))
    FZ = opt("fz", 0)
    def stats_pub(sfx):
        a("""
        s_mov_b64 exec, 0x1111
        s_cmp_eq_u32 s45, 4
        s_cbranch_scc1 L_att_stf%s
        buffer_store_dwordx4 v[64:67], v19, s[56:59], s13 offen sc1
        s_branch L_att_st2%s
        """ % (sfx, sfx))
        a.label("L_att_stf" + sfx)
        a("buffer_store_dwordx4 v[64:67], v19, s[56:59], s13 offen")
        a.label("L_att_st2" + sfx)
        a("s_mov_b64 exec, -1")
        a("ds_write_b32 v7, v29 offset:%d" % F_APUB)
    def zmfma(chi, left=None):
        for t in range(2):
            if left is not None: a("s_waitcnt lgkmcnt(%d)" % (left + 2 - 2 * t))
            r = 96 + chi * 8 + 4 * t; d = 160 + 4 * t
            a("v_mfma_f32_16x16x32_bf16 v[%d:%d], v[%d:%d], v[%d:%d], %s" % (d, d + 3, r, r + 3, 48 + 4 * chi, 51 + 4 * chi, "v[%d:%d]" % (d, d + 3) if chi else "0"))
    if FZ:
        assert VP
        a("""
        v_max3_f32 v92, |v80|, |v81|, |v82|
        v_max3_f32 v93, |v83|, |v84|, |v85|
        v_max3_f32 v92, v92, |v86|, |v87|
        v_max_f32 v92, v92, v93
        v_cmp_nge_f32 vcc, 0x%x, v92
        v_mov_b32 v31, 1
        """ % opt("fzthr", 0x42000000))
        for i in range(8): a("v_mul_f32 v%d, s15, v%d" % (80 + i, 80 + i))
        a("s_cbranch_vccnz L_att_fb")
        a.label("L_att_z")
        for i in range(8): a("v_exp_f32 v%d, v%d" % (80 + i, 80 + i))
        a("v_mov_b32 v64, 0")
        for i in range(4): a("v_cvt_pk_bf16_f32 v%d, v%d, v%d" % (88 + i, 80 + 2 * i, 81 + 2 * i))
        a("""
        ds_write_b128 v14, v[88:91]
        s_mov_b64 exec, 1
        ds_add_u32 v7, v31 offset:%d
        s_mov_b64 exec, -1
        v_mov_b32 v66, v22
        v_mov_b32 v67, v23
        v_mov_b32 v74, v22
        v_mov_b32 v75, v23
        """ % F_P)
        a.stamp()
        a("s_mov_b32 s64, SPIN")
        a.label("L_att_pw")
        a("ds_read2_b32 v[28:29], v7 offset0:%d offset1:%d" % (F_PROG // 4, F_P // 4))
        for w in range(4):
            a("ds_read_b128 v[%d:%d], v15 offset:%d" % (48 + 4 * w, 51 + 4 * w, 1024 * w))
        a("""
        s_sub_u32 s64, s64, 1
        s_cbranch_scc1 L_end
        s_cmp_eq_u32 s65, 2
        s_waitcnt lgkmcnt(0)
        s_cbranch_scc1 L_att_nv2
        v_cmp_gt_u32 vcc, 0x%x, v28
        s_cbranch_vccnz L_att_nv2
        """ % TH_V)
        for chi in range(4): vread(chi)
        a("s_mov_b32 s65, 2")
        a.label("L_att_nv2")
        a("""
        v_and_b32 v30, 7, v29
        v_cmp_ne_u32 vcc, 4, v30
        s_cbranch_vccnz L_att_pw
        """)
        a.stamp()
        a("""
        v_cmp_ne_u32 vcc, 4, v29
        s_cbranch_vccnz L_att_gen
        s_cmp_lg_u32 s62, 0
        s_cbranch_scc1 L_att_nl0
        """)
        for chi in range(4):
            a("v_mfma_f32_16x16x32_bf16 v[68:71], v[212:215], v[%d:%d], %s" % (48 + 4 * chi, 51 + 4 * chi, "v[68:71]" if chi else "0"))
        a.label("L_att_nl0")
        a.pad("PAD_A1", "L_att_x")
        a("s_cmp_lg_u32 s65, 2")
        a("s_cbranch_scc1 L_att_nv3")
        a("s_waitcnt lgkmcnt(0)")
        for chi in range(4): zmfma(chi)
        a.label("L_att_nv3")
        a("""
        s_cmp_lg_u32 s62, 0
        s_cbranch_scc1 L_att_nost
        s_nop 7
        v_mov_b32 v65, v68
        """)
        stats_pub("")
        a.label("L_att_nost")
        a("s_cmp_eq_u32 s65, 2")
        a("s_cbranch_scc1 L_att_sel")
        lds_wait_ge(a, 7, 76, F_PROG, TH_V3, sleep=1)
        for chi in range(3): vread(chi)
        a("ds_read_b32 v76, v7 offset:%d" % F_PROG)
        for chi in range(3): zmfma(chi, 9 - 4 * chi)
        a("s_waitcnt lgkmcnt(0)")
        a("v_cmp_gt_u32 vcc, 0x%x, v76" % TH_V)
        a("s_cbranch_vccz L_att_pv3")
        lds_wait_ge(a, 7, 76, F_PROG, TH_V, sleep=0)
        a.label("L_att_pv3")
        vread(3)
        zmfma(3, 0)
        a.label("L_att_sel")
        a.stamp()
        a.nop(8)
        a.nop(2)
        a("""
        v_cndmask_b32_e64 v160, v160, v162, s[8:9]
        v_cndmask_b32_e64 v161, v161, v163, s[8:9]
        v_cndmask_b32_e64 v164, v164, v166, s[8:9]
        v_cndmask_b32_e64 v165, v165, v167, s[8:9]
        v_cndmask_b32_e64 v72, v160, v164, s[10:11]
        v_cndmask_b32_e64 v73, v161, v165, s[10:11]
        """)
        a.label("L_att_pub")
    else:
        a("""
        v_max3_f32 v92, v80, v81, v82
        v_max3_f32 v93, v83, v84, v85
        v_max3_f32 v92, v92, v86, v87
        v_max_f32 v92, v92, v93
        """)
        xreduce(a, "max", [92], [93])
        a("v_mul_f32 v92, s15, v92")
        for i in range(8):
            a("v_fma_f32 v%d, v%d, s15, -v92" % (80 + i, 80 + i))
        for i in range(8):
            a("v_exp_f32 v%d, v%d" % (80 + i, 80 + i))
        a.nop(1)
        for i in range(4):
            a("v_cvt_pk_bf16_f32 v%d, v%d, v%d" % (88 + i, 80 + 2 * i, 81 + 2 * i))
        a("ds_write_b128 v14, v[88:91]")
        a("""
        v_add_f32 v93, v80, v81
        v_add_f32 v94, v82, v83
        v_add_f32 v95, v84, v85
        v_add_f32 v31, v86, v87
        v_add_f32 v93, v93, v94
        v_add_f32 v95, v95, v31
        v_add_f32 v93, v93, v95
        """)
        xreduce(a, "add", [93], [31])
        a("""
        v_mov_b32 v94, 1
        v_mov_b32 v95, 1
        s_mov_b64 exec, 0x1111
        ds_write_b128 v16, v[92:95]
        s_mov_b64 exec, -1
        """)
        a.stamp()
        if VP:
            a("""
            s_cmp_eq_u32 s65, 2
            s_cbranch_scc1 L_att_nv2
            ds_read_b32 v28, v7 offset:%d
            s_waitcnt lgkmcnt(0)
            v_cmp_gt_u32 vcc, 0x%x, v28
            s_cbranch_vccnz L_att_nv2
            """ % (F_PROG, TH_V))
            for chi in range(4): vread(chi)
            a("s_mov_b32 s65, 2")
            a.label("L_att_nv2")
        a("s_mov_b32 s64, SPIN")
        a.label("L_att_pw")
        a("s_sub_u32 s64, s64, 1")
        a("s_cbranch_scc1 L_end")
        for w in range(4):
            a("ds_read_b128 v[%d:%d], v17 offset:%d" % (32 + 4 * w, 35 + 4 * w, 64 * w))
        for w in range(4):
            a("ds_read_b128 v[%d:%d], v15 offset:%d" % (48 + 4 * w, 51 + 4 * w, 1024 * w))
        a("""
        s_waitcnt lgkmcnt(0)
        v_min_u32 v64, v34, v38
        v_min3_u32 v64, v64, v42, v46
        v_cmp_eq_u32 vcc, 0, v64
        s_cbranch_vccnz L_att_pw
        """)
        a.stamp()
        if VP:
            a("s_cmp_lg_u32 s65, 2")
            a("s_cbranch_scc1 L_att_nv3")
            for chi in range(4):
                for t in range(2):
                    r = 96 + chi * 8 + 4 * t; d = 160 + chi * 8 + 4 * t
                    a("v_mfma_f32_16x16x32_bf16 v[%d:%d], v[%d:%d], v[%d:%d], 0" % (d, d + 3, r, r + 3, 48 + 4 * chi, 51 + 4 * chi))
            a.label("L_att_nv3")
        a("""
        v_max3_f32 v64, v32, v36, v40
        v_max_f32 v64, v64, v44
        """)
        for w in range(4):
            a("v_sub_f32 v%d, v%d, v64" % (68 + w, 32 + 4 * w))
        for w in range(4):
            a("v_exp_f32 v%d, v%d" % (68 + w, 68 + w))
        a.nop(1)
        a("v_mul_f32 v65, v68, v33")
        for w in range(1, 4):
            a("v_fmac_f32 v65, v%d, v%d" % (68 + w, 33 + 4 * w))
        a("""
        v_mov_b32 v66, v22
        v_mov_b32 v67, v23
        v_mov_b32 v74, v22
        v_mov_b32 v75, v23
        s_cmp_lg_u32 s62, 0
        s_cbranch_scc1 L_att_nost
        s_mov_b64 exec, 0x1111
        s_cmp_eq_u32 s45, 4
        s_cbranch_scc1 L_att_stf
        buffer_store_dwordx4 v[64:67], v19, s[56:59], s13 offen sc1
        s_branch L_att_st2
        """)
        a.label("L_att_stf")
        a("buffer_store_dwordx4 v[64:67], v19, s[56:59], s13 offen")
        a.label("L_att_st2")
        a("s_mov_b64 exec, -1")
        a("ds_write_b32 v7, v34 offset:%d" % F_APUB)
        a.label("L_att_nost")
        a.pad("PAD_A1", "L_att_x")
        def vmfma(chi, left):
            for t in range(2):
                a("s_waitcnt lgkmcnt(%d)" % (left + 2 - 2 * t))
                r = 96 + chi * 8 + 4 * t; d = 160 + chi * 8 + 4 * t
                a("v_mfma_f32_16x16x32_bf16 v[%d:%d], v[%d:%d], v[%d:%d], 0" % (d, d + 3, r, r + 3, 48 + 4 * chi, 51 + 4 * chi))
        def vsel(chi):
            d = 160 + chi * 8
            a("""
            v_cndmask_b32_e64 v%d, v%d, v%d, s[8:9]
            v_cndmask_b32_e64 v%d, v%d, v%d, s[8:9]
            v_cndmask_b32_e64 v%d, v%d, v%d, s[8:9]
            v_cndmask_b32_e64 v%d, v%d, v%d, s[8:9]
            v_cndmask_b32_e64 v%d, v%d, v%d, s[10:11]
            v_cndmask_b32_e64 v%d, v%d, v%d, s[10:11]
            """ % (d, d, d + 2, d + 1, d + 1, d + 3, d + 4, d + 4, d + 6, d + 5, d + 5, d + 7, d, d, d + 4, d + 1, d + 1, d + 5))
            if chi == 0:
                a("v_mul_f32 v72, v68, v%d" % d)
                a("v_mul_f32 v73, v68, v%d" % (d + 1))
            else:
                a("v_fmac_f32 v72, v%d, v%d" % (68 + chi, d))
                a("v_fmac_f32 v73, v%d, v%d" % (68 + chi, d + 1))
        if VP:
            a("s_cmp_lg_u32 s65, 2")
            a("s_cbranch_scc1 L_att_nv4")
            a.stamp()
            a.nstamp -= 1
            for chi in range(3): vsel(chi)
            a("s_branch L_att_pv3")
            a.label("L_att_nv4")
        lds_wait_ge(a, 7, 76, F_PROG, TH_V3, sleep=1)
        for chi in range(3): vread(chi)
        a("ds_read_b32 v76, v7 offset:%d" % F_PROG)
        for chi in range(3): vmfma(chi, 9 - 4 * chi)
        a("s_waitcnt lgkmcnt(0)")
        a("v_cmp_gt_u32 vcc, 0x%x, v76" % TH_V)
        a("s_cbranch_vccnz L_att_pvs")
        a.stamp()
        vread(3)
        vsel(0)
        vsel(1)
        vmfma(3, 0)
        vsel(2)
        a("s_branch L_att_pv3")
        a.label("L_att_pvs")
        a.nstamp -= 1
        a.nop(4)
        for chi in range(3): vsel(chi)
        lds_wait_ge(a, 7, 76, F_PROG, TH_V, sleep=0)
        a.stamp()
        vread(3)
        vmfma(3, 0)
        a.nop(8)
        a.label("L_att_pv3")
        a.nop(2)
        vsel(3)
    a("""
    s_cmp_eq_u32 s45, 4
    s_cbranch_scc1 L_att_of
    buffer_store_dwordx4 v[72:75], v18, s[56:59], s12 offen sc1
    s_branch L_att_o2
    """)
    a.label("L_att_of")
    a("buffer_store_dwordx4 v[72:75], v18, s[56:59], s12 offen")
    a.label("L_att_o2")
    if PZ:
        a("v_mov_b32 v24, 1")
        a("s_mov_b64 exec, 1")
        a("ds_add_u32 v7, v24 offset:%d" % F_PZ)
        a("s_mov_b64 exec, -1")
    a.stamp()
    if diag:
        a("s_cmp_lg_u32 s62, 0")
        a("s_cbranch_scc1 L_att_nl")
        a("s_waitcnt vmcnt(0)")
        a.log_flush(208, 210, 0)
        a.label("L_att_nl")
    a.stamp_flush(28)
    a("s_endpgm")
    if FZ:
        a.label("L_att_fb")
        a("""
        v_max3_f32 v92, v80, v81, v82
        v_max3_f32 v93, v83, v84, v85
        v_max3_f32 v92, v92, v86, v87
        v_max_f32 v92, v92, v93
        """)
        xreduce(a, "max", [92], [93])
        for i in range(8): a("v_sub_f32 v%d, v%d, v92" % (80 + i, 80 + i))
        a("""
        s_mov_b64 exec, 0x1111
        ds_write_b32 v16, v92
        s_mov_b64 exec, -1
        v_mov_b32 v31, 0x101
        s_branch L_att_z
        """)
        a.label("L_att_gen")
        for w in range(4):
            a("ds_read_b32 v%d, v17 offset:%d" % (32 + 4 * w, 64 * w))
        for chi in range(4):
            a("v_mfma_f32_16x16x32_bf16 v[%d:%d], v[212:215], v[%d:%d], 0" % (192 + 4 * chi, 195 + 4 * chi, 48 + 4 * chi, 51 + 4 * chi))
        lds_wait_ge(a, 7, 76, F_PROG, TH_V, sleep=1)
        for chi in range(4): vread(chi)
        a("s_waitcnt lgkmcnt(0)")
        for chi in range(4):
            for t in range(2):
                r = 96 + chi * 8 + 4 * t; d = 160 + chi * 8 + 4 * t
                a("v_mfma_f32_16x16x32_bf16 v[%d:%d], v[%d:%d], v[%d:%d], 0" % (d, d + 3, r, r + 3, 48 + 4 * chi, 51 + 4 * chi))
        a("""
        v_max3_f32 v64, v32, v36, v40
        v_max_f32 v64, v64, v44
        """)
        for w in range(4): a("v_sub_f32 v%d, v%d, v64" % (68 + w, 32 + 4 * w))
        for w in range(4): a("v_exp_f32 v%d, v%d" % (68 + w, 68 + w))
        a.nop(1)
        a("v_mul_f32 v65, v68, v192")
        for w in range(1, 4): a("v_fmac_f32 v65, v%d, v%d" % (68 + w, 192 + 4 * w))
        a("s_cmp_lg_u32 s62, 0")
        a("s_cbranch_scc1 L_att_nostg")
        stats_pub("g")
        a.label("L_att_nostg")
        a.nop(8)
        for chi in range(4):
            d = 160 + chi * 8
            a("""
            v_cndmask_b32_e64 v%d, v%d, v%d, s[8:9]
            v_cndmask_b32_e64 v%d, v%d, v%d, s[8:9]
            v_cndmask_b32_e64 v%d, v%d, v%d, s[8:9]
            v_cndmask_b32_e64 v%d, v%d, v%d, s[8:9]
            v_cndmask_b32_e64 v%d, v%d, v%d, s[10:11]
            v_cndmask_b32_e64 v%d, v%d, v%d, s[10:11]
            """ % (d, d, d + 2, d + 1, d + 1, d + 3, d + 4, d + 4, d + 6, d + 5, d + 5, d + 7, d, d, d + 4, d + 1, d + 1, d + 5))
            if chi == 0:
                a("v_mul_f32 v72, v68, v%d" % d)
                a("v_mul_f32 v73, v68, v%d" % (d + 1))
            else:
                a("v_fmac_f32 v72, v%d, v%d" % (68 + chi, d))
                a("v_fmac_f32 v73, v%d, v%d" % (68 + chi, d + 1))
        a("s_branch L_att_pub")
    a.label("L_a_slow")
    a("""
    ds_write_b32 v7, v24 offset:%d
    v_mov_b32 v24, 0x101
    s_waitcnt vmcnt(0)
    s_mov_b32 s64, 0
    """ % F_SLOW)
    for m in QM[0]: a("s_mov_b64 s[%d:%d], -1" % (m, m + 1))
    a.label("L_a_spoll")
    a("""
    s_mov_b32 s6, 0
    s_bitcmp1_b32 s64, 0
    s_cselect_b32 s6, 0, 0x%x
    """ % (INB1S - INB1))
    for k in range(4): a("s_add_u32 s%d, s%d, s6" % (28 + k, 16 + k))
    qissue(0, 28)
    a("s_add_u32 s64, s64, 1")
    a("s_cmp_gt_u32 s64, SPIN")
    a("s_cbranch_scc1 L_end")
    a("s_waitcnt vmcnt(0)")
    for k in range(4):
        m = QM[0][k]
        a("v_xor_b32 v26, s40, v%d" % (QB[0] + 2 + 4 * k))
        a("v_cmp_lt_u32 s[%d:%d], 15, v26" % (m, m + 1))
        a("v_cmp_ne_u32 vcc, s41, v%d" % (QB[0] + 3 + 4 * k))
        a("s_or_b64 s[%d:%d], s[%d:%d], vcc" % (m, m + 1, m, m + 1))
        a("s_or_b64 s[60:61], s[%d:%d], %s" % (m, m + 1, "s[60:61]" if k else "0"))
    a("s_cbranch_scc1 L_a_spoll")
    a("s_branch L_q_d0")

    a.nstamp = nst0
    a.page()
    a.label("L_o")
    if opt("skip", 0) & 64: a("s_endpgm")
    if opt("tw", 0): touches(a, opt("tw", 0))
    if opt("sw", 0):
        if opt("swd", 0): a("s_sleep %d" % opt("swd", 0))
        stouch(a, opt("sw", 0))
    ST = opt("st", 0); SG = opt("sg", 64)
    if ST & 1:
        a("""
        s_lshl_b32 s6, s4, 14
        s_lshl_b32 s7, s5, 9
        s_add_u32 s6, s6, s7
        s_add_u32 s6, s6, 0x%x
        """ % INB1)
        for o in range(0, 512, SG): a("s_load_dword s70, s[56:57], s6 offset:%d" % o)
    if ST & 2:
        if opt("sdel", 0): a("s_sleep %d" % opt("sdel", 0))
        a("""
        s_lshl_b32 s6, s4, 17
        s_lshl_b32 s7, s5, 8
        s_add_u32 s6, s6, s7
        s_add_u32 s6, s6, 0x%x
        s_lshl_b32 s10, s4, 11
        s_lshl_b32 s7, s5, 4
        s_add_u32 s10, s10, s7
        s_add_u32 s10, s10, 0x%x
        """ % (INB2, INBS))
        for h in range(4): a("s_load_dword s70, s[56:57], s10 offset:%d" % (h * 512))
        for b in range(16):
            for o in range(0, 256, SG): a("s_load_dword s70, s[56:57], s6 offset:%d" % (b * 8192 + o))
    a("""
    s_lshl_b32 s10, s4, 11
    s_lshr_b32 s6, s5, 3
    s_lshl_b32 s6, s6, 9
    s_add_u32 s10, s10, s6
    s_add_u32 s10, s10, 0x%x
    v_lshlrev_b32 v8, 4, v5
    s_lshl_b32 s6, s4, 4
    s_lshr_b32 s7, s5, 1
    s_add_u32 s6, s6, s7
    s_lshl_b32 s11, s6, 13
    s_add_u32 s11, s11, 0x%x
    s_add_u32 s12, s11, 4096
    v_lshlrev_b32 v2, 4, v0
    v_bfe_u32 v3, v0, 1, 1
    v_lshlrev_b32 v9, 5, v3
    v_bfe_u32 v3, v0, 2, 2
    v_lshl_or_b32 v9, v3, 3, v9
    v_and_b32 v6, 1, v0
    v_lshl_or_b32 v9, v6, 2, v9
    v_add_u32 v9, %d, v9
    v_lshrrev_b32 v10, 1, v4
    v_lshlrev_b32 v10, 6, v10
    v_lshl_or_b32 v10, v5, 4, v10
    v_add_u32 v10, %d, v10
    v_lshl_add_u32 v6, v5, 3, v3
    v_lshlrev_b32 v6, 9, v6
    v_add_u32 v6, %d, v6
    v_and_b32 v11, 3, v0
    """ % (INBS, INB2, L_OW + 7 * 64, L_OW, L_WO))
    for aa in range(4):
        a("v_xor_b32 v16, %d, v3" % aa)
        a("v_lshl_or_b32 v16, v16, 2, v11")
        a("v_lshl_add_u32 v%d, v16, 4, v6" % (12 + aa))
    a("""
    s_lshl_b32 s6, s6, 6
    s_and_b32 s7, s5, 1
    s_lshl_b32 s7, s7, 18
    s_add_u32 s6, s6, s7
    s_add_u32 s14, s6, 0x%x
    s_add_u32 s15, s14, 0x20000
    v_lshl_add_u32 v6, v3, 2, v5
    v_lshlrev_b32 v6, 13, v6
    v_lshl_or_b32 v6, v11, 4, v6
    s_mov_b32 s8, 0xaaaaaaaa
    s_mov_b32 s9, 0xaaaaaaaa
    v_mov_b32 v11, 1
    """ % INB3S)
    a("""
    v_and_b32 v18, 31, v0
    v_lshlrev_b32 v8, 4, v18
    v_and_b32 v16, 3, v0
    v_lshlrev_b32 v16, 5, v16
    v_and_b32 v18, 28, v0
    v_add3_u32 v16, v16, v18, %d
    v_lshlrev_b32 v17, 5, v5
    v_add_u32 v17, v17, v19
    """ .replace("%d", "v19").replace("v_and_b32 v18, 31, v0", "v_mov_b32 v19, %d\n    v_and_b32 v18, 31, v0" % L_AL, 1))
    get_tag(a, 56)
    a.stamp()
    MA = [16 + 2 * k for k in range(8)]
    MB = [32, 34, 36, 38, 44, 46, 48, 50]
    MS = [52, 54]
    SV = [204, 208]
    for m in MA + MB + MS: a("s_mov_b64 s[%d:%d], -1" % (m, m + 1))
    if diag:
        a("v_mov_b32 v200, 0")
        a("v_mov_b32 v201, 0")
        a("s_mov_b32 s63, 1")
    a("s_mov_b32 s65, 0")
    a("s_mov_b32 s66, 0")
    def mcheck(base, M):
        for k in range(8):
            a("v_cmp_ne_u64 s[%d:%d], s[40:41], v[%d:%d]" % (M[k], M[k] + 1, base + 4 * k + 2, base + 4 * k + 3))
            if opt("skip", 0) & 4: a("s_mov_b64 s[%d:%d], 0" % (M[k], M[k] + 1))
        for k in range(8):
            a("s_or_b64 s[60:61], s[%d:%d], %s" % (M[k], M[k] + 1, "s[60:61]" if k else "0"))
    def oissue(i):
        base, M = (128, MA) if i == 0 else (160, MB)
        a("s_mov_b64 exec, s[%d:%d]" % (MS[i], MS[i] + 1))
        a("buffer_load_dwordx4 v[%d:%d], v8, s[56:59], s10 offen sc1" % (SV[i], SV[i] + 3))
        for k in range(8):
            a("s_mov_b64 exec, s[%d:%d]" % (M[k], M[k] + 1))
            a("buffer_load_dwordx4 v[%d:%d], v2, s[56:59], s%d offen offset:%d sc1" % (base + 4 * k, base + 3 + 4 * k, 11 + k // 4, (k % 4) * 1024))
        a("s_mov_b64 exec, -1")
    def stats(i):
        lab = "L_o_ns%d" % i
        v = SV[i]
        a("s_cmp_lg_u32 s66, 0")
        a("s_cbranch_scc1 %s" % lab)
        a("v_cmp_ne_u64 vcc, s[40:41], v[%d:%d]" % (v + 2, v + 3))
        a("s_mov_b64 s[%d:%d], vcc" % (MS[i], MS[i] + 1))
        a("s_cbranch_vccnz %s" % lab)
        a("v_mov_b32 v56, v%d" % v)
        allreduce(a, "max", 56, 57)
        a("v_sub_f32 v56, v%d, v56" % v)
        a("v_exp_f32 v56, v56")
        a("s_mov_b32 s66, 1")
        a("v_mul_f32 v57, v56, v%d" % (v + 1))
        a("ds_write_b32 v16, v56")
        a("ds_read_b128 v[48:51], v17")
        a("ds_read_b128 v[52:55], v17 offset:16")
        allreduce(a, "add", 57, 58)
        a("v_mul_f32 v57, 0.5, v57")
        a("v_rcp_f32 v58, v57")
        a("s_mov_b64 s[%d:%d], 0" % (MS[1 - i], MS[1 - i] + 1))
        a("s_waitcnt lgkmcnt(0)")
        a.label(lab)
    lds_wait_ge(a, 7, 59, F_APUB, 1, sleep=3)
    lds_wait_ge(a, 7, 59, F_PROG, opt('ogate', TH_V), sleep=1)
    a.stamp()
    a("s_setprio 3")
    if opt("odn", 0):
        a("""
        s_lshr_b32 s6, s4, 2
        s_lshl_b32 s6, s6, 3
        s_add_u32 s6, s6, s5
        s_cmp_lt_u32 s6, 32
        s_cbranch_scc1 L_o_nd
        s_sleep %d
        """ % opt("odn", 0))
        a.label("L_o_nd")
    if opt("odel", 0): a("s_sleep %d" % opt("odel", 0))
    O1 = opt("o1", 0)
    oissue(0)
    if opt("ow2", 0):
        lds_wait_ge(a, 7, 59, F_PROG, opt("ow2", 0), sleep=1)
    if not O1:
        if not opt("ow2", 0): a("s_sleep %d" % opt('ostag', 8))
        oissue(1)
    def wo_pre():
        for al in range(2):
            for t in range(8):
                for h in range(2):
                    r = 64 + ((al * 8 + t) * 2 + h) * 2
                    a("ds_read_b64_tr_b16 v[%d:%d], v%d offset:%d" % (r, r + 1, 12 + (t >> 1), al * 256 + (t & 1) * 8 + h * 2048))
    def opp(lab):
        a("s_cmp_lg_u32 s65, 0")
        a("s_cbranch_scc1 %s" % lab)
        a("ds_read_b32 v59, v7 offset:%d" % F_PROG)
        a("s_waitcnt lgkmcnt(0)")
        a("v_cmp_gt_u32 vcc, 0x%x, v59" % TH_WO)
        a("s_cbranch_vccnz %s" % lab)
        wo_pre()
        a("s_mov_b32 s65, 1")
        a.label(lab)
    a("s_mov_b32 s64, SPIN")
    a.label("L_o_poll")
    opp("L_o_np")
    for i in range(1 if O1 else 2):
        a("s_waitcnt vmcnt(%d)" % (0 if O1 else 9))
        stats(i)
        mcheck(128 + 32 * i, MA if i == 0 else MB)
        a("s_or_b64 s[60:61], s[%d:%d], s[60:61]" % (MS[i], MS[i] + 1))
        a.log(63, "s[60:61]", 200)
        a("s_cbranch_scc0 L_o_d%d" % i)
        if opt("osl", 0): a("s_sleep %d" % opt("osl", 0))
        oissue(i)
    a("s_sub_u32 s64, s64, 1")
    a("s_cbranch_scc1 L_end")
    a("s_branch L_o_poll")
    for nm, base in (("L_o_d0", 128), ("L_o_d1", 160)):
        a.label(nm)
        a("v_mul_f32 v60, v48, v%d" % base)
        a("v_mul_f32 v61, v48, v%d" % (base + 1))
        a("v_mul_f32 v62, v49, v%d" % (base + 4))
        a("v_mul_f32 v63, v49, v%d" % (base + 5))
        for k in range(2, 8):
            a("v_fmac_f32 v%d, v%d, v%d" % (60 + 2 * (k & 1), 48 + k, base + 4 * k))
            a("v_fmac_f32 v%d, v%d, v%d" % (61 + 2 * (k & 1), 48 + k, base + 4 * k + 1))
        if base == 128: a("s_branch L_o_dd")
    a.label("L_o_dd")
    a.stamp()
    a("v_add_f32 v60, v60, v62")
    a("v_add_f32 v61, v61, v63")
    xreduce(a, "add", [60, 61], [62, 63])
    for r in (60, 61):
        a("v_mul_f32 v62, v%d, v58" % r)
        a("v_fma_f32 v63, -v62, v57, v%d" % r)
        a("v_fma_f32 v%d, v63, v58, v62" % r)
    a("v_cvt_pk_bf16_f32 v60, v60, v61")
    a("ds_write_b32 v9, v60")
    for t in range(8):
        a("ds_read_b128 v[%d:%d], v10 offset:%d" % (16 + 4 * t, 19 + 4 * t, (7 - t) * 64))
    a("s_cmp_lg_u32 s65, 0")
    a("s_cbranch_scc1 L_o_have")
    lds_wait_ge(a, 7, 59, F_PROG, TH_WO, sleep=0)
    wo_pre()
    a.label("L_o_have")
    a("""
    v_mov_b32 v194, s40
    v_mov_b32 v195, s41
    v_mov_b32 v198, s40
    v_mov_b32 v199, s41
    s_waitcnt lgkmcnt(0)
    """)
    a.stamp()
    for t in range(8):
        for al in range(2):
            r = 64 + (al * 8 + t) * 4
            c_ = "0" if t == 0 else "v[%d:%d]" % (48 + 4 * al, 51 + 4 * al)
            a("v_mfma_f32_16x16x32_bf16 v[%d:%d], v[%d:%d], v[%d:%d], %s" % (48 + 4 * al, 51 + 4 * al, r, r + 3, 16 + 4 * t, 19 + 4 * t, c_))
    a.nop(7)
    a("""
    v_cndmask_b32_e64 v192, v48, v50, s[8:9]
    v_cndmask_b32_e64 v193, v49, v51, s[8:9]
    v_cndmask_b32_e64 v196, v52, v54, s[8:9]
    v_cndmask_b32_e64 v197, v53, v55, s[8:9]
    buffer_store_dwordx4 v[192:195], v6, s[56:59], s14 offen sc1
    buffer_store_dwordx4 v[196:199], v6, s[56:59], s15 offen sc1
    ds_write_b32 v7, v11 offset:%d
    """ % F_OPUB)
    a.stamp()
    a.log_flush(200, 202, 1)
    a.stamp_flush(28)
    a("s_endpgm")

    a.nstamp = nst0
    a.page()
    a.label("L_f")
    if opt("skip", 0) & 128: a("s_endpgm")
    fcoords(a)
    a("s_cbranch_scc1 L_f_go")
    srd(a, 48, 16, 1024)
    srd(a, 52, 34, 1024)
    a("v_lshlrev_b32 v2, 4, v0")
    get_tag(a, 42)
    a("s_branch L_fin")
    a.label("L_f_go")
    a("""
    s_lshl_b32 s6, s15, 8
    s_add_u32 s6, s6, %d
    v_lshlrev_b32 v13, 4, v5
    v_add_u32 v13, s6, v13
    """ % L_XN)
    traddr128(a, 52, L_G, 3, 6)
    a("""
    v_lshrrev_b32 v3, 2, v4
    v_lshl_add_u32 v2, v5, 3, v3
    """)
    a("""
    v_lshlrev_b32 v2, 8, v2
    v_add_u32 v2, %d, v2
    v_and_b32 v12, 3, v0
    """ % L_WD)
    for aa in range(4):
        a("v_xor_b32 v16, %d, v3" % aa)
        a("v_lshl_or_b32 v16, v16, 2, v12")
        a("v_lshl_add_u32 v%d, v16, 4, v2" % (8 + aa))
    a("""
    s_lshl_b32 s11, s14, 11
    s_add_u32 s11, s11, 0x%x
    s_and_b32 s6, s5, 7
    s_lshl_b32 s6, s6, 8
    s_lshr_b32 s10, s14, 1
    s_lshl_b32 s10, s10, 12
    s_add_u32 s10, s10, s6
    s_add_u32 s10, s10, 0x%x
    v_bfe_u32 v16, v0, 2, 1
    v_lshlrev_b32 v16, 11, v16
    v_lshl_or_b32 v16, v5, 6, v16
    v_lshl_or_b32 v16, v12, 4, v16
    v_lshlrev_b32 v2, 4, v0
    v_bfe_u32 v6, v0, 1, 1
    v_lshlrev_b32 v17, 5, v6
    v_lshl_or_b32 v17, v3, 3, v17
    v_and_b32 v6, 1, v0
    v_lshl_or_b32 v17, v6, 2, v17
    v_add_u32 v17, %d, v17
    v_lshrrev_b32 v18, 1, v4
    v_lshlrev_b32 v18, 6, v18
    v_lshl_or_b32 v18, v5, 4, v18
    v_add_u32 v18, %d, v18
    s_mul_i32 s12, s15, 57344
    s_lshl_b32 s6, s14, 6
    s_add_u32 s12, s12, s6
    s_add_u32 s12, s12, 0x%x
    v_lshl_add_u32 v19, v3, 2, v5
    v_mul_u32_u24 v19, 0xe00, v19
    v_lshl_or_b32 v19, v12, 4, v19
    s_mov_b32 s8, 0xaaaaaaaa
    s_mov_b32 s9, 0xaaaaaaaa
    v_bfe_u32 v6, v0, 1, 2
    """ % (INB4, INB4, L_HW + 7 * 64, L_HW, INB3D))
    if ST & 4:
        if opt("sdel", 0): a("s_sleep %d" % opt("sdel", 0))
        for b in range(2):
            for o in range(0, 256, SG): a("s_load_dword s70, s[56:57], s10 offset:%d" % (b * 2048 + o))
    if PT & 4:
        a("""
        s_mov_b32 exec_lo, 0x00ff00ff
        s_mov_b32 exec_hi, 0x00ff00ff
        buffer_load_dwordx4 v[196:199], v16, s[56:59], s10 offen sc1
        s_mov_b64 exec, -1
        """)
    get_tag(a, 42)
    if opt("pwg", 0):
        a("buffer_load_dwordx4 v[20:23], v2, s[56:59], s11 offen sc1")
        a("buffer_load_dwordx4 v[24:27], v2, s[56:59], s11 offen offset:1024 sc1")
        a("s_waitcnt vmcnt(0)")
    a.stamp()
    lds_wait_ge(a, 7, 20, F_XN, 1, sleep=4)
    for k in range(4):
        a("ds_read_b128 v[%d:%d], v13 offset:%d" % (20 + 4 * k, 23 + 4 * k, k * 64))
    a("v_mov_b32 v36, 0")
    a("s_waitcnt lgkmcnt(0)")
    for u in range(4):
        a("v_cmp_eq_u32 vcc, %d, v6" % u)
        a.nop(2)
        for k in range(4):
            for i in range(4):
                a("v_cndmask_b32 v%d, v36, v%d, vcc" % (128 + (u * 4 + k) * 4 + i, 20 + 4 * k + i))
    a("s_mov_b32 s64, SPIN")
    a.label("L_f_qw")
    a("""
    ds_read_b32 v20, v7 offset:%d
    s_waitcnt lgkmcnt(0)
    v_and_b32 v21, 7, v20
    v_cmp_ne_u32 vcc, 4, v21
    s_cbranch_vccz L_f_qok
    s_sleep 4
    s_sub_u32 s64, s64, 1
    s_cbranch_scc1 L_end
    s_branch L_f_qw
    """ % F_Q)
    a.label("L_f_qok")
    a("v_readfirstlane_b32 s45, v20")
    if opt("g2", 0):
        for half in range(2):
            lds_wait_ge(a, 7, 20, F_PROG, PV[("G", 7)] if half == 0 else TH_G, sleep=1 - half)
            if half: a.stamp()
            else: a("s_setprio 3")
            for u in range(4):
                for k in (2 * half, 2 * half + 1):
                    for h in range(2):
                        r = 64 + ((u * 4 + k) * 2 + h) * 2
                        a("ds_read_b64_tr_b16 v[%d:%d], v%d offset:%d" % (r, r + 1, 52 + u, k * 4096 + h * 512))
            for u in range(4):
                for k in (2 * half, 2 * half + 1):
                    a("s_waitcnt lgkmcnt(%d)" % (14 - 4 * u - 2 * (k & 1)))
                    n = u * 4 + k
                    c_ = "0" if n == 0 else "v[36:39]"
                    a("v_mfma_f32_16x16x32_bf16 v[36:39], v[%d:%d], v[%d:%d], %s" % (64 + n * 4, 67 + n * 4, 128 + n * 4, 131 + n * 4, c_))
    else:
        lds_wait_ge(a, 7, 20, F_PROG, TH_G, sleep=1)
        a.stamp()
        a("s_setprio 3")
        for u in range(4):
            for k in range(4):
                for h in range(2):
                    r = 64 + ((u * 4 + k) * 2 + h) * 2
                    a("ds_read_b64_tr_b16 v[%d:%d], v%d offset:%d" % (r, r + 1, 52 + u, k * 4096 + h * 512))
            if u >= 1:
                a("s_waitcnt lgkmcnt(8)")
                for k in range(4):
                    n = (u - 1) * 4 + k
                    c_ = "0" if n == 0 else "v[36:39]"
                    a("v_mfma_f32_16x16x32_bf16 v[36:39], v[%d:%d], v[%d:%d], %s" % (64 + n * 4, 67 + n * 4, 128 + n * 4, 131 + n * 4, c_))
        a("s_waitcnt lgkmcnt(0)")
        for k in range(4):
            n = 12 + k
            a("v_mfma_f32_16x16x32_bf16 v[36:39], v[%d:%d], v[%d:%d], v[36:39]" % (64 + n * 4, 67 + n * 4, 128 + n * 4, 131 + n * 4))
    a.nop(8)
    a("""
    v_cndmask_b32_e64 v40, v36, v38, s[8:9]
    v_cndmask_b32_e64 v41, v37, v39, s[8:9]
    s_mov_b32 exec_lo, 0x00ff00ff
    s_mov_b32 exec_hi, 0x00ff00ff
    s_cmp_eq_u32 s45, 4
    s_cbranch_scc1 L_f_pf
    buffer_store_dwordx4 v[40:43], v16, s[56:59], s10 offen sc1
    s_branch L_f_p2
    """)
    a.label("L_f_pf")
    a("buffer_store_dwordx4 v[40:43], v16, s[56:59], s10 offen")
    a.label("L_f_p2")
    if PZ:
        a("s_mov_b64 exec, 1")
        a("ds_add_u32 v7, v44 offset:%d" % F_PZ)
    a("s_mov_b64 exec, -1")
    a.stamp()
    a("s_mov_b32 s65, 0")
    def wd_pre():
        for t in range(8):
            for h in range(2):
                r = 64 + (t * 2 + h) * 2
                a("ds_read_b64_tr_b16 v[%d:%d], v%d offset:%d" % (r, r + 1, 8 + (t >> 1), (t & 1) * 8 + h * 1024))
    def gissue(base):
        a("buffer_load_dwordx4 v[%d:%d], v2, s[56:59], s11 offen sc1" % (base, base + 3))
        a("buffer_load_dwordx4 v[%d:%d], v2, s[56:59], s11 offen offset:1024 sc1" % (base + 4, base + 7))
    if opt("gdel", 0): a("s_sleep %d" % opt("gdel", 0))
    gissue(20)
    a("s_sleep %d" % opt("gstag", 4))
    gissue(28)
    a("s_mov_b32 s64, SPIN")
    a.label("L_f_poll")
    a("""
    s_cmp_lg_u32 s65, 0
    s_cbranch_scc1 L_f_np
    ds_read_b32 v44, v7 offset:%d
    s_waitcnt lgkmcnt(0)
    v_cmp_gt_u32 vcc, 0x%x, v44
    s_cbranch_vccnz L_f_np
    """ % (F_PROG, TH_WD))
    wd_pre()
    a("s_mov_b32 s65, 1")
    a.label("L_f_np")
    a("s_waitcnt vmcnt(2)")
    tagcheck(a, [20, 24])
    if opt("skip", 0) & 16: a("s_branch L_f_d0")
    a("s_cbranch_vccz L_f_d0")
    if opt("gsl", 0): a("s_sleep %d" % opt("gsl", 0))
    gissue(20)
    a("s_waitcnt vmcnt(2)")
    tagcheck(a, [28, 32])
    a("s_cbranch_vccz L_f_d1")
    if opt("gsl", 0): a("s_sleep %d" % opt("gsl", 0))
    gissue(28)
    a("s_sub_u32 s64, s64, 1")
    a("s_cbranch_scc1 L_end")
    a("s_branch L_f_poll")
    for nm, base in (("L_f_d0", 20), ("L_f_d1", 28)):
        a.label(nm)
        a("v_mov_b32 v44, v%d" % base)
        a("v_mov_b32 v45, v%d" % (base + 1))
        a("v_mov_b32 v46, v%d" % (base + 4))
        a("v_mov_b32 v47, v%d" % (base + 5))
        if base == 20: a("s_branch L_f_dd")
    a.label("L_f_dd")
    a.stamp()
    xreduce(a, "add", [44, 45, 46, 47], [48, 49, 50, 51])
    a("""
    s_mov_b32 s16, 0x3d372713
    s_mov_b32 s17, 0xc0135761
    v_cvt_pk_bf16_f32 v48, v44, v45
    v_cvt_pk_bf16_f32 v49, v46, v47
    v_lshlrev_b32 v44, 16, v48
    v_and_b32 v45, 0xffff0000, v48
    v_lshlrev_b32 v46, 16, v49
    v_and_b32 v47, 0xffff0000, v49
    v_mul_f32 v48, v44, v44
    v_mul_f32 v49, v45, v45
    v_mul_f32 v48, v48, v44
    v_mul_f32 v49, v49, v45
    v_fma_f32 v48, v48, s16, v44
    v_fma_f32 v49, v49, s16, v45
    v_mul_f32 v48, s17, v48
    v_mul_f32 v49, s17, v49
    v_exp_f32 v48, v48
    v_exp_f32 v49, v49
    s_nop 0
    v_add_f32 v48, 1.0, v48
    v_add_f32 v49, 1.0, v49
    v_rcp_f32 v48, v48
    v_rcp_f32 v49, v49
    s_nop 0
    v_mul_f32 v44, v44, v48
    v_mul_f32 v45, v45, v49
    v_cvt_pk_bf16_f32 v48, v44, v45
    v_lshlrev_b32 v44, 16, v48
    v_and_b32 v45, 0xffff0000, v48
    v_mul_f32 v44, v44, v46
    v_mul_f32 v45, v45, v47
    v_cvt_pk_bf16_f32 v48, v44, v45
    ds_write_b32 v17, v48
    """)
    for t in range(8):
        a("ds_read_b128 v[%d:%d], v18 offset:%d" % (128 + 4 * t, 131 + 4 * t, (7 - t) * 64))
    a("s_cmp_lg_u32 s65, 0")
    a("s_cbranch_scc1 L_f_have")
    lds_wait_ge(a, 7, 44, F_PROG, TH_WD, sleep=1 if opt("ord", 0) else 0)
    wd_pre()
    a.label("L_f_have")
    a("s_waitcnt lgkmcnt(0)")
    a.stamp()
    for t in range(8):
        c_ = "0" if t == 0 else "v[36:39]"
        a("v_mfma_f32_16x16x32_bf16 v[36:39], v[%d:%d], v[%d:%d], %s" % (64 + 4 * t, 67 + 4 * t, 128 + 4 * t, 131 + 4 * t, c_))
    a.nop(8)
    a("""
    v_cndmask_b32_e64 v40, v36, v38, s[8:9]
    v_cndmask_b32_e64 v41, v37, v39, s[8:9]
    buffer_store_dwordx4 v[40:43], v19, s[56:59], s12 offen sc1
    """)
    a.stamp()
    a.stamp_flush(28)
    a.label("L_end")
    a("s_endpgm")

    out += a.l
    out.append('''.section .rodata,"a"
.p2align 6
.amdhsa_kernel %s_kernel
  .amdhsa_next_free_vgpr 216
  .amdhsa_next_free_sgpr 102
  .amdhsa_accum_offset 216
  .amdhsa_group_segment_fixed_size 0
  .amdhsa_kernarg_size 96
  .amdhsa_user_sgpr_count 2
  .amdhsa_user_sgpr_kernarg_segment_ptr 1
  .amdhsa_system_sgpr_workgroup_id_x 1
  .amdhsa_float_denorm_mode_32 3
.end_amdhsa_kernel''' % NAME)
    return "\n".join(out) + "\n"

if __name__ == "__main__":
    ap = argparse.ArgumentParser()
    ap.add_argument("-o", default="cdna_kernels/%s.s" % NAME)
    ap.add_argument("--diag", action="store_true")
    ap.add_argument("--slow", action="store_true")
    ap.add_argument("-W", type=int, default=16)
    ap.add_argument("--W0", type=int, default=24)
    ap.add_argument("-P", nargs="*", default=[])
    ap.add_argument("--onlyld", action="store_true")
    ap.add_argument("--kv", type=int, default=1)
    args = ap.parse_args()
    open(args.o, "w").write(gen(diag=args.diag, W=args.W, forceslow=args.slow, onlyld=args.onlyld, kvmode=args.kv, W0=args.W0, P={x.split('=')[0]: int(x.split('=')[1]) for x in args.P}))
    print("wrote", args.o)
```

```python
import sys, argparse

NAME = "recurrent_scan__sliding_block_cached__glu_gated_geglu__decode"
HEADER = open("cdna_kernels/%s.s.ref" % NAME).read().split("; Override launch")[0]

INBS = 0x1000
INB4 = 0x5000
INB1 = 0x200000
INB1S = 0x220000
INB3D = 0x41000
INB3S = 0x80000
INB2 = 0x100000
DIAG = 0x1000000
L_WQ = 0
L_K = 16384
L_V = 49152
L_G = 81920
L_U = 90112
L_WO = 98304
L_WD = 114688
L_M = 122880
L_XN = L_M
L_Q = L_M + 1024
L_P = L_M + 2048
L_Z = L_M + 6144
L_OW = L_Z
L_HW = L_Z + 1024
L_ST = L_Z + 2048
L_FL = L_Z + 2304
L_AL = L_Z + 2560
F_PROG = 0
F_XN = 4
F_Q = 8
F_SLOW = 12
F_TAG = 16
F_TAGV = 24
F_APUB = 28
F_OPUB = 32
F_QPUB = 36
F_PZ = 40
F_P = 44
LDS_BYTES = L_Z + 4096

LOG2E = 0x3fb8aa3b
SCALE = 0x3db504f3
ST0 = 76
OGATE = 72
OSTAG = 4

class Asm:
    def __init__(self, diag=False):
        self.l = []; self.diag = diag; self.nstamp = 0; self.uid = 0
    def __call__(self, s):
        for x in s.strip().split("\n"):
            x = x.strip()
            if x: self.l.append("    " + x)
    def label(self, n): self.l.append(n + ":")
    def nop(self, n=1): self("s_nop %d" % (n - 1))
    def comment(self, s): self.l.append("    ; " + s)
    def page(self): self.l.append(".p2align 12")
    def pad(self, name, target):
        self.label(name); self("s_cbranch_execz %s" % target)
    def newlabel(self, p):
        self.uid += 1; return "%s_%d" % (p, self.uid)
    def stamp(self):
        if not self.diag: return
        i = self.nstamp; assert i < 13, "too many stamps"
        self("s_memrealtime s[%d:%d]" % (ST0 + 2 * i, ST0 + 1 + 2 * i))
        self.nstamp += 1
    def log(self, sidx, smask, vlog, tmp=62):
        if not self.diag: return
        self("s_memrealtime s[6:7]")
        self("s_bcnt1_i32_b64 s%d, %s" % (tmp, smask))
        self("s_min_u32 m0, s%d, 63" % sidx)
        self("s_waitcnt lgkmcnt(0)")
        self("v_writelane_b32 v%d, s6, m0" % vlog)
        self("v_writelane_b32 v%d, s%d, m0" % (vlog + 1, tmp))
        self("s_add_u32 s%d, s%d, 1" % (sidx, sidx))
        self("s_cmp_lg_u64 %s, 0" % smask)
    def log_flush(self, vlog, vt, slot):
        if not self.diag: return
        self("s_mov_b64 exec, -1")
        self("s_lshl_b32 s64, s2, 12")
        self("s_add_u32 s64, s64, 0x%x" % (DIAG + 0x100000 + slot * 512))
        self("v_lshlrev_b32 v%d, 2, v0" % vt)
        self("buffer_store_dword v%d, v%d, s[56:59], s64 offen" % (vlog, vt))
        self("buffer_store_dword v%d, v%d, s[56:59], s64 offen offset:256" % (vlog + 1, vt))
    def dbg_flush(self, vtmp, ents):
        self("s_load_dwordx2 s[60:61], s[0:1], 80")
        self("s_mov_b32 s62, 256")
        self("s_mov_b32 s63, 0x20000")
        self("s_waitcnt lgkmcnt(0)")
        for op, i, slot in ents:
            if op == "min": self("v_not_b32 v%d, s%d" % (vtmp, ST0 + 2 * i))
            elif op == "max": self("v_mov_b32 v%d, s%d" % (vtmp, ST0 + 2 * i))
            elif op == "max1":
                self("s_cmp_eq_u32 s3, 1")
                self("s_cselect_b32 s65, s%d, 0" % (ST0 + 2 * i))
                self("v_mov_b32 v%d, s65" % vtmp)
            else:
                self("s_sub_u32 s65, s%d, s%d" % (ST0 + 2 * i, ST0))
                self("v_mov_b32 v%d, s65" % vtmp)
            self("buffer_atomic_%s v%d, v%d, s[60:63], 0 offen offset:%d sc1" % ("add" if op == "sum" else "umax", vtmp, vtmp + 2, slot * 4))
            self.nop(2)
    def stamp_flush(self, vtmp, dbg=None):
        if not self.diag: return
        self._sf(vtmp)
        if dbg and DBGD: self.dbg_flush(vtmp, dbg)
    def _sf(self, vtmp):
        n = self.nstamp
        self("s_waitcnt vmcnt(0) lgkmcnt(0)")
        self("s_mov_b64 exec, 1")
        self("s_lshl_b32 s64, s2, 10")
        self("s_lshl_b32 s65, s3, 7")
        self("s_add_u32 s64, s64, s65")
        self("s_add_u32 s64, s64, 0x%x" % DIAG)
        self("v_mov_b32 v%d, 0" % (vtmp + 2))
        for i in range(n):
            self("v_mov_b32 v%d, s%d" % (vtmp, ST0 + 2 * i))
            self("v_mov_b32 v%d, s%d" % (vtmp + 1, ST0 + 1 + 2 * i))
            self("buffer_store_dwordx2 v[%d:%d], v%d, s[56:59], s64 offen offset:%d" % (vtmp, vtmp + 1, vtmp + 2, i * 8))
            self.nop(2)
        self("v_mov_b32 v%d, %d" % (vtmp, n))
        self("buffer_store_dword v%d, v%d, s[56:59], s64 offen offset:120" % (vtmp, vtmp + 2))

def allreduce(a, op, v, t):
    for r in (1, 2, 4, 8):
        a.nop(2)
        a("v_%s_f32_dpp v%d, v%d, v%d row_ror:%d row_mask:0xf bank_mask:0xf" % (op, v, v, v, r))
    for sw in ("16", "32"):
        a("v_mov_b32 v%d, v%d" % (t, v))
        a.nop(2)
        a("v_permlane%s_swap_b32 v%d, v%d" % (sw, v, t))
        a("v_%s_f32 v%d, v%d, v%d" % (op, v, v, t))

def xreduce(a, op, regs, tmps):
    for sw in ("16", "32"):
        for r, t in zip(regs, tmps):
            a("v_mov_b32 v%d, v%d" % (t, r))
        a.nop(2 if len(regs) < 3 else 1)
        for r, t in zip(regs, tmps):
            a("v_permlane%s_swap_b32 v%d, v%d" % (sw, r, t))
        for r, t in zip(regs, tmps):
            a("v_%s_f32 v%d, v%d, v%d" % (op, r, r, t))

def bf16_round(a, dst, src, tmp):
    a("v_cvt_pk_bf16_f32 v%d, v%d, v%d" % (tmp, src, src))
    a("v_lshlrev_b32 v%d, 16, v%d" % (dst, tmp))

def layernorm(a, xr, f, t, xp):
    for i in range(4):
        a("v_lshlrev_b32 v%d, 16, v%d" % (f + 2 * i, xr + i))
        a("v_and_b32 v%d, 0xffff0000, v%d" % (f + 2 * i + 1, xr + i))
    a("v_add_f32 v%d, v%d, v%d" % (t, f, f + 1))
    a("v_add_f32 v%d, v%d, v%d" % (t + 1, f + 2, f + 3))
    a("v_add_f32 v%d, v%d, v%d" % (t + 2, f + 4, f + 5))
    a("v_add_f32 v%d, v%d, v%d" % (t + 3, f + 6, f + 7))
    a("v_add_f32 v%d, v%d, v%d" % (t, t, t + 1))
    a("v_add_f32 v%d, v%d, v%d" % (t + 2, t + 2, t + 3))
    a("v_add_f32 v%d, v%d, v%d" % (t, t, t + 2))
    allreduce(a, "add", t, t + 1)
    a("v_mul_f32 v%d, 0x3b000000, v%d" % (t, t))
    a("v_sub_f32 v%d, v%d, v%d" % (t + 2, f, t))
    a("v_mul_f32 v%d, v%d, v%d" % (t + 1, t + 2, t + 2))
    for i in range(1, 8):
        a("v_sub_f32 v%d, v%d, v%d" % (t + 2, f + i, t))
        a("v_fmac_f32 v%d, v%d, v%d" % (t + 1, t + 2, t + 2))
    allreduce(a, "add", t + 1, t + 2)
    a("v_mul_f32 v%d, 0x3b000000, v%d" % (t + 1, t + 1))
    a("v_cvt_pk_bf16_f32 v%d, v%d, v%d" % (t + 2, t, t + 1))
    a("v_lshlrev_b32 v%d, 16, v%d" % (t, t + 2))
    a("v_and_b32 v%d, 0xffff0000, v%d" % (t + 1, t + 2))
    a("v_add_f32 v%d, 0x3727c5ac, v%d" % (t + 1, t + 1))
    bf16_round(a, t + 1, t + 1, t + 2)
    a("v_sqrt_f32 v%d, v%d" % (t + 1, t + 1))
    a.nop(1)
    bf16_round(a, t + 1, t + 1, t + 2)
    a("v_rcp_f32 v%d, v%d" % (t + 2, t + 1))
    for i in range(8):
        a("v_sub_f32 v%d, v%d, v%d" % (f + i, f + i, t))
    for i in range(4):
        a("v_cvt_pk_bf16_f32 v%d, v%d, v%d" % (xp + i, f + 2 * i, f + 2 * i + 1))
    for i in range(4):
        a("v_lshlrev_b32 v%d, 16, v%d" % (f + 2 * i, xp + i))
        a("v_and_b32 v%d, 0xffff0000, v%d" % (f + 2 * i + 1, xp + i))
    for i in range(8):
        a("v_mul_f32 v%d, v%d, v%d" % (t + 3, f + i, t + 2))
        a("v_fma_f32 v%d, -v%d, v%d, v%d" % (t + 4, t + 3, t + 1, f + i))
        a("v_fma_f32 v%d, v%d, v%d, v%d" % (f + i, t + 4, t + 2, t + 3))
    for i in range(4):
        a("v_cvt_pk_bf16_f32 v%d, v%d, v%d" % (xp + i, f + 2 * i, f + 2 * i + 1))

def srd(a, d, base, nbytes):
    a("s_mov_b32 s%d, s%d" % (d, base))
    a("s_mov_b32 s%d, s%d" % (d + 1, base + 1))
    a("s_mov_b32 s%d, 0x%x" % (d + 2, nbytes))
    a("s_mov_b32 s%d, 0x20000" % (d + 3))

def fcoords(a):
    a("""
    s_and_b32 s14, s4, 3
    s_mul_i32 s14, s14, 14
    s_lshr_b32 s36, s4, 2
    s_lshl_b32 s7, s36, 3
    s_add_u32 s14, s14, s7
    s_lshr_b32 s7, s5, 2
    s_add_u32 s14, s14, s7
    s_and_b32 s15, s5, 3
    s_lshl_b32 s36, s36, 3
    s_add_u32 s36, s36, s5
    s_cmp_lt_u32 s36, 32
    s_cselect_b32 s36, 1, 0
    """)

def touches(a, tw, vz=212):
    a("s_mov_b64 exec, 1")
    a("v_mov_b32 v%d, 0" % vz)
    n = 1
    if tw & 1:
        srd(a, 68, 20, 0x8000000)
        a("""
        s_lshl_b32 s6, s4, 24
        s_lshl_b32 s7, s5, 12
        s_add_u32 s6, s6, s7
        s_add_u32 s6, s6, 0xf00000
        buffer_load_dword v%d, v%d, s[68:71], s6 offen
        """ % (vz + 1, vz))
    if tw & 2:
        srd(a, 72, 24, 4096 * 512 * 2)
        a("""
        s_lshl_b32 s6, s4, 19
        s_lshr_b32 s7, s5, 1
        s_lshl_b32 s7, s7, 15
        s_add_u32 s6, s6, s7
        buffer_load_dword v%d, v%d, s[72:75], s6 offen
        """ % (vz + 1, vz))
    if tw & 4:
        fcoords(a)
        a("s_bitcmp1_b32 s5, 2")
        a("s_cselect_b32 s68, s30, s28")
        a("s_cselect_b32 s69, s31, s29")
        a("s_mov_b32 s70, 0x%x" % (512 * 1792 * 2))
        a("s_mov_b32 s71, 0x20000")
        srd(a, 72, 32, 1792 * 512 * 2)
        a("""
        s_mul_i32 s6, s15, %d
        s_lshl_b32 s7, s14, 6
        s_and_b32 s7, s7, -128
        s_add_u32 s6, s6, s7
        buffer_load_dword v%d, v%d, s[68:71], s6 offen
        s_lshl_b32 s6, s14, 15
        s_lshl_b32 s7, s15, 8
        s_add_u32 s6, s6, s7
        buffer_load_dword v%d, v%d, s[72:75], s6 offen
        """ % (128 * 3584, vz + 1, vz, vz + 1, vz))
    if tw & 8:
        a("""
        s_mov_b32 s6, 0x30000
        buffer_load_dword v%d, v%d, s[56:59], s6 offen
        s_mov_b32 s6, 0x240000
        buffer_load_dword v%d, v%d, s[56:59], s6 offen
        """ % (vz + 1, vz, vz + 1, vz))
    a("s_mov_b64 exec, -1")

def stouch(a, m):
    if m & 1:
        a("""
        s_lshl_b32 s6, s4, 24
        s_lshl_b32 s7, s5, 12
        s_add_u32 s6, s6, s7
        s_add_u32 s6, s6, 0xf00000
        s_load_dword s70, s[20:21], s6
        """)
    if m & 2:
        a("""
        s_lshl_b32 s6, s4, 19
        s_lshr_b32 s7, s5, 1
        s_lshl_b32 s7, s7, 15
        s_add_u32 s6, s6, s7
        s_load_dword s70, s[24:25], s6
        """)
    if m & 4:
        a("""
        s_and_b32 s6, s5, 3
        s_mul_i32 s6, s6, %d
        s_load_dword s70, s[28:29], s6
        s_load_dword s70, s[30:31], s6
        s_load_dword s70, s[32:33], s6
        """ % (128 * 3584))
    if m & 8:
        a("""
        s_mov_b32 s6, 0x240000
        s_load_dword s70, s[38:39], s6
        s_load_dword s70, s[34:35], 0
        """)

def traddr128(a, d, base, t0, t1):
    a("""
    v_lshrrev_b32 v%d, 2, v4
    v_lshl_add_u32 v%d, v5, 3, v%d
    v_lshlrev_b32 v%d, 7, v%d
    v_bfe_u32 v%d, v0, 3, 2
    v_lshl_or_b32 v%d, v%d, 5, v%d
    v_and_b32 v%d, 3, v0
    v_lshl_or_b32 v%d, v%d, 3, v%d
    """ % (t0, t0, t0, t0, t0, t1, t0, t1, t0, t1, d, t1, t0))
    if base: a("v_add_u32 v%d, %d, v%d" % (d, base, d))
    for u in range(1, 4):
        a("v_xor_b32 v%d, %d, v%d" % (d + u, 32 * u, d))

def early_barrier(a):
    a("s_waitcnt lgkmcnt(0)")
    a("s_barrier")
    srd(a, 56, 38, 0x20000000)

def make_tag(a):
    a("""
    s_waitcnt lgkmcnt(0)
    s_add_u32 s40, s40, 16
    s_and_b32 s40, s40, -16
    s_add_u32 s41, s41, 0x9e3779b9
    """)

def get_tag(a, vt):
    if OWNTAG:
        make_tag(a)
        a("v_mov_b32 v%d, s40" % vt)
        a("v_mov_b32 v%d, s41" % (vt + 1))
        a("v_mov_b32 v%d, 1" % (vt + 2))
        return
    name = a.newlabel("L_gt")
    a("s_mov_b32 s64, SPIN")
    a.label(name)
    a("ds_read_b96 v[%d:%d], v7 offset:%d" % (vt, vt + 2, F_TAG))
    a("s_waitcnt lgkmcnt(0)")
    a("v_cmp_eq_u32 vcc, 0, v%d" % (vt + 2))
    a("s_cbranch_vccz %s_ok" % name)
    a("s_sleep 10")
    a("s_sub_u32 s64, s64, 1")
    a("s_cbranch_scc1 L_end")
    a("s_branch %s" % name)
    a.label(name + "_ok")
    a("v_readfirstlane_b32 s40, v%d" % vt)
    a("v_readfirstlane_b32 s41, v%d" % (vt + 1))
    a.nop(2)

def lds_wait_ge(a, vfl, vtmp, off, thr, sleep=1):
    name = a.newlabel("L_w")
    a("s_mov_b32 s64, SPIN")
    a.label(name)
    a("ds_read_b32 v%d, v%d offset:%d" % (vtmp, vfl, off))
    a("s_waitcnt lgkmcnt(0)")
    a("v_cmp_gt_u32 vcc, %d, v%d" % (thr, vtmp) if thr <= 64 else "v_cmp_gt_u32 vcc, 0x%x, v%d" % (thr, vtmp))
    a("s_cbranch_vccz %s_ok" % name)
    if sleep: a("s_sleep %d" % sleep)
    a("s_sub_u32 s64, s64, 1")
    a("s_cbranch_scc1 L_end")
    a("s_branch %s" % name)
    a.label(name + "_ok")

def tagcheck(a, regs, tag="s[40:41]"):
    a("v_cmp_ne_u64 vcc, %s, v[%d:%d]" % (tag, regs[0] + 2, regs[0] + 3))
    for r in regs[1:]:
        a("v_cmp_ne_u64 s[60:61], %s, v[%d:%d]" % (tag, r + 2, r + 3))
        a("s_or_b64 vcc, vcc, s[60:61]")

def gen(diag=False, W=16, forceslow=False, onlyld=False, kvmode=1, W0=24, P=None):
    P = P or {}
    global OWNTAG, DBGD
    DBGD = P.get("dbgd", 0)
    OWNTAG = P.get("owntag", 0)
    if OWNTAG: P["epf"] = 1
    def opt(k, d): return P.get(k, d)
    a = Asm(diag)
    out = []
    out.append(HEADER.rstrip("\n"))
    out.append("; @launch grid=(256,1,1) block=(512,1,1) lds=%d" % LDS_BYTES)
    out.append('.amdgcn_target "amdgcn-amd-amdhsa--gfx950"')
    out.append(".set SPIN, 0x40000")
    out.append(".text")
    out.append(".globl %s_kernel" % NAME)
    out.append(".p2align 8")
    out.append(".type %s_kernel,@function" % NAME)
    out.append("%s_kernel:" % NAME)

    a("""
    s_cmp_ge_u32 s2, 256
    s_cbranch_scc1 L_end0
    s_load_dwordx16 s[16:31], s[0:1], 0
    s_load_dwordx8 s[32:39], s[0:1], 64
    v_lshrrev_b32 v1, 6, v0
    v_lshlrev_b32 v2, 3, v0
    v_mov_b32 v8, 0
    v_mov_b32 v9, 0
    v_readfirstlane_b32 s3, v1
    v_add_u32 v2, %d, v2
    v_and_b32 v0, 63, v0
    ds_write_b64 v2, v[8:9]
    s_and_b32 s4, s2, 7
    s_lshr_b32 s5, s2, 3
    v_and_b32 v4, 15, v0
    v_lshrrev_b32 v5, 4, v0
    v_mov_b32 v7, %d
    """ % (L_Z, L_FL))
    a.stamp()
    nst0 = a.nstamp
    a("""
    s_cmp_eq_u32 s3, 0
    s_cbranch_scc1 L_ld
    """)
    if onlyld:
        if opt("sw", 0):
            a("s_cmp_lg_u32 s3, 7")
            a("s_cbranch_scc1 L_end0")
            a("s_waitcnt lgkmcnt(0)")
            a("s_barrier")
            if opt("swd", 0): a("s_sleep %d" % opt("swd", 0))
            stouch(a, opt("sw", 0))
            a("s_waitcnt lgkmcnt(0)")
        if opt("tw", 0):
            a("s_cmp_lg_u32 s3, 7")
            a("s_cbranch_scc1 L_end0")
            a("s_waitcnt lgkmcnt(0)")
            srd(a, 56, 38, 0x20000000)
            touches(a, opt("tw", 0))
            a("s_barrier")
        a("s_branch L_end0")
    a("""
    s_cmp_eq_u32 s3, 1
    s_cbranch_scc1 L_qh
    s_mov_b32 s58, 0x20000000
    s_mov_b32 s59, 0x20000
    s_waitcnt lgkmcnt(0)
    s_load_dwordx2 s[40:41], s[38:39], 0
    s_mov_b32 s56, s38
    s_mov_b32 s57, s39
    s_getreg_b32 s44, hwreg(HW_REG_XCC_ID, 0, 4)
    s_barrier
    s_cmp_eq_u32 s3, 6
    s_cbranch_scc1 L_f
    s_cmp_eq_u32 s3, 7
    s_cbranch_scc1 L_o
    s_cmp_eq_u32 s3, 2
    s_cbranch_scc1 L_att
    s_mov_b64 exec, 0
    s_cmp_eq_u32 s3, 3
    s_cbranch_scc1 PAD_Q1
    s_cmp_eq_u32 s3, 4
    s_cbranch_scc1 PAD_Q2
    s_branch PAD_A1
    """)
    a.label("L_end0")
    a("s_endpgm")
    a.label("L_qh")
    a("""
    s_setprio 3
    v_lshlrev_b32 v2, 4, v0
    s_mov_b32 s50, 1024
    s_mov_b32 s51, 0x20000
    s_mov_b32 s58, 0x20000000
    s_mov_b32 s59, 0x20000
    s_waitcnt lgkmcnt(0)
    s_mov_b32 s48, s16
    s_mov_b32 s49, s17
    s_mov_b32 s56, s38
    s_mov_b32 s57, s39
    buffer_load_dwordx4 v[8:11], v2, s[48:51], 0 offen
    s_getreg_b32 s44, hwreg(HW_REG_XCC_ID, 0, 4)
    s_barrier
    s_branch L_q
    """)

    a.label("L_ld")
    a("s_setprio 2")
    a("""
    v_lshrrev_b32 v6, 3, v0
    v_bfe_u32 v3, v0, 4, 1
    v_lshlrev_b32 v3, 1, v3
    v_and_b32 v8, 7, v0
    v_xor_b32 v8, v8, v3
    v_lshlrev_b32 v8, 4, v8
    v_lshl_or_b32 v10, v6, 13, v8
    v_xor_b32 v21, 64, v10
    v_lshrrev_b32 v9, 5, v0
    s_lshr_b32 s6, s5, 3
    s_lshl_b32 s6, s6, 20
    s_lshl_b32 s7, s4, 10
    s_add_u32 s6, s6, s7
    s_and_b32 s7, s5, 7
    s_lshl_b32 s7, s7, 7
    s_add_u32 s6, s6, s7
    s_mov_b32 s46, 0x400000
    s_mov_b32 s47, 0x20000
    s_mov_b32 m0, %d
    s_movk_i32 s42, 1024
    s_movk_i32 s43, 4096
    s_mov_b32 s40, 0x20000
    s_mov_b32 s41, 0x10000
    """ % L_WQ)
    for b in range(4):
        a("v_add_u32 v2, %d, v5" % (4 * b))
        a("v_xor_b32 v2, v4, v2")
        a("v_lshlrev_b32 v2, 4, v2")
        a("v_lshl_or_b32 v%d, v5, 8, v2" % (12 + b))
    a("""
    s_lshl_b32 s8, s4, 24
    s_lshl_b32 s7, s5, %d
    s_add_u32 s8, s8, s7
    s_add_u32 s8, s8, 0xf00000
    s_mov_b32 s9, s8
    s_mov_b32 s50, 0x8000000
    s_mov_b32 s51, 0x20000
    s_waitcnt lgkmcnt(0)
    s_mov_b32 s44, s22
    s_mov_b32 s45, s23
    s_mov_b32 s48, s18
    s_mov_b32 s49, s19
    """ % ({0: 15, 1: 12}[kvmode]))
    a.stamp()

    def loader_setup2():
        a("v_mul_u32_u24 v11, %d, v6" % 3584)
        a("v_add_u32 v11, v11, v8")
        a("v_xor_b32 v22, 64, v11")
        for b in range(2):
            a("v_add_u32 v2, %d, v5" % (4 * b))
            a("v_lshlrev_b32 v2, 1, v2")
            a("v_xor_b32 v2, v4, v2")
            a("v_lshlrev_b32 v2, 4, v2")
            a("v_lshl_or_b32 v%d, v5, 8, v2" % (16 + b))
        a("v_and_b32 v3, 31, v0")
        for b in range(2):
            a("v_add_u32 v2, %d, v9" % (2 * b))
            a("v_lshlrev_b32 v2, 2, v2")
            a("v_xor_b32 v2, v3, v2")
            a("v_lshlrev_b32 v2, 4, v2")
            a("v_lshl_or_b32 v%d, v9, 10, v2" % (18 + b))
        a("v_lshlrev_b32 v2, 2, v5")
        a("v_xor_b32 v2, v4, v2")
        a("v_lshlrev_b32 v2, 4, v2")
        a("v_lshl_or_b32 v20, v5, 10, v2")
        srd(a, 52, 20, 0x8000000)
        a("s_bitcmp1_b32 s5, 2")
        a("s_cselect_b32 s60, s30, s28")
        a("s_cselect_b32 s61, s31, s29")
        a("s_mov_b32 s62, 0x%x" % (512 * 1792 * 2))
        a("s_mov_b32 s63, 0x20000")
        srd(a, 68, 24, 4096 * 512 * 2)
        srd(a, 72, 32, 1792 * 512 * 2)
        srd(a, 56, 38, 0x20000000)
        fcoords(a)
        a("""
        s_mul_i32 s10, s15, %d
        s_lshl_b32 s7, s14, 6
        s_and_b32 s7, s7, -128
        s_add_u32 s10, s10, s7
        s_movk_i32 s41, %d
        """ % (128 * 3584, 8 * 3584))
        a("""
        s_lshl_b32 s12, s4, 19
        s_lshr_b32 s7, s5, 1
        s_lshl_b32 s7, s7, 15
        s_add_u32 s12, s12, s7
        s_and_b32 s7, s5, 1
        s_lshl_b32 s7, s7, 9
        s_add_u32 s12, s12, s7
        """)
        a("""
        s_lshl_b32 s13, s14, 15
        s_lshl_b32 s7, s15, 8
        s_add_u32 s13, s13, s7
        """)

    def item(kind, i):
        def m0set(base, i): return "s_mov_b32 m0, %d" % base if i == 0 else "s_add_u32 m0, m0, s42"
        if kind == "wq":
            pre = [] if i == 0 else ["s_add_u32 m0, m0, s42", "s_add_u32 s6, s6, s41"]
            return pre + ["buffer_load_dwordx4 v%d, s[44:47], s6 offen nt lds" % (21 if i & 1 else 10)]
        if kind in ("K", "V"):
            base = L_K if kind == "K" else L_V
            sr = 8 if kind == "K" else 9
            pre = []
            if i % 4 == 0:
                pre = ["s_mov_b32 m0, %d" % (base + i * 1024) if i in (0, 16) else "s_add_u32 m0, m0, s43", ("s_add_u32 s%d, s%d, %s" % (sr, sr, "s43" if kvmode == 0 else "s40")) if i else "s_nop 0"]
                if opt("kvx", 0) and i:
                    u = i // 4
                    pre[1] = "s_xor_b32 s%d, s%d, 0x%x" % (sr, sr, (u * 0x21000) ^ ((u - 1) * 0x21000))
            vr = 12 + (i % 4) if kind == "K" else 16 + (i % 2)
            return pre + ["buffer_load_dwordx4 v%d, s[%d:%d], s%d offen offset:%d nt lds" % (vr, 48 if kind == "K" else 52, 51 if kind == "K" else 55, sr, (i % 4) * 1024)]
        if kind == "G":
            pre = [m0set(L_G, i), "s_add_u32 s10, s10, s41" if i else "s_nop 0"]
            return pre + ["buffer_load_dwordx4 v%d, s[60:63], s10 offen nt lds" % (22 if i & 1 else 11)]
        if kind == "wo":
            pre = [m0set(L_WO, i), "s_add_u32 s12, s12, 0x800" if i else "s_nop 0"]
            return pre + ["buffer_load_dwordx4 v%d, s[68:71], s12 offen nt lds" % (18 + (i % 2))]
        if kind == "wd":
            pre = [m0set(L_WD, i), "s_add_u32 s13, s13, s43" if i else "s_nop 0"]
            return pre + ["buffer_load_dwordx4 v20, s[72:75], s13 offen nt lds"]

    ORD = {0: "K V G wo wd", 1: "K G wd wo V", 2: "K G wo V wd", 3: "K G V wo wd", 4: "K G Va wo wd Vb", 5: "K G wd Va wo Vb", 6: "K Va G wd wo Vb", 7: "K G wo wd V"}[opt("ord", 0)].split()
    CNT = {"wq": 16, "K": 32, "V": 32, "G": 16, "wo": 16, "wd": 8}
    def expand(k):
        if k == "Va": return [("V", i) for i in range(16)]
        if k == "Vb": return [("V", i) for i in range(16, 32)]
        return [(k, i) for i in range(CNT[k])]
    seqfull = expand("wq")
    for k in ORD: seqfull += expand(k)
    PV = {it: n + 1 for n, it in enumerate(seqfull)}
    def mark(k, i):
        if k == "wq": return i in ((3, 7, 11, 15) if opt("q4", 0) else (7, 15))
        if k in ("K", "V"): return i % 8 == 7
        if k == "G": return i == 15 or (opt("g2", 0) and i == 7)
        return i == CNT[k] - 1
    TH_K0 = PV[("K", 7)]; TH_V3 = PV[("V", 23)]; TH_V = PV[("V", 31)]; TH_G = PV[("G", 15)]; TH_WO = PV[("wo", 15)]; TH_WD = PV[("wd", 7)]
    STAMPS = (16, PV[("K", 31)], TH_V, TH_G, TH_WO, TH_WD)
    def stream(full):
        seq = [it for it in seqfull if full or it[0] not in ("G", "wd")]
        prog = {}
        for n, (k, i) in enumerate(seq):
            if mark(k, i): prog[n + 1] = PV[(k, i)]
        return seq, prog

    WL = opt("WL", W)
    def win(n):
        if n >= 80: return WL
        if n < opt("wqn", 0): return max(opt("wqw", W), W0 - max(0, n - W0) * opt("shrink", 1))
        return max(W, W0 - max(0, n - W0) * opt("shrink", 1))
    seqF, progF = stream(True)
    seqS, progS = stream(False)
    NB = opt("nb", 6)
    if NB == 0: a("s_barrier")
    for i in range(16):
        for x in item("wq", i): a(x)
        if i == NB - 1: a("s_barrier")
    assert 16 <= W0 <= 48
    for n in range(16, W0):
        for x in item(*seqF[n]): a(x)
    a.stamp()
    loader_setup2()

    def publish(prog, cnt):
        a("v_mov_b32 v2, %d" % prog[cnt])
        a("ds_write_b32 v7, v2 offset:%d" % F_PROG)
        if prog[cnt] in STAMPS: a.stamp()
    def emit(seq, prog, n0, n1, done):
        for n in range(n0, n1):
            target = n - win(n) + 1
            for cnt in range(done + 1, target + 1):
                if cnt in prog and cnt < target:
                    a("s_waitcnt vmcnt(%d)" % (n - cnt))
                    publish(prog, cnt)
            if target > done:
                a("s_waitcnt vmcnt(%d)" % (n - target))
            for x in item(*seq[n]): a(x)
            if target > done and target in prog: publish(prog, target)
            done = max(done, target)
        return done
    def drain(seq, prog, done):
        N = len(seq)
        for cnt in range(done + 1, N + 1):
            if cnt in prog:
                a("s_waitcnt vmcnt(%d)" % (N - cnt))
                publish(prog, cnt)
    PZ = opt("pause", 0)
    def tail(seq, prog, done, np_, need):
        if not PZ:
            d2 = emit(seq, prog, 80, len(seq), done)
            drain(seq, prog, d2)
            return
        ahead = opt("pzah", 0)
        d2 = emit(seq, prog, 80, np_ + ahead, done)
        for cnt in range(d2 + 1, np_ + 1):
            if cnt in prog:
                a("s_waitcnt vmcnt(%d)" % (np_ + ahead - cnt))
                publish(prog, cnt)
        lab = a.newlabel("L_pz")
        a("s_mov_b32 s37, %d" % opt("pzmax", 24))
        a.label(lab)
        a("ds_read_b32 v3, v7 offset:%d" % F_PZ)
        a("s_waitcnt lgkmcnt(0)")
        a("v_cmp_gt_u32 vcc, %d, v3" % need)
        a("s_cbranch_vccz %s_ok" % lab)
        a("s_sub_u32 s37, s37, 1")
        a("s_cbranch_scc0 %s" % lab)
        a.label(lab + "_ok")
        for n in range(np_ + ahead, len(seq)):
            for x in item(*seq[n]): a(x)
        drain(seq, prog, np_)
    NC = 0
    while seqF[NC] == seqS[NC]: NC += 1
    done = emit(seqF, progF, W0, NC, 0)
    nst1 = a.nstamp
    a("s_cmp_lg_u32 s36, 0")
    a("s_cbranch_scc1 L_ld_full")
    drain(seqS, progS, emit(seqS, progS, NC, len(seqS), done))
    a.stamp_flush(28)
    a("s_endpgm")
    a.label("L_ld_full")
    a.nstamp = nst1
    drain(seqF, progF, emit(seqF, progF, NC, len(seqF), done))
    if opt("wb", 0) & 4:
        a("s_cmp_lg_u32 s5, %d" % opt("wbc", 0))
        a("s_cbranch_scc1 L_ld_nwb")
        if opt("wbd", 0): a("s_sleep %d" % opt("wbd", 0))
        a("buffer_wbl2 sc1")
        a.label("L_ld_nwb")
    a.stamp_flush(28, [("min", 0, 0), ("max", 0, 1)] + [("max", 3 + i, 2 + i) for i in range(6)] + [("sum", 3 + i, 8 + i) for i in range(6)])
    a("s_endpgm")

    a.nstamp = nst0
    a.page()
    a.label("L_q")
    a("""
    v_add_u32 v12, %d, v2
    s_lshr_b32 s6, s5, 3
    s_lshl_b32 s6, s6, 8
    s_add_u32 s6, s6, %d
    v_lshlrev_b32 v13, 4, v5
    v_add_u32 v13, s6, v13
    """ % (L_XN, L_XN))
    traddr128(a, 120, L_WQ, 3, 6)
    a("""
    s_lshl_b32 s14, s4, 14
    s_lshl_b32 s15, s5, 9
    s_add_u32 s15, s15, s14
    s_add_u32 s15, s15, 0x%x
    v_lshrrev_b32 v3, 1, v4
    v_lshlrev_b32 v3, 7, v3
    v_lshl_or_b32 v3, v5, 5, v3
    v_and_b32 v6, 1, v0
    v_lshl_or_b32 v3, v6, 4, v3
    s_mov_b32 s8, 0xaaaaaaaa
    s_mov_b32 s9, 0xaaaaaaaa
    s_mov_b32 s10, 0xcccccccc
    s_mov_b32 s11, 0xcccccccc
    s_mov_b32 s12, 0xf0f0f0f0
    s_mov_b32 s13, 0xf0f0f0f0
    v_mov_b32 v149, 1
    """ % INB1)
    a("""
    s_mov_b32 s52, s34
    s_mov_b32 s53, s35
    s_mov_b32 s54, 1024
    s_mov_b32 s55, 0x20000
    """)
    PT = opt("pt", 0)
    if PT & 1:
        a("""
        s_mov_b32 exec_lo, 0x00ff00ff
        s_mov_b32 exec_hi, 0x00ff00ff
        buffer_load_dwordx4 v[160:163], v3, s[56:59], s15 offen sc1
        s_mov_b64 exec, -1
        s_waitcnt vmcnt(1)
        """)
    else:
        a("s_waitcnt vmcnt(0)")
    a.stamp()
    layernorm(a, 8, 80, 88, 96)
    a("ds_write_b128 v12, v[96:99]")
    a("ds_write_b32 v7, v149 offset:%d" % F_XN)
    a.pad("PAD_Q1", "L_att_x")
    for k in range(4):
        a("ds_read_b128 v[%d:%d], v13 offset:%d" % (100 + 4 * k, 103 + 4 * k, k * 64))
    a.stamp()
    for k in range(4 if opt("q4", 0) else 0):
        lds_wait_ge(a, 7, 80, F_PROG, 4 * (k + 1), sleep=0)
        for u in range(4):
            for h in range(2):
                r = 16 + k * 16 + (u * 2 + h) * 2
                a("ds_read_b64_tr_b16 v[%d:%d], v%d offset:%d" % (r, r + 1, 120 + u, k * 4096 + h * 512))
        if k == 3: a("ds_read_b96 v[150:152], v7 offset:%d" % F_TAG)
        for u in range(4):
            a("s_waitcnt lgkmcnt(%d)" % (6 - 2 * u + (k == 3)))
            r = 16 + k * 16 + u * 4
            c_ = "0" if k == 0 else "v[%d:%d]" % (132 + 4 * u, 135 + 4 * u)
            a("v_mfma_f32_16x16x32_bf16 v[%d:%d], v[%d:%d], v[%d:%d], %s" % (132 + 4 * u, 135 + 4 * u, r, r + 3, 100 + 4 * k, 103 + 4 * k, c_))
    for half in range(0 if opt("q4", 0) else 2):
        lds_wait_ge(a, 7, 80, F_PROG, 8 * (half + 1), sleep=0)
        for kk in range(2):
            k = half * 2 + kk
            for u in range(4):
                for h in range(2):
                    r = 16 + (kk * 8 + u * 2 + h) * 2 + half * 32
                    a("ds_read_b64_tr_b16 v[%d:%d], v%d offset:%d" % (r, r + 1, 120 + u, k * 4096 + h * 512))
        if half == 1: a("ds_read_b96 v[150:152], v7 offset:%d" % F_TAG)
        for kk in range(2):
            k = half * 2 + kk
            for u in range(4):
                if u % 2 == 0: a("s_waitcnt lgkmcnt(%d)" % (12 - 8 * kk - 2 * u + half))
                r = 16 + (kk * 8 + u * 2) * 2 + half * 32
                c_ = "0" if k == 0 else "v[%d:%d]" % (132 + 4 * u, 135 + 4 * u)
                a("v_mfma_f32_16x16x32_bf16 v[%d:%d], v[%d:%d], v[%d:%d], %s" % (132 + 4 * u, 135 + 4 * u, r, r + 3, 100 + 4 * k, 103 + 4 * k, c_))
    a.stamp()
    a("s_mov_b32 s64, SPIN")
    a.pad("PAD_Q2", "L_att_x")
    a.label("L_q_tw")
    a("""
    s_waitcnt lgkmcnt(0)
    v_cmp_eq_u32 vcc, 0, v152
    s_cbranch_vccz L_q_tok
    ds_read_b96 v[150:152], v7 offset:%d
    s_sub_u32 s64, s64, 1
    s_cbranch_scc1 L_end
    s_branch L_q_tw
    """ % F_TAG)
    a.label("L_q_tok")
    a("""
    v_or_b32 v158, s44, v150
    v_mov_b32 v159, v151
    v_readfirstlane_b32 s40, v150
    v_readfirstlane_b32 s41, v151
    """)
    for u in range(4):
        a("v_cndmask_b32_e64 v%d, v%d, v%d, s[8:9]" % (80 + 2 * u, 132 + 4 * u, 134 + 4 * u))
        a("v_cndmask_b32_e64 v%d, v%d, v%d, s[8:9]" % (81 + 2 * u, 133 + 4 * u, 135 + 4 * u))
    a("""
    v_cndmask_b32_e64 v80, v80, v82, s[10:11]
    v_cndmask_b32_e64 v81, v81, v83, s[10:11]
    v_cndmask_b32_e64 v84, v84, v86, s[10:11]
    v_cndmask_b32_e64 v85, v85, v87, s[10:11]
    s_mov_b32 exec_lo, 0x00ff00ff
    s_mov_b32 exec_hi, 0x00ff00ff
    v_cndmask_b32_e64 v156, v80, v84, s[12:13]
    v_cndmask_b32_e64 v157, v81, v85, s[12:13]
    %s
    ds_write_b32 v7, v149 offset:%d
    """ % ("s_nop 0" if forceslow else "buffer_store_dwordx4 v[156:159], v3, s[56:59], s15 offen", F_QPUB))
    a.stamp()
    a("s_setprio 0")
    a("s_mov_b32 s64, SPIN")
    a.label("L_q_w")
    a("""
    s_sleep 4
    ds_read_b64 v[80:81], v7 offset:%d
    s_sub_u32 s64, s64, 1
    s_cbranch_scc1 L_end
    s_waitcnt lgkmcnt(0)
    v_cmp_ne_u32 vcc, 0, v81
    s_cbranch_vccnz L_q_slow
    v_and_b32 v80, 7, v80
    v_cmp_ne_u32 vcc, 4, v80
    s_cbranch_vccnz L_q_w
    """ % F_Q)
    if opt("rs", 0) & 2:
        lds_wait_ge(a, 7, 80, F_APUB, 1, sleep=4)
        if opt("rsq", 0): a("s_sleep %d" % opt("rsq", 0))
        a("buffer_store_dwordx4 v[156:159], v3, s[56:59], s15 offen sc1")
    a("s_branch L_q_dd")
    a.label("L_q_slow")
    a("""
    s_add_u32 s15, s15, 0x%x
    buffer_store_dwordx4 v[156:159], v3, s[56:59], s15 offen sc1
    """ % (INB1S - INB1))
    a.label("L_q_dd")
    a("s_mov_b64 exec, -1")
    a.stamp()
    a("s_lshr_b32 s6, s4, 2")
    a("s_lshl_b32 s6, s6, 3")
    a("s_add_u32 s6, s6, s5")
    a("s_cmp_ge_u32 s6, 32")
    a("s_cbranch_scc1 L_fin")
    if opt("wb", 0) & 8:
        a("s_cmp_lg_u32 s5, %d" % opt("wbc", 0))
        a("s_cbranch_scc1 L_q_nwb")
        lds_wait_ge(a, 7, 160, F_PZ, 1, sleep=4)
        if opt("wbd", 0): a("s_sleep %d" % opt("wbd", 0))
        a("buffer_wbl2 sc1")
        a.label("L_q_nwb")
    if diag: a("s_branch L_q_done")
    a("s_endpgm")
    a.page()
    a.label("L_fin")
    if opt("skip", 0) & 32: a("s_endpgm")
    a("""
    s_setprio 1
    s_and_b32 s6, s4, 3
    s_lshl_b32 s6, s6, 3
    s_add_u32 s6, s6, s5
    s_sub_u32 s6, s6, 24
    s_lshl_b32 s6, s6, 1
    s_lshr_b32 s7, s3, 2
    s_add_u32 s6, s6, s7
    s_mov_b32 s65, s6
    s_lshl_b32 s12, s6, 13
    s_add_u32 s12, s12, 0x%x
    s_add_u32 s13, s12, 4096
    s_mul_i32 s14, s6, 3584
    s_add_u32 s14, s14, 0x%x
    s_lshl_b32 s15, s6, 4
    v_and_b32 v3, 3, v0
    v_lshlrev_b32 v3, 2, v3
    v_add_u32 v3, s15, v3
    s_waitcnt vmcnt(0)
    buffer_load_dword v6, v3, s[48:51], 0 offen
    """ % (INB3S, INB3D))
    FN = opt("fn", 0)
    for i, M in enumerate([[16 + 2 * k for k in range(12)], [42, 44, 46, 66, 68, 70, 72, 74, 94, 96, 98, 100]]):
        if FN and i: break
        for m in M: a("s_mov_b64 s[%d:%d], -1" % (m, m + 1))
        a("s_mov_b32 s%d, 0" % (M[11] + 1))
        a("v_mov_b32 v%d, 0" % (16 + 48 * i + 44))
        a("v_mov_b32 v%d, 0" % (16 + 48 * i + 45))
    for b in [16, 64, 112, 190][1:FN]:
        a("v_mov_b32 v%d, 0" % (b + 44))
        a("v_mov_b32 v%d, 0" % (b + 45))
    if diag:
        a("v_mov_b32 v180, 0")
        a("v_mov_b32 v181, 0")
        a("s_mov_b32 s63, 1")
    if opt("fpre", 0):
        if opt("fpre", 0) > 1: lds_wait_ge(a, 7, 160, F_PROG, opt("fpre", 0), sleep=2)
        for j in range(3): a("s_add_u32 s%d, s%d, 0x%x" % (8 + j, 12 + j, opt("fprd", 0) * 0x100000))
        for k in range(12):
            if k == 11: a("s_mov_b64 exec, 0xffffffff")
            a("buffer_load_dwordx4 v[%d:%d], v2, s[56:59], s%d offen offset:%d sc1" % (16 + 4 * k, 19 + 4 * k, 8 + k // 4, (k % 4) * 1024))
        a("s_mov_b64 exec, -1")
        a("s_waitcnt vmcnt(0)")
    lds_wait_ge(a, 7, 160, F_OPUB, 1, sleep=2)
    a("s_setprio 3")
    a.stamp()
    NS = 2
    SK = opt("skip", 0)
    FM = [[16 + 2 * k for k in range(12)], [42, 44, 46, 66, 68, 70, 72, 74, 94, 96, 98, 100]]
    bases = [16 + 48 * i for i in range(NS)]
    if FN:
        NS = FN; bases = [16, 64, 112, 190][:FN]; FM = [FM[0]] * FN
    def fissue(i):
        base = bases[i]
        for k in range(12):
            a("s_mov_b64 exec, s[%d:%d]" % (FM[i][k], FM[i][k] + 1))
            a("buffer_load_dwordx4 v[%d:%d], v2, s[56:59], s%d offen offset:%d sc1" % (base + 4 * k, base + 3 + 4 * k, 12 + k // 4, (k % 4) * 1024))
        a("s_mov_b64 exec, -1")
    def fcheck(i, lab):
        base = bases[i]
        for k in range(12):
            a("v_cmp_ne_u64 s[%d:%d], s[40:41], v[%d:%d]" % (FM[i][k], FM[i][k] + 1, base + 4 * k + 2, base + 4 * k + 3))
        a("s_mov_b32 s%d, 0" % (FM[i][11] + 1))
        for k in range(12):
            if (SK & 1 and k >= 8) or (SK & 2 and k < 8): a("s_mov_b64 s[%d:%d], 0" % (FM[i][k], FM[i][k] + 1))
        for k in range(12):
            a("s_or_b64 s[60:61], s[%d:%d], %s" % (FM[i][k], FM[i][k] + 1, "s[60:61]" if k else "0"))
        a.log(63, "s[60:61]", 180)
        a("s_cbranch_scc0 %s" % lab)
    a("s_mov_b32 s64, SPIN")
    if opt("fdel", 0): a("s_sleep %d" % opt("fdel", 0))
    FK = opt("fk", 0)
    if FK:
        bases = bases[:1]; NS = 1
        for i in range(FK):
            fissue(0)
            if i < FK - 1: a("s_sleep %d" % opt("fstag", 8))
        a.label("L_f_poll3")
        a("s_waitcnt vmcnt(%d)" % (12 * (FK - 1)))
        fcheck(0, "L_fin_d0")
        fissue(0)
    else:
        for i in range(NS):
            fissue(i)
            if i < NS - 1: a("s_sleep %d" % opt("fstag", 8))
        a.label("L_f_poll3")
        for i in range(NS):
            a("s_waitcnt vmcnt(%d)" % (12 * (NS - 1)))
            fcheck(i, "L_fin_d%d" % i)
            fissue(i)
    a("s_sub_u32 s64, s64, 1")
    a("s_cbranch_scc1 L_end")
    a("s_branch L_f_poll3")
    for i, b in enumerate(bases):
        a.label("L_fin_d%d" % i)
        for e in range(2):
            a("v_add_f32 v%d, v%d, v%d" % (160 + e, b + e, b + 4 + e))
            a("v_add_f32 v%d, v%d, v%d" % (164 + e, b + 8 + e, b + 12 + e))
            a("v_add_f32 v%d, v%d, v%d" % (166 + e, b + 16 + e, b + 20 + e))
            a("v_add_f32 v%d, v%d, v%d" % (168 + e, b + 24 + e, b + 28 + e))
            a("v_add_f32 v%d, v%d, v%d" % (162 + e, b + 32 + e, b + 36 + e))
            a("v_add_f32 v%d, v%d, v%d" % (170 + e, b + 40 + e, b + 44 + e))
        if i < NS - 1: a("s_branch L_fin_dd")
    a.label("L_fin_dd")
    a.stamp()
    a("""
    v_add_f32 v160, v160, v164
    v_add_f32 v161, v161, v165
    v_add_f32 v166, v166, v168
    v_add_f32 v167, v167, v169
    v_add_f32 v162, v162, v170
    v_add_f32 v163, v163, v171
    v_add_f32 v160, v160, v166
    v_add_f32 v161, v161, v167
    """)
    for r in (4, 8):
        a.nop(1)
        for v in (162, 163, 160, 161):
            a("v_add_f32_dpp v%d, v%d, v%d row_ror:%d row_mask:0xf bank_mask:0xf" % (v, v, v, r))
    xreduce(a, "add", [160, 161, 162, 163], [164, 165, 166, 167])
    a("""
    v_cvt_pk_bf16_f32 v164, v160, v161
    v_cvt_pk_bf16_f32 v165, v162, v163
    v_lshlrev_b32 v160, 16, v164
    v_and_b32 v161, 0xffff0000, v164
    v_lshlrev_b32 v162, 16, v165
    v_and_b32 v163, 0xffff0000, v165
    v_mul_f32 v164, 0xbfb8aa3b, v162
    v_mul_f32 v165, 0xbfb8aa3b, v163
    v_exp_f32 v164, v164
    v_exp_f32 v165, v165
    s_nop 0
    v_add_f32 v164, 1.0, v164
    v_add_f32 v165, 1.0, v165
    v_rcp_f32 v166, v164
    v_rcp_f32 v167, v165
    s_nop 0
    v_mul_f32 v168, v162, v166
    v_mul_f32 v169, v163, v167
    v_fma_f32 v170, -v168, v164, v162
    v_fma_f32 v171, -v169, v165, v163
    v_fma_f32 v170, v170, v166, v168
    v_fma_f32 v171, v171, v167, v169
    v_cmp_class_f32 vcc, v170, 3
    v_cmp_class_f32 s[60:61], v171, 3
    s_nop 1
    v_cndmask_b32 v170, v170, v168, vcc
    v_cndmask_b32_e64 v171, v171, v169, s[60:61]
    v_cvt_pk_bf16_f32 v164, v170, v171
    v_lshlrev_b32 v170, 16, v164
    v_and_b32 v171, 0xffff0000, v164
    v_mul_f32 v170, v160, v170
    v_mul_f32 v171, v161, v171
    v_cvt_pk_bf16_f32 v164, v170, v171
    v_lshlrev_b32 v170, 16, v164
    v_and_b32 v171, 0xffff0000, v164
    v_lshlrev_b32 v164, 16, v6
    v_and_b32 v165, 0xffff0000, v6
    v_add_f32 v170, v164, v170
    v_add_f32 v171, v165, v171
    v_cvt_pk_bf16_f32 v164, v170, v171
    s_mov_b64 exec, 15
    buffer_store_dword v164, v3, s[52:55], 0 offen%s
    """ % (" sc1" if opt("wb", 0) & 2 else ""))
    a.log_flush(180, 178, 2)
    a("""
    s_cmp_lg_u32 s65, 0
    s_cbranch_scc1 L_q_done
    s_mov_b64 exec, 1
    v_mov_b32 v166, s40
    v_mov_b32 v167, s41
    v_mov_b32 v168, 0
    buffer_store_dwordx2 v[166:167], v168, s[56:59], 0 offen%s
    """ % (" sc1" if opt("wb", 0) & 2 else ""))
    a.label("L_q_done")
    a.stamp()
    a.stamp_flush(172, [("max", 8, 14), ("max1", 5, 15)])
    a("s_endpgm")

    a.nstamp = nst0
    a.page()
    a.label("L_att_x")
    a("s_mov_b64 exec, -1")
    a.label("L_att")
    a("s_sub_u32 s62, s3, 2")
    a("""
    s_lshl_b32 s6, s62, 13
    s_add_u32 s6, s6, %d
    v_lshlrev_b32 v2, 8, v4
    v_add_u32 v2, s6, v2
    """ % L_K)
    for kk in range(4):
        a("v_add_u32 v3, %d, v5" % (4 * kk))
        a("v_xor_b32 v3, v3, v4")
        a("v_lshl_add_u32 v%d, v3, 4, v2" % (8 + kk))
    a("""
    v_lshrrev_b32 v3, 2, v4
    v_lshlrev_b32 v6, 8, v3
    v_lshl_or_b32 v6, v5, 4, v6
    v_add_u32 v6, %d, v6
    v_lshl_add_u32 v2, v5, 2, v3
    v_lshlrev_b32 v2, 8, v2
    v_add_u32 v2, %d, v2
    v_and_b32 v12, 1, v0
    v_lshl_add_u32 v2, v12, 3, v2
    v_and_b32 v12, 1, v5
    v_lshl_add_u32 v12, v12, 2, v3
    v_lshlrev_b32 v12, 1, v12
    v_bfe_u32 v13, v0, 1, 1
    s_lshl_b32 s6, s62, 2
    v_add_u32 v13, s6, v13
    v_xor_b32 v12, v12, v13
    v_lshl_add_u32 v12, v12, 4, v2
    v_xor_b32 v13, 32, v12
    """ % (L_Q, L_V))
    a("""
    v_lshlrev_b32 v15, 4, v0
    v_add_u32 v15, %d, v15
    s_lshl_b32 s6, s62, 10
    v_add_u32 v14, s6, v15
    v_lshlrev_b32 v17, 4, v3
    v_add_u32 v17, %d, v17
    s_lshl_b32 s6, s62, 6
    v_add_u32 v16, s6, v17
    """ % (L_P, L_ST))
    a("""
    s_lshl_b32 s6, s4, 17
    s_lshl_b32 s7, s62, 13
    s_add_u32 s6, s6, s7
    s_lshl_b32 s7, s5, 8
    s_add_u32 s6, s6, s7
    s_add_u32 s12, s6, 0x%x
    v_lshlrev_b32 v18, 15, v3
    v_lshl_or_b32 v18, v5, 6, v18
    v_and_b32 v2, 3, v0
    v_lshl_or_b32 v18, v2, 4, v18
    s_lshl_b32 s6, s4, 11
    s_lshl_b32 s7, s5, 4
    s_add_u32 s6, s6, s7
    s_add_u32 s13, s6, 0x%x
    v_lshlrev_b32 v19, 9, v3
    s_mov_b32 s8, 0xaaaaaaaa
    s_mov_b32 s9, 0xaaaaaaaa
    s_mov_b32 s10, 0xcccccccc
    s_mov_b32 s11, 0xcccccccc
    s_mov_b32 s14, 0x%x
    s_mov_b32 s15, 0x%x
    s_lshl_b32 s63, s62, 3
    s_add_u32 s63, s63, %d
    """ % (INB2, INBS, SCALE, LOG2E, TH_K0))
    if PT & 2:
        a("buffer_load_dwordx4 v[196:199], v18, s[56:59], s12 offen sc1")
    a("s_cmp_lg_u32 s62, 0")
    a("s_cbranch_scc1 L_att_gt")
    if PT & 2:
        a("s_mov_b64 exec, 0x1111")
        a("buffer_load_dwordx4 v[200:203], v19, s[56:59], s13 offen sc1")
        a("s_mov_b64 exec, -1")
    make_tag(a)
    a("""
    v_mov_b32 v22, s40
    v_mov_b32 v23, s41
    v_mov_b32 v24, 1
    ds_write_b96 v7, v[22:24] offset:%d
    s_branch L_att_nt
    """ % F_TAG)
    a.label("L_att_gt")
    get_tag(a, 22)
    a.label("L_att_nt")
    a("""
    s_lshl_b32 s16, s4, 14
    s_lshl_b32 s6, s62, 10
    s_add_u32 s16, s16, s6
    s_add_u32 s16, s16, 0x%x
    s_add_u32 s17, s16, 0x1000
    s_add_u32 s18, s16, 0x2000
    s_add_u32 s19, s16, 0x3000
    v_lshlrev_b32 v21, 4, v0
    s_lshl_b32 s6, s62, 8
    s_add_u32 s6, s6, %d
    v_lshlrev_b32 v25, 2, v0
    v_add_u32 v25, s6, v25
    s_or_b32 s46, s40, s44
    s_mov_b32 s47, s41
    s_mov_b32 s65, 0
    """ % (INB1, L_Q))
    if opt("fz", 0):
        for r in range(212, 216): a("v_mov_b32 v%d, 0x3f803f80" % r)
    QM = [[20, 22, 24, 26], [28, 30, 32, 34]]
    QB = [128, 144]
    for M in QM:
        for m in M: a("s_mov_b64 s[%d:%d], -1" % (m, m + 1))
    def qissue(i, sa=16):
        for k in range(4):
            a("s_mov_b64 exec, s[%d:%d]" % (QM[i][k], QM[i][k] + 1))
            a("buffer_load_dwordx4 v[%d:%d], v21, s[56:59], s%d offen sc1" % (QB[i] + 4 * k, QB[i] + 3 + 4 * k, sa + k))
        a("s_mov_b64 exec, -1")
    def qcheck(i):
        for k in range(4):
            a("v_cmp_ne_u64 s[%d:%d], s[46:47], v[%d:%d]" % (QM[i][k], QM[i][k] + 1, QB[i] + 2 + 4 * k, QB[i] + 3 + 4 * k))
            if opt("skip", 0) & 8: a("s_mov_b64 s[%d:%d], 0" % (QM[i][k], QM[i][k] + 1))
        for k in range(4):
            a("s_or_b64 s[60:61], s[%d:%d], %s" % (QM[i][k], QM[i][k] + 1, "s[60:61]" if k else "0"))
    def kfrags():
        for tau in range(2):
            for kk in range(4):
                r = 32 + (tau * 4 + kk) * 4
                a("ds_read_b128 v[%d:%d], v%d offset:%d" % (r, r + 3, 8 + kk, tau * 4096))
    if diag:
        a("v_mov_b32 v208, 0")
        a("v_mov_b32 v209, 0")
        a("s_mov_b32 s66, 1")
    a.stamp()
    lds_wait_ge(a, 7, 20, F_QPUB, 1, sleep=2)
    a("s_setprio 2")
    if opt("qdel", 0): a("s_sleep %d" % opt("qdel", 0))
    Q1 = opt("q1", 0)
    qissue(0)
    a("s_mov_b32 s64, %d" % opt("qthr", 16))
    if not Q1:
        a("s_sleep %d" % opt("qstag", 10))
        qissue(1)
    a.label("L_q_poll")
    a("""
    s_cmp_lg_u32 s65, 0
    s_cbranch_scc1 L_q_nk
    ds_read_b32 v20, v7 offset:%d
    s_waitcnt lgkmcnt(0)
    v_cmp_gt_u32 vcc, s63, v20
    s_cbranch_vccnz L_q_nk
    """ % F_PROG)
    kfrags()
    a("s_mov_b32 s65, 1")
    a.label("L_q_nk")
    for i in range(1 if Q1 else 2):
        a("s_waitcnt vmcnt(%d)" % (0 if Q1 else 4))
        qcheck(i)
        a.log(66, "s[60:61]", 208, 67)
        a("s_cbranch_scc0 L_q_d%d" % i)
        qissue(i)
    a("s_sub_u32 s64, s64, 1")
    a("s_cbranch_scc0 L_q_poll")
    a("s_branch L_a_slow")
    for i in (1, 0):
        a.label("L_q_d%d" % i)
        b = QB[i]
        a("v_add_f32 v26, v%d, v%d" % (b, b + 4))
        a("v_add_f32 v27, v%d, v%d" % (b + 1, b + 5))
        a("v_add_f32 v28, v%d, v%d" % (b + 8, b + 12))
        a("v_add_f32 v29, v%d, v%d" % (b + 9, b + 13))
        if i == 1: a("s_branch L_q_d")
    a.label("L_q_d")
    a("""
    v_add_f32 v26, v26, v28
    v_add_f32 v27, v27, v29
    v_cvt_pk_bf16_f32 v26, v26, v27
    ds_write_b32 v25, v26
    s_mov_b64 exec, 1
    ds_add_u32 v7, v24 offset:%d
    s_mov_b64 exec, -1
    """ % F_Q)
    a.stamp()
    a("s_cmp_lg_u32 s65, 0")
    a("s_cbranch_scc1 L_att_kok")
    a("s_mov_b32 s64, SPIN")
    a.label("L_att_kw")
    a("""
    ds_read_b32 v20, v7 offset:%d
    s_waitcnt lgkmcnt(0)
    v_cmp_gt_u32 vcc, s63, v20
    s_cbranch_vccz L_att_kgo
    s_sleep 1
    s_sub_u32 s64, s64, 1
    s_cbranch_scc1 L_end
    s_branch L_att_kw
    """ % F_PROG)
    a.label("L_att_kgo")
    kfrags()
    a.label("L_att_kok")
    a("s_mov_b32 s64, SPIN")
    VP = opt("vp", 0)
    def vread(chi):
        for t in range(2):
            for h in range(2):
                r = 96 + chi * 8 + t * 4 + h * 2
                a("ds_read_b64_tr_b16 v[%d:%d], v%d offset:%d" % (r, r + 1, 12 + t, chi * 8192 + h * 4096))
    a.label("L_att_qw")
    if VP:
        a("ds_read_b96 v[28:30], v7 offset:%d" % F_PROG)
    else:
        a("ds_read_b32 v20, v7 offset:%d" % F_Q)
    for kk in range(4):
        a("ds_read_b128 v[%d:%d], v6 offset:%d" % (64 + 4 * kk, 67 + 4 * kk, kk * 64))
    a("""
    s_waitcnt lgkmcnt(0)
    v_and_b32 v26, 7, v%d
    v_cmp_ne_u32 vcc, 4, v26
    s_cbranch_vccz L_att_qok
    s_sub_u32 s64, s64, 1
    s_cbranch_scc1 L_end
    s_branch L_att_qw
    """ % (30 if VP else 20))
    a.label("L_att_qok")
    if opt("skip", 0) & 256: a("s_endpgm")
    a.stamp()
    a("s_setprio 3")
    a("v_readfirstlane_b32 s45, v%d" % (30 if VP else 20))
    if VP: a("v_cmp_gt_u32 vcc, 0x%x, v28" % TH_V)
    for kk in range(4):
        for tau in range(2):
            r = 32 + (tau * 4 + kk) * 4
            c_ = "0" if kk == 0 else "v[%d:%d]" % (80 + 4 * tau, 83 + 4 * tau)
            a("v_mfma_f32_16x16x32_bf16 v[%d:%d], v[%d:%d], v[%d:%d], %s" % (80 + 4 * tau, 83 + 4 * tau, r, r + 3, 64 + 4 * kk, 67 + 4 * kk, c_))
    if VP:
        a("s_cbranch_vccnz L_att_nv1")
        for chi in range(4): vread(chi)
        a("s_mov_b32 s65, 2")
        a.label("L_att_nv1")
    a.nop(8)
    if opt("cv", 0):
        for i in range(8): a("v_cvt_pk_bf16_f32 v%d, 0, v%d" % (80 + i, 80 + i))
        for i in range(8): a("v_mul_f32 v%d, s14, v%d" % (80 + i, 80 + i))
        for i in range(8): a("v_cvt_pk_bf16_f32 v%d, 0, v%d" % (80 + i, 80 + i))
    else:
      for rnd in range(2):
        for i in range(4):
            a("v_cvt_pk_bf16_f32 v%d, v%d, v%d" % (88 + i, 80 + 2 * i, 81 + 2 * i))
        for i in range(4):
            a("v_lshlrev_b32 v%d, 16, v%d" % (80 + 2 * i, 88 + i))
            a("v_and_b32 v%d, 0xffff0000, v%d" % (81 + 2 * i, 88 + i))
        if rnd == 0:
            for i in range(8):
                a("v_mul_f32 v%d, s14, v%d" % (80 + i, 80 + i))
    FZ = opt("fz", 0)
    def stats_pub(sfx):
        a("""
        s_mov_b64 exec, 0x1111
        s_cmp_eq_u32 s45, 4
        s_cbranch_scc1 L_att_stf%s
        buffer_store_dwordx4 v[64:67], v19, s[56:59], s13 offen sc1
        s_branch L_att_st2%s
        """ % (sfx, sfx))
        a.label("L_att_stf" + sfx)
        a("buffer_store_dwordx4 v[64:67], v19, s[56:59], s13 offen")
        a.label("L_att_st2" + sfx)
        a("s_mov_b64 exec, -1")
        a("ds_write_b32 v7, v29 offset:%d" % F_APUB)
    def zmfma(chi, left=None):
        for t in range(2):
            if left is not None: a("s_waitcnt lgkmcnt(%d)" % (left + 2 - 2 * t))
            r = 96 + chi * 8 + 4 * t; d = 160 + 4 * t
            a("v_mfma_f32_16x16x32_bf16 v[%d:%d], v[%d:%d], v[%d:%d], %s" % (d, d + 3, r, r + 3, 48 + 4 * chi, 51 + 4 * chi, "v[%d:%d]" % (d, d + 3) if chi else "0"))
    if FZ:
        assert VP
        a("""
        v_max3_f32 v92, |v80|, |v81|, |v82|
        v_max3_f32 v93, |v83|, |v84|, |v85|
        v_max3_f32 v92, v92, |v86|, |v87|
        v_max_f32 v92, v92, v93
        v_cmp_nge_f32 vcc, 0x%x, v92
        v_mov_b32 v31, 1
        """ % opt("fzthr", 0x42000000))
        for i in range(8): a("v_mul_f32 v%d, s15, v%d" % (80 + i, 80 + i))
        a("s_cbranch_vccnz L_att_fb")
        a.label("L_att_z")
        for i in range(8): a("v_exp_f32 v%d, v%d" % (80 + i, 80 + i))
        a("v_mov_b32 v64, 0")
        for i in range(4): a("v_cvt_pk_bf16_f32 v%d, v%d, v%d" % (88 + i, 80 + 2 * i, 81 + 2 * i))
        a("""
        ds_write_b128 v14, v[88:91]
        s_mov_b64 exec, 1
        ds_add_u32 v7, v31 offset:%d
        s_mov_b64 exec, -1
        v_mov_b32 v66, v22
        v_mov_b32 v67, v23
        v_mov_b32 v74, v22
        v_mov_b32 v75, v23
        """ % F_P)
        a.stamp()
        a("s_mov_b32 s64, SPIN")
        a.label("L_att_pw")
        a("ds_read2_b32 v[28:29], v7 offset0:%d offset1:%d" % (F_PROG // 4, F_P // 4))
        for w in range(4):
            a("ds_read_b128 v[%d:%d], v15 offset:%d" % (48 + 4 * w, 51 + 4 * w, 1024 * w))
        a("""
        s_sub_u32 s64, s64, 1
        s_cbranch_scc1 L_end
        s_cmp_eq_u32 s65, 2
        s_waitcnt lgkmcnt(0)
        s_cbranch_scc1 L_att_nv2
        v_cmp_gt_u32 vcc, 0x%x, v28
        s_cbranch_vccnz L_att_nv2
        """ % TH_V)
        for chi in range(4): vread(chi)
        a("s_mov_b32 s65, 2")
        a.label("L_att_nv2")
        a("""
        v_and_b32 v30, 7, v29
        v_cmp_ne_u32 vcc, 4, v30
        s_cbranch_vccnz L_att_pw
        """)
        a.stamp()
        a("""
        v_cmp_ne_u32 vcc, 4, v29
        s_cbranch_vccnz L_att_gen
        s_cmp_lg_u32 s62, 0
        s_cbranch_scc1 L_att_nl0
        """)
        for chi in range(4):
            a("v_mfma_f32_16x16x32_bf16 v[68:71], v[212:215], v[%d:%d], %s" % (48 + 4 * chi, 51 + 4 * chi, "v[68:71]" if chi else "0"))
        a.label("L_att_nl0")
        a.pad("PAD_A1", "L_att_x")
        a("s_cmp_lg_u32 s65, 2")
        a("s_cbranch_scc1 L_att_nv3")
        a("s_waitcnt lgkmcnt(0)")
        for chi in range(4): zmfma(chi)
        a.label("L_att_nv3")
        a("""
        s_cmp_lg_u32 s62, 0
        s_cbranch_scc1 L_att_nost
        s_nop 7
        v_mov_b32 v65, v68
        """)
        stats_pub("")
        a.label("L_att_nost")
        a("s_cmp_eq_u32 s65, 2")
        a("s_cbranch_scc1 L_att_sel")
        lds_wait_ge(a, 7, 76, F_PROG, TH_V3, sleep=1)
        for chi in range(3): vread(chi)
        a("ds_read_b32 v76, v7 offset:%d" % F_PROG)
        for chi in range(3): zmfma(chi, 9 - 4 * chi)
        a("s_waitcnt lgkmcnt(0)")
        a("v_cmp_gt_u32 vcc, 0x%x, v76" % TH_V)
        a("s_cbranch_vccz L_att_pv3")
        lds_wait_ge(a, 7, 76, F_PROG, TH_V, sleep=0)
        a.label("L_att_pv3")
        vread(3)
        zmfma(3, 0)
        a.label("L_att_sel")
        a.stamp()
        a.nop(8)
        a.nop(2)
        a("""
        v_cndmask_b32_e64 v160, v160, v162, s[8:9]
        v_cndmask_b32_e64 v161, v161, v163, s[8:9]
        v_cndmask_b32_e64 v164, v164, v166, s[8:9]
        v_cndmask_b32_e64 v165, v165, v167, s[8:9]
        v_cndmask_b32_e64 v72, v160, v164, s[10:11]
        v_cndmask_b32_e64 v73, v161, v165, s[10:11]
        """)
        a.label("L_att_pub")
    else:
        a("""
        v_max3_f32 v92, v80, v81, v82
        v_max3_f32 v93, v83, v84, v85
        v_max3_f32 v92, v92, v86, v87
        v_max_f32 v92, v92, v93
        """)
        xreduce(a, "max", [92], [93])
        a("v_mul_f32 v92, s15, v92")
        for i in range(8):
            a("v_fma_f32 v%d, v%d, s15, -v92" % (80 + i, 80 + i))
        for i in range(8):
            a("v_exp_f32 v%d, v%d" % (80 + i, 80 + i))
        a.nop(1)
        for i in range(4):
            a("v_cvt_pk_bf16_f32 v%d, v%d, v%d" % (88 + i, 80 + 2 * i, 81 + 2 * i))
        a("ds_write_b128 v14, v[88:91]")
        a("""
        v_add_f32 v93, v80, v81
        v_add_f32 v94, v82, v83
        v_add_f32 v95, v84, v85
        v_add_f32 v31, v86, v87
        v_add_f32 v93, v93, v94
        v_add_f32 v95, v95, v31
        v_add_f32 v93, v93, v95
        """)
        xreduce(a, "add", [93], [31])
        a("""
        v_mov_b32 v94, 1
        v_mov_b32 v95, 1
        s_mov_b64 exec, 0x1111
        ds_write_b128 v16, v[92:95]
        s_mov_b64 exec, -1
        """)
        a.stamp()
        if VP:
            a("""
            s_cmp_eq_u32 s65, 2
            s_cbranch_scc1 L_att_nv2
            ds_read_b32 v28, v7 offset:%d
            s_waitcnt lgkmcnt(0)
            v_cmp_gt_u32 vcc, 0x%x, v28
            s_cbranch_vccnz L_att_nv2
            """ % (F_PROG, TH_V))
            for chi in range(4): vread(chi)
            a("s_mov_b32 s65, 2")
            a.label("L_att_nv2")
        a("s_mov_b32 s64, SPIN")
        a.label("L_att_pw")
        a("s_sub_u32 s64, s64, 1")
        a("s_cbranch_scc1 L_end")
        for w in range(4):
            a("ds_read_b128 v[%d:%d], v17 offset:%d" % (32 + 4 * w, 35 + 4 * w, 64 * w))
        for w in range(4):
            a("ds_read_b128 v[%d:%d], v15 offset:%d" % (48 + 4 * w, 51 + 4 * w, 1024 * w))
        a("""
        s_waitcnt lgkmcnt(0)
        v_min_u32 v64, v34, v38
        v_min3_u32 v64, v64, v42, v46
        v_cmp_eq_u32 vcc, 0, v64
        s_cbranch_vccnz L_att_pw
        """)
        a.stamp()
        if VP:
            a("s_cmp_lg_u32 s65, 2")
            a("s_cbranch_scc1 L_att_nv3")
            for chi in range(4):
                for t in range(2):
                    r = 96 + chi * 8 + 4 * t; d = 160 + chi * 8 + 4 * t
                    a("v_mfma_f32_16x16x32_bf16 v[%d:%d], v[%d:%d], v[%d:%d], 0" % (d, d + 3, r, r + 3, 48 + 4 * chi, 51 + 4 * chi))
            a.label("L_att_nv3")
        a("""
        v_max3_f32 v64, v32, v36, v40
        v_max_f32 v64, v64, v44
        """)
        for w in range(4):
            a("v_sub_f32 v%d, v%d, v64" % (68 + w, 32 + 4 * w))
        for w in range(4):
            a("v_exp_f32 v%d, v%d" % (68 + w, 68 + w))
        a.nop(1)
        a("v_mul_f32 v65, v68, v33")
        for w in range(1, 4):
            a("v_fmac_f32 v65, v%d, v%d" % (68 + w, 33 + 4 * w))
        a("""
        v_mov_b32 v66, v22
        v_mov_b32 v67, v23
        v_mov_b32 v74, v22
        v_mov_b32 v75, v23
        s_cmp_lg_u32 s62, 0
        s_cbranch_scc1 L_att_nost
        s_mov_b64 exec, 0x1111
        s_cmp_eq_u32 s45, 4
        s_cbranch_scc1 L_att_stf
        buffer_store_dwordx4 v[64:67], v19, s[56:59], s13 offen sc1
        s_branch L_att_st2
        """)
        a.label("L_att_stf")
        a("buffer_store_dwordx4 v[64:67], v19, s[56:59], s13 offen")
        a.label("L_att_st2")
        a("s_mov_b64 exec, -1")
        a("ds_write_b32 v7, v34 offset:%d" % F_APUB)
        a.label("L_att_nost")
        a.pad("PAD_A1", "L_att_x")
        def vmfma(chi, left):
            for t in range(2):
                a("s_waitcnt lgkmcnt(%d)" % (left + 2 - 2 * t))
                r = 96 + chi * 8 + 4 * t; d = 160 + chi * 8 + 4 * t
                a("v_mfma_f32_16x16x32_bf16 v[%d:%d], v[%d:%d], v[%d:%d], 0" % (d, d + 3, r, r + 3, 48 + 4 * chi, 51 + 4 * chi))
        def vsel(chi):
            d = 160 + chi * 8
            a("""
            v_cndmask_b32_e64 v%d, v%d, v%d, s[8:9]
            v_cndmask_b32_e64 v%d, v%d, v%d, s[8:9]
            v_cndmask_b32_e64 v%d, v%d, v%d, s[8:9]
            v_cndmask_b32_e64 v%d, v%d, v%d, s[8:9]
            v_cndmask_b32_e64 v%d, v%d, v%d, s[10:11]
            v_cndmask_b32_e64 v%d, v%d, v%d, s[10:11]
            """ % (d, d, d + 2, d + 1, d + 1, d + 3, d + 4, d + 4, d + 6, d + 5, d + 5, d + 7, d, d, d + 4, d + 1, d + 1, d + 5))
            if chi == 0:
                a("v_mul_f32 v72, v68, v%d" % d)
                a("v_mul_f32 v73, v68, v%d" % (d + 1))
            else:
                a("v_fmac_f32 v72, v%d, v%d" % (68 + chi, d))
                a("v_fmac_f32 v73, v%d, v%d" % (68 + chi, d + 1))
        if VP:
            a("s_cmp_lg_u32 s65, 2")
            a("s_cbranch_scc1 L_att_nv4")
            a.stamp()
            a.nstamp -= 1
            for chi in range(3): vsel(chi)
            a("s_branch L_att_pv3")
            a.label("L_att_nv4")
        lds_wait_ge(a, 7, 76, F_PROG, TH_V3, sleep=1)
        for chi in range(3): vread(chi)
        a("ds_read_b32 v76, v7 offset:%d" % F_PROG)
        for chi in range(3): vmfma(chi, 9 - 4 * chi)
        a("s_waitcnt lgkmcnt(0)")
        a("v_cmp_gt_u32 vcc, 0x%x, v76" % TH_V)
        a("s_cbranch_vccnz L_att_pvs")
        a.stamp()
        vread(3)
        vsel(0)
        vsel(1)
        vmfma(3, 0)
        vsel(2)
        a("s_branch L_att_pv3")
        a.label("L_att_pvs")
        a.nstamp -= 1
        a.nop(4)
        for chi in range(3): vsel(chi)
        lds_wait_ge(a, 7, 76, F_PROG, TH_V, sleep=0)
        a.stamp()
        vread(3)
        vmfma(3, 0)
        a.nop(8)
        a.label("L_att_pv3")
        a.nop(2)
        vsel(3)
    a("""
    s_cmp_eq_u32 s45, 4
    s_cbranch_scc1 L_att_of
    buffer_store_dwordx4 v[72:75], v18, s[56:59], s12 offen sc1
    s_branch L_att_o2
    """)
    a.label("L_att_of")
    a("buffer_store_dwordx4 v[72:75], v18, s[56:59], s12 offen")
    RS = opt("rs", 0)
    if RS & 1:
        a.stamp(); a.nstamp -= 1
        lds_wait_ge(a, 7, 76, F_OPUB, 1, sleep=4)
        if opt("rsd", 0): a("s_sleep %d" % opt("rsd", 0))
        a("buffer_store_dwordx4 v[72:75], v18, s[56:59], s12 offen sc1")
        a("s_cmp_lg_u32 s62, 0")
        a("s_cbranch_scc1 L_att_o3")
        a("s_mov_b64 exec, 0x1111")
        a("buffer_store_dwordx4 v[64:67], v19, s[56:59], s13 offen sc1")
        a("s_mov_b64 exec, -1")
        a("s_branch L_att_o3")
    a.label("L_att_o2")
    if PZ:
        a("v_mov_b32 v24, 1")
        a("s_mov_b64 exec, 1")
        a("ds_add_u32 v7, v24 offset:%d" % F_PZ)
        a("s_mov_b64 exec, -1")
    a.stamp()
    if RS & 1: a.label("L_att_o3")
    if diag:
        a("s_cmp_lg_u32 s62, 0")
        a("s_cbranch_scc1 L_att_nl")
        a("s_waitcnt vmcnt(0)")
        a.log_flush(208, 210, 0)
        a.label("L_att_nl")
    a.stamp_flush(28)
    a("s_endpgm")
    if FZ:
        a.label("L_att_fb")
        a("""
        v_max3_f32 v92, v80, v81, v82
        v_max3_f32 v93, v83, v84, v85
        v_max3_f32 v92, v92, v86, v87
        v_max_f32 v92, v92, v93
        """)
        xreduce(a, "max", [92], [93])
        for i in range(8): a("v_sub_f32 v%d, v%d, v92" % (80 + i, 80 + i))
        a("""
        s_mov_b64 exec, 0x1111
        ds_write_b32 v16, v92
        s_mov_b64 exec, -1
        v_mov_b32 v31, 0x101
        s_branch L_att_z
        """)
        a.label("L_att_gen")
        for w in range(4):
            a("ds_read_b32 v%d, v17 offset:%d" % (32 + 4 * w, 64 * w))
        for chi in range(4):
            a("v_mfma_f32_16x16x32_bf16 v[%d:%d], v[212:215], v[%d:%d], 0" % (192 + 4 * chi, 195 + 4 * chi, 48 + 4 * chi, 51 + 4 * chi))
        lds_wait_ge(a, 7, 76, F_PROG, TH_V, sleep=1)
        for chi in range(4): vread(chi)
        a("s_waitcnt lgkmcnt(0)")
        for chi in range(4):
            for t in range(2):
                r = 96 + chi * 8 + 4 * t; d = 160 + chi * 8 + 4 * t
                a("v_mfma_f32_16x16x32_bf16 v[%d:%d], v[%d:%d], v[%d:%d], 0" % (d, d + 3, r, r + 3, 48 + 4 * chi, 51 + 4 * chi))
        a("""
        v_max3_f32 v64, v32, v36, v40
        v_max_f32 v64, v64, v44
        """)
        for w in range(4): a("v_sub_f32 v%d, v%d, v64" % (68 + w, 32 + 4 * w))
        for w in range(4): a("v_exp_f32 v%d, v%d" % (68 + w, 68 + w))
        a.nop(1)
        a("v_mul_f32 v65, v68, v192")
        for w in range(1, 4): a("v_fmac_f32 v65, v%d, v%d" % (68 + w, 192 + 4 * w))
        a("s_cmp_lg_u32 s62, 0")
        a("s_cbranch_scc1 L_att_nostg")
        stats_pub("g")
        a.label("L_att_nostg")
        a.nop(8)
        for chi in range(4):
            d = 160 + chi * 8
            a("""
            v_cndmask_b32_e64 v%d, v%d, v%d, s[8:9]
            v_cndmask_b32_e64 v%d, v%d, v%d, s[8:9]
            v_cndmask_b32_e64 v%d, v%d, v%d, s[8:9]
            v_cndmask_b32_e64 v%d, v%d, v%d, s[8:9]
            v_cndmask_b32_e64 v%d, v%d, v%d, s[10:11]
            v_cndmask_b32_e64 v%d, v%d, v%d, s[10:11]
            """ % (d, d, d + 2, d + 1, d + 1, d + 3, d + 4, d + 4, d + 6, d + 5, d + 5, d + 7, d, d, d + 4, d + 1, d + 1, d + 5))
            if chi == 0:
                a("v_mul_f32 v72, v68, v%d" % d)
                a("v_mul_f32 v73, v68, v%d" % (d + 1))
            else:
                a("v_fmac_f32 v72, v%d, v%d" % (68 + chi, d))
                a("v_fmac_f32 v73, v%d, v%d" % (68 + chi, d + 1))
        a("s_branch L_att_pub")
    a.label("L_a_slow")
    a("""
    ds_write_b32 v7, v24 offset:%d
    v_mov_b32 v24, 0x101
    s_waitcnt vmcnt(0)
    s_mov_b32 s64, 0
    """ % F_SLOW)
    for m in QM[0]: a("s_mov_b64 s[%d:%d], -1" % (m, m + 1))
    a.label("L_a_spoll")
    a("""
    s_mov_b32 s6, 0
    s_bitcmp1_b32 s64, 0
    s_cselect_b32 s6, 0, 0x%x
    """ % (INB1S - INB1))
    for k in range(4): a("s_add_u32 s%d, s%d, s6" % (28 + k, 16 + k))
    qissue(0, 28)
    a("s_add_u32 s64, s64, 1")
    a("s_cmp_gt_u32 s64, SPIN")
    a("s_cbranch_scc1 L_end")
    a("s_waitcnt vmcnt(0)")
    for k in range(4):
        m = QM[0][k]
        a("v_xor_b32 v26, s40, v%d" % (QB[0] + 2 + 4 * k))
        a("v_cmp_lt_u32 s[%d:%d], 15, v26" % (m, m + 1))
        a("v_cmp_ne_u32 vcc, s41, v%d" % (QB[0] + 3 + 4 * k))
        a("s_or_b64 s[%d:%d], s[%d:%d], vcc" % (m, m + 1, m, m + 1))
        a("s_or_b64 s[60:61], s[%d:%d], %s" % (m, m + 1, "s[60:61]" if k else "0"))
    a("s_cbranch_scc1 L_a_spoll")
    a("s_branch L_q_d0")

    a.nstamp = nst0
    a.page()
    a.label("L_o")
    if opt("skip", 0) & 64: a("s_endpgm")
    if opt("tw", 0): touches(a, opt("tw", 0))
    if opt("sw", 0):
        if opt("swd", 0): a("s_sleep %d" % opt("swd", 0))
        stouch(a, opt("sw", 0))
    ST = opt("st", 0); SG = opt("sg", 64)
    if ST & 1:
        a("""
        s_lshl_b32 s6, s4, 14
        s_lshl_b32 s7, s5, 9
        s_add_u32 s6, s6, s7
        s_add_u32 s6, s6, 0x%x
        """ % INB1)
        for o in range(0, 512, SG): a("s_load_dword s70, s[56:57], s6 offset:%d" % o)
    if ST & 2:
        if opt("sdel", 0): a("s_sleep %d" % opt("sdel", 0))
        a("""
        s_lshl_b32 s6, s4, 17
        s_lshl_b32 s7, s5, 8
        s_add_u32 s6, s6, s7
        s_add_u32 s6, s6, 0x%x
        s_lshl_b32 s10, s4, 11
        s_lshl_b32 s7, s5, 4
        s_add_u32 s10, s10, s7
        s_add_u32 s10, s10, 0x%x
        """ % (INB2, INBS))
        for h in range(4): a("s_load_dword s70, s[56:57], s10 offset:%d" % (h * 512))
        for b in range(16):
            for o in range(0, 256, SG): a("s_load_dword s70, s[56:57], s6 offset:%d" % (b * 8192 + o))
    a("""
    s_lshl_b32 s10, s4, 11
    s_lshr_b32 s6, s5, 3
    s_lshl_b32 s6, s6, 9
    s_add_u32 s10, s10, s6
    s_add_u32 s10, s10, 0x%x
    v_lshlrev_b32 v8, 4, v5
    s_lshl_b32 s6, s4, 4
    s_lshr_b32 s7, s5, 1
    s_add_u32 s6, s6, s7
    s_lshl_b32 s11, s6, 13
    s_add_u32 s11, s11, 0x%x
    s_add_u32 s12, s11, 4096
    v_lshlrev_b32 v2, 4, v0
    v_bfe_u32 v3, v0, 1, 1
    v_lshlrev_b32 v9, 5, v3
    v_bfe_u32 v3, v0, 2, 2
    v_lshl_or_b32 v9, v3, 3, v9
    v_and_b32 v6, 1, v0
    v_lshl_or_b32 v9, v6, 2, v9
    v_add_u32 v9, %d, v9
    v_lshrrev_b32 v10, 1, v4
    v_lshlrev_b32 v10, 6, v10
    v_lshl_or_b32 v10, v5, 4, v10
    v_add_u32 v10, %d, v10
    v_lshl_add_u32 v6, v5, 3, v3
    v_lshlrev_b32 v6, 9, v6
    v_add_u32 v6, %d, v6
    v_and_b32 v11, 3, v0
    """ % (INBS, INB2, L_OW + 7 * 64, L_OW, L_WO))
    for aa in range(4):
        a("v_xor_b32 v16, %d, v3" % aa)
        a("v_lshl_or_b32 v16, v16, 2, v11")
        a("v_lshl_add_u32 v%d, v16, 4, v6" % (12 + aa))
    a("""
    s_lshl_b32 s6, s6, 6
    s_and_b32 s7, s5, 1
    s_lshl_b32 s7, s7, 18
    s_add_u32 s6, s6, s7
    s_add_u32 s14, s6, 0x%x
    s_add_u32 s15, s14, 0x20000
    v_lshl_add_u32 v6, v3, 2, v5
    v_lshlrev_b32 v6, 13, v6
    v_lshl_or_b32 v6, v11, 4, v6
    s_mov_b32 s8, 0xaaaaaaaa
    s_mov_b32 s9, 0xaaaaaaaa
    v_mov_b32 v11, 1
    """ % INB3S)
    a("""
    v_and_b32 v18, 31, v0
    v_lshlrev_b32 v8, 4, v18
    v_and_b32 v16, 3, v0
    v_lshlrev_b32 v16, 5, v16
    v_and_b32 v18, 28, v0
    v_add3_u32 v16, v16, v18, %d
    v_lshlrev_b32 v17, 5, v5
    v_add_u32 v17, v17, v19
    """ .replace("%d", "v19").replace("v_and_b32 v18, 31, v0", "v_mov_b32 v19, %d\n    v_and_b32 v18, 31, v0" % L_AL, 1))
    get_tag(a, 56)
    a.stamp()
    MA = [16 + 2 * k for k in range(8)]
    MB = [32, 34, 36, 38, 44, 46, 48, 50]
    MS = [52, 54]
    SV = [204, 208]
    for m in MA + MB + MS: a("s_mov_b64 s[%d:%d], -1" % (m, m + 1))
    if diag:
        a("v_mov_b32 v200, 0")
        a("v_mov_b32 v201, 0")
        a("s_mov_b32 s63, 1")
    a("s_mov_b32 s65, 0")
    a("s_mov_b32 s66, 0")
    def mcheck(base, M):
        for k in range(8):
            a("v_cmp_ne_u64 s[%d:%d], s[40:41], v[%d:%d]" % (M[k], M[k] + 1, base + 4 * k + 2, base + 4 * k + 3))
            if opt("skip", 0) & 4: a("s_mov_b64 s[%d:%d], 0" % (M[k], M[k] + 1))
        for k in range(8):
            a("s_or_b64 s[60:61], s[%d:%d], %s" % (M[k], M[k] + 1, "s[60:61]" if k else "0"))
    def oissue(i):
        base, M = (128, MA) if i == 0 else (160, MB)
        a("s_mov_b64 exec, s[%d:%d]" % (MS[i], MS[i] + 1))
        a("buffer_load_dwordx4 v[%d:%d], v8, s[56:59], s10 offen sc1" % (SV[i], SV[i] + 3))
        for k in range(8):
            a("s_mov_b64 exec, s[%d:%d]" % (M[k], M[k] + 1))
            a("buffer_load_dwordx4 v[%d:%d], v2, s[56:59], s%d offen offset:%d sc1" % (base + 4 * k, base + 3 + 4 * k, 11 + k // 4, (k % 4) * 1024))
        a("s_mov_b64 exec, -1")
    def stats(i):
        lab = "L_o_ns%d" % i
        v = SV[i]
        a("s_cmp_lg_u32 s66, 0")
        a("s_cbranch_scc1 %s" % lab)
        a("v_cmp_ne_u64 vcc, s[40:41], v[%d:%d]" % (v + 2, v + 3))
        a("s_mov_b64 s[%d:%d], vcc" % (MS[i], MS[i] + 1))
        a("s_cbranch_vccnz %s" % lab)
        a("v_mov_b32 v56, v%d" % v)
        allreduce(a, "max", 56, 57)
        a("v_sub_f32 v56, v%d, v56" % v)
        a("v_exp_f32 v56, v56")
        a("s_mov_b32 s66, 1")
        a("v_mul_f32 v57, v56, v%d" % (v + 1))
        a("ds_write_b32 v16, v56")
        a("ds_read_b128 v[48:51], v17")
        a("ds_read_b128 v[52:55], v17 offset:16")
        allreduce(a, "add", 57, 58)
        a("v_mul_f32 v57, 0.5, v57")
        a("v_rcp_f32 v58, v57")
        a("s_mov_b64 s[%d:%d], 0" % (MS[1 - i], MS[1 - i] + 1))
        a("s_waitcnt lgkmcnt(0)")
        a.label(lab)
    lds_wait_ge(a, 7, 59, F_APUB, 1, sleep=3)
    lds_wait_ge(a, 7, 59, F_PROG, opt('ogate', TH_V), sleep=1)
    a.stamp()
    a("s_setprio 3")
    if opt("odn", 0):
        a("""
        s_lshr_b32 s6, s4, 2
        s_lshl_b32 s6, s6, 3
        s_add_u32 s6, s6, s5
        s_cmp_lt_u32 s6, 32
        s_cbranch_scc1 L_o_nd
        s_sleep %d
        """ % opt("odn", 0))
        a.label("L_o_nd")
    if opt("odel", 0): a("s_sleep %d" % opt("odel", 0))
    O1 = opt("o1", 0)
    oissue(0)
    if opt("ow2", 0):
        lds_wait_ge(a, 7, 59, F_PROG, opt("ow2", 0), sleep=1)
    if not O1:
        if not opt("ow2", 0): a("s_sleep %d" % opt('ostag', 8))
        oissue(1)
    def wo_pre():
        for al in range(2):
            for t in range(8):
                for h in range(2):
                    r = 64 + ((al * 8 + t) * 2 + h) * 2
                    a("ds_read_b64_tr_b16 v[%d:%d], v%d offset:%d" % (r, r + 1, 12 + (t >> 1), al * 256 + (t & 1) * 8 + h * 2048))
    def opp(lab):
        a("s_cmp_lg_u32 s65, 0")
        a("s_cbranch_scc1 %s" % lab)
        a("ds_read_b32 v59, v7 offset:%d" % F_PROG)
        a("s_waitcnt lgkmcnt(0)")
        a("v_cmp_gt_u32 vcc, 0x%x, v59" % TH_WO)
        a("s_cbranch_vccnz %s" % lab)
        wo_pre()
        a("s_mov_b32 s65, 1")
        a.label(lab)
    a("s_mov_b32 s64, SPIN")
    a.label("L_o_poll")
    opp("L_o_np")
    for i in range(1 if O1 else 2):
        a("s_waitcnt vmcnt(%d)" % (0 if O1 else 9))
        stats(i)
        mcheck(128 + 32 * i, MA if i == 0 else MB)
        a("s_or_b64 s[60:61], s[%d:%d], s[60:61]" % (MS[i], MS[i] + 1))
        a.log(63, "s[60:61]", 200)
        a("s_cbranch_scc0 L_o_d%d" % i)
        if opt("osl", 0): a("s_sleep %d" % opt("osl", 0))
        oissue(i)
    a("s_sub_u32 s64, s64, 1")
    a("s_cbranch_scc1 L_end")
    a("s_branch L_o_poll")
    for nm, base in (("L_o_d0", 128), ("L_o_d1", 160)):
        a.label(nm)
        a("v_mul_f32 v60, v48, v%d" % base)
        a("v_mul_f32 v61, v48, v%d" % (base + 1))
        a("v_mul_f32 v62, v49, v%d" % (base + 4))
        a("v_mul_f32 v63, v49, v%d" % (base + 5))
        for k in range(2, 8):
            a("v_fmac_f32 v%d, v%d, v%d" % (60 + 2 * (k & 1), 48 + k, base + 4 * k))
            a("v_fmac_f32 v%d, v%d, v%d" % (61 + 2 * (k & 1), 48 + k, base + 4 * k + 1))
        if base == 128: a("s_branch L_o_dd")
    a.label("L_o_dd")
    if opt("wb", 0) & 8: a("ds_write_b32 v7, v11 offset:%d" % F_PZ)
    a.stamp()
    a("v_add_f32 v60, v60, v62")
    a("v_add_f32 v61, v61, v63")
    xreduce(a, "add", [60, 61], [62, 63])
    for r in (60, 61):
        a("v_mul_f32 v62, v%d, v58" % r)
        a("v_fma_f32 v63, -v62, v57, v%d" % r)
        a("v_fma_f32 v%d, v63, v58, v62" % r)
    a("v_cvt_pk_bf16_f32 v60, v60, v61")
    a("ds_write_b32 v9, v60")
    for t in range(8):
        a("ds_read_b128 v[%d:%d], v10 offset:%d" % (16 + 4 * t, 19 + 4 * t, (7 - t) * 64))
    a("s_cmp_lg_u32 s65, 0")
    a("s_cbranch_scc1 L_o_have")
    lds_wait_ge(a, 7, 59, F_PROG, TH_WO, sleep=0)
    wo_pre()
    a.label("L_o_have")
    a("""
    v_mov_b32 v194, s40
    v_mov_b32 v195, s41
    v_mov_b32 v198, s40
    v_mov_b32 v199, s41
    s_waitcnt lgkmcnt(0)
    """)
    a.stamp()
    for t in range(8):
        for al in range(2):
            r = 64 + (al * 8 + t) * 4
            c_ = "0" if t == 0 else "v[%d:%d]" % (48 + 4 * al, 51 + 4 * al)
            a("v_mfma_f32_16x16x32_bf16 v[%d:%d], v[%d:%d], v[%d:%d], %s" % (48 + 4 * al, 51 + 4 * al, r, r + 3, 16 + 4 * t, 19 + 4 * t, c_))
    a.nop(7)
    a("""
    v_cndmask_b32_e64 v192, v48, v50, s[8:9]
    v_cndmask_b32_e64 v193, v49, v51, s[8:9]
    v_cndmask_b32_e64 v196, v52, v54, s[8:9]
    v_cndmask_b32_e64 v197, v53, v55, s[8:9]
    buffer_store_dwordx4 v[192:195], v6, s[56:59], s14 offen sc1
    buffer_store_dwordx4 v[196:199], v6, s[56:59], s15 offen sc1
    ds_write_b32 v7, v11 offset:%d
    """ % F_OPUB)
    if opt("wb", 0) & 1:
        a("s_cmp_lg_u32 s5, %d" % opt("wbc", 0))
        a("s_cbranch_scc1 L_o_nwb")
        if opt("wbd", 0): a("s_sleep %d" % opt("wbd", 0))
        a("buffer_wbl2 sc1")
        a.label("L_o_nwb")
    a.stamp()
    a.log_flush(200, 202, 1)
    a.stamp_flush(28)
    a("s_endpgm")

    a.nstamp = nst0
    a.page()
    a.label("L_f")
    if opt("skip", 0) & 128: a("s_endpgm")
    fcoords(a)
    a("s_cbranch_scc1 L_f_go")
    srd(a, 48, 16, 1024)
    srd(a, 52, 34, 1024)
    a("v_lshlrev_b32 v2, 4, v0")
    get_tag(a, 42)
    a("s_branch L_fin")
    a.label("L_f_go")
    a("""
    s_lshl_b32 s6, s15, 8
    s_add_u32 s6, s6, %d
    v_lshlrev_b32 v13, 4, v5
    v_add_u32 v13, s6, v13
    """ % L_XN)
    traddr128(a, 52, L_G, 3, 6)
    a("""
    v_lshrrev_b32 v3, 2, v4
    v_lshl_add_u32 v2, v5, 3, v3
    """)
    a("""
    v_lshlrev_b32 v2, 8, v2
    v_add_u32 v2, %d, v2
    v_and_b32 v12, 3, v0
    """ % L_WD)
    for aa in range(4):
        a("v_xor_b32 v16, %d, v3" % aa)
        a("v_lshl_or_b32 v16, v16, 2, v12")
        a("v_lshl_add_u32 v%d, v16, 4, v2" % (8 + aa))
    a("""
    s_lshl_b32 s11, s14, 11
    s_add_u32 s11, s11, 0x%x
    s_and_b32 s6, s5, 7
    s_lshl_b32 s6, s6, 8
    s_lshr_b32 s10, s14, 1
    s_lshl_b32 s10, s10, 12
    s_add_u32 s10, s10, s6
    s_add_u32 s10, s10, 0x%x
    v_bfe_u32 v16, v0, 2, 1
    v_lshlrev_b32 v16, 11, v16
    v_lshl_or_b32 v16, v5, 6, v16
    v_lshl_or_b32 v16, v12, 4, v16
    v_lshlrev_b32 v2, 4, v0
    v_bfe_u32 v6, v0, 1, 1
    v_lshlrev_b32 v17, 5, v6
    v_lshl_or_b32 v17, v3, 3, v17
    v_and_b32 v6, 1, v0
    v_lshl_or_b32 v17, v6, 2, v17
    v_add_u32 v17, %d, v17
    v_lshrrev_b32 v18, 1, v4
    v_lshlrev_b32 v18, 6, v18
    v_lshl_or_b32 v18, v5, 4, v18
    v_add_u32 v18, %d, v18
    s_mul_i32 s12, s15, 57344
    s_lshl_b32 s6, s14, 6
    s_add_u32 s12, s12, s6
    s_add_u32 s12, s12, 0x%x
    v_lshl_add_u32 v19, v3, 2, v5
    v_mul_u32_u24 v19, 0xe00, v19
    v_lshl_or_b32 v19, v12, 4, v19
    s_mov_b32 s8, 0xaaaaaaaa
    s_mov_b32 s9, 0xaaaaaaaa
    v_bfe_u32 v6, v0, 1, 2
    """ % (INB4, INB4, L_HW + 7 * 64, L_HW, INB3D))
    if ST & 4:
        if opt("sdel", 0): a("s_sleep %d" % opt("sdel", 0))
        for b in range(2):
            for o in range(0, 256, SG): a("s_load_dword s70, s[56:57], s10 offset:%d" % (b * 2048 + o))
    if PT & 4:
        a("""
        s_mov_b32 exec_lo, 0x00ff00ff
        s_mov_b32 exec_hi, 0x00ff00ff
        buffer_load_dwordx4 v[196:199], v16, s[56:59], s10 offen sc1
        s_mov_b64 exec, -1
        """)
    get_tag(a, 42)
    if opt("pwg", 0):
        a("buffer_load_dwordx4 v[20:23], v2, s[56:59], s11 offen sc1")
        a("buffer_load_dwordx4 v[24:27], v2, s[56:59], s11 offen offset:1024 sc1")
        a("s_waitcnt vmcnt(0)")
    a.stamp()
    lds_wait_ge(a, 7, 20, F_XN, 1, sleep=4)
    for k in range(4):
        a("ds_read_b128 v[%d:%d], v13 offset:%d" % (20 + 4 * k, 23 + 4 * k, k * 64))
    a("v_mov_b32 v36, 0")
    a("s_waitcnt lgkmcnt(0)")
    for u in range(4):
        a("v_cmp_eq_u32 vcc, %d, v6" % u)
        a.nop(2)
        for k in range(4):
            for i in range(4):
                a("v_cndmask_b32 v%d, v36, v%d, vcc" % (128 + (u * 4 + k) * 4 + i, 20 + 4 * k + i))
    a("s_mov_b32 s64, SPIN")
    a.label("L_f_qw")
    a("""
    ds_read_b32 v20, v7 offset:%d
    s_waitcnt lgkmcnt(0)
    v_and_b32 v21, 7, v20
    v_cmp_ne_u32 vcc, 4, v21
    s_cbranch_vccz L_f_qok
    s_sleep 4
    s_sub_u32 s64, s64, 1
    s_cbranch_scc1 L_end
    s_branch L_f_qw
    """ % F_Q)
    a.label("L_f_qok")
    a("v_readfirstlane_b32 s45, v20")
    if opt("g2", 0):
        for half in range(2):
            lds_wait_ge(a, 7, 20, F_PROG, PV[("G", 7)] if half == 0 else TH_G, sleep=1 - half)
            if half: a.stamp()
            else: a("s_setprio 3")
            for u in range(4):
                for k in (2 * half, 2 * half + 1):
                    for h in range(2):
                        r = 64 + ((u * 4 + k) * 2 + h) * 2
                        a("ds_read_b64_tr_b16 v[%d:%d], v%d offset:%d" % (r, r + 1, 52 + u, k * 4096 + h * 512))
            for u in range(4):
                for k in (2 * half, 2 * half + 1):
                    a("s_waitcnt lgkmcnt(%d)" % (14 - 4 * u - 2 * (k & 1)))
                    n = u * 4 + k
                    c_ = "0" if n == 0 else "v[36:39]"
                    a("v_mfma_f32_16x16x32_bf16 v[36:39], v[%d:%d], v[%d:%d], %s" % (64 + n * 4, 67 + n * 4, 128 + n * 4, 131 + n * 4, c_))
    else:
        lds_wait_ge(a, 7, 20, F_PROG, TH_G, sleep=1)
        a.stamp()
        a("s_setprio 3")
        for u in range(4):
            for k in range(4):
                for h in range(2):
                    r = 64 + ((u * 4 + k) * 2 + h) * 2
                    a("ds_read_b64_tr_b16 v[%d:%d], v%d offset:%d" % (r, r + 1, 52 + u, k * 4096 + h * 512))
            if u >= 1:
                a("s_waitcnt lgkmcnt(8)")
                for k in range(4):
                    n = (u - 1) * 4 + k
                    c_ = "0" if n == 0 else "v[36:39]"
                    a("v_mfma_f32_16x16x32_bf16 v[36:39], v[%d:%d], v[%d:%d], %s" % (64 + n * 4, 67 + n * 4, 128 + n * 4, 131 + n * 4, c_))
        a("s_waitcnt lgkmcnt(0)")
        for k in range(4):
            n = 12 + k
            a("v_mfma_f32_16x16x32_bf16 v[36:39], v[%d:%d], v[%d:%d], v[36:39]" % (64 + n * 4, 67 + n * 4, 128 + n * 4, 131 + n * 4))
    a.nop(8)
    a("""
    v_cndmask_b32_e64 v40, v36, v38, s[8:9]
    v_cndmask_b32_e64 v41, v37, v39, s[8:9]
    s_mov_b32 exec_lo, 0x00ff00ff
    s_mov_b32 exec_hi, 0x00ff00ff
    s_cmp_eq_u32 s45, 4
    s_cbranch_scc1 L_f_pf
    buffer_store_dwordx4 v[40:43], v16, s[56:59], s10 offen sc1
    s_branch L_f_p2
    """)
    a.label("L_f_pf")
    a("buffer_store_dwordx4 v[40:43], v16, s[56:59], s10 offen")
    a.label("L_f_p2")
    if opt("rs", 0) & 4:
        for i in range(4): a("v_mov_b32 v%d, v%d" % (200 + i, 40 + i))
    if PZ:
        a("s_mov_b64 exec, 1")
        a("ds_add_u32 v7, v44 offset:%d" % F_PZ)
    a("s_mov_b64 exec, -1")
    a.stamp()
    a("s_mov_b32 s65, 0")
    def wd_pre():
        for t in range(8):
            for h in range(2):
                r = 64 + (t * 2 + h) * 2
                a("ds_read_b64_tr_b16 v[%d:%d], v%d offset:%d" % (r, r + 1, 8 + (t >> 1), (t & 1) * 8 + h * 1024))
    def gissue(base):
        a("buffer_load_dwordx4 v[%d:%d], v2, s[56:59], s11 offen sc1" % (base, base + 3))
        a("buffer_load_dwordx4 v[%d:%d], v2, s[56:59], s11 offen offset:1024 sc1" % (base + 4, base + 7))
    if opt("gdel", 0): a("s_sleep %d" % opt("gdel", 0))
    gissue(20)
    a("s_sleep %d" % opt("gstag", 4))
    gissue(28)
    a("s_mov_b32 s64, SPIN")
    a.label("L_f_poll")
    a("""
    s_cmp_lg_u32 s65, 0
    s_cbranch_scc1 L_f_np
    ds_read_b32 v44, v7 offset:%d
    s_waitcnt lgkmcnt(0)
    v_cmp_gt_u32 vcc, 0x%x, v44
    s_cbranch_vccnz L_f_np
    """ % (F_PROG, TH_WD))
    wd_pre()
    a("s_mov_b32 s65, 1")
    a.label("L_f_np")
    a("s_waitcnt vmcnt(2)")
    tagcheck(a, [20, 24])
    if opt("skip", 0) & 16: a("s_branch L_f_d0")
    a("s_cbranch_vccz L_f_d0")
    if opt("gsl", 0): a("s_sleep %d" % opt("gsl", 0))
    gissue(20)
    a("s_waitcnt vmcnt(2)")
    tagcheck(a, [28, 32])
    a("s_cbranch_vccz L_f_d1")
    if opt("gsl", 0): a("s_sleep %d" % opt("gsl", 0))
    gissue(28)
    a("s_sub_u32 s64, s64, 1")
    a("s_cbranch_scc1 L_end")
    a("s_branch L_f_poll")
    for nm, base in (("L_f_d0", 20), ("L_f_d1", 28)):
        a.label(nm)
        a("v_mov_b32 v44, v%d" % base)
        a("v_mov_b32 v45, v%d" % (base + 1))
        a("v_mov_b32 v46, v%d" % (base + 4))
        a("v_mov_b32 v47, v%d" % (base + 5))
        if base == 20: a("s_branch L_f_dd")
    a.label("L_f_dd")
    a.stamp()
    xreduce(a, "add", [44, 45, 46, 47], [48, 49, 50, 51])
    a("""
    s_mov_b32 s16, 0x3d372713
    s_mov_b32 s17, 0xc0135761
    v_cvt_pk_bf16_f32 v48, v44, v45
    v_cvt_pk_bf16_f32 v49, v46, v47
    v_lshlrev_b32 v44, 16, v48
    v_and_b32 v45, 0xffff0000, v48
    v_lshlrev_b32 v46, 16, v49
    v_and_b32 v47, 0xffff0000, v49
    v_mul_f32 v48, v44, v44
    v_mul_f32 v49, v45, v45
    v_mul_f32 v48, v48, v44
    v_mul_f32 v49, v49, v45
    v_fma_f32 v48, v48, s16, v44
    v_fma_f32 v49, v49, s16, v45
    v_mul_f32 v48, s17, v48
    v_mul_f32 v49, s17, v49
    v_exp_f32 v48, v48
    v_exp_f32 v49, v49
    s_nop 0
    v_add_f32 v48, 1.0, v48
    v_add_f32 v49, 1.0, v49
    v_rcp_f32 v48, v48
    v_rcp_f32 v49, v49
    s_nop 0
    v_mul_f32 v44, v44, v48
    v_mul_f32 v45, v45, v49
    v_cvt_pk_bf16_f32 v48, v44, v45
    v_lshlrev_b32 v44, 16, v48
    v_and_b32 v45, 0xffff0000, v48
    v_mul_f32 v44, v44, v46
    v_mul_f32 v45, v45, v47
    v_cvt_pk_bf16_f32 v48, v44, v45
    ds_write_b32 v17, v48
    """)
    for t in range(8):
        a("ds_read_b128 v[%d:%d], v18 offset:%d" % (128 + 4 * t, 131 + 4 * t, (7 - t) * 64))
    a("s_cmp_lg_u32 s65, 0")
    a("s_cbranch_scc1 L_f_have")
    lds_wait_ge(a, 7, 44, F_PROG, TH_WD, sleep=1 if opt("ord", 0) else 0)
    wd_pre()
    a.label("L_f_have")
    a("s_waitcnt lgkmcnt(0)")
    a.stamp()
    for t in range(8):
        c_ = "0" if t == 0 else "v[36:39]"
        a("v_mfma_f32_16x16x32_bf16 v[36:39], v[%d:%d], v[%d:%d], %s" % (64 + 4 * t, 67 + 4 * t, 128 + 4 * t, 131 + 4 * t, c_))
    a.nop(8)
    a("""
    v_cndmask_b32_e64 v40, v36, v38, s[8:9]
    v_cndmask_b32_e64 v41, v37, v39, s[8:9]
    buffer_store_dwordx4 v[40:43], v19, s[56:59], s12 offen sc1
    """)
    a.stamp()
    if opt("rs", 0) & 4:
        if opt("rsf", 0): a("s_sleep %d" % opt("rsf", 0))
        a("""
        s_mov_b32 exec_lo, 0x00ff00ff
        s_mov_b32 exec_hi, 0x00ff00ff
        buffer_store_dwordx4 v[200:203], v16, s[56:59], s10 offen sc1
        s_mov_b64 exec, -1
        """)
    a.stamp_flush(28)
    a.label("L_end")
    a("s_endpgm")

    out += a.l
    out.append('''.section .rodata,"a"
.p2align 6
.amdhsa_kernel %s_kernel
  .amdhsa_next_free_vgpr 216
  .amdhsa_next_free_sgpr 102
  .amdhsa_accum_offset 216
  .amdhsa_group_segment_fixed_size 0
  .amdhsa_kernarg_size 96
  .amdhsa_user_sgpr_count 2
  .amdhsa_user_sgpr_kernarg_segment_ptr 1
  .amdhsa_system_sgpr_workgroup_id_x 1
  .amdhsa_float_denorm_mode_32 3
.end_amdhsa_kernel'''.replace('216', '240' if FN == 4 else '216') % NAME)
    return "\n".join(out) + "\n"

if __name__ == "__main__":
    ap = argparse.ArgumentParser()
    ap.add_argument("-o", default="cdna_kernels/%s.s" % NAME)
    ap.add_argument("--diag", action="store_true")
    ap.add_argument("--slow", action="store_true")
    ap.add_argument("-W", type=int, default=16)
    ap.add_argument("--W0", type=int, default=24)
    ap.add_argument("-P", nargs="*", default=[])
    ap.add_argument("--onlyld", action="store_true")
    ap.add_argument("--kv", type=int, default=1)
    args = ap.parse_args()
    open(args.o, "w").write(gen(diag=args.diag, W=args.W, forceslow=args.slow, onlyld=args.onlyld, kvmode=args.kv, W0=args.W0, P={x.split('=')[0]: int(x.split('=')[1]) for x in args.P}))
    print("wrote", args.o)
```

```python
import sys, argparse

NAME = "recurrent_scan__sliding_block_cached__glu_gated_geglu__decode"
HEADER = open("cdna_kernels/%s.s.ref" % NAME).read().split("; Override launch")[0]

INBS = 0x1000
INB4 = 0x5000
INB1 = 0x200000
INB1S = 0x220000
INB3D = 0x41000
INB3S = 0x80000
INB2 = 0x100000
DIAG = 0x1000000
L_WQ = 0
L_K = 16384
L_V = 49152
L_G = 81920
L_U = 90112
L_WO = 98304
L_WD = 114688
L_M = 122880
L_XN = L_M
L_Q = L_M + 1024
L_P = L_M + 2048
L_Z = L_M + 6144
L_OW = L_Z
L_HW = L_Z + 1024
L_ST = L_Z + 2048
L_FL = L_Z + 2304
L_AL = L_Z + 2560
F_PROG = 0
F_XN = 4
F_Q = 8
F_SLOW = 12
F_TAG = 16
F_TAGV = 24
F_APUB = 28
F_OPUB = 32
F_QPUB = 36
F_PZ = 40
F_P = 44
LDS_BYTES = L_Z + 4096

LOG2E = 0x3fb8aa3b
SCALE = 0x3db504f3
ST0 = 76
OGATE = 72
OSTAG = 4

class Asm:
    def __init__(self, diag=False):
        self.l = []; self.diag = diag; self.nstamp = 0; self.uid = 0
    def __call__(self, s):
        for x in s.strip().split("\n"):
            x = x.strip()
            if x: self.l.append("    " + x)
    def label(self, n): self.l.append(n + ":")
    def nop(self, n=1): self("s_nop %d" % (n - 1))
    def comment(self, s): self.l.append("    ; " + s)
    def page(self): self.l.append(".p2align 12")
    def pad(self, name, target):
        self.label(name); self("s_cbranch_execz %s" % target)
    def newlabel(self, p):
        self.uid += 1; return "%s_%d" % (p, self.uid)
    def stamp(self):
        if not self.diag: return
        i = self.nstamp; assert i < 13, "too many stamps"
        self("s_memrealtime s[%d:%d]" % (ST0 + 2 * i, ST0 + 1 + 2 * i))
        self.nstamp += 1
    def log(self, sidx, smask, vlog, tmp=62):
        if not self.diag: return
        self("s_memrealtime s[6:7]")
        self("s_bcnt1_i32_b64 s%d, %s" % (tmp, smask))
        self("s_min_u32 m0, s%d, 63" % sidx)
        self("s_waitcnt lgkmcnt(0)")
        self("v_writelane_b32 v%d, s6, m0" % vlog)
        self("v_writelane_b32 v%d, s%d, m0" % (vlog + 1, tmp))
        self("s_add_u32 s%d, s%d, 1" % (sidx, sidx))
        self("s_cmp_lg_u64 %s, 0" % smask)
    def log_flush(self, vlog, vt, slot):
        if not self.diag: return
        self("s_mov_b64 exec, -1")
        self("s_lshl_b32 s64, s2, 12")
        self("s_add_u32 s64, s64, 0x%x" % (DIAG + 0x100000 + slot * 512))
        self("v_lshlrev_b32 v%d, 2, v0" % vt)
        self("buffer_store_dword v%d, v%d, s[56:59], s64 offen" % (vlog, vt))
        self("buffer_store_dword v%d, v%d, s[56:59], s64 offen offset:256" % (vlog + 1, vt))
    def dbg_flush(self, vtmp, ents):
        self("s_load_dwordx2 s[60:61], s[0:1], 80")
        self("s_mov_b32 s62, 256")
        self("s_mov_b32 s63, 0x20000")
        self("s_waitcnt lgkmcnt(0)")
        for op, i, slot in ents:
            if op == "min": self("v_not_b32 v%d, s%d" % (vtmp, ST0 + 2 * i))
            elif op == "max": self("v_mov_b32 v%d, s%d" % (vtmp, ST0 + 2 * i))
            elif op == "max1":
                self("s_cmp_eq_u32 s3, 1")
                self("s_cselect_b32 s65, s%d, 0" % (ST0 + 2 * i))
                self("v_mov_b32 v%d, s65" % vtmp)
            else:
                self("s_sub_u32 s65, s%d, s%d" % (ST0 + 2 * i, ST0))
                self("v_mov_b32 v%d, s65" % vtmp)
            self("buffer_atomic_%s v%d, v%d, s[60:63], 0 offen offset:%d sc1" % ("add" if op == "sum" else "umax", vtmp, vtmp + 2, slot * 4))
            self.nop(2)
    def stamp_flush(self, vtmp, dbg=None):
        if not self.diag: return
        self._sf(vtmp)
        if dbg and DBGD: self.dbg_flush(vtmp, dbg)
    def _sf(self, vtmp):
        n = self.nstamp
        self("s_waitcnt vmcnt(0) lgkmcnt(0)")
        self("s_mov_b64 exec, 1")
        self("s_lshl_b32 s64, s2, 10")
        self("s_lshl_b32 s65, s3, 7")
        self("s_add_u32 s64, s64, s65")
        self("s_add_u32 s64, s64, 0x%x" % DIAG)
        self("v_mov_b32 v%d, 0" % (vtmp + 2))
        for i in range(n):
            self("v_mov_b32 v%d, s%d" % (vtmp, ST0 + 2 * i))
            self("v_mov_b32 v%d, s%d" % (vtmp + 1, ST0 + 1 + 2 * i))
            self("buffer_store_dwordx2 v[%d:%d], v%d, s[56:59], s64 offen offset:%d" % (vtmp, vtmp + 1, vtmp + 2, i * 8))
            self.nop(2)
        self("v_mov_b32 v%d, %d" % (vtmp, n))
        self("buffer_store_dword v%d, v%d, s[56:59], s64 offen offset:120" % (vtmp, vtmp + 2))

def allreduce(a, op, v, t):
    for r in (1, 2, 4, 8):
        a.nop(2)
        a("v_%s_f32_dpp v%d, v%d, v%d row_ror:%d row_mask:0xf bank_mask:0xf" % (op, v, v, v, r))
    for sw in ("16", "32"):
        a("v_mov_b32 v%d, v%d" % (t, v))
        a.nop(2)
        a("v_permlane%s_swap_b32 v%d, v%d" % (sw, v, t))
        a("v_%s_f32 v%d, v%d, v%d" % (op, v, v, t))

def xreduce(a, op, regs, tmps):
    for sw in ("16", "32"):
        for r, t in zip(regs, tmps):
            a("v_mov_b32 v%d, v%d" % (t, r))
        a.nop(2 if len(regs) < 3 else 1)
        for r, t in zip(regs, tmps):
            a("v_permlane%s_swap_b32 v%d, v%d" % (sw, r, t))
        for r, t in zip(regs, tmps):
            a("v_%s_f32 v%d, v%d, v%d" % (op, r, r, t))

def bf16_round(a, dst, src, tmp):
    a("v_cvt_pk_bf16_f32 v%d, v%d, v%d" % (tmp, src, src))
    a("v_lshlrev_b32 v%d, 16, v%d" % (dst, tmp))

def layernorm(a, xr, f, t, xp):
    for i in range(4):
        a("v_lshlrev_b32 v%d, 16, v%d" % (f + 2 * i, xr + i))
        a("v_and_b32 v%d, 0xffff0000, v%d" % (f + 2 * i + 1, xr + i))
    a("v_add_f32 v%d, v%d, v%d" % (t, f, f + 1))
    a("v_add_f32 v%d, v%d, v%d" % (t + 1, f + 2, f + 3))
    a("v_add_f32 v%d, v%d, v%d" % (t + 2, f + 4, f + 5))
    a("v_add_f32 v%d, v%d, v%d" % (t + 3, f + 6, f + 7))
    a("v_add_f32 v%d, v%d, v%d" % (t, t, t + 1))
    a("v_add_f32 v%d, v%d, v%d" % (t + 2, t + 2, t + 3))
    a("v_add_f32 v%d, v%d, v%d" % (t, t, t + 2))
    allreduce(a, "add", t, t + 1)
    a("v_mul_f32 v%d, 0x3b000000, v%d" % (t, t))
    a("v_sub_f32 v%d, v%d, v%d" % (t + 2, f, t))
    a("v_mul_f32 v%d, v%d, v%d" % (t + 1, t + 2, t + 2))
    for i in range(1, 8):
        a("v_sub_f32 v%d, v%d, v%d" % (t + 2, f + i, t))
        a("v_fmac_f32 v%d, v%d, v%d" % (t + 1, t + 2, t + 2))
    allreduce(a, "add", t + 1, t + 2)
    a("v_mul_f32 v%d, 0x3b000000, v%d" % (t + 1, t + 1))
    a("v_cvt_pk_bf16_f32 v%d, v%d, v%d" % (t + 2, t, t + 1))
    a("v_lshlrev_b32 v%d, 16, v%d" % (t, t + 2))
    a("v_and_b32 v%d, 0xffff0000, v%d" % (t + 1, t + 2))
    a("v_add_f32 v%d, 0x3727c5ac, v%d" % (t + 1, t + 1))
    bf16_round(a, t + 1, t + 1, t + 2)
    a("v_sqrt_f32 v%d, v%d" % (t + 1, t + 1))
    a.nop(1)
    bf16_round(a, t + 1, t + 1, t + 2)
    a("v_rcp_f32 v%d, v%d" % (t + 2, t + 1))
    for i in range(8):
        a("v_sub_f32 v%d, v%d, v%d" % (f + i, f + i, t))
    for i in range(4):
        a("v_cvt_pk_bf16_f32 v%d, v%d, v%d" % (xp + i, f + 2 * i, f + 2 * i + 1))
    for i in range(4):
        a("v_lshlrev_b32 v%d, 16, v%d" % (f + 2 * i, xp + i))
        a("v_and_b32 v%d, 0xffff0000, v%d" % (f + 2 * i + 1, xp + i))
    for i in range(8):
        a("v_mul_f32 v%d, v%d, v%d" % (t + 3, f + i, t + 2))
        a("v_fma_f32 v%d, -v%d, v%d, v%d" % (t + 4, t + 3, t + 1, f + i))
        a("v_fma_f32 v%d, v%d, v%d, v%d" % (f + i, t + 4, t + 2, t + 3))
    for i in range(4):
        a("v_cvt_pk_bf16_f32 v%d, v%d, v%d" % (xp + i, f + 2 * i, f + 2 * i + 1))

def srd(a, d, base, nbytes):
    a("s_mov_b32 s%d, s%d" % (d, base))
    a("s_mov_b32 s%d, s%d" % (d + 1, base + 1))
    a("s_mov_b32 s%d, 0x%x" % (d + 2, nbytes))
    a("s_mov_b32 s%d, 0x20000" % (d + 3))

def fcoords(a):
    a("""
    s_and_b32 s14, s4, 3
    s_mul_i32 s14, s14, 14
    s_lshr_b32 s36, s4, 2
    s_lshl_b32 s7, s36, 3
    s_add_u32 s14, s14, s7
    s_lshr_b32 s7, s5, 2
    s_add_u32 s14, s14, s7
    s_and_b32 s15, s5, 3
    s_lshl_b32 s36, s36, 3
    s_add_u32 s36, s36, s5
    s_cmp_lt_u32 s36, 32
    s_cselect_b32 s36, 1, 0
    """)

def touches(a, tw, vz=212):
    a("s_mov_b64 exec, 1")
    a("v_mov_b32 v%d, 0" % vz)
    n = 1
    if tw & 1:
        srd(a, 68, 20, 0x8000000)
        a("""
        s_lshl_b32 s6, s4, 24
        s_lshl_b32 s7, s5, 12
        s_add_u32 s6, s6, s7
        s_add_u32 s6, s6, 0xf00000
        buffer_load_dword v%d, v%d, s[68:71], s6 offen
        """ % (vz + 1, vz))
    if tw & 2:
        srd(a, 72, 24, 4096 * 512 * 2)
        a("""
        s_lshl_b32 s6, s4, 19
        s_lshr_b32 s7, s5, 1
        s_lshl_b32 s7, s7, 15
        s_add_u32 s6, s6, s7
        buffer_load_dword v%d, v%d, s[72:75], s6 offen
        """ % (vz + 1, vz))
    if tw & 4:
        fcoords(a)
        a("s_bitcmp1_b32 s5, 2")
        a("s_cselect_b32 s68, s30, s28")
        a("s_cselect_b32 s69, s31, s29")
        a("s_mov_b32 s70, 0x%x" % (512 * 1792 * 2))
        a("s_mov_b32 s71, 0x20000")
        srd(a, 72, 32, 1792 * 512 * 2)
        a("""
        s_mul_i32 s6, s15, %d
        s_lshl_b32 s7, s14, 6
        s_and_b32 s7, s7, -128
        s_add_u32 s6, s6, s7
        buffer_load_dword v%d, v%d, s[68:71], s6 offen
        s_lshl_b32 s6, s14, 15
        s_lshl_b32 s7, s15, 8
        s_add_u32 s6, s6, s7
        buffer_load_dword v%d, v%d, s[72:75], s6 offen
        """ % (128 * 3584, vz + 1, vz, vz + 1, vz))
    if tw & 8:
        a("""
        s_mov_b32 s6, 0x30000
        buffer_load_dword v%d, v%d, s[56:59], s6 offen
        s_mov_b32 s6, 0x240000
        buffer_load_dword v%d, v%d, s[56:59], s6 offen
        """ % (vz + 1, vz, vz + 1, vz))
    a("s_mov_b64 exec, -1")

def stouch(a, m):
    if m & 1:
        a("""
        s_lshl_b32 s6, s4, 24
        s_lshl_b32 s7, s5, 12
        s_add_u32 s6, s6, s7
        s_add_u32 s6, s6, 0xf00000
        s_load_dword s70, s[20:21], s6
        """)
    if m & 2:
        a("""
        s_lshl_b32 s6, s4, 19
        s_lshr_b32 s7, s5, 1
        s_lshl_b32 s7, s7, 15
        s_add_u32 s6, s6, s7
        s_load_dword s70, s[24:25], s6
        """)
    if m & 4:
        a("""
        s_and_b32 s6, s5, 3
        s_mul_i32 s6, s6, %d
        s_load_dword s70, s[28:29], s6
        s_load_dword s70, s[30:31], s6
        s_load_dword s70, s[32:33], s6
        """ % (128 * 3584))
    if m & 8:
        a("""
        s_mov_b32 s6, 0x240000
        s_load_dword s70, s[38:39], s6
        s_load_dword s70, s[34:35], 0
        """)

def traddr128(a, d, base, t0, t1):
    a("""
    v_lshrrev_b32 v%d, 2, v4
    v_lshl_add_u32 v%d, v5, 3, v%d
    v_lshlrev_b32 v%d, 7, v%d
    v_bfe_u32 v%d, v0, 3, 2
    v_lshl_or_b32 v%d, v%d, 5, v%d
    v_and_b32 v%d, 3, v0
    v_lshl_or_b32 v%d, v%d, 3, v%d
    """ % (t0, t0, t0, t0, t0, t1, t0, t1, t0, t1, d, t1, t0))
    if base: a("v_add_u32 v%d, %d, v%d" % (d, base, d))
    for u in range(1, 4):
        a("v_xor_b32 v%d, %d, v%d" % (d + u, 32 * u, d))

def early_barrier(a):
    a("s_waitcnt lgkmcnt(0)")
    a("s_barrier")
    srd(a, 56, 38, 0x20000000)

def make_tag(a):
    a("""
    s_waitcnt lgkmcnt(0)
    s_add_u32 s40, s40, 16
    s_and_b32 s40, s40, -16
    s_add_u32 s41, s41, 0x9e3779b9
    """)

def get_tag(a, vt):
    if OWNTAG:
        make_tag(a)
        a("v_mov_b32 v%d, s40" % vt)
        a("v_mov_b32 v%d, s41" % (vt + 1))
        a("v_mov_b32 v%d, 1" % (vt + 2))
        return
    name = a.newlabel("L_gt")
    a("s_mov_b32 s64, SPIN")
    a.label(name)
    a("ds_read_b96 v[%d:%d], v7 offset:%d" % (vt, vt + 2, F_TAG))
    a("s_waitcnt lgkmcnt(0)")
    a("v_cmp_eq_u32 vcc, 0, v%d" % (vt + 2))
    a("s_cbranch_vccz %s_ok" % name)
    a("s_sleep 10")
    a("s_sub_u32 s64, s64, 1")
    a("s_cbranch_scc1 L_end")
    a("s_branch %s" % name)
    a.label(name + "_ok")
    a("v_readfirstlane_b32 s40, v%d" % vt)
    a("v_readfirstlane_b32 s41, v%d" % (vt + 1))
    a.nop(2)

def lds_wait_ge(a, vfl, vtmp, off, thr, sleep=1):
    name = a.newlabel("L_w")
    a("s_mov_b32 s64, SPIN")
    a.label(name)
    a("ds_read_b32 v%d, v%d offset:%d" % (vtmp, vfl, off))
    a("s_waitcnt lgkmcnt(0)")
    a("v_cmp_gt_u32 vcc, %d, v%d" % (thr, vtmp) if thr <= 64 else "v_cmp_gt_u32 vcc, 0x%x, v%d" % (thr, vtmp))
    a("s_cbranch_vccz %s_ok" % name)
    if sleep: a("s_sleep %d" % sleep)
    a("s_sub_u32 s64, s64, 1")
    a("s_cbranch_scc1 L_end")
    a("s_branch %s" % name)
    a.label(name + "_ok")

def tagcheck(a, regs, tag="s[40:41]"):
    a("v_cmp_ne_u64 vcc, %s, v[%d:%d]" % (tag, regs[0] + 2, regs[0] + 3))
    for r in regs[1:]:
        a("v_cmp_ne_u64 s[60:61], %s, v[%d:%d]" % (tag, r + 2, r + 3))
        a("s_or_b64 vcc, vcc, s[60:61]")

def gen(diag=False, W=16, forceslow=False, onlyld=False, kvmode=1, W0=24, P=None):
    P = P or {}
    global OWNTAG, DBGD
    DBGD = P.get("dbgd", 0)
    OWNTAG = P.get("owntag", 0)
    if OWNTAG: P["epf"] = 1
    def opt(k, d): return P.get(k, d)
    a = Asm(diag)
    out = []
    out.append(HEADER.rstrip("\n"))
    out.append("; @launch grid=(256,1,1) block=(512,1,1) lds=%d" % LDS_BYTES)
    out.append('.amdgcn_target "amdgcn-amd-amdhsa--gfx950"')
    out.append(".set SPIN, 0x40000")
    out.append(".text")
    out.append(".globl %s_kernel" % NAME)
    out.append(".p2align 8")
    out.append(".type %s_kernel,@function" % NAME)
    out.append("%s_kernel:" % NAME)

    a("""
    s_cmp_ge_u32 s2, 256
    s_cbranch_scc1 L_end0
    s_load_dwordx16 s[16:31], s[0:1], 0
    s_load_dwordx8 s[32:39], s[0:1], 64
    v_lshrrev_b32 v1, 6, v0
    v_lshlrev_b32 v2, 3, v0
    v_mov_b32 v8, 0
    v_mov_b32 v9, 0
    v_readfirstlane_b32 s3, v1
    v_add_u32 v2, %d, v2
    v_and_b32 v0, 63, v0
    ds_write_b64 v2, v[8:9]
    s_and_b32 s4, s2, 7
    s_lshr_b32 s5, s2, 3
    v_and_b32 v4, 15, v0
    v_lshrrev_b32 v5, 4, v0
    v_mov_b32 v7, %d
    """ % (L_Z, L_FL))
    a.stamp()
    nst0 = a.nstamp
    a("""
    s_cmp_eq_u32 s3, 0
    s_cbranch_scc1 L_ld
    """)
    if onlyld:
        if opt("sw", 0):
            a("s_cmp_lg_u32 s3, 7")
            a("s_cbranch_scc1 L_end0")
            a("s_waitcnt lgkmcnt(0)")
            a("s_barrier")
            if opt("swd", 0): a("s_sleep %d" % opt("swd", 0))
            stouch(a, opt("sw", 0))
            a("s_waitcnt lgkmcnt(0)")
        if opt("tw", 0):
            a("s_cmp_lg_u32 s3, 7")
            a("s_cbranch_scc1 L_end0")
            a("s_waitcnt lgkmcnt(0)")
            srd(a, 56, 38, 0x20000000)
            touches(a, opt("tw", 0))
            a("s_barrier")
        a("s_branch L_end0")
    a("""
    s_cmp_eq_u32 s3, 1
    s_cbranch_scc1 L_qh
    s_mov_b32 s58, 0x20000000
    s_mov_b32 s59, 0x20000
    s_waitcnt lgkmcnt(0)
    s_load_dwordx2 s[40:41], s[38:39], 0
    s_mov_b32 s56, s38
    s_mov_b32 s57, s39
    s_getreg_b32 s44, hwreg(HW_REG_XCC_ID, 0, 4)
    s_barrier
    s_cmp_eq_u32 s3, 6
    s_cbranch_scc1 L_f
    s_cmp_eq_u32 s3, 7
    s_cbranch_scc1 L_o
    s_cmp_eq_u32 s3, 2
    s_cbranch_scc1 L_att
    s_mov_b64 exec, 0
    s_cmp_eq_u32 s3, 3
    s_cbranch_scc1 PAD_Q1
    s_cmp_eq_u32 s3, 4
    s_cbranch_scc1 PAD_Q2
    s_branch PAD_A1
    """)
    a.label("L_end0")
    a("s_endpgm")
    a.label("L_qh")
    a("""
    s_setprio 3
    v_lshlrev_b32 v2, 4, v0
    s_mov_b32 s50, 1024
    s_mov_b32 s51, 0x20000
    s_mov_b32 s58, 0x20000000
    s_mov_b32 s59, 0x20000
    s_waitcnt lgkmcnt(0)
    s_mov_b32 s48, s16
    s_mov_b32 s49, s17
    s_mov_b32 s56, s38
    s_mov_b32 s57, s39
    buffer_load_dwordx4 v[8:11], v2, s[48:51], 0 offen
    s_getreg_b32 s44, hwreg(HW_REG_XCC_ID, 0, 4)
    s_barrier
    s_branch L_q
    """)

    a.label("L_ld")
    a("s_setprio 2")
    a("""
    v_lshrrev_b32 v6, 3, v0
    v_bfe_u32 v3, v0, 4, 1
    v_lshlrev_b32 v3, 1, v3
    v_and_b32 v8, 7, v0
    v_xor_b32 v8, v8, v3
    v_lshlrev_b32 v8, 4, v8
    v_lshl_or_b32 v10, v6, 13, v8
    v_xor_b32 v21, 64, v10
    v_lshrrev_b32 v9, 5, v0
    s_lshr_b32 s6, s5, 3
    s_lshl_b32 s6, s6, 20
    s_lshl_b32 s7, s4, 10
    s_add_u32 s6, s6, s7
    s_and_b32 s7, s5, 7
    s_lshl_b32 s7, s7, 7
    s_add_u32 s6, s6, s7
    s_mov_b32 s46, 0x400000
    s_mov_b32 s47, 0x20000
    s_mov_b32 m0, %d
    s_movk_i32 s42, 1024
    s_movk_i32 s43, 4096
    s_mov_b32 s40, 0x20000
    s_mov_b32 s41, 0x10000
    """ % L_WQ)
    for b in range(4):
        a("v_add_u32 v2, %d, v5" % (4 * b))
        a("v_xor_b32 v2, v4, v2")
        a("v_lshlrev_b32 v2, 4, v2")
        a("v_lshl_or_b32 v%d, v5, 8, v2" % (12 + b))
    a("""
    s_lshl_b32 s8, s4, 24
    s_lshl_b32 s7, s5, %d
    s_add_u32 s8, s8, s7
    s_add_u32 s8, s8, 0xf00000
    s_mov_b32 s9, s8
    s_mov_b32 s50, 0x8000000
    s_mov_b32 s51, 0x20000
    s_waitcnt lgkmcnt(0)
    s_mov_b32 s44, s22
    s_mov_b32 s45, s23
    s_mov_b32 s48, s18
    s_mov_b32 s49, s19
    """ % ({0: 15, 1: 12}[kvmode]))
    a.stamp()

    def loader_setup2():
        a("v_mul_u32_u24 v11, %d, v6" % 3584)
        a("v_add_u32 v11, v11, v8")
        a("v_xor_b32 v22, 64, v11")
        for b in range(2):
            a("v_add_u32 v2, %d, v5" % (4 * b))
            a("v_lshlrev_b32 v2, 1, v2")
            a("v_xor_b32 v2, v4, v2")
            a("v_lshlrev_b32 v2, 4, v2")
            a("v_lshl_or_b32 v%d, v5, 8, v2" % (16 + b))
        a("v_and_b32 v3, 31, v0")
        for b in range(2):
            a("v_add_u32 v2, %d, v9" % (2 * b))
            a("v_lshlrev_b32 v2, 2, v2")
            a("v_xor_b32 v2, v3, v2")
            a("v_lshlrev_b32 v2, 4, v2")
            a("v_lshl_or_b32 v%d, v9, 10, v2" % (18 + b))
        a("v_lshlrev_b32 v2, 2, v5")
        a("v_xor_b32 v2, v4, v2")
        a("v_lshlrev_b32 v2, 4, v2")
        a("v_lshl_or_b32 v20, v5, 10, v2")
        srd(a, 52, 20, 0x8000000)
        a("s_bitcmp1_b32 s5, 2")
        a("s_cselect_b32 s60, s30, s28")
        a("s_cselect_b32 s61, s31, s29")
        a("s_mov_b32 s62, 0x%x" % (512 * 1792 * 2))
        a("s_mov_b32 s63, 0x20000")
        srd(a, 68, 24, 4096 * 512 * 2)
        srd(a, 72, 32, 1792 * 512 * 2)
        srd(a, 56, 38, 0x20000000)
        fcoords(a)
        a("""
        s_mul_i32 s10, s15, %d
        s_lshl_b32 s7, s14, 6
        s_and_b32 s7, s7, -128
        s_add_u32 s10, s10, s7
        s_movk_i32 s41, %d
        """ % (128 * 3584, 8 * 3584))
        a("""
        s_lshl_b32 s12, s4, 19
        s_lshr_b32 s7, s5, 1
        s_lshl_b32 s7, s7, 15
        s_add_u32 s12, s12, s7
        s_and_b32 s7, s5, 1
        s_lshl_b32 s7, s7, 9
        s_add_u32 s12, s12, s7
        """)
        a("""
        s_lshl_b32 s13, s14, 15
        s_lshl_b32 s7, s15, 8
        s_add_u32 s13, s13, s7
        """)

    def item(kind, i):
        def m0set(base, i): return "s_mov_b32 m0, %d" % base if i == 0 else "s_add_u32 m0, m0, s42"
        if kind == "wq":
            pre = [] if i == 0 else ["s_add_u32 m0, m0, s42", "s_add_u32 s6, s6, s41"]
            return pre + ["buffer_load_dwordx4 v%d, s[44:47], s6 offen nt lds" % (21 if i & 1 else 10)]
        if kind in ("K", "V"):
            base = L_K if kind == "K" else L_V
            sr = 8 if kind == "K" else 9
            pre = []
            if i % 4 == 0:
                pre = ["s_mov_b32 m0, %d" % (base + i * 1024) if i in (0, 16) else "s_add_u32 m0, m0, s43", ("s_add_u32 s%d, s%d, %s" % (sr, sr, "s43" if kvmode == 0 else "s40")) if i else "s_nop 0"]
                if opt("kvx", 0) and i:
                    u = i // 4
                    pre[1] = "s_xor_b32 s%d, s%d, 0x%x" % (sr, sr, (u * 0x21000) ^ ((u - 1) * 0x21000))
            vr = 12 + (i % 4) if kind == "K" else 16 + (i % 2)
            return pre + ["buffer_load_dwordx4 v%d, s[%d:%d], s%d offen offset:%d nt lds" % (vr, 48 if kind == "K" else 52, 51 if kind == "K" else 55, sr, (i % 4) * 1024)]
        if kind == "G":
            pre = [m0set(L_G, i), "s_add_u32 s10, s10, s41" if i else "s_nop 0"]
            return pre + ["buffer_load_dwordx4 v%d, s[60:63], s10 offen nt lds" % (22 if i & 1 else 11)]
        if kind == "wo":
            pre = [m0set(L_WO, i), "s_add_u32 s12, s12, 0x800" if i else "s_nop 0"]
            return pre + ["buffer_load_dwordx4 v%d, s[68:71], s12 offen nt lds" % (18 + (i % 2))]
        if kind == "wd":
            pre = [m0set(L_WD, i), "s_add_u32 s13, s13, s43" if i else "s_nop 0"]
            return pre + ["buffer_load_dwordx4 v20, s[72:75], s13 offen nt lds"]

    ORD = {0: "K V G wo wd", 1: "K G wd wo V", 2: "K G wo V wd", 3: "K G V wo wd", 4: "K G Va wo wd Vb", 5: "K G wd Va wo Vb", 6: "K Va G wd wo Vb", 7: "K G wo wd V"}[opt("ord", 0)].split()
    CNT = {"wq": 16, "K": 32, "V": 32, "G": 16, "wo": 16, "wd": 8}
    def expand(k):
        if k == "Va": return [("V", i) for i in range(16)]
        if k == "Vb": return [("V", i) for i in range(16, 32)]
        return [(k, i) for i in range(CNT[k])]
    seqfull = expand("wq")
    for k in ORD: seqfull += expand(k)
    PV = {it: n + 1 for n, it in enumerate(seqfull)}
    def mark(k, i):
        if k == "wq": return i in ((3, 7, 11, 15) if opt("q4", 0) else (7, 15))
        if k in ("K", "V"): return i % 8 == 7
        if k == "G": return i == 15 or (opt("g2", 0) and i == 7)
        return i == CNT[k] - 1
    TH_K0 = PV[("K", 7)]; TH_V3 = PV[("V", 23)]; TH_V = PV[("V", 31)]; TH_G = PV[("G", 15)]; TH_WO = PV[("wo", 15)]; TH_WD = PV[("wd", 7)]
    STAMPS = (16, PV[("K", 31)], TH_V, TH_G, TH_WO, TH_WD)
    def stream(full):
        seq = [it for it in seqfull if full or it[0] not in ("G", "wd")]
        prog = {}
        for n, (k, i) in enumerate(seq):
            if mark(k, i): prog[n + 1] = PV[(k, i)]
        return seq, prog

    WL = opt("WL", W)
    def win(n):
        if n >= 80: return WL
        if n < opt("wqn", 0): return max(opt("wqw", W), W0 - max(0, n - W0) * opt("shrink", 1))
        return max(W, W0 - max(0, n - W0) * opt("shrink", 1))
    seqF, progF = stream(True)
    seqS, progS = stream(False)
    NB = opt("nb", 6)
    if NB == 0: a("s_barrier")
    for i in range(16):
        for x in item("wq", i): a(x)
        if i == NB - 1: a("s_barrier")
    assert 16 <= W0 <= 48
    for n in range(16, W0):
        for x in item(*seqF[n]): a(x)
    a.stamp()
    loader_setup2()

    def publish(prog, cnt):
        a("v_mov_b32 v2, %d" % prog[cnt])
        a("ds_write_b32 v7, v2 offset:%d" % F_PROG)
        if prog[cnt] in STAMPS: a.stamp()
    def emit(seq, prog, n0, n1, done):
        for n in range(n0, n1):
            target = n - win(n) + 1
            for cnt in range(done + 1, target + 1):
                if cnt in prog and cnt < target:
                    a("s_waitcnt vmcnt(%d)" % (n - cnt))
                    publish(prog, cnt)
            if target > done:
                a("s_waitcnt vmcnt(%d)" % (n - target))
            for x in item(*seq[n]): a(x)
            if target > done and target in prog: publish(prog, target)
            done = max(done, target)
        return done
    def drain(seq, prog, done):
        N = len(seq)
        for cnt in range(done + 1, N + 1):
            if cnt in prog:
                a("s_waitcnt vmcnt(%d)" % (N - cnt))
                publish(prog, cnt)
    PZ = opt("pause", 0)
    def tail(seq, prog, done, np_, need):
        if not PZ:
            d2 = emit(seq, prog, 80, len(seq), done)
            drain(seq, prog, d2)
            return
        ahead = opt("pzah", 0)
        d2 = emit(seq, prog, 80, np_ + ahead, done)
        for cnt in range(d2 + 1, np_ + 1):
            if cnt in prog:
                a("s_waitcnt vmcnt(%d)" % (np_ + ahead - cnt))
                publish(prog, cnt)
        lab = a.newlabel("L_pz")
        a("s_mov_b32 s37, %d" % opt("pzmax", 24))
        a.label(lab)
        a("ds_read_b32 v3, v7 offset:%d" % F_PZ)
        a("s_waitcnt lgkmcnt(0)")
        a("v_cmp_gt_u32 vcc, %d, v3" % need)
        a("s_cbranch_vccz %s_ok" % lab)
        a("s_sub_u32 s37, s37, 1")
        a("s_cbranch_scc0 %s" % lab)
        a.label(lab + "_ok")
        for n in range(np_ + ahead, len(seq)):
            for x in item(*seq[n]): a(x)
        drain(seq, prog, np_)
    NC = 0
    while seqF[NC] == seqS[NC]: NC += 1
    done = emit(seqF, progF, W0, NC, 0)
    nst1 = a.nstamp
    a("s_cmp_lg_u32 s36, 0")
    a("s_cbranch_scc1 L_ld_full")
    drain(seqS, progS, emit(seqS, progS, NC, len(seqS), done))
    a.stamp_flush(28)
    a("s_endpgm")
    a.label("L_ld_full")
    a.nstamp = nst1
    drain(seqF, progF, emit(seqF, progF, NC, len(seqF), done))
    if opt("wb", 0) & 4:
        a("s_cmp_lg_u32 s5, %d" % opt("wbc", 0))
        a("s_cbranch_scc1 L_ld_nwb")
        if opt("wbd", 0): a("s_sleep %d" % opt("wbd", 0))
        a("buffer_wbl2 sc1")
        a.label("L_ld_nwb")
    a.stamp_flush(28, [("min", 0, 0), ("max", 0, 1)] + [("max", 3 + i, 2 + i) for i in range(6)] + [("sum", 3 + i, 8 + i) for i in range(6)])
    a("s_endpgm")

    a.nstamp = nst0
    a.page()
    a.label("L_q")
    a("""
    v_add_u32 v12, %d, v2
    s_lshr_b32 s6, s5, 3
    s_lshl_b32 s6, s6, 8
    s_add_u32 s6, s6, %d
    v_lshlrev_b32 v13, 4, v5
    v_add_u32 v13, s6, v13
    """ % (L_XN, L_XN))
    traddr128(a, 120, L_WQ, 3, 6)
    a("""
    s_lshl_b32 s14, s4, 14
    s_lshl_b32 s15, s5, 9
    s_add_u32 s15, s15, s14
    s_add_u32 s15, s15, 0x%x
    v_lshrrev_b32 v3, 1, v4
    v_lshlrev_b32 v3, 7, v3
    v_lshl_or_b32 v3, v5, 5, v3
    v_and_b32 v6, 1, v0
    v_lshl_or_b32 v3, v6, 4, v3
    s_mov_b32 s8, 0xaaaaaaaa
    s_mov_b32 s9, 0xaaaaaaaa
    s_mov_b32 s10, 0xcccccccc
    s_mov_b32 s11, 0xcccccccc
    s_mov_b32 s12, 0xf0f0f0f0
    s_mov_b32 s13, 0xf0f0f0f0
    v_mov_b32 v149, 1
    """ % INB1)
    a("""
    s_mov_b32 s52, s34
    s_mov_b32 s53, s35
    s_mov_b32 s54, 1024
    s_mov_b32 s55, 0x20000
    """)
    PT = opt("pt", 0)
    if PT & 1:
        a("""
        s_mov_b32 exec_lo, 0x00ff00ff
        s_mov_b32 exec_hi, 0x00ff00ff
        buffer_load_dwordx4 v[160:163], v3, s[56:59], s15 offen sc1
        s_mov_b64 exec, -1
        s_waitcnt vmcnt(1)
        """)
    else:
        a("s_waitcnt vmcnt(0)")
    a.stamp()
    layernorm(a, 8, 80, 88, 96)
    a("ds_write_b128 v12, v[96:99]")
    a("ds_write_b32 v7, v149 offset:%d" % F_XN)
    a.pad("PAD_Q1", "L_att_x")
    for k in range(4):
        a("ds_read_b128 v[%d:%d], v13 offset:%d" % (100 + 4 * k, 103 + 4 * k, k * 64))
    a.stamp()
    for k in range(4 if opt("q4", 0) else 0):
        lds_wait_ge(a, 7, 80, F_PROG, 4 * (k + 1), sleep=0)
        for u in range(4):
            for h in range(2):
                r = 16 + k * 16 + (u * 2 + h) * 2
                a("ds_read_b64_tr_b16 v[%d:%d], v%d offset:%d" % (r, r + 1, 120 + u, k * 4096 + h * 512))
        if k == 3: a("ds_read_b96 v[150:152], v7 offset:%d" % F_TAG)
        for u in range(4):
            a("s_waitcnt lgkmcnt(%d)" % (6 - 2 * u + (k == 3)))
            r = 16 + k * 16 + u * 4
            c_ = "0" if k == 0 else "v[%d:%d]" % (132 + 4 * u, 135 + 4 * u)
            a("v_mfma_f32_16x16x32_bf16 v[%d:%d], v[%d:%d], v[%d:%d], %s" % (132 + 4 * u, 135 + 4 * u, r, r + 3, 100 + 4 * k, 103 + 4 * k, c_))
    for half in range(0 if opt("q4", 0) else 2):
        lds_wait_ge(a, 7, 80, F_PROG, 8 * (half + 1), sleep=0)
        for kk in range(2):
            k = half * 2 + kk
            for u in range(4):
                for h in range(2):
                    r = 16 + (kk * 8 + u * 2 + h) * 2 + half * 32
                    a("ds_read_b64_tr_b16 v[%d:%d], v%d offset:%d" % (r, r + 1, 120 + u, k * 4096 + h * 512))
        if half == 1: a("ds_read_b96 v[150:152], v7 offset:%d" % F_TAG)
        for kk in range(2):
            k = half * 2 + kk
            for u in range(4):
                if u % 2 == 0: a("s_waitcnt lgkmcnt(%d)" % (12 - 8 * kk - 2 * u + half))
                r = 16 + (kk * 8 + u * 2) * 2 + half * 32
                c_ = "0" if k == 0 else "v[%d:%d]" % (132 + 4 * u, 135 + 4 * u)
                a("v_mfma_f32_16x16x32_bf16 v[%d:%d], v[%d:%d], v[%d:%d], %s" % (132 + 4 * u, 135 + 4 * u, r, r + 3, 100 + 4 * k, 103 + 4 * k, c_))
    a.stamp()
    a("s_mov_b32 s64, SPIN")
    a.pad("PAD_Q2", "L_att_x")
    a.label("L_q_tw")
    a("""
    s_waitcnt lgkmcnt(0)
    v_cmp_eq_u32 vcc, 0, v152
    s_cbranch_vccz L_q_tok
    ds_read_b96 v[150:152], v7 offset:%d
    s_sub_u32 s64, s64, 1
    s_cbranch_scc1 L_end
    s_branch L_q_tw
    """ % F_TAG)
    a.label("L_q_tok")
    a("""
    v_or_b32 v158, s44, v150
    v_mov_b32 v159, v151
    v_readfirstlane_b32 s40, v150
    v_readfirstlane_b32 s41, v151
    """)
    for u in range(4):
        a("v_cndmask_b32_e64 v%d, v%d, v%d, s[8:9]" % (80 + 2 * u, 132 + 4 * u, 134 + 4 * u))
        a("v_cndmask_b32_e64 v%d, v%d, v%d, s[8:9]" % (81 + 2 * u, 133 + 4 * u, 135 + 4 * u))
    a("""
    v_cndmask_b32_e64 v80, v80, v82, s[10:11]
    v_cndmask_b32_e64 v81, v81, v83, s[10:11]
    v_cndmask_b32_e64 v84, v84, v86, s[10:11]
    v_cndmask_b32_e64 v85, v85, v87, s[10:11]
    s_mov_b32 exec_lo, 0x00ff00ff
    s_mov_b32 exec_hi, 0x00ff00ff
    v_cndmask_b32_e64 v156, v80, v84, s[12:13]
    v_cndmask_b32_e64 v157, v81, v85, s[12:13]
    %s
    ds_write_b32 v7, v149 offset:%d
    """ % ("s_nop 0" if forceslow else "buffer_store_dwordx4 v[156:159], v3, s[56:59], s15 offen", F_QPUB))
    a.stamp()
    a("s_setprio 0")
    a("s_mov_b32 s64, SPIN")
    a.label("L_q_w")
    a("""
    s_sleep 4
    ds_read_b64 v[80:81], v7 offset:%d
    s_sub_u32 s64, s64, 1
    s_cbranch_scc1 L_end
    s_waitcnt lgkmcnt(0)
    v_cmp_ne_u32 vcc, 0, v81
    s_cbranch_vccnz L_q_slow
    v_and_b32 v80, 7, v80
    v_cmp_ne_u32 vcc, 4, v80
    s_cbranch_vccnz L_q_w
    """ % F_Q)
    if opt("rs", 0) & 2:
        lds_wait_ge(a, 7, 80, F_APUB, 1, sleep=4)
        if opt("rsq", 0): a("s_sleep %d" % opt("rsq", 0))
        a("buffer_store_dwordx4 v[156:159], v3, s[56:59], s15 offen sc1")
    a("s_branch L_q_dd")
    a.label("L_q_slow")
    a("""
    s_add_u32 s15, s15, 0x%x
    buffer_store_dwordx4 v[156:159], v3, s[56:59], s15 offen sc1
    """ % (INB1S - INB1))
    a.label("L_q_dd")
    a("s_mov_b64 exec, -1")
    a.stamp()
    a("s_lshr_b32 s6, s4, 2")
    a("s_lshl_b32 s6, s6, 3")
    a("s_add_u32 s6, s6, s5")
    a("s_cmp_ge_u32 s6, 32")
    a("s_cbranch_scc1 L_fin")
    if opt("wb", 0) & 8:
        if opt("wbm", 0):
            a("s_bitcmp0_b32 0x%x, s5" % opt("wbm", 0))
        else:
            a("s_cmp_lg_u32 s5, %d" % opt("wbc", 0))
        a("s_cbranch_scc1 L_q_nwb")
        lds_wait_ge(a, 7, 160, F_PZ, 1, sleep=4)
        if opt("wbd", 0): a("s_sleep %d" % opt("wbd", 0))
        a("buffer_wbl2 %ssc1" % ("sc0 " if opt("wbs", 0) else ""))
        a.label("L_q_nwb")
    if diag: a("s_branch L_q_done")
    a("s_endpgm")
    a.page()
    a.label("L_fin")
    if opt("skip", 0) & 32: a("s_endpgm")
    a("""
    s_setprio 1
    s_and_b32 s6, s4, 3
    s_lshl_b32 s6, s6, 3
    s_add_u32 s6, s6, s5
    s_sub_u32 s6, s6, 24
    s_lshl_b32 s6, s6, 1
    s_lshr_b32 s7, s3, 2
    s_add_u32 s6, s6, s7
    s_mov_b32 s65, s6
    s_lshl_b32 s12, s6, 13
    s_add_u32 s12, s12, 0x%x
    s_add_u32 s13, s12, 4096
    s_mul_i32 s14, s6, 3584
    s_add_u32 s14, s14, 0x%x
    s_lshl_b32 s15, s6, 4
    v_and_b32 v3, 3, v0
    v_lshlrev_b32 v3, 2, v3
    v_add_u32 v3, s15, v3
    s_waitcnt vmcnt(0)
    buffer_load_dword v6, v3, s[48:51], 0 offen
    """ % (INB3S, INB3D))
    FN = opt("fn", 0)
    for i, M in enumerate([[16 + 2 * k for k in range(12)], [42, 44, 46, 66, 68, 70, 72, 74, 94, 96, 98, 100]]):
        if FN and i: break
        for m in M: a("s_mov_b64 s[%d:%d], -1" % (m, m + 1))
        a("s_mov_b32 s%d, 0" % (M[11] + 1))
        a("v_mov_b32 v%d, 0" % (16 + 48 * i + 44))
        a("v_mov_b32 v%d, 0" % (16 + 48 * i + 45))
    for b in [16, 64, 112, 190][1:FN]:
        a("v_mov_b32 v%d, 0" % (b + 44))
        a("v_mov_b32 v%d, 0" % (b + 45))
    if diag:
        a("v_mov_b32 v180, 0")
        a("v_mov_b32 v181, 0")
        a("s_mov_b32 s63, 1")
    if opt("fpre", 0):
        if opt("fpre", 0) > 1: lds_wait_ge(a, 7, 160, F_PROG, opt("fpre", 0), sleep=2)
        for j in range(3): a("s_add_u32 s%d, s%d, 0x%x" % (8 + j, 12 + j, opt("fprd", 0) * 0x100000))
        for k in range(12):
            if k == 11: a("s_mov_b64 exec, 0xffffffff")
            a("buffer_load_dwordx4 v[%d:%d], v2, s[56:59], s%d offen offset:%d sc1" % (16 + 4 * k, 19 + 4 * k, 8 + k // 4, (k % 4) * 1024))
        a("s_mov_b64 exec, -1")
        a("s_waitcnt vmcnt(0)")
    lds_wait_ge(a, 7, 160, F_OPUB, 1, sleep=2)
    a("s_setprio 3")
    a.stamp()
    NS = 2
    SK = opt("skip", 0)
    FM = [[16 + 2 * k for k in range(12)], [42, 44, 46, 66, 68, 70, 72, 74, 94, 96, 98, 100]]
    bases = [16 + 48 * i for i in range(NS)]
    if FN:
        NS = FN; bases = [16, 64, 112, 190][:FN]; FM = [FM[0]] * FN
    def fissue(i):
        base = bases[i]
        for k in range(12):
            a("s_mov_b64 exec, s[%d:%d]" % (FM[i][k], FM[i][k] + 1))
            a("buffer_load_dwordx4 v[%d:%d], v2, s[56:59], s%d offen offset:%d sc1" % (base + 4 * k, base + 3 + 4 * k, 12 + k // 4, (k % 4) * 1024))
        a("s_mov_b64 exec, -1")
    def fcheck(i, lab):
        base = bases[i]
        for k in range(12):
            a("v_cmp_ne_u64 s[%d:%d], s[40:41], v[%d:%d]" % (FM[i][k], FM[i][k] + 1, base + 4 * k + 2, base + 4 * k + 3))
        a("s_mov_b32 s%d, 0" % (FM[i][11] + 1))
        for k in range(12):
            if (SK & 1 and k >= 8) or (SK & 2 and k < 8): a("s_mov_b64 s[%d:%d], 0" % (FM[i][k], FM[i][k] + 1))
        for k in range(12):
            a("s_or_b64 s[60:61], s[%d:%d], %s" % (FM[i][k], FM[i][k] + 1, "s[60:61]" if k else "0"))
        a.log(63, "s[60:61]", 180)
        a("s_cbranch_scc0 %s" % lab)
    a("s_mov_b32 s64, SPIN")
    if opt("fdel", 0): a("s_sleep %d" % opt("fdel", 0))
    FK = opt("fk", 0)
    if FK:
        bases = bases[:1]; NS = 1
        for i in range(FK):
            fissue(0)
            if i < FK - 1: a("s_sleep %d" % opt("fstag", 8))
        a.label("L_f_poll3")
        a("s_waitcnt vmcnt(%d)" % (12 * (FK - 1)))
        fcheck(0, "L_fin_d0")
        fissue(0)
    else:
        for i in range(NS):
            fissue(i)
            if i < NS - 1: a("s_sleep %d" % opt("fstag", 8))
        a.label("L_f_poll3")
        for i in range(NS):
            a("s_waitcnt vmcnt(%d)" % (12 * (NS - 1)))
            fcheck(i, "L_fin_d%d" % i)
            fissue(i)
    a("s_sub_u32 s64, s64, 1")
    a("s_cbranch_scc1 L_end")
    a("s_branch L_f_poll3")
    for i, b in enumerate(bases):
        a.label("L_fin_d%d" % i)
        for e in range(2):
            a("v_add_f32 v%d, v%d, v%d" % (160 + e, b + e, b + 4 + e))
            a("v_add_f32 v%d, v%d, v%d" % (164 + e, b + 8 + e, b + 12 + e))
            a("v_add_f32 v%d, v%d, v%d" % (166 + e, b + 16 + e, b + 20 + e))
            a("v_add_f32 v%d, v%d, v%d" % (168 + e, b + 24 + e, b + 28 + e))
            a("v_add_f32 v%d, v%d, v%d" % (162 + e, b + 32 + e, b + 36 + e))
            a("v_add_f32 v%d, v%d, v%d" % (170 + e, b + 40 + e, b + 44 + e))
        if i < NS - 1: a("s_branch L_fin_dd")
    a.label("L_fin_dd")
    a.stamp()
    a("""
    v_add_f32 v160, v160, v164
    v_add_f32 v161, v161, v165
    v_add_f32 v166, v166, v168
    v_add_f32 v167, v167, v169
    v_add_f32 v162, v162, v170
    v_add_f32 v163, v163, v171
    v_add_f32 v160, v160, v166
    v_add_f32 v161, v161, v167
    """)
    for r in (4, 8):
        a.nop(1)
        for v in (162, 163, 160, 161):
            a("v_add_f32_dpp v%d, v%d, v%d row_ror:%d row_mask:0xf bank_mask:0xf" % (v, v, v, r))
    xreduce(a, "add", [160, 161, 162, 163], [164, 165, 166, 167])
    a("""
    v_cvt_pk_bf16_f32 v164, v160, v161
    v_cvt_pk_bf16_f32 v165, v162, v163
    v_lshlrev_b32 v160, 16, v164
    v_and_b32 v161, 0xffff0000, v164
    v_lshlrev_b32 v162, 16, v165
    v_and_b32 v163, 0xffff0000, v165
    v_mul_f32 v164, 0xbfb8aa3b, v162
    v_mul_f32 v165, 0xbfb8aa3b, v163
    v_exp_f32 v164, v164
    v_exp_f32 v165, v165
    s_nop 0
    v_add_f32 v164, 1.0, v164
    v_add_f32 v165, 1.0, v165
    v_rcp_f32 v166, v164
    v_rcp_f32 v167, v165
    s_nop 0
    v_mul_f32 v168, v162, v166
    v_mul_f32 v169, v163, v167
    v_fma_f32 v170, -v168, v164, v162
    v_fma_f32 v171, -v169, v165, v163
    v_fma_f32 v170, v170, v166, v168
    v_fma_f32 v171, v171, v167, v169
    v_cmp_class_f32 vcc, v170, 3
    v_cmp_class_f32 s[60:61], v171, 3
    s_nop 1
    v_cndmask_b32 v170, v170, v168, vcc
    v_cndmask_b32_e64 v171, v171, v169, s[60:61]
    v_cvt_pk_bf16_f32 v164, v170, v171
    v_lshlrev_b32 v170, 16, v164
    v_and_b32 v171, 0xffff0000, v164
    v_mul_f32 v170, v160, v170
    v_mul_f32 v171, v161, v171
    v_cvt_pk_bf16_f32 v164, v170, v171
    v_lshlrev_b32 v170, 16, v164
    v_and_b32 v171, 0xffff0000, v164
    v_lshlrev_b32 v164, 16, v6
    v_and_b32 v165, 0xffff0000, v6
    v_add_f32 v170, v164, v170
    v_add_f32 v171, v165, v171
    v_cvt_pk_bf16_f32 v164, v170, v171
    s_mov_b64 exec, 15
    buffer_store_dword v164, v3, s[52:55], 0 offen%s
    """ % (" sc1" if opt("wb", 0) & 2 else ""))
    a.log_flush(180, 178, 2)
    a("""
    s_cmp_lg_u32 s65, 0
    s_cbranch_scc1 L_q_done
    s_mov_b64 exec, 1
    v_mov_b32 v166, s40
    v_mov_b32 v167, s41
    v_mov_b32 v168, 0
    buffer_store_dwordx2 v[166:167], v168, s[56:59], 0 offen%s
    """ % (" sc1" if opt("wb", 0) & 2 else ""))
    a.label("L_q_done")
    a.stamp()
    a.stamp_flush(172, [("max", 8, 14), ("max1", 5, 15)])
    a("s_endpgm")

    a.nstamp = nst0
    a.page()
    a.label("L_att_x")
    a("s_mov_b64 exec, -1")
    a.label("L_att")
    a("s_sub_u32 s62, s3, 2")
    a("""
    s_lshl_b32 s6, s62, 13
    s_add_u32 s6, s6, %d
    v_lshlrev_b32 v2, 8, v4
    v_add_u32 v2, s6, v2
    """ % L_K)
    for kk in range(4):
        a("v_add_u32 v3, %d, v5" % (4 * kk))
        a("v_xor_b32 v3, v3, v4")
        a("v_lshl_add_u32 v%d, v3, 4, v2" % (8 + kk))
    a("""
    v_lshrrev_b32 v3, 2, v4
    v_lshlrev_b32 v6, 8, v3
    v_lshl_or_b32 v6, v5, 4, v6
    v_add_u32 v6, %d, v6
    v_lshl_add_u32 v2, v5, 2, v3
    v_lshlrev_b32 v2, 8, v2
    v_add_u32 v2, %d, v2
    v_and_b32 v12, 1, v0
    v_lshl_add_u32 v2, v12, 3, v2
    v_and_b32 v12, 1, v5
    v_lshl_add_u32 v12, v12, 2, v3
    v_lshlrev_b32 v12, 1, v12
    v_bfe_u32 v13, v0, 1, 1
    s_lshl_b32 s6, s62, 2
    v_add_u32 v13, s6, v13
    v_xor_b32 v12, v12, v13
    v_lshl_add_u32 v12, v12, 4, v2
    v_xor_b32 v13, 32, v12
    """ % (L_Q, L_V))
    a("""
    v_lshlrev_b32 v15, 4, v0
    v_add_u32 v15, %d, v15
    s_lshl_b32 s6, s62, 10
    v_add_u32 v14, s6, v15
    v_lshlrev_b32 v17, 4, v3
    v_add_u32 v17, %d, v17
    s_lshl_b32 s6, s62, 6
    v_add_u32 v16, s6, v17
    """ % (L_P, L_ST))
    a("""
    s_lshl_b32 s6, s4, 17
    s_lshl_b32 s7, s62, 13
    s_add_u32 s6, s6, s7
    s_lshl_b32 s7, s5, 8
    s_add_u32 s6, s6, s7
    s_add_u32 s12, s6, 0x%x
    v_lshlrev_b32 v18, 15, v3
    v_lshl_or_b32 v18, v5, 6, v18
    v_and_b32 v2, 3, v0
    v_lshl_or_b32 v18, v2, 4, v18
    s_lshl_b32 s6, s4, 11
    s_lshl_b32 s7, s5, 4
    s_add_u32 s6, s6, s7
    s_add_u32 s13, s6, 0x%x
    v_lshlrev_b32 v19, 9, v3
    s_mov_b32 s8, 0xaaaaaaaa
    s_mov_b32 s9, 0xaaaaaaaa
    s_mov_b32 s10, 0xcccccccc
    s_mov_b32 s11, 0xcccccccc
    s_mov_b32 s14, 0x%x
    s_mov_b32 s15, 0x%x
    s_lshl_b32 s63, s62, 3
    s_add_u32 s63, s63, %d
    """ % (INB2, INBS, SCALE, LOG2E, TH_K0))
    if PT & 2:
        a("buffer_load_dwordx4 v[196:199], v18, s[56:59], s12 offen sc1")
    a("s_cmp_lg_u32 s62, 0")
    a("s_cbranch_scc1 L_att_gt")
    if PT & 2:
        a("s_mov_b64 exec, 0x1111")
        a("buffer_load_dwordx4 v[200:203], v19, s[56:59], s13 offen sc1")
        a("s_mov_b64 exec, -1")
    make_tag(a)
    a("""
    v_mov_b32 v22, s40
    v_mov_b32 v23, s41
    v_mov_b32 v24, 1
    ds_write_b96 v7, v[22:24] offset:%d
    s_branch L_att_nt
    """ % F_TAG)
    a.label("L_att_gt")
    get_tag(a, 22)
    a.label("L_att_nt")
    a("""
    s_lshl_b32 s16, s4, 14
    s_lshl_b32 s6, s62, 10
    s_add_u32 s16, s16, s6
    s_add_u32 s16, s16, 0x%x
    s_add_u32 s17, s16, 0x1000
    s_add_u32 s18, s16, 0x2000
    s_add_u32 s19, s16, 0x3000
    v_lshlrev_b32 v21, 4, v0
    s_lshl_b32 s6, s62, 8
    s_add_u32 s6, s6, %d
    v_lshlrev_b32 v25, 2, v0
    v_add_u32 v25, s6, v25
    s_or_b32 s46, s40, s44
    s_mov_b32 s47, s41
    s_mov_b32 s65, 0
    """ % (INB1, L_Q))
    if opt("fz", 0):
        for r in range(212, 216): a("v_mov_b32 v%d, 0x3f803f80" % r)
    QM = [[20, 22, 24, 26], [28, 30, 32, 34]]
    QB = [128, 144]
    for M in QM:
        for m in M: a("s_mov_b64 s[%d:%d], -1" % (m, m + 1))
    def qissue(i, sa=16):
        for k in range(4):
            a("s_mov_b64 exec, s[%d:%d]" % (QM[i][k], QM[i][k] + 1))
            a("buffer_load_dwordx4 v[%d:%d], v21, s[56:59], s%d offen sc1" % (QB[i] + 4 * k, QB[i] + 3 + 4 * k, sa + k))
        a("s_mov_b64 exec, -1")
    def qcheck(i):
        for k in range(4):
            a("v_cmp_ne_u64 s[%d:%d], s[46:47], v[%d:%d]" % (QM[i][k], QM[i][k] + 1, QB[i] + 2 + 4 * k, QB[i] + 3 + 4 * k))
            if opt("skip", 0) & 8: a("s_mov_b64 s[%d:%d], 0" % (QM[i][k], QM[i][k] + 1))
        for k in range(4):
            a("s_or_b64 s[60:61], s[%d:%d], %s" % (QM[i][k], QM[i][k] + 1, "s[60:61]" if k else "0"))
    def kfrags():
        for tau in range(2):
            for kk in range(4):
                r = 32 + (tau * 4 + kk) * 4
                a("ds_read_b128 v[%d:%d], v%d offset:%d" % (r, r + 3, 8 + kk, tau * 4096))
    if diag:
        a("v_mov_b32 v208, 0")
        a("v_mov_b32 v209, 0")
        a("s_mov_b32 s66, 1")
    a.stamp()
    lds_wait_ge(a, 7, 20, F_QPUB, 1, sleep=2)
    a("s_setprio 2")
    if opt("qdel", 0): a("s_sleep %d" % opt("qdel", 0))
    Q1 = opt("q1", 0)
    qissue(0)
    a("s_mov_b32 s64, %d" % opt("qthr", 16))
    if not Q1:
        a("s_sleep %d" % opt("qstag", 10))
        qissue(1)
    a.label("L_q_poll")
    a("""
    s_cmp_lg_u32 s65, 0
    s_cbranch_scc1 L_q_nk
    ds_read_b32 v20, v7 offset:%d
    s_waitcnt lgkmcnt(0)
    v_cmp_gt_u32 vcc, s63, v20
    s_cbranch_vccnz L_q_nk
    """ % F_PROG)
    kfrags()
    a("s_mov_b32 s65, 1")
    a.label("L_q_nk")
    for i in range(1 if Q1 else 2):
        a("s_waitcnt vmcnt(%d)" % (0 if Q1 else 4))
        qcheck(i)
        a.log(66, "s[60:61]", 208, 67)
        a("s_cbranch_scc0 L_q_d%d" % i)
        qissue(i)
    a("s_sub_u32 s64, s64, 1")
    a("s_cbranch_scc0 L_q_poll")
    a("s_branch L_a_slow")
    for i in (1, 0):
        a.label("L_q_d%d" % i)
        b = QB[i]
        a("v_add_f32 v26, v%d, v%d" % (b, b + 4))
        a("v_add_f32 v27, v%d, v%d" % (b + 1, b + 5))
        a("v_add_f32 v28, v%d, v%d" % (b + 8, b + 12))
        a("v_add_f32 v29, v%d, v%d" % (b + 9, b + 13))
        if i == 1: a("s_branch L_q_d")
    a.label("L_q_d")
    a("""
    v_add_f32 v26, v26, v28
    v_add_f32 v27, v27, v29
    v_cvt_pk_bf16_f32 v26, v26, v27
    ds_write_b32 v25, v26
    s_mov_b64 exec, 1
    ds_add_u32 v7, v24 offset:%d
    s_mov_b64 exec, -1
    """ % F_Q)
    a.stamp()
    a("s_cmp_lg_u32 s65, 0")
    a("s_cbranch_scc1 L_att_kok")
    a("s_mov_b32 s64, SPIN")
    a.label("L_att_kw")
    a("""
    ds_read_b32 v20, v7 offset:%d
    s_waitcnt lgkmcnt(0)
    v_cmp_gt_u32 vcc, s63, v20
    s_cbranch_vccz L_att_kgo
    s_sleep 1
    s_sub_u32 s64, s64, 1
    s_cbranch_scc1 L_end
    s_branch L_att_kw
    """ % F_PROG)
    a.label("L_att_kgo")
    kfrags()
    a.label("L_att_kok")
    a("s_mov_b32 s64, SPIN")
    VP = opt("vp", 0)
    def vread(chi):
        for t in range(2):
            for h in range(2):
                r = 96 + chi * 8 + t * 4 + h * 2
                a("ds_read_b64_tr_b16 v[%d:%d], v%d offset:%d" % (r, r + 1, 12 + t, chi * 8192 + h * 4096))
    a.label("L_att_qw")
    if VP:
        a("ds_read_b96 v[28:30], v7 offset:%d" % F_PROG)
    else:
        a("ds_read_b32 v20, v7 offset:%d" % F_Q)
    for kk in range(4):
        a("ds_read_b128 v[%d:%d], v6 offset:%d" % (64 + 4 * kk, 67 + 4 * kk, kk * 64))
    a("""
    s_waitcnt lgkmcnt(0)
    v_and_b32 v26, 7, v%d
    v_cmp_ne_u32 vcc, 4, v26
    s_cbranch_vccz L_att_qok
    s_sub_u32 s64, s64, 1
    s_cbranch_scc1 L_end
    s_branch L_att_qw
    """ % (30 if VP else 20))
    a.label("L_att_qok")
    if opt("skip", 0) & 256: a("s_endpgm")
    a.stamp()
    a("s_setprio 3")
    a("v_readfirstlane_b32 s45, v%d" % (30 if VP else 20))
    if VP: a("v_cmp_gt_u32 vcc, 0x%x, v28" % TH_V)
    for kk in range(4):
        for tau in range(2):
            r = 32 + (tau * 4 + kk) * 4
            c_ = "0" if kk == 0 else "v[%d:%d]" % (80 + 4 * tau, 83 + 4 * tau)
            a("v_mfma_f32_16x16x32_bf16 v[%d:%d], v[%d:%d], v[%d:%d], %s" % (80 + 4 * tau, 83 + 4 * tau, r, r + 3, 64 + 4 * kk, 67 + 4 * kk, c_))
    if VP:
        a("s_cbranch_vccnz L_att_nv1")
        for chi in range(4): vread(chi)
        a("s_mov_b32 s65, 2")
        a.label("L_att_nv1")
    a.nop(8)
    if opt("cv", 0):
        for i in range(8): a("v_cvt_pk_bf16_f32 v%d, 0, v%d" % (80 + i, 80 + i))
        for i in range(8): a("v_mul_f32 v%d, s14, v%d" % (80 + i, 80 + i))
        for i in range(8): a("v_cvt_pk_bf16_f32 v%d, 0, v%d" % (80 + i, 80 + i))
    else:
      for rnd in range(2):
        for i in range(4):
            a("v_cvt_pk_bf16_f32 v%d, v%d, v%d" % (88 + i, 80 + 2 * i, 81 + 2 * i))
        for i in range(4):
            a("v_lshlrev_b32 v%d, 16, v%d" % (80 + 2 * i, 88 + i))
            a("v_and_b32 v%d, 0xffff0000, v%d" % (81 + 2 * i, 88 + i))
        if rnd == 0:
            for i in range(8):
                a("v_mul_f32 v%d, s14, v%d" % (80 + i, 80 + i))
    FZ = opt("fz", 0)
    def stats_pub(sfx):
        a("""
        s_mov_b64 exec, 0x1111
        s_cmp_eq_u32 s45, 4
        s_cbranch_scc1 L_att_stf%s
        buffer_store_dwordx4 v[64:67], v19, s[56:59], s13 offen sc1
        s_branch L_att_st2%s
        """ % (sfx, sfx))
        a.label("L_att_stf" + sfx)
        a("buffer_store_dwordx4 v[64:67], v19, s[56:59], s13 offen")
        a.label("L_att_st2" + sfx)
        a("s_mov_b64 exec, -1")
        a("ds_write_b32 v7, v29 offset:%d" % F_APUB)
    def zmfma(chi, left=None):
        for t in range(2):
            if left is not None: a("s_waitcnt lgkmcnt(%d)" % (left + 2 - 2 * t))
            r = 96 + chi * 8 + 4 * t; d = 160 + 4 * t
            a("v_mfma_f32_16x16x32_bf16 v[%d:%d], v[%d:%d], v[%d:%d], %s" % (d, d + 3, r, r + 3, 48 + 4 * chi, 51 + 4 * chi, "v[%d:%d]" % (d, d + 3) if chi else "0"))
    if FZ:
        assert VP
        a("""
        v_max3_f32 v92, |v80|, |v81|, |v82|
        v_max3_f32 v93, |v83|, |v84|, |v85|
        v_max3_f32 v92, v92, |v86|, |v87|
        v_max_f32 v92, v92, v93
        v_cmp_nge_f32 vcc, 0x%x, v92
        v_mov_b32 v31, 1
        """ % opt("fzthr", 0x42000000))
        for i in range(8): a("v_mul_f32 v%d, s15, v%d" % (80 + i, 80 + i))
        a("s_cbranch_vccnz L_att_fb")
        a.label("L_att_z")
        for i in range(8): a("v_exp_f32 v%d, v%d" % (80 + i, 80 + i))
        a("v_mov_b32 v64, 0")
        for i in range(4): a("v_cvt_pk_bf16_f32 v%d, v%d, v%d" % (88 + i, 80 + 2 * i, 81 + 2 * i))
        a("""
        ds_write_b128 v14, v[88:91]
        s_mov_b64 exec, 1
        ds_add_u32 v7, v31 offset:%d
        s_mov_b64 exec, -1
        v_mov_b32 v66, v22
        v_mov_b32 v67, v23
        v_mov_b32 v74, v22
        v_mov_b32 v75, v23
        """ % F_P)
        a.stamp()
        a("s_mov_b32 s64, SPIN")
        a.label("L_att_pw")
        a("ds_read2_b32 v[28:29], v7 offset0:%d offset1:%d" % (F_PROG // 4, F_P // 4))
        for w in range(4):
            a("ds_read_b128 v[%d:%d], v15 offset:%d" % (48 + 4 * w, 51 + 4 * w, 1024 * w))
        a("""
        s_sub_u32 s64, s64, 1
        s_cbranch_scc1 L_end
        s_cmp_eq_u32 s65, 2
        s_waitcnt lgkmcnt(0)
        s_cbranch_scc1 L_att_nv2
        v_cmp_gt_u32 vcc, 0x%x, v28
        s_cbranch_vccnz L_att_nv2
        """ % TH_V)
        for chi in range(4): vread(chi)
        a("s_mov_b32 s65, 2")
        a.label("L_att_nv2")
        a("""
        v_and_b32 v30, 7, v29
        v_cmp_ne_u32 vcc, 4, v30
        s_cbranch_vccnz L_att_pw
        """)
        a.stamp()
        a("""
        v_cmp_ne_u32 vcc, 4, v29
        s_cbranch_vccnz L_att_gen
        s_cmp_lg_u32 s62, 0
        s_cbranch_scc1 L_att_nl0
        """)
        for chi in range(4):
            a("v_mfma_f32_16x16x32_bf16 v[68:71], v[212:215], v[%d:%d], %s" % (48 + 4 * chi, 51 + 4 * chi, "v[68:71]" if chi else "0"))
        a.label("L_att_nl0")
        a.pad("PAD_A1", "L_att_x")
        a("s_cmp_lg_u32 s65, 2")
        a("s_cbranch_scc1 L_att_nv3")
        a("s_waitcnt lgkmcnt(0)")
        for chi in range(4): zmfma(chi)
        a.label("L_att_nv3")
        a("""
        s_cmp_lg_u32 s62, 0
        s_cbranch_scc1 L_att_nost
        s_nop 7
        v_mov_b32 v65, v68
        """)
        stats_pub("")
        a.label("L_att_nost")
        a("s_cmp_eq_u32 s65, 2")
        a("s_cbranch_scc1 L_att_sel")
        lds_wait_ge(a, 7, 76, F_PROG, TH_V3, sleep=1)
        for chi in range(3): vread(chi)
        a("ds_read_b32 v76, v7 offset:%d" % F_PROG)
        for chi in range(3): zmfma(chi, 9 - 4 * chi)
        a("s_waitcnt lgkmcnt(0)")
        a("v_cmp_gt_u32 vcc, 0x%x, v76" % TH_V)
        a("s_cbranch_vccz L_att_pv3")
        lds_wait_ge(a, 7, 76, F_PROG, TH_V, sleep=0)
        a.label("L_att_pv3")
        vread(3)
        zmfma(3, 0)
        a.label("L_att_sel")
        a.stamp()
        a.nop(8)
        a.nop(2)
        a("""
        v_cndmask_b32_e64 v160, v160, v162, s[8:9]
        v_cndmask_b32_e64 v161, v161, v163, s[8:9]
        v_cndmask_b32_e64 v164, v164, v166, s[8:9]
        v_cndmask_b32_e64 v165, v165, v167, s[8:9]
        v_cndmask_b32_e64 v72, v160, v164, s[10:11]
        v_cndmask_b32_e64 v73, v161, v165, s[10:11]
        """)
        a.label("L_att_pub")
    else:
        a("""
        v_max3_f32 v92, v80, v81, v82
        v_max3_f32 v93, v83, v84, v85
        v_max3_f32 v92, v92, v86, v87
        v_max_f32 v92, v92, v93
        """)
        xreduce(a, "max", [92], [93])
        a("v_mul_f32 v92, s15, v92")
        for i in range(8):
            a("v_fma_f32 v%d, v%d, s15, -v92" % (80 + i, 80 + i))
        for i in range(8):
            a("v_exp_f32 v%d, v%d" % (80 + i, 80 + i))
        a.nop(1)
        for i in range(4):
            a("v_cvt_pk_bf16_f32 v%d, v%d, v%d" % (88 + i, 80 + 2 * i, 81 + 2 * i))
        a("ds_write_b128 v14, v[88:91]")
        a("""
        v_add_f32 v93, v80, v81
        v_add_f32 v94, v82, v83
        v_add_f32 v95, v84, v85
        v_add_f32 v31, v86, v87
        v_add_f32 v93, v93, v94
        v_add_f32 v95, v95, v31
        v_add_f32 v93, v93, v95
        """)
        xreduce(a, "add", [93], [31])
        a("""
        v_mov_b32 v94, 1
        v_mov_b32 v95, 1
        s_mov_b64 exec, 0x1111
        ds_write_b128 v16, v[92:95]
        s_mov_b64 exec, -1
        """)
        a.stamp()
        if VP:
            a("""
            s_cmp_eq_u32 s65, 2
            s_cbranch_scc1 L_att_nv2
            ds_read_b32 v28, v7 offset:%d
            s_waitcnt lgkmcnt(0)
            v_cmp_gt_u32 vcc, 0x%x, v28
            s_cbranch_vccnz L_att_nv2
            """ % (F_PROG, TH_V))
            for chi in range(4): vread(chi)
            a("s_mov_b32 s65, 2")
            a.label("L_att_nv2")
        a("s_mov_b32 s64, SPIN")
        a.label("L_att_pw")
        a("s_sub_u32 s64, s64, 1")
        a("s_cbranch_scc1 L_end")
        for w in range(4):
            a("ds_read_b128 v[%d:%d], v17 offset:%d" % (32 + 4 * w, 35 + 4 * w, 64 * w))
        for w in range(4):
            a("ds_read_b128 v[%d:%d], v15 offset:%d" % (48 + 4 * w, 51 + 4 * w, 1024 * w))
        a("""
        s_waitcnt lgkmcnt(0)
        v_min_u32 v64, v34, v38
        v_min3_u32 v64, v64, v42, v46
        v_cmp_eq_u32 vcc, 0, v64
        s_cbranch_vccnz L_att_pw
        """)
        a.stamp()
        if VP:
            a("s_cmp_lg_u32 s65, 2")
            a("s_cbranch_scc1 L_att_nv3")
            for chi in range(4):
                for t in range(2):
                    r = 96 + chi * 8 + 4 * t; d = 160 + chi * 8 + 4 * t
                    a("v_mfma_f32_16x16x32_bf16 v[%d:%d], v[%d:%d], v[%d:%d], 0" % (d, d + 3, r, r + 3, 48 + 4 * chi, 51 + 4 * chi))
            a.label("L_att_nv3")
        a("""
        v_max3_f32 v64, v32, v36, v40
        v_max_f32 v64, v64, v44
        """)
        for w in range(4):
            a("v_sub_f32 v%d, v%d, v64" % (68 + w, 32 + 4 * w))
        for w in range(4):
            a("v_exp_f32 v%d, v%d" % (68 + w, 68 + w))
        a.nop(1)
        a("v_mul_f32 v65, v68, v33")
        for w in range(1, 4):
            a("v_fmac_f32 v65, v%d, v%d" % (68 + w, 33 + 4 * w))
        a("""
        v_mov_b32 v66, v22
        v_mov_b32 v67, v23
        v_mov_b32 v74, v22
        v_mov_b32 v75, v23
        s_cmp_lg_u32 s62, 0
        s_cbranch_scc1 L_att_nost
        s_mov_b64 exec, 0x1111
        s_cmp_eq_u32 s45, 4
        s_cbranch_scc1 L_att_stf
        buffer_store_dwordx4 v[64:67], v19, s[56:59], s13 offen sc1
        s_branch L_att_st2
        """)
        a.label("L_att_stf")
        a("buffer_store_dwordx4 v[64:67], v19, s[56:59], s13 offen")
        a.label("L_att_st2")
        a("s_mov_b64 exec, -1")
        a("ds_write_b32 v7, v34 offset:%d" % F_APUB)
        a.label("L_att_nost")
        a.pad("PAD_A1", "L_att_x")
        def vmfma(chi, left):
            for t in range(2):
                a("s_waitcnt lgkmcnt(%d)" % (left + 2 - 2 * t))
                r = 96 + chi * 8 + 4 * t; d = 160 + chi * 8 + 4 * t
                a("v_mfma_f32_16x16x32_bf16 v[%d:%d], v[%d:%d], v[%d:%d], 0" % (d, d + 3, r, r + 3, 48 + 4 * chi, 51 + 4 * chi))
        def vsel(chi):
            d = 160 + chi * 8
            a("""
            v_cndmask_b32_e64 v%d, v%d, v%d, s[8:9]
            v_cndmask_b32_e64 v%d, v%d, v%d, s[8:9]
            v_cndmask_b32_e64 v%d, v%d, v%d, s[8:9]
            v_cndmask_b32_e64 v%d, v%d, v%d, s[8:9]
            v_cndmask_b32_e64 v%d, v%d, v%d, s[10:11]
            v_cndmask_b32_e64 v%d, v%d, v%d, s[10:11]
            """ % (d, d, d + 2, d + 1, d + 1, d + 3, d + 4, d + 4, d + 6, d + 5, d + 5, d + 7, d, d, d + 4, d + 1, d + 1, d + 5))
            if chi == 0:
                a("v_mul_f32 v72, v68, v%d" % d)
                a("v_mul_f32 v73, v68, v%d" % (d + 1))
            else:
                a("v_fmac_f32 v72, v%d, v%d" % (68 + chi, d))
                a("v_fmac_f32 v73, v%d, v%d" % (68 + chi, d + 1))
        if VP:
            a("s_cmp_lg_u32 s65, 2")
            a("s_cbranch_scc1 L_att_nv4")
            a.stamp()
            a.nstamp -= 1
            for chi in range(3): vsel(chi)
            a("s_branch L_att_pv3")
            a.label("L_att_nv4")
        lds_wait_ge(a, 7, 76, F_PROG, TH_V3, sleep=1)
        for chi in range(3): vread(chi)
        a("ds_read_b32 v76, v7 offset:%d" % F_PROG)
        for chi in range(3): vmfma(chi, 9 - 4 * chi)
        a("s_waitcnt lgkmcnt(0)")
        a("v_cmp_gt_u32 vcc, 0x%x, v76" % TH_V)
        a("s_cbranch_vccnz L_att_pvs")
        a.stamp()
        vread(3)
        vsel(0)
        vsel(1)
        vmfma(3, 0)
        vsel(2)
        a("s_branch L_att_pv3")
        a.label("L_att_pvs")
        a.nstamp -= 1
        a.nop(4)
        for chi in range(3): vsel(chi)
        lds_wait_ge(a, 7, 76, F_PROG, TH_V, sleep=0)
        a.stamp()
        vread(3)
        vmfma(3, 0)
        a.nop(8)
        a.label("L_att_pv3")
        a.nop(2)
        vsel(3)
    a("""
    s_cmp_eq_u32 s45, 4
    s_cbranch_scc1 L_att_of
    buffer_store_dwordx4 v[72:75], v18, s[56:59], s12 offen sc1
    s_branch L_att_o2
    """)
    a.label("L_att_of")
    a("buffer_store_dwordx4 v[72:75], v18, s[56:59], s12 offen")
    RS = opt("rs", 0)
    if RS & 1:
        a.stamp(); a.nstamp -= 1
        lds_wait_ge(a, 7, 76, F_OPUB, 1, sleep=4)
        if opt("rsd", 0): a("s_sleep %d" % opt("rsd", 0))
        a("buffer_store_dwordx4 v[72:75], v18, s[56:59], s12 offen sc1")
        a("s_cmp_lg_u32 s62, 0")
        a("s_cbranch_scc1 L_att_o3")
        a("s_mov_b64 exec, 0x1111")
        a("buffer_store_dwordx4 v[64:67], v19, s[56:59], s13 offen sc1")
        a("s_mov_b64 exec, -1")
        a("s_branch L_att_o3")
    a.label("L_att_o2")
    if PZ:
        a("v_mov_b32 v24, 1")
        a("s_mov_b64 exec, 1")
        a("ds_add_u32 v7, v24 offset:%d" % F_PZ)
        a("s_mov_b64 exec, -1")
    a.stamp()
    if RS & 1: a.label("L_att_o3")
    if diag:
        a("s_cmp_lg_u32 s62, 0")
        a("s_cbranch_scc1 L_att_nl")
        a("s_waitcnt vmcnt(0)")
        a.log_flush(208, 210, 0)
        a.label("L_att_nl")
    a.stamp_flush(28)
    a("s_endpgm")
    if FZ:
        a.label("L_att_fb")
        a("""
        v_max3_f32 v92, v80, v81, v82
        v_max3_f32 v93, v83, v84, v85
        v_max3_f32 v92, v92, v86, v87
        v_max_f32 v92, v92, v93
        """)
        xreduce(a, "max", [92], [93])
        for i in range(8): a("v_sub_f32 v%d, v%d, v92" % (80 + i, 80 + i))
        a("""
        s_mov_b64 exec, 0x1111
        ds_write_b32 v16, v92
        s_mov_b64 exec, -1
        v_mov_b32 v31, 0x101
        s_branch L_att_z
        """)
        a.label("L_att_gen")
        for w in range(4):
            a("ds_read_b32 v%d, v17 offset:%d" % (32 + 4 * w, 64 * w))
        for chi in range(4):
            a("v_mfma_f32_16x16x32_bf16 v[%d:%d], v[212:215], v[%d:%d], 0" % (192 + 4 * chi, 195 + 4 * chi, 48 + 4 * chi, 51 + 4 * chi))
        lds_wait_ge(a, 7, 76, F_PROG, TH_V, sleep=1)
        for chi in range(4): vread(chi)
        a("s_waitcnt lgkmcnt(0)")
        for chi in range(4):
            for t in range(2):
                r = 96 + chi * 8 + 4 * t; d = 160 + chi * 8 + 4 * t
                a("v_mfma_f32_16x16x32_bf16 v[%d:%d], v[%d:%d], v[%d:%d], 0" % (d, d + 3, r, r + 3, 48 + 4 * chi, 51 + 4 * chi))
        a("""
        v_max3_f32 v64, v32, v36, v40
        v_max_f32 v64, v64, v44
        """)
        for w in range(4): a("v_sub_f32 v%d, v%d, v64" % (68 + w, 32 + 4 * w))
        for w in range(4): a("v_exp_f32 v%d, v%d" % (68 + w, 68 + w))
        a.nop(1)
        a("v_mul_f32 v65, v68, v192")
        for w in range(1, 4): a("v_fmac_f32 v65, v%d, v%d" % (68 + w, 192 + 4 * w))
        a("s_cmp_lg_u32 s62, 0")
        a("s_cbranch_scc1 L_att_nostg")
        stats_pub("g")
        a.label("L_att_nostg")
        a.nop(8)
        for chi in range(4):
            d = 160 + chi * 8
            a("""
            v_cndmask_b32_e64 v%d, v%d, v%d, s[8:9]
            v_cndmask_b32_e64 v%d, v%d, v%d, s[8:9]
            v_cndmask_b32_e64 v%d, v%d, v%d, s[8:9]
            v_cndmask_b32_e64 v%d, v%d, v%d, s[8:9]
            v_cndmask_b32_e64 v%d, v%d, v%d, s[10:11]
            v_cndmask_b32_e64 v%d, v%d, v%d, s[10:11]
            """ % (d, d, d + 2, d + 1, d + 1, d + 3, d + 4, d + 4, d + 6, d + 5, d + 5, d + 7, d, d, d + 4, d + 1, d + 1, d + 5))
            if chi == 0:
                a("v_mul_f32 v72, v68, v%d" % d)
                a("v_mul_f32 v73, v68, v%d" % (d + 1))
            else:
                a("v_fmac_f32 v72, v%d, v%d" % (68 + chi, d))
                a("v_fmac_f32 v73, v%d, v%d" % (68 + chi, d + 1))
        a("s_branch L_att_pub")
    a.label("L_a_slow")
    a("""
    ds_write_b32 v7, v24 offset:%d
    v_mov_b32 v24, 0x101
    s_waitcnt vmcnt(0)
    s_mov_b32 s64, 0
    """ % F_SLOW)
    for m in QM[0]: a("s_mov_b64 s[%d:%d], -1" % (m, m + 1))
    a.label("L_a_spoll")
    a("""
    s_mov_b32 s6, 0
    s_bitcmp1_b32 s64, 0
    s_cselect_b32 s6, 0, 0x%x
    """ % (INB1S - INB1))
    for k in range(4): a("s_add_u32 s%d, s%d, s6" % (28 + k, 16 + k))
    qissue(0, 28)
    a("s_add_u32 s64, s64, 1")
    a("s_cmp_gt_u32 s64, SPIN")
    a("s_cbranch_scc1 L_end")
    a("s_waitcnt vmcnt(0)")
    for k in range(4):
        m = QM[0][k]
        a("v_xor_b32 v26, s40, v%d" % (QB[0] + 2 + 4 * k))
        a("v_cmp_lt_u32 s[%d:%d], 15, v26" % (m, m + 1))
        a("v_cmp_ne_u32 vcc, s41, v%d" % (QB[0] + 3 + 4 * k))
        a("s_or_b64 s[%d:%d], s[%d:%d], vcc" % (m, m + 1, m, m + 1))
        a("s_or_b64 s[60:61], s[%d:%d], %s" % (m, m + 1, "s[60:61]" if k else "0"))
    a("s_cbranch_scc1 L_a_spoll")
    a("s_branch L_q_d0")

    a.nstamp = nst0
    a.page()
    a.label("L_o")
    if opt("skip", 0) & 64: a("s_endpgm")
    if opt("tw", 0): touches(a, opt("tw", 0))
    if opt("sw", 0):
        if opt("swd", 0): a("s_sleep %d" % opt("swd", 0))
        stouch(a, opt("sw", 0))
    ST = opt("st", 0); SG = opt("sg", 64)
    if ST & 1:
        a("""
        s_lshl_b32 s6, s4, 14
        s_lshl_b32 s7, s5, 9
        s_add_u32 s6, s6, s7
        s_add_u32 s6, s6, 0x%x
        """ % INB1)
        for o in range(0, 512, SG): a("s_load_dword s70, s[56:57], s6 offset:%d" % o)
    if ST & 2:
        if opt("sdel", 0): a("s_sleep %d" % opt("sdel", 0))
        a("""
        s_lshl_b32 s6, s4, 17
        s_lshl_b32 s7, s5, 8
        s_add_u32 s6, s6, s7
        s_add_u32 s6, s6, 0x%x
        s_lshl_b32 s10, s4, 11
        s_lshl_b32 s7, s5, 4
        s_add_u32 s10, s10, s7
        s_add_u32 s10, s10, 0x%x
        """ % (INB2, INBS))
        for h in range(4): a("s_load_dword s70, s[56:57], s10 offset:%d" % (h * 512))
        for b in range(16):
            for o in range(0, 256, SG): a("s_load_dword s70, s[56:57], s6 offset:%d" % (b * 8192 + o))
    a("""
    s_lshl_b32 s10, s4, 11
    s_lshr_b32 s6, s5, 3
    s_lshl_b32 s6, s6, 9
    s_add_u32 s10, s10, s6
    s_add_u32 s10, s10, 0x%x
    v_lshlrev_b32 v8, 4, v5
    s_lshl_b32 s6, s4, 4
    s_lshr_b32 s7, s5, 1
    s_add_u32 s6, s6, s7
    s_lshl_b32 s11, s6, 13
    s_add_u32 s11, s11, 0x%x
    s_add_u32 s12, s11, 4096
    v_lshlrev_b32 v2, 4, v0
    v_bfe_u32 v3, v0, 1, 1
    v_lshlrev_b32 v9, 5, v3
    v_bfe_u32 v3, v0, 2, 2
    v_lshl_or_b32 v9, v3, 3, v9
    v_and_b32 v6, 1, v0
    v_lshl_or_b32 v9, v6, 2, v9
    v_add_u32 v9, %d, v9
    v_lshrrev_b32 v10, 1, v4
    v_lshlrev_b32 v10, 6, v10
    v_lshl_or_b32 v10, v5, 4, v10
    v_add_u32 v10, %d, v10
    v_lshl_add_u32 v6, v5, 3, v3
    v_lshlrev_b32 v6, 9, v6
    v_add_u32 v6, %d, v6
    v_and_b32 v11, 3, v0
    """ % (INBS, INB2, L_OW + 7 * 64, L_OW, L_WO))
    for aa in range(4):
        a("v_xor_b32 v16, %d, v3" % aa)
        a("v_lshl_or_b32 v16, v16, 2, v11")
        a("v_lshl_add_u32 v%d, v16, 4, v6" % (12 + aa))
    a("""
    s_lshl_b32 s6, s6, 6
    s_and_b32 s7, s5, 1
    s_lshl_b32 s7, s7, 18
    s_add_u32 s6, s6, s7
    s_add_u32 s14, s6, 0x%x
    s_add_u32 s15, s14, 0x20000
    v_lshl_add_u32 v6, v3, 2, v5
    v_lshlrev_b32 v6, 13, v6
    v_lshl_or_b32 v6, v11, 4, v6
    s_mov_b32 s8, 0xaaaaaaaa
    s_mov_b32 s9, 0xaaaaaaaa
    v_mov_b32 v11, 1
    """ % INB3S)
    a("""
    v_and_b32 v18, 31, v0
    v_lshlrev_b32 v8, 4, v18
    v_and_b32 v16, 3, v0
    v_lshlrev_b32 v16, 5, v16
    v_and_b32 v18, 28, v0
    v_add3_u32 v16, v16, v18, %d
    v_lshlrev_b32 v17, 5, v5
    v_add_u32 v17, v17, v19
    """ .replace("%d", "v19").replace("v_and_b32 v18, 31, v0", "v_mov_b32 v19, %d\n    v_and_b32 v18, 31, v0" % L_AL, 1))
    get_tag(a, 56)
    a.stamp()
    MA = [16 + 2 * k for k in range(8)]
    MB = [32, 34, 36, 38, 44, 46, 48, 50]
    MS = [52, 54]
    SV = [204, 208]
    for m in MA + MB + MS: a("s_mov_b64 s[%d:%d], -1" % (m, m + 1))
    if diag:
        a("v_mov_b32 v200, 0")
        a("v_mov_b32 v201, 0")
        a("s_mov_b32 s63, 1")
    a("s_mov_b32 s65, 0")
    a("s_mov_b32 s66, 0")
    def mcheck(base, M):
        for k in range(8):
            a("v_cmp_ne_u64 s[%d:%d], s[40:41], v[%d:%d]" % (M[k], M[k] + 1, base + 4 * k + 2, base + 4 * k + 3))
            if opt("skip", 0) & 4: a("s_mov_b64 s[%d:%d], 0" % (M[k], M[k] + 1))
        for k in range(8):
            a("s_or_b64 s[60:61], s[%d:%d], %s" % (M[k], M[k] + 1, "s[60:61]" if k else "0"))
    def oissue(i):
        base, M = (128, MA) if i == 0 else (160, MB)
        a("s_mov_b64 exec, s[%d:%d]" % (MS[i], MS[i] + 1))
        a("buffer_load_dwordx4 v[%d:%d], v8, s[56:59], s10 offen sc1" % (SV[i], SV[i] + 3))
        for k in range(8):
            a("s_mov_b64 exec, s[%d:%d]" % (M[k], M[k] + 1))
            a("buffer_load_dwordx4 v[%d:%d], v2, s[56:59], s%d offen offset:%d sc1" % (base + 4 * k, base + 3 + 4 * k, 11 + k // 4, (k % 4) * 1024))
        a("s_mov_b64 exec, -1")
    def stats(i):
        lab = "L_o_ns%d" % i
        v = SV[i]
        a("s_cmp_lg_u32 s66, 0")
        a("s_cbranch_scc1 %s" % lab)
        a("v_cmp_ne_u64 vcc, s[40:41], v[%d:%d]" % (v + 2, v + 3))
        a("s_mov_b64 s[%d:%d], vcc" % (MS[i], MS[i] + 1))
        a("s_cbranch_vccnz %s" % lab)
        a("v_mov_b32 v56, v%d" % v)
        allreduce(a, "max", 56, 57)
        a("v_sub_f32 v56, v%d, v56" % v)
        a("v_exp_f32 v56, v56")
        a("s_mov_b32 s66, 1")
        a("v_mul_f32 v57, v56, v%d" % (v + 1))
        a("ds_write_b32 v16, v56")
        a("ds_read_b128 v[48:51], v17")
        a("ds_read_b128 v[52:55], v17 offset:16")
        allreduce(a, "add", 57, 58)
        a("v_mul_f32 v57, 0.5, v57")
        a("v_rcp_f32 v58, v57")
        a("s_mov_b64 s[%d:%d], 0" % (MS[1 - i], MS[1 - i] + 1))
        a("s_waitcnt lgkmcnt(0)")
        a.label(lab)
    lds_wait_ge(a, 7, 59, F_APUB, 1, sleep=3)
    lds_wait_ge(a, 7, 59, F_PROG, opt('ogate', TH_V), sleep=1)
    a.stamp()
    a("s_setprio 3")
    if opt("odn", 0):
        a("""
        s_lshr_b32 s6, s4, 2
        s_lshl_b32 s6, s6, 3
        s_add_u32 s6, s6, s5
        s_cmp_lt_u32 s6, 32
        s_cbranch_scc1 L_o_nd
        s_sleep %d
        """ % opt("odn", 0))
        a.label("L_o_nd")
    if opt("odel", 0): a("s_sleep %d" % opt("odel", 0))
    O1 = opt("o1", 0)
    oissue(0)
    if opt("ow2", 0):
        lds_wait_ge(a, 7, 59, F_PROG, opt("ow2", 0), sleep=1)
    if not O1:
        if not opt("ow2", 0): a("s_sleep %d" % opt('ostag', 8))
        oissue(1)
    def wo_pre():
        for al in range(2):
            for t in range(8):
                for h in range(2):
                    r = 64 + ((al * 8 + t) * 2 + h) * 2
                    a("ds_read_b64_tr_b16 v[%d:%d], v%d offset:%d" % (r, r + 1, 12 + (t >> 1), al * 256 + (t & 1) * 8 + h * 2048))
    def opp(lab):
        a("s_cmp_lg_u32 s65, 0")
        a("s_cbranch_scc1 %s" % lab)
        a("ds_read_b32 v59, v7 offset:%d" % F_PROG)
        a("s_waitcnt lgkmcnt(0)")
        a("v_cmp_gt_u32 vcc, 0x%x, v59" % TH_WO)
        a("s_cbranch_vccnz %s" % lab)
        wo_pre()
        a("s_mov_b32 s65, 1")
        a.label(lab)
    a("s_mov_b32 s64, SPIN")
    a.label("L_o_poll")
    opp("L_o_np")
    for i in range(1 if O1 else 2):
        a("s_waitcnt vmcnt(%d)" % (0 if O1 else 9))
        stats(i)
        mcheck(128 + 32 * i, MA if i == 0 else MB)
        a("s_or_b64 s[60:61], s[%d:%d], s[60:61]" % (MS[i], MS[i] + 1))
        a.log(63, "s[60:61]", 200)
        a("s_cbranch_scc0 L_o_d%d" % i)
        if opt("osl", 0): a("s_sleep %d" % opt("osl", 0))
        oissue(i)
    a("s_sub_u32 s64, s64, 1")
    a("s_cbranch_scc1 L_end")
    a("s_branch L_o_poll")
    for nm, base in (("L_o_d0", 128), ("L_o_d1", 160)):
        a.label(nm)
        a("v_mul_f32 v60, v48, v%d" % base)
        a("v_mul_f32 v61, v48, v%d" % (base + 1))
        a("v_mul_f32 v62, v49, v%d" % (base + 4))
        a("v_mul_f32 v63, v49, v%d" % (base + 5))
        for k in range(2, 8):
            a("v_fmac_f32 v%d, v%d, v%d" % (60 + 2 * (k & 1), 48 + k, base + 4 * k))
            a("v_fmac_f32 v%d, v%d, v%d" % (61 + 2 * (k & 1), 48 + k, base + 4 * k + 1))
        if base == 128: a("s_branch L_o_dd")
    a.label("L_o_dd")
    if opt("wb", 0) & 8: a("ds_write_b32 v7, v11 offset:%d" % F_PZ)
    a.stamp()
    a("v_add_f32 v60, v60, v62")
    a("v_add_f32 v61, v61, v63")
    xreduce(a, "add", [60, 61], [62, 63])
    for r in (60, 61):
        a("v_mul_f32 v62, v%d, v58" % r)
        a("v_fma_f32 v63, -v62, v57, v%d" % r)
        a("v_fma_f32 v%d, v63, v58, v62" % r)
    a("v_cvt_pk_bf16_f32 v60, v60, v61")
    a("ds_write_b32 v9, v60")
    for t in range(8):
        a("ds_read_b128 v[%d:%d], v10 offset:%d" % (16 + 4 * t, 19 + 4 * t, (7 - t) * 64))
    a("s_cmp_lg_u32 s65, 0")
    a("s_cbranch_scc1 L_o_have")
    lds_wait_ge(a, 7, 59, F_PROG, TH_WO, sleep=0)
    wo_pre()
    a.label("L_o_have")
    a("""
    v_mov_b32 v194, s40
    v_mov_b32 v195, s41
    v_mov_b32 v198, s40
    v_mov_b32 v199, s41
    s_waitcnt lgkmcnt(0)
    """)
    a.stamp()
    for t in range(8):
        for al in range(2):
            r = 64 + (al * 8 + t) * 4
            c_ = "0" if t == 0 else "v[%d:%d]" % (48 + 4 * al, 51 + 4 * al)
            a("v_mfma_f32_16x16x32_bf16 v[%d:%d], v[%d:%d], v[%d:%d], %s" % (48 + 4 * al, 51 + 4 * al, r, r + 3, 16 + 4 * t, 19 + 4 * t, c_))
    a.nop(7)
    a("""
    v_cndmask_b32_e64 v192, v48, v50, s[8:9]
    v_cndmask_b32_e64 v193, v49, v51, s[8:9]
    v_cndmask_b32_e64 v196, v52, v54, s[8:9]
    v_cndmask_b32_e64 v197, v53, v55, s[8:9]
    buffer_store_dwordx4 v[192:195], v6, s[56:59], s14 offen sc1
    buffer_store_dwordx4 v[196:199], v6, s[56:59], s15 offen sc1
    ds_write_b32 v7, v11 offset:%d
    """ % F_OPUB)
    if opt("wb", 0) & 1:
        a("s_cmp_lg_u32 s5, %d" % opt("wbc", 0))
        a("s_cbranch_scc1 L_o_nwb")
        if opt("wbd", 0): a("s_sleep %d" % opt("wbd", 0))
        a("buffer_wbl2 sc1")
        a.label("L_o_nwb")
    a.stamp()
    a.log_flush(200, 202, 1)
    a.stamp_flush(28)
    a("s_endpgm")

    a.nstamp = nst0
    a.page()
    a.label("L_f")
    if opt("skip", 0) & 128: a("s_endpgm")
    fcoords(a)
    a("s_cbranch_scc1 L_f_go")
    srd(a, 48, 16, 1024)
    srd(a, 52, 34, 1024)
    a("v_lshlrev_b32 v2, 4, v0")
    get_tag(a, 42)
    a("s_branch L_fin")
    a.label("L_f_go")
    a("""
    s_lshl_b32 s6, s15, 8
    s_add_u32 s6, s6, %d
    v_lshlrev_b32 v13, 4, v5
    v_add_u32 v13, s6, v13
    """ % L_XN)
    traddr128(a, 52, L_G, 3, 6)
    a("""
    v_lshrrev_b32 v3, 2, v4
    v_lshl_add_u32 v2, v5, 3, v3
    """)
    a("""
    v_lshlrev_b32 v2, 8, v2
    v_add_u32 v2, %d, v2
    v_and_b32 v12, 3, v0
    """ % L_WD)
    for aa in range(4):
        a("v_xor_b32 v16, %d, v3" % aa)
        a("v_lshl_or_b32 v16, v16, 2, v12")
        a("v_lshl_add_u32 v%d, v16, 4, v2" % (8 + aa))
    a("""
    s_lshl_b32 s11, s14, 11
    s_add_u32 s11, s11, 0x%x
    s_and_b32 s6, s5, 7
    s_lshl_b32 s6, s6, 8
    s_lshr_b32 s10, s14, 1
    s_lshl_b32 s10, s10, 12
    s_add_u32 s10, s10, s6
    s_add_u32 s10, s10, 0x%x
    v_bfe_u32 v16, v0, 2, 1
    v_lshlrev_b32 v16, 11, v16
    v_lshl_or_b32 v16, v5, 6, v16
    v_lshl_or_b32 v16, v12, 4, v16
    v_lshlrev_b32 v2, 4, v0
    v_bfe_u32 v6, v0, 1, 1
    v_lshlrev_b32 v17, 5, v6
    v_lshl_or_b32 v17, v3, 3, v17
    v_and_b32 v6, 1, v0
    v_lshl_or_b32 v17, v6, 2, v17
    v_add_u32 v17, %d, v17
    v_lshrrev_b32 v18, 1, v4
    v_lshlrev_b32 v18, 6, v18
    v_lshl_or_b32 v18, v5, 4, v18
    v_add_u32 v18, %d, v18
    s_mul_i32 s12, s15, 57344
    s_lshl_b32 s6, s14, 6
    s_add_u32 s12, s12, s6
    s_add_u32 s12, s12, 0x%x
    v_lshl_add_u32 v19, v3, 2, v5
    v_mul_u32_u24 v19, 0xe00, v19
    v_lshl_or_b32 v19, v12, 4, v19
    s_mov_b32 s8, 0xaaaaaaaa
    s_mov_b32 s9, 0xaaaaaaaa
    v_bfe_u32 v6, v0, 1, 2
    """ % (INB4, INB4, L_HW + 7 * 64, L_HW, INB3D))
    if ST & 4:
        if opt("sdel", 0): a("s_sleep %d" % opt("sdel", 0))
        for b in range(2):
            for o in range(0, 256, SG): a("s_load_dword s70, s[56:57], s10 offset:%d" % (b * 2048 + o))
    if PT & 4:
        a("""
        s_mov_b32 exec_lo, 0x00ff00ff
        s_mov_b32 exec_hi, 0x00ff00ff
        buffer_load_dwordx4 v[196:199], v16, s[56:59], s10 offen sc1
        s_mov_b64 exec, -1
        """)
    get_tag(a, 42)
    if opt("pwg", 0):
        a("buffer_load_dwordx4 v[20:23], v2, s[56:59], s11 offen sc1")
        a("buffer_load_dwordx4 v[24:27], v2, s[56:59], s11 offen offset:1024 sc1")
        a("s_waitcnt vmcnt(0)")
    a.stamp()
    lds_wait_ge(a, 7, 20, F_XN, 1, sleep=4)
    for k in range(4):
        a("ds_read_b128 v[%d:%d], v13 offset:%d" % (20 + 4 * k, 23 + 4 * k, k * 64))
    a("v_mov_b32 v36, 0")
    a("s_waitcnt lgkmcnt(0)")
    for u in range(4):
        a("v_cmp_eq_u32 vcc, %d, v6" % u)
        a.nop(2)
        for k in range(4):
            for i in range(4):
                a("v_cndmask_b32 v%d, v36, v%d, vcc" % (128 + (u * 4 + k) * 4 + i, 20 + 4 * k + i))
    a("s_mov_b32 s64, SPIN")
    a.label("L_f_qw")
    a("""
    ds_read_b32 v20, v7 offset:%d
    s_waitcnt lgkmcnt(0)
    v_and_b32 v21, 7, v20
    v_cmp_ne_u32 vcc, 4, v21
    s_cbranch_vccz L_f_qok
    s_sleep 4
    s_sub_u32 s64, s64, 1
    s_cbranch_scc1 L_end
    s_branch L_f_qw
    """ % F_Q)
    a.label("L_f_qok")
    a("v_readfirstlane_b32 s45, v20")
    if opt("g2", 0):
        for half in range(2):
            lds_wait_ge(a, 7, 20, F_PROG, PV[("G", 7)] if half == 0 else TH_G, sleep=1 - half)
            if half: a.stamp()
            else: a("s_setprio 3")
            for u in range(4):
                for k in (2 * half, 2 * half + 1):
                    for h in range(2):
                        r = 64 + ((u * 4 + k) * 2 + h) * 2
                        a("ds_read_b64_tr_b16 v[%d:%d], v%d offset:%d" % (r, r + 1, 52 + u, k * 4096 + h * 512))
            for u in range(4):
                for k in (2 * half, 2 * half + 1):
                    a("s_waitcnt lgkmcnt(%d)" % (14 - 4 * u - 2 * (k & 1)))
                    n = u * 4 + k
                    c_ = "0" if n == 0 else "v[36:39]"
                    a("v_mfma_f32_16x16x32_bf16 v[36:39], v[%d:%d], v[%d:%d], %s" % (64 + n * 4, 67 + n * 4, 128 + n * 4, 131 + n * 4, c_))
    else:
        lds_wait_ge(a, 7, 20, F_PROG, TH_G, sleep=1)
        a.stamp()
        a("s_setprio 3")
        for u in range(4):
            for k in range(4):
                for h in range(2):
                    r = 64 + ((u * 4 + k) * 2 + h) * 2
                    a("ds_read_b64_tr_b16 v[%d:%d], v%d offset:%d" % (r, r + 1, 52 + u, k * 4096 + h * 512))
            if u >= 1:
                a("s_waitcnt lgkmcnt(8)")
                for k in range(4):
                    n = (u - 1) * 4 + k
                    c_ = "0" if n == 0 else "v[36:39]"
                    a("v_mfma_f32_16x16x32_bf16 v[36:39], v[%d:%d], v[%d:%d], %s" % (64 + n * 4, 67 + n * 4, 128 + n * 4, 131 + n * 4, c_))
        a("s_waitcnt lgkmcnt(0)")
        for k in range(4):
            n = 12 + k
            a("v_mfma_f32_16x16x32_bf16 v[36:39], v[%d:%d], v[%d:%d], v[36:39]" % (64 + n * 4, 67 + n * 4, 128 + n * 4, 131 + n * 4))
    a.nop(8)
    a("""
    v_cndmask_b32_e64 v40, v36, v38, s[8:9]
    v_cndmask_b32_e64 v41, v37, v39, s[8:9]
    s_mov_b32 exec_lo, 0x00ff00ff
    s_mov_b32 exec_hi, 0x00ff00ff
    s_cmp_eq_u32 s45, 4
    s_cbranch_scc1 L_f_pf
    buffer_store_dwordx4 v[40:43], v16, s[56:59], s10 offen sc1
    s_branch L_f_p2
    """)
    a.label("L_f_pf")
    a("buffer_store_dwordx4 v[40:43], v16, s[56:59], s10 offen")
    a.label("L_f_p2")
    if opt("rs", 0) & 4:
        for i in range(4): a("v_mov_b32 v%d, v%d" % (200 + i, 40 + i))
    if PZ:
        a("s_mov_b64 exec, 1")
        a("ds_add_u32 v7, v44 offset:%d" % F_PZ)
    a("s_mov_b64 exec, -1")
    a.stamp()
    a("s_mov_b32 s65, 0")
    def wd_pre():
        for t in range(8):
            for h in range(2):
                r = 64 + (t * 2 + h) * 2
                a("ds_read_b64_tr_b16 v[%d:%d], v%d offset:%d" % (r, r + 1, 8 + (t >> 1), (t & 1) * 8 + h * 1024))
    def gissue(base):
        a("buffer_load_dwordx4 v[%d:%d], v2, s[56:59], s11 offen sc1" % (base, base + 3))
        a("buffer_load_dwordx4 v[%d:%d], v2, s[56:59], s11 offen offset:1024 sc1" % (base + 4, base + 7))
    if opt("gdel", 0): a("s_sleep %d" % opt("gdel", 0))
    gissue(20)
    a("s_sleep %d" % opt("gstag", 4))
    gissue(28)
    a("s_mov_b32 s64, SPIN")
    a.label("L_f_poll")
    a("""
    s_cmp_lg_u32 s65, 0
    s_cbranch_scc1 L_f_np
    ds_read_b32 v44, v7 offset:%d
    s_waitcnt lgkmcnt(0)
    v_cmp_gt_u32 vcc, 0x%x, v44
    s_cbranch_vccnz L_f_np
    """ % (F_PROG, TH_WD))
    wd_pre()
    a("s_mov_b32 s65, 1")
    a.label("L_f_np")
    a("s_waitcnt vmcnt(2)")
    tagcheck(a, [20, 24])
    if opt("skip", 0) & 16: a("s_branch L_f_d0")
    a("s_cbranch_vccz L_f_d0")
    if opt("gsl", 0): a("s_sleep %d" % opt("gsl", 0))
    gissue(20)
    a("s_waitcnt vmcnt(2)")
    tagcheck(a, [28, 32])
    a("s_cbranch_vccz L_f_d1")
    if opt("gsl", 0): a("s_sleep %d" % opt("gsl", 0))
    gissue(28)
    a("s_sub_u32 s64, s64, 1")
    a("s_cbranch_scc1 L_end")
    a("s_branch L_f_poll")
    for nm, base in (("L_f_d0", 20), ("L_f_d1", 28)):
        a.label(nm)
        a("v_mov_b32 v44, v%d" % base)
        a("v_mov_b32 v45, v%d" % (base + 1))
        a("v_mov_b32 v46, v%d" % (base + 4))
        a("v_mov_b32 v47, v%d" % (base + 5))
        if base == 20: a("s_branch L_f_dd")
    a.label("L_f_dd")
    a.stamp()
    xreduce(a, "add", [44, 45, 46, 47], [48, 49, 50, 51])
    a("""
    s_mov_b32 s16, 0x3d372713
    s_mov_b32 s17, 0xc0135761
    v_cvt_pk_bf16_f32 v48, v44, v45
    v_cvt_pk_bf16_f32 v49, v46, v47
    v_lshlrev_b32 v44, 16, v48
    v_and_b32 v45, 0xffff0000, v48
    v_lshlrev_b32 v46, 16, v49
    v_and_b32 v47, 0xffff0000, v49
    v_mul_f32 v48, v44, v44
    v_mul_f32 v49, v45, v45
    v_mul_f32 v48, v48, v44
    v_mul_f32 v49, v49, v45
    v_fma_f32 v48, v48, s16, v44
    v_fma_f32 v49, v49, s16, v45
    v_mul_f32 v48, s17, v48
    v_mul_f32 v49, s17, v49
    v_exp_f32 v48, v48
    v_exp_f32 v49, v49
    s_nop 0
    v_add_f32 v48, 1.0, v48
    v_add_f32 v49, 1.0, v49
    v_rcp_f32 v48, v48
    v_rcp_f32 v49, v49
    s_nop 0
    v_mul_f32 v44, v44, v48
    v_mul_f32 v45, v45, v49
    v_cvt_pk_bf16_f32 v48, v44, v45
    v_lshlrev_b32 v44, 16, v48
    v_and_b32 v45, 0xffff0000, v48
    v_mul_f32 v44, v44, v46
    v_mul_f32 v45, v45, v47
    v_cvt_pk_bf16_f32 v48, v44, v45
    ds_write_b32 v17, v48
    """)
    for t in range(8):
        a("ds_read_b128 v[%d:%d], v18 offset:%d" % (128 + 4 * t, 131 + 4 * t, (7 - t) * 64))
    a("s_cmp_lg_u32 s65, 0")
    a("s_cbranch_scc1 L_f_have")
    lds_wait_ge(a, 7, 44, F_PROG, TH_WD, sleep=1 if opt("ord", 0) else 0)
    wd_pre()
    a.label("L_f_have")
    a("s_waitcnt lgkmcnt(0)")
    a.stamp()
    for t in range(8):
        c_ = "0" if t == 0 else "v[36:39]"
        a("v_mfma_f32_16x16x32_bf16 v[36:39], v[%d:%d], v[%d:%d], %s" % (64 + 4 * t, 67 + 4 * t, 128 + 4 * t, 131 + 4 * t, c_))
    a.nop(8)
    a("""
    v_cndmask_b32_e64 v40, v36, v38, s[8:9]
    v_cndmask_b32_e64 v41, v37, v39, s[8:9]
    buffer_store_dwordx4 v[40:43], v19, s[56:59], s12 offen sc1
    """)
    a.stamp()
    if opt("rs", 0) & 4:
        if opt("rsf", 0): a("s_sleep %d" % opt("rsf", 0))
        a("""
        s_mov_b32 exec_lo, 0x00ff00ff
        s_mov_b32 exec_hi, 0x00ff00ff
        buffer_store_dwordx4 v[200:203], v16, s[56:59], s10 offen sc1
        s_mov_b64 exec, -1
        """)
    a.stamp_flush(28)
    a.label("L_end")
    a("s_endpgm")

    out += a.l
    out.append('''.section .rodata,"a"
.p2align 6
.amdhsa_kernel %s_kernel
  .amdhsa_next_free_vgpr 216
  .amdhsa_next_free_sgpr 102
  .amdhsa_accum_offset 216
  .amdhsa_group_segment_fixed_size 0
  .amdhsa_kernarg_size 96
  .amdhsa_user_sgpr_count 2
  .amdhsa_user_sgpr_kernarg_segment_ptr 1
  .amdhsa_system_sgpr_workgroup_id_x 1
  .amdhsa_float_denorm_mode_32 3
.end_amdhsa_kernel'''.replace('216', '240' if FN == 4 else '216') % NAME)
    return "\n".join(out) + "\n"

if __name__ == "__main__":
    ap = argparse.ArgumentParser()
    ap.add_argument("-o", default="cdna_kernels/%s.s" % NAME)
    ap.add_argument("--diag", action="store_true")
    ap.add_argument("--slow", action="store_true")
    ap.add_argument("-W", type=int, default=16)
    ap.add_argument("--W0", type=int, default=24)
    ap.add_argument("-P", nargs="*", default=[])
    ap.add_argument("--onlyld", action="store_true")
    ap.add_argument("--kv", type=int, default=1)
    args = ap.parse_args()
    open(args.o, "w").write(gen(diag=args.diag, W=args.W, forceslow=args.slow, onlyld=args.onlyld, kvmode=args.kv, W0=args.W0, P={x.split('=')[0]: int(x.split('=')[1]) for x in args.P}))
    print("wrote", args.o)
```

```python
import sys, argparse

NAME = "recurrent_scan__sliding_block_cached__glu_gated_geglu__decode"
HEADER = open("cdna_kernels/%s.s.ref" % NAME).read().split("; Override launch")[0]

INBS = 0x1000
INB4 = 0x5000
INB1 = 0x200000
INB1S = 0x220000
INB3D = 0x41000
INB3S = 0x80000
INB2 = 0x100000
DIAG = 0x1000000
L_WQ = 0
L_K = 16384
L_V = 49152
L_G = 81920
L_U = 90112
L_WO = 98304
L_WD = 114688
L_M = 122880
L_XN = L_M
L_Q = L_M + 1024
L_P = L_M + 2048
L_Z = L_M + 6144
L_OW = L_Z
L_HW = L_Z + 1024
L_ST = L_Z + 2048
L_FL = L_Z + 2304
L_AL = L_Z + 2560
F_PROG = 0
F_XN = 4
F_Q = 8
F_SLOW = 12
F_TAG = 16
F_TAGV = 24
F_APUB = 28
F_OPUB = 32
F_QPUB = 36
F_PZ = 40
F_P = 44
LDS_BYTES = L_Z + 4096

LOG2E = 0x3fb8aa3b
SCALE = 0x3db504f3
ST0 = 76
OGATE = 72
OSTAG = 4

class Asm:
    def __init__(self, diag=False):
        self.l = []; self.diag = diag; self.nstamp = 0; self.uid = 0
    def __call__(self, s):
        for x in s.strip().split("\n"):
            x = x.strip()
            if x: self.l.append("    " + x)
    def label(self, n): self.l.append(n + ":")
    def nop(self, n=1): self("s_nop %d" % (n - 1))
    def comment(self, s): self.l.append("    ; " + s)
    def page(self): self.l.append(".p2align 12")
    def pad(self, name, target):
        self.label(name); self("s_cbranch_execz %s" % target)
    def newlabel(self, p):
        self.uid += 1; return "%s_%d" % (p, self.uid)
    def stamp(self):
        if not self.diag: return
        i = self.nstamp; assert i < 13, "too many stamps"
        self("s_memrealtime s[%d:%d]" % (ST0 + 2 * i, ST0 + 1 + 2 * i))
        self.nstamp += 1
    def log(self, sidx, smask, vlog, tmp=62):
        if not self.diag: return
        self("s_memrealtime s[6:7]")
        self("s_bcnt1_i32_b64 s%d, %s" % (tmp, smask))
        self("s_min_u32 m0, s%d, 63" % sidx)
        self("s_waitcnt lgkmcnt(0)")
        self("v_writelane_b32 v%d, s6, m0" % vlog)
        self("v_writelane_b32 v%d, s%d, m0" % (vlog + 1, tmp))
        self("s_add_u32 s%d, s%d, 1" % (sidx, sidx))
        self("s_cmp_lg_u64 %s, 0" % smask)
    def log_flush(self, vlog, vt, slot):
        if not self.diag: return
        self("s_mov_b64 exec, -1")
        self("s_lshl_b32 s64, s2, 12")
        self("s_add_u32 s64, s64, 0x%x" % (DIAG + 0x100000 + slot * 512))
        self("v_lshlrev_b32 v%d, 2, v0" % vt)
        self("buffer_store_dword v%d, v%d, s[56:59], s64 offen" % (vlog, vt))
        self("buffer_store_dword v%d, v%d, s[56:59], s64 offen offset:256" % (vlog + 1, vt))
    def dbg_flush(self, vtmp, ents):
        self("s_load_dwordx2 s[60:61], s[0:1], 80")
        self("s_mov_b32 s62, 256")
        self("s_mov_b32 s63, 0x20000")
        self("s_waitcnt lgkmcnt(0)")
        for op, i, slot in ents:
            if op == "min": self("v_not_b32 v%d, s%d" % (vtmp, ST0 + 2 * i))
            elif op == "max": self("v_mov_b32 v%d, s%d" % (vtmp, ST0 + 2 * i))
            elif op == "max1":
                self("s_cmp_eq_u32 s3, 1")
                self("s_cselect_b32 s65, s%d, 0" % (ST0 + 2 * i))
                self("v_mov_b32 v%d, s65" % vtmp)
            else:
                self("s_sub_u32 s65, s%d, s%d" % (ST0 + 2 * i, ST0))
                self("v_mov_b32 v%d, s65" % vtmp)
            self("buffer_atomic_%s v%d, v%d, s[60:63], 0 offen offset:%d sc1" % ("add" if op == "sum" else "umax", vtmp, vtmp + 2, slot * 4))
            self.nop(2)
    def stamp_flush(self, vtmp, dbg=None):
        if not self.diag: return
        self._sf(vtmp)
        if dbg and DBGD: self.dbg_flush(vtmp, dbg)
    def _sf(self, vtmp):
        n = self.nstamp
        self("s_waitcnt vmcnt(0) lgkmcnt(0)")
        self("s_mov_b64 exec, 1")
        self("s_lshl_b32 s64, s2, 10")
        self("s_lshl_b32 s65, s3, 7")
        self("s_add_u32 s64, s64, s65")
        self("s_add_u32 s64, s64, 0x%x" % DIAG)
        self("v_mov_b32 v%d, 0" % (vtmp + 2))
        for i in range(n):
            self("v_mov_b32 v%d, s%d" % (vtmp, ST0 + 2 * i))
            self("v_mov_b32 v%d, s%d" % (vtmp + 1, ST0 + 1 + 2 * i))
            self("buffer_store_dwordx2 v[%d:%d], v%d, s[56:59], s64 offen offset:%d" % (vtmp, vtmp + 1, vtmp + 2, i * 8))
            self.nop(2)
        self("v_mov_b32 v%d, %d" % (vtmp, n))
        self("buffer_store_dword v%d, v%d, s[56:59], s64 offen offset:120" % (vtmp, vtmp + 2))

def allreduce(a, op, v, t):
    for r in (1, 2, 4, 8):
        a.nop(2)
        a("v_%s_f32_dpp v%d, v%d, v%d row_ror:%d row_mask:0xf bank_mask:0xf" % (op, v, v, v, r))
    for sw in ("16", "32"):
        a("v_mov_b32 v%d, v%d" % (t, v))
        a.nop(2)
        a("v_permlane%s_swap_b32 v%d, v%d" % (sw, v, t))
        a("v_%s_f32 v%d, v%d, v%d" % (op, v, v, t))

def xreduce(a, op, regs, tmps):
    for sw in ("16", "32"):
        for r, t in zip(regs, tmps):
            a("v_mov_b32 v%d, v%d" % (t, r))
        a.nop(2 if len(regs) < 3 else 1)
        for r, t in zip(regs, tmps):
            a("v_permlane%s_swap_b32 v%d, v%d" % (sw, r, t))
        for r, t in zip(regs, tmps):
            a("v_%s_f32 v%d, v%d, v%d" % (op, r, r, t))

def bf16_round(a, dst, src, tmp):
    a("v_cvt_pk_bf16_f32 v%d, v%d, v%d" % (tmp, src, src))
    a("v_lshlrev_b32 v%d, 16, v%d" % (dst, tmp))

def layernorm(a, xr, f, t, xp):
    for i in range(4):
        a("v_lshlrev_b32 v%d, 16, v%d" % (f + 2 * i, xr + i))
        a("v_and_b32 v%d, 0xffff0000, v%d" % (f + 2 * i + 1, xr + i))
    a("v_add_f32 v%d, v%d, v%d" % (t, f, f + 1))
    a("v_add_f32 v%d, v%d, v%d" % (t + 1, f + 2, f + 3))
    a("v_add_f32 v%d, v%d, v%d" % (t + 2, f + 4, f + 5))
    a("v_add_f32 v%d, v%d, v%d" % (t + 3, f + 6, f + 7))
    a("v_add_f32 v%d, v%d, v%d" % (t, t, t + 1))
    a("v_add_f32 v%d, v%d, v%d" % (t + 2, t + 2, t + 3))
    a("v_add_f32 v%d, v%d, v%d" % (t, t, t + 2))
    allreduce(a, "add", t, t + 1)
    a("v_mul_f32 v%d, 0x3b000000, v%d" % (t, t))
    a("v_sub_f32 v%d, v%d, v%d" % (t + 2, f, t))
    a("v_mul_f32 v%d, v%d, v%d" % (t + 1, t + 2, t + 2))
    for i in range(1, 8):
        a("v_sub_f32 v%d, v%d, v%d" % (t + 2, f + i, t))
        a("v_fmac_f32 v%d, v%d, v%d" % (t + 1, t + 2, t + 2))
    allreduce(a, "add", t + 1, t + 2)
    a("v_mul_f32 v%d, 0x3b000000, v%d" % (t + 1, t + 1))
    a("v_cvt_pk_bf16_f32 v%d, v%d, v%d" % (t + 2, t, t + 1))
    a("v_lshlrev_b32 v%d, 16, v%d" % (t, t + 2))
    a("v_and_b32 v%d, 0xffff0000, v%d" % (t + 1, t + 2))
    a("v_add_f32 v%d, 0x3727c5ac, v%d" % (t + 1, t + 1))
    bf16_round(a, t + 1, t + 1, t + 2)
    a("v_sqrt_f32 v%d, v%d" % (t + 1, t + 1))
    a.nop(1)
    bf16_round(a, t + 1, t + 1, t + 2)
    a("v_rcp_f32 v%d, v%d" % (t + 2, t + 1))
    for i in range(8):
        a("v_sub_f32 v%d, v%d, v%d" % (f + i, f + i, t))
    for i in range(4):
        a("v_cvt_pk_bf16_f32 v%d, v%d, v%d" % (xp + i, f + 2 * i, f + 2 * i + 1))
    for i in range(4):
        a("v_lshlrev_b32 v%d, 16, v%d" % (f + 2 * i, xp + i))
        a("v_and_b32 v%d, 0xffff0000, v%d" % (f + 2 * i + 1, xp + i))
    for i in range(8):
        a("v_mul_f32 v%d, v%d, v%d" % (t + 3, f + i, t + 2))
        a("v_fma_f32 v%d, -v%d, v%d, v%d" % (t + 4, t + 3, t + 1, f + i))
        a("v_fma_f32 v%d, v%d, v%d, v%d" % (f + i, t + 4, t + 2, t + 3))
    for i in range(4):
        a("v_cvt_pk_bf16_f32 v%d, v%d, v%d" % (xp + i, f + 2 * i, f + 2 * i + 1))

def srd(a, d, base, nbytes):
    a("s_mov_b32 s%d, s%d" % (d, base))
    a("s_mov_b32 s%d, s%d" % (d + 1, base + 1))
    a("s_mov_b32 s%d, 0x%x" % (d + 2, nbytes))
    a("s_mov_b32 s%d, 0x20000" % (d + 3))

def fcoords(a):
    a("""
    s_and_b32 s14, s4, 3
    s_mul_i32 s14, s14, 14
    s_lshr_b32 s36, s4, 2
    s_lshl_b32 s7, s36, 3
    s_add_u32 s14, s14, s7
    s_lshr_b32 s7, s5, 2
    s_add_u32 s14, s14, s7
    s_and_b32 s15, s5, 3
    s_lshl_b32 s36, s36, 3
    s_add_u32 s36, s36, s5
    s_cmp_lt_u32 s36, 32
    s_cselect_b32 s36, 1, 0
    """)

def touches(a, tw, vz=212):
    a("s_mov_b64 exec, 1")
    a("v_mov_b32 v%d, 0" % vz)
    n = 1
    if tw & 1:
        srd(a, 68, 20, 0x8000000)
        a("""
        s_lshl_b32 s6, s4, 24
        s_lshl_b32 s7, s5, 12
        s_add_u32 s6, s6, s7
        s_add_u32 s6, s6, 0xf00000
        buffer_load_dword v%d, v%d, s[68:71], s6 offen
        """ % (vz + 1, vz))
    if tw & 2:
        srd(a, 72, 24, 4096 * 512 * 2)
        a("""
        s_lshl_b32 s6, s4, 19
        s_lshr_b32 s7, s5, 1
        s_lshl_b32 s7, s7, 15
        s_add_u32 s6, s6, s7
        buffer_load_dword v%d, v%d, s[72:75], s6 offen
        """ % (vz + 1, vz))
    if tw & 4:
        fcoords(a)
        a("s_bitcmp1_b32 s5, 2")
        a("s_cselect_b32 s68, s30, s28")
        a("s_cselect_b32 s69, s31, s29")
        a("s_mov_b32 s70, 0x%x" % (512 * 1792 * 2))
        a("s_mov_b32 s71, 0x20000")
        srd(a, 72, 32, 1792 * 512 * 2)
        a("""
        s_mul_i32 s6, s15, %d
        s_lshl_b32 s7, s14, 6
        s_and_b32 s7, s7, -128
        s_add_u32 s6, s6, s7
        buffer_load_dword v%d, v%d, s[68:71], s6 offen
        s_lshl_b32 s6, s14, 15
        s_lshl_b32 s7, s15, 8
        s_add_u32 s6, s6, s7
        buffer_load_dword v%d, v%d, s[72:75], s6 offen
        """ % (128 * 3584, vz + 1, vz, vz + 1, vz))
    if tw & 8:
        a("""
        s_mov_b32 s6, 0x30000
        buffer_load_dword v%d, v%d, s[56:59], s6 offen
        s_mov_b32 s6, 0x240000
        buffer_load_dword v%d, v%d, s[56:59], s6 offen
        """ % (vz + 1, vz, vz + 1, vz))
    a("s_mov_b64 exec, -1")

def stouch(a, m):
    if m & 1:
        a("""
        s_lshl_b32 s6, s4, 24
        s_lshl_b32 s7, s5, 12
        s_add_u32 s6, s6, s7
        s_add_u32 s6, s6, 0xf00000
        s_load_dword s70, s[20:21], s6
        """)
    if m & 2:
        a("""
        s_lshl_b32 s6, s4, 19
        s_lshr_b32 s7, s5, 1
        s_lshl_b32 s7, s7, 15
        s_add_u32 s6, s6, s7
        s_load_dword s70, s[24:25], s6
        """)
    if m & 4:
        a("""
        s_and_b32 s6, s5, 3
        s_mul_i32 s6, s6, %d
        s_load_dword s70, s[28:29], s6
        s_load_dword s70, s[30:31], s6
        s_load_dword s70, s[32:33], s6
        """ % (128 * 3584))
    if m & 8:
        a("""
        s_mov_b32 s6, 0x240000
        s_load_dword s70, s[38:39], s6
        s_load_dword s70, s[34:35], 0
        """)

def traddr128(a, d, base, t0, t1):
    a("""
    v_lshrrev_b32 v%d, 2, v4
    v_lshl_add_u32 v%d, v5, 3, v%d
    v_lshlrev_b32 v%d, 7, v%d
    v_bfe_u32 v%d, v0, 3, 2
    v_lshl_or_b32 v%d, v%d, 5, v%d
    v_and_b32 v%d, 3, v0
    v_lshl_or_b32 v%d, v%d, 3, v%d
    """ % (t0, t0, t0, t0, t0, t1, t0, t1, t0, t1, d, t1, t0))
    if base: a("v_add_u32 v%d, %d, v%d" % (d, base, d))
    for u in range(1, 4):
        a("v_xor_b32 v%d, %d, v%d" % (d + u, 32 * u, d))

def early_barrier(a):
    a("s_waitcnt lgkmcnt(0)")
    a("s_barrier")
    srd(a, 56, 38, 0x20000000)

def make_tag(a):
    a("""
    s_waitcnt lgkmcnt(0)
    s_add_u32 s40, s40, 16
    s_and_b32 s40, s40, -16
    s_add_u32 s41, s41, 0x9e3779b9
    """)

def get_tag(a, vt):
    if OWNTAG:
        make_tag(a)
        a("v_mov_b32 v%d, s40" % vt)
        a("v_mov_b32 v%d, s41" % (vt + 1))
        a("v_mov_b32 v%d, 1" % (vt + 2))
        return
    name = a.newlabel("L_gt")
    a("s_mov_b32 s64, SPIN")
    a.label(name)
    a("ds_read_b96 v[%d:%d], v7 offset:%d" % (vt, vt + 2, F_TAG))
    a("s_waitcnt lgkmcnt(0)")
    a("v_cmp_eq_u32 vcc, 0, v%d" % (vt + 2))
    a("s_cbranch_vccz %s_ok" % name)
    a("s_sleep 10")
    a("s_sub_u32 s64, s64, 1")
    a("s_cbranch_scc1 L_end")
    a("s_branch %s" % name)
    a.label(name + "_ok")
    a("v_readfirstlane_b32 s40, v%d" % vt)
    a("v_readfirstlane_b32 s41, v%d" % (vt + 1))
    a.nop(2)

def lds_wait_ge(a, vfl, vtmp, off, thr, sleep=1):
    name = a.newlabel("L_w")
    a("s_mov_b32 s64, SPIN")
    a.label(name)
    a("ds_read_b32 v%d, v%d offset:%d" % (vtmp, vfl, off))
    a("s_waitcnt lgkmcnt(0)")
    a("v_cmp_gt_u32 vcc, %d, v%d" % (thr, vtmp) if thr <= 64 else "v_cmp_gt_u32 vcc, 0x%x, v%d" % (thr, vtmp))
    a("s_cbranch_vccz %s_ok" % name)
    if sleep: a("s_sleep %d" % sleep)
    a("s_sub_u32 s64, s64, 1")
    a("s_cbranch_scc1 L_end")
    a("s_branch %s" % name)
    a.label(name + "_ok")

def tagcheck(a, regs, tag="s[40:41]"):
    a("v_cmp_ne_u64 vcc, %s, v[%d:%d]" % (tag, regs[0] + 2, regs[0] + 3))
    for r in regs[1:]:
        a("v_cmp_ne_u64 s[60:61], %s, v[%d:%d]" % (tag, r + 2, r + 3))
        a("s_or_b64 vcc, vcc, s[60:61]")

def gen(diag=False, W=16, forceslow=False, onlyld=False, kvmode=1, W0=24, P=None):
    P = P or {}
    global OWNTAG, DBGD
    DBGD = P.get("dbgd", 0)
    OWNTAG = P.get("owntag", 0)
    if OWNTAG: P["epf"] = 1
    def opt(k, d): return P.get(k, d)
    a = Asm(diag)
    out = []
    out.append(HEADER.rstrip("\n"))
    out.append("; @launch grid=(256,1,1) block=(512,1,1) lds=%d" % LDS_BYTES)
    out.append('.amdgcn_target "amdgcn-amd-amdhsa--gfx950"')
    out.append(".set SPIN, 0x40000")
    out.append(".text")
    out.append(".globl %s_kernel" % NAME)
    out.append(".p2align 8")
    out.append(".type %s_kernel,@function" % NAME)
    out.append("%s_kernel:" % NAME)

    a("""
    s_cmp_ge_u32 s2, 256
    s_cbranch_scc1 L_end0
    s_load_dwordx16 s[16:31], s[0:1], 0
    s_load_dwordx8 s[32:39], s[0:1], 64
    v_lshrrev_b32 v1, 6, v0
    v_lshlrev_b32 v2, 3, v0
    v_mov_b32 v8, 0
    v_mov_b32 v9, 0
    v_readfirstlane_b32 s3, v1
    v_add_u32 v2, %d, v2
    v_and_b32 v0, 63, v0
    ds_write_b64 v2, v[8:9]
    s_and_b32 s4, s2, 7
    s_lshr_b32 s5, s2, 3
    v_and_b32 v4, 15, v0
    v_lshrrev_b32 v5, 4, v0
    v_mov_b32 v7, %d
    """ % (L_Z, L_FL))
    a.stamp()
    nst0 = a.nstamp
    a("""
    s_cmp_eq_u32 s3, 0
    s_cbranch_scc1 L_ld
    """)
    if onlyld:
        if opt("sw", 0):
            a("s_cmp_lg_u32 s3, 7")
            a("s_cbranch_scc1 L_end0")
            a("s_waitcnt lgkmcnt(0)")
            a("s_barrier")
            if opt("swd", 0): a("s_sleep %d" % opt("swd", 0))
            stouch(a, opt("sw", 0))
            a("s_waitcnt lgkmcnt(0)")
        if opt("tw", 0):
            a("s_cmp_lg_u32 s3, 7")
            a("s_cbranch_scc1 L_end0")
            a("s_waitcnt lgkmcnt(0)")
            srd(a, 56, 38, 0x20000000)
            touches(a, opt("tw", 0))
            a("s_barrier")
        a("s_branch L_end0")
    a("""
    s_cmp_eq_u32 s3, 1
    s_cbranch_scc1 L_qh
    s_mov_b32 s58, 0x20000000
    s_mov_b32 s59, 0x20000
    s_waitcnt lgkmcnt(0)
    s_load_dwordx2 s[40:41], s[38:39], 0
    s_mov_b32 s56, s38
    s_mov_b32 s57, s39
    s_getreg_b32 s44, hwreg(HW_REG_XCC_ID, 0, 4)
    s_barrier
    s_cmp_eq_u32 s3, 6
    s_cbranch_scc1 L_f
    s_cmp_eq_u32 s3, 7
    s_cbranch_scc1 L_o
    s_cmp_eq_u32 s3, 2
    s_cbranch_scc1 L_att
    s_mov_b64 exec, 0
    s_cmp_eq_u32 s3, 3
    s_cbranch_scc1 PAD_Q1
    s_cmp_eq_u32 s3, 4
    s_cbranch_scc1 PAD_Q2
    s_branch PAD_A1
    """)
    a.label("L_end0")
    a("s_endpgm")
    a.label("L_qh")
    a("""
    s_setprio 3
    v_lshlrev_b32 v2, 4, v0
    s_mov_b32 s50, 1024
    s_mov_b32 s51, 0x20000
    s_mov_b32 s58, 0x20000000
    s_mov_b32 s59, 0x20000
    s_waitcnt lgkmcnt(0)
    s_mov_b32 s48, s16
    s_mov_b32 s49, s17
    s_mov_b32 s56, s38
    s_mov_b32 s57, s39
    buffer_load_dwordx4 v[8:11], v2, s[48:51], 0 offen
    s_getreg_b32 s44, hwreg(HW_REG_XCC_ID, 0, 4)
    s_barrier
    s_branch L_q
    """)

    a.label("L_ld")
    a("s_setprio 2")
    a("""
    v_lshrrev_b32 v6, 3, v0
    v_bfe_u32 v3, v0, 4, 1
    v_lshlrev_b32 v3, 1, v3
    v_and_b32 v8, 7, v0
    v_xor_b32 v8, v8, v3
    v_lshlrev_b32 v8, 4, v8
    v_lshl_or_b32 v10, v6, 13, v8
    v_xor_b32 v21, 64, v10
    v_lshrrev_b32 v9, 5, v0
    s_lshr_b32 s6, s5, 3
    s_lshl_b32 s6, s6, 20
    s_lshl_b32 s7, s4, 10
    s_add_u32 s6, s6, s7
    s_and_b32 s7, s5, 7
    s_lshl_b32 s7, s7, 7
    s_add_u32 s6, s6, s7
    s_mov_b32 s46, 0x400000
    s_mov_b32 s47, 0x20000
    s_mov_b32 m0, %d
    s_movk_i32 s42, 1024
    s_movk_i32 s43, 4096
    s_mov_b32 s40, 0x20000
    s_mov_b32 s41, 0x10000
    """ % L_WQ)
    for b in range(4):
        a("v_add_u32 v2, %d, v5" % (4 * b))
        a("v_xor_b32 v2, v4, v2")
        a("v_lshlrev_b32 v2, 4, v2")
        a("v_lshl_or_b32 v%d, v5, 8, v2" % (12 + b))
    a("""
    s_lshl_b32 s8, s4, 24
    s_lshl_b32 s7, s5, %d
    s_add_u32 s8, s8, s7
    s_add_u32 s8, s8, 0xf00000
    s_mov_b32 s9, s8
    s_mov_b32 s50, 0x8000000
    s_mov_b32 s51, 0x20000
    s_waitcnt lgkmcnt(0)
    s_mov_b32 s44, s22
    s_mov_b32 s45, s23
    s_mov_b32 s48, s18
    s_mov_b32 s49, s19
    """ % ({0: 15, 1: 12}[kvmode]))
    a.stamp()

    def loader_setup2():
        a("v_mul_u32_u24 v11, %d, v6" % 3584)
        a("v_add_u32 v11, v11, v8")
        a("v_xor_b32 v22, 64, v11")
        for b in range(2):
            a("v_add_u32 v2, %d, v5" % (4 * b))
            a("v_lshlrev_b32 v2, 1, v2")
            a("v_xor_b32 v2, v4, v2")
            a("v_lshlrev_b32 v2, 4, v2")
            a("v_lshl_or_b32 v%d, v5, 8, v2" % (16 + b))
        a("v_and_b32 v3, 31, v0")
        for b in range(2):
            a("v_add_u32 v2, %d, v9" % (2 * b))
            a("v_lshlrev_b32 v2, 2, v2")
            a("v_xor_b32 v2, v3, v2")
            a("v_lshlrev_b32 v2, 4, v2")
            a("v_lshl_or_b32 v%d, v9, 10, v2" % (18 + b))
        a("v_lshlrev_b32 v2, 2, v5")
        a("v_xor_b32 v2, v4, v2")
        a("v_lshlrev_b32 v2, 4, v2")
        a("v_lshl_or_b32 v20, v5, 10, v2")
        srd(a, 52, 20, 0x8000000)
        a("s_bitcmp1_b32 s5, 2")
        a("s_cselect_b32 s60, s30, s28")
        a("s_cselect_b32 s61, s31, s29")
        a("s_mov_b32 s62, 0x%x" % (512 * 1792 * 2))
        a("s_mov_b32 s63, 0x20000")
        srd(a, 68, 24, 4096 * 512 * 2)
        srd(a, 72, 32, 1792 * 512 * 2)
        srd(a, 56, 38, 0x20000000)
        fcoords(a)
        a("""
        s_mul_i32 s10, s15, %d
        s_lshl_b32 s7, s14, 6
        s_and_b32 s7, s7, -128
        s_add_u32 s10, s10, s7
        s_movk_i32 s41, %d
        """ % (128 * 3584, 8 * 3584))
        a("""
        s_lshl_b32 s12, s4, 19
        s_lshr_b32 s7, s5, 1
        s_lshl_b32 s7, s7, 15
        s_add_u32 s12, s12, s7
        s_and_b32 s7, s5, 1
        s_lshl_b32 s7, s7, 9
        s_add_u32 s12, s12, s7
        """)
        a("""
        s_lshl_b32 s13, s14, 15
        s_lshl_b32 s7, s15, 8
        s_add_u32 s13, s13, s7
        """)

    def item(kind, i):
        def m0set(base, i): return "s_mov_b32 m0, %d" % base if i == 0 else "s_add_u32 m0, m0, s42"
        if kind == "wq":
            pre = [] if i == 0 else ["s_add_u32 m0, m0, s42", "s_add_u32 s6, s6, s41"]
            return pre + ["buffer_load_dwordx4 v%d, s[44:47], s6 offen nt lds" % (21 if i & 1 else 10)]
        if kind in ("K", "V"):
            base = L_K if kind == "K" else L_V
            sr = 8 if kind == "K" else 9
            pre = []
            if i % 4 == 0:
                pre = ["s_mov_b32 m0, %d" % (base + i * 1024) if i in (0, 16) else "s_add_u32 m0, m0, s43", ("s_add_u32 s%d, s%d, %s" % (sr, sr, "s43" if kvmode == 0 else "s40")) if i else "s_nop 0"]
                if opt("kvx", 0) and i:
                    u = i // 4
                    pre[1] = "s_xor_b32 s%d, s%d, 0x%x" % (sr, sr, (u * 0x21000) ^ ((u - 1) * 0x21000))
            vr = 12 + (i % 4) if kind == "K" else 16 + (i % 2)
            return pre + ["buffer_load_dwordx4 v%d, s[%d:%d], s%d offen offset:%d nt lds" % (vr, 48 if kind == "K" else 52, 51 if kind == "K" else 55, sr, (i % 4) * 1024)]
        if kind == "G":
            pre = [m0set(L_G, i), "s_add_u32 s10, s10, s41" if i else "s_nop 0"]
            return pre + ["buffer_load_dwordx4 v%d, s[60:63], s10 offen nt lds" % (22 if i & 1 else 11)]
        if kind == "wo":
            pre = [m0set(L_WO, i), "s_add_u32 s12, s12, 0x800" if i else "s_nop 0"]
            return pre + ["buffer_load_dwordx4 v%d, s[68:71], s12 offen nt lds" % (18 + (i % 2))]
        if kind == "wd":
            pre = [m0set(L_WD, i), "s_add_u32 s13, s13, s43" if i else "s_nop 0"]
            return pre + ["buffer_load_dwordx4 v20, s[72:75], s13 offen nt lds"]

    ORD = {0: "K V G wo wd", 1: "K G wd wo V", 2: "K G wo V wd", 3: "K G V wo wd", 4: "K G Va wo wd Vb", 5: "K G wd Va wo Vb", 6: "K Va G wd wo Vb", 7: "K G wo wd V"}[opt("ord", 0)].split()
    CNT = {"wq": 16, "K": 32, "V": 32, "G": 16, "wo": 16, "wd": 8}
    def expand(k):
        if k == "Va": return [("V", i) for i in range(16)]
        if k == "Vb": return [("V", i) for i in range(16, 32)]
        return [(k, i) for i in range(CNT[k])]
    seqfull = expand("wq")
    for k in ORD: seqfull += expand(k)
    PV = {it: n + 1 for n, it in enumerate(seqfull)}
    def mark(k, i):
        if k == "wq": return i in ((3, 7, 11, 15) if opt("q4", 0) else (7, 15))
        if k in ("K", "V"): return i % 8 == 7
        if k == "G": return i == 15 or (opt("g2", 0) and i == 7)
        return i == CNT[k] - 1
    TH_K0 = PV[("K", 7)]; TH_V3 = PV[("V", 23)]; TH_V = PV[("V", 31)]; TH_G = PV[("G", 15)]; TH_WO = PV[("wo", 15)]; TH_WD = PV[("wd", 7)]
    STAMPS = (16, PV[("K", 31)], TH_V, TH_G, TH_WO, TH_WD)
    def stream(full):
        seq = [it for it in seqfull if full or it[0] not in ("G", "wd")]
        prog = {}
        for n, (k, i) in enumerate(seq):
            if mark(k, i): prog[n + 1] = PV[(k, i)]
        return seq, prog

    WL = opt("WL", W)
    def win(n):
        if n >= 80: return WL
        if n < opt("wqn", 0): return max(opt("wqw", W), W0 - max(0, n - W0) * opt("shrink", 1))
        return max(W, W0 - max(0, n - W0) * opt("shrink", 1))
    seqF, progF = stream(True)
    seqS, progS = stream(False)
    NB = opt("nb", 6)
    if NB == 0: a("s_barrier")
    for i in range(16):
        for x in item("wq", i): a(x)
        if i == NB - 1: a("s_barrier")
    assert 16 <= W0 <= 48
    for n in range(16, W0):
        for x in item(*seqF[n]): a(x)
    a.stamp()
    loader_setup2()

    def publish(prog, cnt):
        a("v_mov_b32 v2, %d" % prog[cnt])
        a("ds_write_b32 v7, v2 offset:%d" % F_PROG)
        if prog[cnt] in STAMPS: a.stamp()
    def emit(seq, prog, n0, n1, done):
        for n in range(n0, n1):
            target = n - win(n) + 1
            for cnt in range(done + 1, target + 1):
                if cnt in prog and cnt < target:
                    a("s_waitcnt vmcnt(%d)" % (n - cnt))
                    publish(prog, cnt)
            if target > done:
                a("s_waitcnt vmcnt(%d)" % (n - target))
            for x in item(*seq[n]): a(x)
            if target > done and target in prog: publish(prog, target)
            done = max(done, target)
        return done
    def drain(seq, prog, done):
        N = len(seq)
        for cnt in range(done + 1, N + 1):
            if cnt in prog:
                a("s_waitcnt vmcnt(%d)" % (N - cnt))
                publish(prog, cnt)
    PZ = opt("pause", 0)
    def tail(seq, prog, done, np_, need):
        if not PZ:
            d2 = emit(seq, prog, 80, len(seq), done)
            drain(seq, prog, d2)
            return
        ahead = opt("pzah", 0)
        d2 = emit(seq, prog, 80, np_ + ahead, done)
        for cnt in range(d2 + 1, np_ + 1):
            if cnt in prog:
                a("s_waitcnt vmcnt(%d)" % (np_ + ahead - cnt))
                publish(prog, cnt)
        lab = a.newlabel("L_pz")
        a("s_mov_b32 s37, %d" % opt("pzmax", 24))
        a.label(lab)
        a("ds_read_b32 v3, v7 offset:%d" % F_PZ)
        a("s_waitcnt lgkmcnt(0)")
        a("v_cmp_gt_u32 vcc, %d, v3" % need)
        a("s_cbranch_vccz %s_ok" % lab)
        a("s_sub_u32 s37, s37, 1")
        a("s_cbranch_scc0 %s" % lab)
        a.label(lab + "_ok")
        for n in range(np_ + ahead, len(seq)):
            for x in item(*seq[n]): a(x)
        drain(seq, prog, np_)
    NC = 0
    while seqF[NC] == seqS[NC]: NC += 1
    done = emit(seqF, progF, W0, NC, 0)
    nst1 = a.nstamp
    a("s_cmp_lg_u32 s36, 0")
    a("s_cbranch_scc1 L_ld_full")
    drain(seqS, progS, emit(seqS, progS, NC, len(seqS), done))
    a.stamp_flush(28)
    a("s_endpgm")
    a.label("L_ld_full")
    a.nstamp = nst1
    drain(seqF, progF, emit(seqF, progF, NC, len(seqF), done))
    if opt("wb", 0) & 4:
        a("s_cmp_lg_u32 s5, %d" % opt("wbc", 0))
        a("s_cbranch_scc1 L_ld_nwb")
        if opt("wbd", 0): a("s_sleep %d" % opt("wbd", 0))
        a("buffer_wbl2 sc1")
        a.label("L_ld_nwb")
    a.stamp_flush(28, [("min", 0, 0), ("max", 0, 1)] + [("max", 3 + i, 2 + i) for i in range(6)] + [("sum", 3 + i, 8 + i) for i in range(6)])
    a("s_endpgm")

    a.nstamp = nst0
    a.page()
    a.label("L_q")
    a("""
    v_add_u32 v12, %d, v2
    s_lshr_b32 s6, s5, 3
    s_lshl_b32 s6, s6, 8
    s_add_u32 s6, s6, %d
    v_lshlrev_b32 v13, 4, v5
    v_add_u32 v13, s6, v13
    """ % (L_XN, L_XN))
    traddr128(a, 120, L_WQ, 3, 6)
    a("""
    s_lshl_b32 s14, s4, 14
    s_lshl_b32 s15, s5, 9
    s_add_u32 s15, s15, s14
    s_add_u32 s15, s15, 0x%x
    v_lshrrev_b32 v3, 1, v4
    v_lshlrev_b32 v3, 7, v3
    v_lshl_or_b32 v3, v5, 5, v3
    v_and_b32 v6, 1, v0
    v_lshl_or_b32 v3, v6, 4, v3
    s_mov_b32 s8, 0xaaaaaaaa
    s_mov_b32 s9, 0xaaaaaaaa
    s_mov_b32 s10, 0xcccccccc
    s_mov_b32 s11, 0xcccccccc
    s_mov_b32 s12, 0xf0f0f0f0
    s_mov_b32 s13, 0xf0f0f0f0
    v_mov_b32 v149, 1
    """ % INB1)
    a("""
    s_mov_b32 s52, s34
    s_mov_b32 s53, s35
    s_mov_b32 s54, 1024
    s_mov_b32 s55, 0x20000
    """)
    PT = opt("pt", 0)
    if PT & 1:
        a("""
        s_mov_b32 exec_lo, 0x00ff00ff
        s_mov_b32 exec_hi, 0x00ff00ff
        buffer_load_dwordx4 v[160:163], v3, s[56:59], s15 offen sc1
        s_mov_b64 exec, -1
        s_waitcnt vmcnt(1)
        """)
    else:
        a("s_waitcnt vmcnt(0)")
    a.stamp()
    layernorm(a, 8, 80, 88, 96)
    a("ds_write_b128 v12, v[96:99]")
    a("ds_write_b32 v7, v149 offset:%d" % F_XN)
    a.pad("PAD_Q1", "L_att_x")
    for k in range(4):
        a("ds_read_b128 v[%d:%d], v13 offset:%d" % (100 + 4 * k, 103 + 4 * k, k * 64))
    a.stamp()
    for k in range(4 if opt("q4", 0) else 0):
        lds_wait_ge(a, 7, 80, F_PROG, 4 * (k + 1), sleep=0)
        for u in range(4):
            for h in range(2):
                r = 16 + k * 16 + (u * 2 + h) * 2
                a("ds_read_b64_tr_b16 v[%d:%d], v%d offset:%d" % (r, r + 1, 120 + u, k * 4096 + h * 512))
        if k == 3: a("ds_read_b96 v[150:152], v7 offset:%d" % F_TAG)
        for u in range(4):
            a("s_waitcnt lgkmcnt(%d)" % (6 - 2 * u + (k == 3)))
            r = 16 + k * 16 + u * 4
            c_ = "0" if k == 0 else "v[%d:%d]" % (132 + 4 * u, 135 + 4 * u)
            a("v_mfma_f32_16x16x32_bf16 v[%d:%d], v[%d:%d], v[%d:%d], %s" % (132 + 4 * u, 135 + 4 * u, r, r + 3, 100 + 4 * k, 103 + 4 * k, c_))
    for half in range(0 if opt("q4", 0) else 2):
        lds_wait_ge(a, 7, 80, F_PROG, 8 * (half + 1), sleep=0)
        for kk in range(2):
            k = half * 2 + kk
            for u in range(4):
                for h in range(2):
                    r = 16 + (kk * 8 + u * 2 + h) * 2 + half * 32
                    a("ds_read_b64_tr_b16 v[%d:%d], v%d offset:%d" % (r, r + 1, 120 + u, k * 4096 + h * 512))
        if half == 1: a("ds_read_b96 v[150:152], v7 offset:%d" % F_TAG)
        for kk in range(2):
            k = half * 2 + kk
            for u in range(4):
                if u % 2 == 0: a("s_waitcnt lgkmcnt(%d)" % (12 - 8 * kk - 2 * u + half))
                r = 16 + (kk * 8 + u * 2) * 2 + half * 32
                c_ = "0" if k == 0 else "v[%d:%d]" % (132 + 4 * u, 135 + 4 * u)
                a("v_mfma_f32_16x16x32_bf16 v[%d:%d], v[%d:%d], v[%d:%d], %s" % (132 + 4 * u, 135 + 4 * u, r, r + 3, 100 + 4 * k, 103 + 4 * k, c_))
    a.stamp()
    a("s_mov_b32 s64, SPIN")
    a.pad("PAD_Q2", "L_att_x")
    a.label("L_q_tw")
    a("""
    s_waitcnt lgkmcnt(0)
    v_cmp_eq_u32 vcc, 0, v152
    s_cbranch_vccz L_q_tok
    ds_read_b96 v[150:152], v7 offset:%d
    s_sub_u32 s64, s64, 1
    s_cbranch_scc1 L_end
    s_branch L_q_tw
    """ % F_TAG)
    a.label("L_q_tok")
    a("""
    v_or_b32 v158, s44, v150
    v_mov_b32 v159, v151
    v_readfirstlane_b32 s40, v150
    v_readfirstlane_b32 s41, v151
    """)
    for u in range(4):
        a("v_cndmask_b32_e64 v%d, v%d, v%d, s[8:9]" % (80 + 2 * u, 132 + 4 * u, 134 + 4 * u))
        a("v_cndmask_b32_e64 v%d, v%d, v%d, s[8:9]" % (81 + 2 * u, 133 + 4 * u, 135 + 4 * u))
    a("""
    v_cndmask_b32_e64 v80, v80, v82, s[10:11]
    v_cndmask_b32_e64 v81, v81, v83, s[10:11]
    v_cndmask_b32_e64 v84, v84, v86, s[10:11]
    v_cndmask_b32_e64 v85, v85, v87, s[10:11]
    s_mov_b32 exec_lo, 0x00ff00ff
    s_mov_b32 exec_hi, 0x00ff00ff
    v_cndmask_b32_e64 v156, v80, v84, s[12:13]
    v_cndmask_b32_e64 v157, v81, v85, s[12:13]
    %s
    ds_write_b32 v7, v149 offset:%d
    """ % ("s_nop 0" if forceslow else "buffer_store_dwordx4 v[156:159], v3, s[56:59], s15 offen", F_QPUB))
    a.stamp()
    a("s_setprio 0")
    a("s_mov_b32 s64, SPIN")
    a.label("L_q_w")
    a("""
    s_sleep 4
    ds_read_b64 v[80:81], v7 offset:%d
    s_sub_u32 s64, s64, 1
    s_cbranch_scc1 L_end
    s_waitcnt lgkmcnt(0)
    v_cmp_ne_u32 vcc, 0, v81
    s_cbranch_vccnz L_q_slow
    v_and_b32 v80, 7, v80
    v_cmp_ne_u32 vcc, 4, v80
    s_cbranch_vccnz L_q_w
    """ % F_Q)
    if opt("rs", 0) & 2:
        lds_wait_ge(a, 7, 80, F_APUB, 1, sleep=4)
        if opt("rsq", 0): a("s_sleep %d" % opt("rsq", 0))
        a("buffer_store_dwordx4 v[156:159], v3, s[56:59], s15 offen sc1")
    a("s_branch L_q_dd")
    a.label("L_q_slow")
    a("""
    s_add_u32 s15, s15, 0x%x
    buffer_store_dwordx4 v[156:159], v3, s[56:59], s15 offen sc1
    """ % (INB1S - INB1))
    a.label("L_q_dd")
    a("s_mov_b64 exec, -1")
    a.stamp()
    a("s_lshr_b32 s6, s4, 2")
    a("s_lshl_b32 s6, s6, 3")
    a("s_add_u32 s6, s6, s5")
    a("s_cmp_ge_u32 s6, 32")
    a("s_cbranch_scc1 L_fin")
    if opt("wb", 0) & 8:
        if opt("wbm", 0):
            a("s_bitcmp0_b32 0x%x, s5" % opt("wbm", 0))
        else:
            a("s_cmp_lg_u32 s5, %d" % opt("wbc", 0))
        a("s_cbranch_scc1 L_q_nwb")
        lds_wait_ge(a, 7, 160, F_PZ, 1, sleep=4)
        if opt("wbd", 0): a("s_sleep %d" % opt("wbd", 0))
        a("buffer_wbl2 %ssc1" % ("sc0 " if opt("wbs", 0) else ""))
        a.label("L_q_nwb")
    if diag: a("s_branch L_q_done")
    a("s_endpgm")
    a.page()
    a.label("L_fin")
    if opt("skip", 0) & 32: a("s_endpgm")
    a("""
    s_setprio 1
    s_and_b32 s6, s4, 3
    s_lshl_b32 s6, s6, 3
    s_add_u32 s6, s6, s5
    s_sub_u32 s6, s6, 24
    s_lshl_b32 s6, s6, 1
    s_lshr_b32 s7, s3, 2
    s_add_u32 s6, s6, s7
    s_mov_b32 s65, s6
    s_lshl_b32 s12, s6, 13
    s_add_u32 s12, s12, 0x%x
    s_add_u32 s13, s12, 4096
    s_mul_i32 s14, s6, 3584
    s_add_u32 s14, s14, 0x%x
    s_lshl_b32 s15, s6, 4
    v_and_b32 v3, 3, v0
    v_lshlrev_b32 v3, 2, v3
    v_add_u32 v3, s15, v3
    s_waitcnt vmcnt(0)
    buffer_load_dword v6, v3, s[48:51], 0 offen
    """ % (INB3S, INB3D))
    FN = opt("fn", 0)
    for i, M in enumerate([[16 + 2 * k for k in range(12)], [42, 44, 46, 66, 68, 70, 72, 74, 94, 96, 98, 100]]):
        if FN and i: break
        for m in M: a("s_mov_b64 s[%d:%d], -1" % (m, m + 1))
        a("s_mov_b32 s%d, 0" % (M[11] + 1))
        a("v_mov_b32 v%d, 0" % (16 + 48 * i + 44))
        a("v_mov_b32 v%d, 0" % (16 + 48 * i + 45))
    for b in [16, 64, 112, 190][1:FN]:
        a("v_mov_b32 v%d, 0" % (b + 44))
        a("v_mov_b32 v%d, 0" % (b + 45))
    if diag:
        a("v_mov_b32 v180, 0")
        a("v_mov_b32 v181, 0")
        a("s_mov_b32 s63, 1")
    if opt("fpre", 0):
        if opt("fpre", 0) > 1: lds_wait_ge(a, 7, 160, F_PROG, opt("fpre", 0), sleep=2)
        for j in range(3): a("s_add_u32 s%d, s%d, 0x%x" % (8 + j, 12 + j, opt("fprd", 0) * 0x100000))
        for k in range(12):
            if k == 11: a("s_mov_b64 exec, 0xffffffff")
            a("buffer_load_dwordx4 v[%d:%d], v2, s[56:59], s%d offen offset:%d sc1" % (16 + 4 * k, 19 + 4 * k, 8 + k // 4, (k % 4) * 1024))
        a("s_mov_b64 exec, -1")
        a("s_waitcnt vmcnt(0)")
    lds_wait_ge(a, 7, 160, F_OPUB, 1, sleep=2)
    a("s_setprio 3")
    a.stamp()
    NS = 2
    SK = opt("skip", 0)
    FM = [[16 + 2 * k for k in range(12)], [42, 44, 46, 66, 68, 70, 72, 74, 94, 96, 98, 100]]
    bases = [16 + 48 * i for i in range(NS)]
    if FN:
        NS = FN; bases = [16, 64, 112, 190][:FN]; FM = [FM[0]] * FN
    def fissue(i):
        base = bases[i]
        for k in range(12):
            a("s_mov_b64 exec, s[%d:%d]" % (FM[i][k], FM[i][k] + 1))
            a("buffer_load_dwordx4 v[%d:%d], v2, s[56:59], s%d offen offset:%d sc1" % (base + 4 * k, base + 3 + 4 * k, 12 + k // 4, (k % 4) * 1024))
        a("s_mov_b64 exec, -1")
    def fcheck(i, lab):
        base = bases[i]
        for k in range(12):
            a("v_cmp_ne_u64 s[%d:%d], s[40:41], v[%d:%d]" % (FM[i][k], FM[i][k] + 1, base + 4 * k + 2, base + 4 * k + 3))
        a("s_mov_b32 s%d, 0" % (FM[i][11] + 1))
        for k in range(12):
            if (SK & 1 and k >= 8) or (SK & 2 and k < 8): a("s_mov_b64 s[%d:%d], 0" % (FM[i][k], FM[i][k] + 1))
        for k in range(12):
            a("s_or_b64 s[60:61], s[%d:%d], %s" % (FM[i][k], FM[i][k] + 1, "s[60:61]" if k else "0"))
        a.log(63, "s[60:61]", 180)
        a("s_cbranch_scc0 %s" % lab)
    a("s_mov_b32 s64, SPIN")
    if opt("fdel", 0): a("s_sleep %d" % opt("fdel", 0))
    FK = opt("fk", 0)
    if FK:
        bases = bases[:1]; NS = 1
        for i in range(FK):
            fissue(0)
            if i < FK - 1: a("s_sleep %d" % opt("fstag", 8))
        a.label("L_f_poll3")
        a("s_waitcnt vmcnt(%d)" % (12 * (FK - 1)))
        fcheck(0, "L_fin_d0")
        fissue(0)
    else:
        for i in range(NS):
            fissue(i)
            if i < NS - 1: a("s_sleep %d" % opt("fstag", 8))
        a.label("L_f_poll3")
        for i in range(NS):
            a("s_waitcnt vmcnt(%d)" % (12 * (NS - 1)))
            fcheck(i, "L_fin_d%d" % i)
            fissue(i)
    a("s_sub_u32 s64, s64, 1")
    a("s_cbranch_scc1 L_end")
    a("s_branch L_f_poll3")
    for i, b in enumerate(bases):
        a.label("L_fin_d%d" % i)
        for e in range(2):
            a("v_add_f32 v%d, v%d, v%d" % (160 + e, b + e, b + 4 + e))
            a("v_add_f32 v%d, v%d, v%d" % (164 + e, b + 8 + e, b + 12 + e))
            a("v_add_f32 v%d, v%d, v%d" % (166 + e, b + 16 + e, b + 20 + e))
            a("v_add_f32 v%d, v%d, v%d" % (168 + e, b + 24 + e, b + 28 + e))
            a("v_add_f32 v%d, v%d, v%d" % (162 + e, b + 32 + e, b + 36 + e))
            a("v_add_f32 v%d, v%d, v%d" % (170 + e, b + 40 + e, b + 44 + e))
        if i < NS - 1: a("s_branch L_fin_dd")
    a.label("L_fin_dd")
    a.stamp()
    a("""
    v_add_f32 v160, v160, v164
    v_add_f32 v161, v161, v165
    v_add_f32 v166, v166, v168
    v_add_f32 v167, v167, v169
    v_add_f32 v162, v162, v170
    v_add_f32 v163, v163, v171
    v_add_f32 v160, v160, v166
    v_add_f32 v161, v161, v167
    """)
    for r in (4, 8):
        a.nop(1)
        for v in (162, 163, 160, 161):
            a("v_add_f32_dpp v%d, v%d, v%d row_ror:%d row_mask:0xf bank_mask:0xf" % (v, v, v, r))
    xreduce(a, "add", [160, 161, 162, 163], [164, 165, 166, 167])
    a("""
    v_cvt_pk_bf16_f32 v164, v160, v161
    v_cvt_pk_bf16_f32 v165, v162, v163
    v_lshlrev_b32 v160, 16, v164
    v_and_b32 v161, 0xffff0000, v164
    v_lshlrev_b32 v162, 16, v165
    v_and_b32 v163, 0xffff0000, v165
    v_mul_f32 v164, 0xbfb8aa3b, v162
    v_mul_f32 v165, 0xbfb8aa3b, v163
    v_exp_f32 v164, v164
    v_exp_f32 v165, v165
    s_nop 0
    v_add_f32 v164, 1.0, v164
    v_add_f32 v165, 1.0, v165
    v_rcp_f32 v166, v164
    v_rcp_f32 v167, v165
    s_nop 0
    v_mul_f32 v168, v162, v166
    v_mul_f32 v169, v163, v167
    v_fma_f32 v170, -v168, v164, v162
    v_fma_f32 v171, -v169, v165, v163
    v_fma_f32 v170, v170, v166, v168
    v_fma_f32 v171, v171, v167, v169
    v_cmp_class_f32 vcc, v170, 3
    v_cmp_class_f32 s[60:61], v171, 3
    s_nop 1
    v_cndmask_b32 v170, v170, v168, vcc
    v_cndmask_b32_e64 v171, v171, v169, s[60:61]
    v_cvt_pk_bf16_f32 v164, v170, v171
    v_lshlrev_b32 v170, 16, v164
    v_and_b32 v171, 0xffff0000, v164
    v_mul_f32 v170, v160, v170
    v_mul_f32 v171, v161, v171
    v_cvt_pk_bf16_f32 v164, v170, v171
    v_lshlrev_b32 v170, 16, v164
    v_and_b32 v171, 0xffff0000, v164
    v_lshlrev_b32 v164, 16, v6
    v_and_b32 v165, 0xffff0000, v6
    v_add_f32 v170, v164, v170
    v_add_f32 v171, v165, v171
    v_cvt_pk_bf16_f32 v164, v170, v171
    s_mov_b64 exec, 15
    buffer_store_dword v164, v3, s[52:55], 0 offen%s
    """ % (" sc1" if opt("wb", 0) & 2 else ""))
    a.log_flush(180, 178, 2)
    a("""
    s_cmp_lg_u32 s65, 0
    s_cbranch_scc1 L_q_done
    s_mov_b64 exec, 1
    v_mov_b32 v166, s40
    v_mov_b32 v167, s41
    v_mov_b32 v168, 0
    buffer_store_dwordx2 v[166:167], v168, s[56:59], 0 offen%s
    """ % (" sc1" if opt("wb", 0) & 2 else ""))
    a.label("L_q_done")
    a.stamp()
    a.stamp_flush(172, [("max", 8, 14), ("max1", 5, 15)])
    a("s_endpgm")

    a.nstamp = nst0
    a.page()
    a.label("L_att_x")
    a("s_mov_b64 exec, -1")
    a.label("L_att")
    a("s_sub_u32 s62, s3, 2")
    a("""
    s_lshl_b32 s6, s62, 13
    s_add_u32 s6, s6, %d
    v_lshlrev_b32 v2, 8, v4
    v_add_u32 v2, s6, v2
    """ % L_K)
    for kk in range(4):
        a("v_add_u32 v3, %d, v5" % (4 * kk))
        a("v_xor_b32 v3, v3, v4")
        a("v_lshl_add_u32 v%d, v3, 4, v2" % (8 + kk))
    a("""
    v_lshrrev_b32 v3, 2, v4
    v_lshlrev_b32 v6, 8, v3
    v_lshl_or_b32 v6, v5, 4, v6
    v_add_u32 v6, %d, v6
    v_lshl_add_u32 v2, v5, 2, v3
    v_lshlrev_b32 v2, 8, v2
    v_add_u32 v2, %d, v2
    v_and_b32 v12, 1, v0
    v_lshl_add_u32 v2, v12, 3, v2
    v_and_b32 v12, 1, v5
    v_lshl_add_u32 v12, v12, 2, v3
    v_lshlrev_b32 v12, 1, v12
    v_bfe_u32 v13, v0, 1, 1
    s_lshl_b32 s6, s62, 2
    v_add_u32 v13, s6, v13
    v_xor_b32 v12, v12, v13
    v_lshl_add_u32 v12, v12, 4, v2
    v_xor_b32 v13, 32, v12
    """ % (L_Q, L_V))
    a("""
    v_lshlrev_b32 v15, 4, v0
    v_add_u32 v15, %d, v15
    s_lshl_b32 s6, s62, 10
    v_add_u32 v14, s6, v15
    v_lshlrev_b32 v17, 4, v3
    v_add_u32 v17, %d, v17
    s_lshl_b32 s6, s62, 6
    v_add_u32 v16, s6, v17
    """ % (L_P, L_ST))
    a("""
    s_lshl_b32 s6, s4, 17
    s_lshl_b32 s7, s62, 13
    s_add_u32 s6, s6, s7
    s_lshl_b32 s7, s5, 8
    s_add_u32 s6, s6, s7
    s_add_u32 s12, s6, 0x%x
    v_lshlrev_b32 v18, 15, v3
    v_lshl_or_b32 v18, v5, 6, v18
    v_and_b32 v2, 3, v0
    v_lshl_or_b32 v18, v2, 4, v18
    s_lshl_b32 s6, s4, 11
    s_lshl_b32 s7, s5, 4
    s_add_u32 s6, s6, s7
    s_add_u32 s13, s6, 0x%x
    v_lshlrev_b32 v19, 9, v3
    s_mov_b32 s8, 0xaaaaaaaa
    s_mov_b32 s9, 0xaaaaaaaa
    s_mov_b32 s10, 0xcccccccc
    s_mov_b32 s11, 0xcccccccc
    s_mov_b32 s14, 0x%x
    s_mov_b32 s15, 0x%x
    s_lshl_b32 s63, s62, 3
    s_add_u32 s63, s63, %d
    """ % (INB2, INBS, SCALE, LOG2E, TH_K0))
    if PT & 2:
        a("buffer_load_dwordx4 v[196:199], v18, s[56:59], s12 offen sc1")
    a("s_cmp_lg_u32 s62, 0")
    a("s_cbranch_scc1 L_att_gt")
    if PT & 2:
        a("s_mov_b64 exec, 0x1111")
        a("buffer_load_dwordx4 v[200:203], v19, s[56:59], s13 offen sc1")
        a("s_mov_b64 exec, -1")
    make_tag(a)
    a("""
    v_mov_b32 v22, s40
    v_mov_b32 v23, s41
    v_mov_b32 v24, 1
    ds_write_b96 v7, v[22:24] offset:%d
    s_branch L_att_nt
    """ % F_TAG)
    a.label("L_att_gt")
    get_tag(a, 22)
    a.label("L_att_nt")
    a("""
    s_lshl_b32 s16, s4, 14
    s_lshl_b32 s6, s62, 10
    s_add_u32 s16, s16, s6
    s_add_u32 s16, s16, 0x%x
    s_add_u32 s17, s16, 0x1000
    s_add_u32 s18, s16, 0x2000
    s_add_u32 s19, s16, 0x3000
    v_lshlrev_b32 v21, 4, v0
    s_lshl_b32 s6, s62, 8
    s_add_u32 s6, s6, %d
    v_lshlrev_b32 v25, 2, v0
    v_add_u32 v25, s6, v25
    s_or_b32 s46, s40, s44
    s_mov_b32 s47, s41
    s_mov_b32 s65, 0
    """ % (INB1, L_Q))
    if opt("fz", 0):
        for r in range(212, 216): a("v_mov_b32 v%d, 0x3f803f80" % r)
    QM = [[20, 22, 24, 26], [28, 30, 32, 34]]
    QB = [128, 144]
    for M in QM:
        for m in M: a("s_mov_b64 s[%d:%d], -1" % (m, m + 1))
    FLV = {0: " sc1", 1: "", 2: " nt", 3: " sc0", 4: " sc1 nt"}
    def qissue(i, sa=16, fl=0):
        for k in range(4):
            a("s_mov_b64 exec, s[%d:%d]" % (QM[i][k], QM[i][k] + 1))
            a("buffer_load_dwordx4 v[%d:%d], v21, s[56:59], s%d offen%s" % (QB[i] + 4 * k, QB[i] + 3 + 4 * k, sa + k, FLV[fl]))
        a("s_mov_b64 exec, -1")
    def qcheck(i):
        for k in range(4):
            a("v_cmp_ne_u64 s[%d:%d], s[46:47], v[%d:%d]" % (QM[i][k], QM[i][k] + 1, QB[i] + 2 + 4 * k, QB[i] + 3 + 4 * k))
            if opt("skip", 0) & 8: a("s_mov_b64 s[%d:%d], 0" % (QM[i][k], QM[i][k] + 1))
        for k in range(4):
            a("s_or_b64 s[60:61], s[%d:%d], %s" % (QM[i][k], QM[i][k] + 1, "s[60:61]" if k else "0"))
    def kfrags():
        for tau in range(2):
            for kk in range(4):
                r = 32 + (tau * 4 + kk) * 4
                a("ds_read_b128 v[%d:%d], v%d offset:%d" % (r, r + 3, 8 + kk, tau * 4096))
    if diag:
        a("v_mov_b32 v208, 0")
        a("v_mov_b32 v209, 0")
        a("s_mov_b32 s66, 1")
    a.stamp()
    lds_wait_ge(a, 7, 20, F_QPUB, 1, sleep=2)
    a("s_setprio 2")
    if opt("qdel", 0): a("s_sleep %d" % opt("qdel", 0))
    Q1 = opt("q1", 0)
    qissue(0, fl=opt("qf", 0))
    a("s_mov_b32 s64, %d" % opt("qthr", 16))
    if not Q1:
        a("s_sleep %d" % opt("qstag", 10))
        qissue(1, fl=opt("qf2", 0))
    a.label("L_q_poll")
    a("""
    s_cmp_lg_u32 s65, 0
    s_cbranch_scc1 L_q_nk
    ds_read_b32 v20, v7 offset:%d
    s_waitcnt lgkmcnt(0)
    v_cmp_gt_u32 vcc, s63, v20
    s_cbranch_vccnz L_q_nk
    """ % F_PROG)
    kfrags()
    a("s_mov_b32 s65, 1")
    a.label("L_q_nk")
    for i in range(1 if Q1 else 2):
        a("s_waitcnt vmcnt(%d)" % (0 if Q1 else 4))
        qcheck(i)
        a.log(66, "s[60:61]", 208, 67)
        a("s_cbranch_scc0 L_q_d%d" % i)
        qissue(i, fl=opt("qf2", 0))
    a("s_sub_u32 s64, s64, 1")
    a("s_cbranch_scc0 L_q_poll")
    a("s_branch L_a_slow")
    for i in (1, 0):
        a.label("L_q_d%d" % i)
        b = QB[i]
        a("v_add_f32 v26, v%d, v%d" % (b, b + 4))
        a("v_add_f32 v27, v%d, v%d" % (b + 1, b + 5))
        a("v_add_f32 v28, v%d, v%d" % (b + 8, b + 12))
        a("v_add_f32 v29, v%d, v%d" % (b + 9, b + 13))
        if i == 1: a("s_branch L_q_d")
    a.label("L_q_d")
    a("""
    v_add_f32 v26, v26, v28
    v_add_f32 v27, v27, v29
    v_cvt_pk_bf16_f32 v26, v26, v27
    ds_write_b32 v25, v26
    s_mov_b64 exec, 1
    ds_add_u32 v7, v24 offset:%d
    s_mov_b64 exec, -1
    """ % F_Q)
    a.stamp()
    a("s_cmp_lg_u32 s65, 0")
    a("s_cbranch_scc1 L_att_kok")
    a("s_mov_b32 s64, SPIN")
    a.label("L_att_kw")
    a("""
    ds_read_b32 v20, v7 offset:%d
    s_waitcnt lgkmcnt(0)
    v_cmp_gt_u32 vcc, s63, v20
    s_cbranch_vccz L_att_kgo
    s_sleep 1
    s_sub_u32 s64, s64, 1
    s_cbranch_scc1 L_end
    s_branch L_att_kw
    """ % F_PROG)
    a.label("L_att_kgo")
    kfrags()
    a.label("L_att_kok")
    a("s_mov_b32 s64, SPIN")
    VP = opt("vp", 0)
    def vread(chi):
        for t in range(2):
            for h in range(2):
                r = 96 + chi * 8 + t * 4 + h * 2
                a("ds_read_b64_tr_b16 v[%d:%d], v%d offset:%d" % (r, r + 1, 12 + t, chi * 8192 + h * 4096))
    a.label("L_att_qw")
    if VP:
        a("ds_read_b96 v[28:30], v7 offset:%d" % F_PROG)
    else:
        a("ds_read_b32 v20, v7 offset:%d" % F_Q)
    for kk in range(4):
        a("ds_read_b128 v[%d:%d], v6 offset:%d" % (64 + 4 * kk, 67 + 4 * kk, kk * 64))
    a("""
    s_waitcnt lgkmcnt(0)
    v_and_b32 v26, 7, v%d
    v_cmp_ne_u32 vcc, 4, v26
    s_cbranch_vccz L_att_qok
    s_sub_u32 s64, s64, 1
    s_cbranch_scc1 L_end
    s_branch L_att_qw
    """ % (30 if VP else 20))
    a.label("L_att_qok")
    if opt("skip", 0) & 256: a("s_endpgm")
    a.stamp()
    a("s_setprio 3")
    a("v_readfirstlane_b32 s45, v%d" % (30 if VP else 20))
    if VP: a("v_cmp_gt_u32 vcc, 0x%x, v28" % TH_V)
    for kk in range(4):
        for tau in range(2):
            r = 32 + (tau * 4 + kk) * 4
            c_ = "0" if kk == 0 else "v[%d:%d]" % (80 + 4 * tau, 83 + 4 * tau)
            a("v_mfma_f32_16x16x32_bf16 v[%d:%d], v[%d:%d], v[%d:%d], %s" % (80 + 4 * tau, 83 + 4 * tau, r, r + 3, 64 + 4 * kk, 67 + 4 * kk, c_))
    if VP:
        a("s_cbranch_vccnz L_att_nv1")
        for chi in range(4): vread(chi)
        a("s_mov_b32 s65, 2")
        a.label("L_att_nv1")
    a.nop(8)
    if opt("cv", 0):
        for i in range(8): a("v_cvt_pk_bf16_f32 v%d, 0, v%d" % (80 + i, 80 + i))
        for i in range(8): a("v_mul_f32 v%d, s14, v%d" % (80 + i, 80 + i))
        for i in range(8): a("v_cvt_pk_bf16_f32 v%d, 0, v%d" % (80 + i, 80 + i))
    else:
      for rnd in range(2):
        for i in range(4):
            a("v_cvt_pk_bf16_f32 v%d, v%d, v%d" % (88 + i, 80 + 2 * i, 81 + 2 * i))
        for i in range(4):
            a("v_lshlrev_b32 v%d, 16, v%d" % (80 + 2 * i, 88 + i))
            a("v_and_b32 v%d, 0xffff0000, v%d" % (81 + 2 * i, 88 + i))
        if rnd == 0:
            for i in range(8):
                a("v_mul_f32 v%d, s14, v%d" % (80 + i, 80 + i))
    FZ = opt("fz", 0)
    def stats_pub(sfx):
        a("""
        s_mov_b64 exec, 0x1111
        s_cmp_eq_u32 s45, 4
        s_cbranch_scc1 L_att_stf%s
        buffer_store_dwordx4 v[64:67], v19, s[56:59], s13 offen sc1
        s_branch L_att_st2%s
        """ % (sfx, sfx))
        a.label("L_att_stf" + sfx)
        a("buffer_store_dwordx4 v[64:67], v19, s[56:59], s13 offen")
        a.label("L_att_st2" + sfx)
        a("s_mov_b64 exec, -1")
        a("ds_write_b32 v7, v29 offset:%d" % F_APUB)
    def zmfma(chi, left=None):
        for t in range(2):
            if left is not None: a("s_waitcnt lgkmcnt(%d)" % (left + 2 - 2 * t))
            r = 96 + chi * 8 + 4 * t; d = 160 + 4 * t
            a("v_mfma_f32_16x16x32_bf16 v[%d:%d], v[%d:%d], v[%d:%d], %s" % (d, d + 3, r, r + 3, 48 + 4 * chi, 51 + 4 * chi, "v[%d:%d]" % (d, d + 3) if chi else "0"))
    if FZ:
        assert VP
        a("""
        v_max3_f32 v92, |v80|, |v81|, |v82|
        v_max3_f32 v93, |v83|, |v84|, |v85|
        v_max3_f32 v92, v92, |v86|, |v87|
        v_max_f32 v92, v92, v93
        v_cmp_nge_f32 vcc, 0x%x, v92
        v_mov_b32 v31, 1
        """ % opt("fzthr", 0x42000000))
        for i in range(8): a("v_mul_f32 v%d, s15, v%d" % (80 + i, 80 + i))
        a("s_cbranch_vccnz L_att_fb")
        a.label("L_att_z")
        for i in range(8): a("v_exp_f32 v%d, v%d" % (80 + i, 80 + i))
        a("v_mov_b32 v64, 0")
        for i in range(4): a("v_cvt_pk_bf16_f32 v%d, v%d, v%d" % (88 + i, 80 + 2 * i, 81 + 2 * i))
        a("""
        ds_write_b128 v14, v[88:91]
        s_mov_b64 exec, 1
        ds_add_u32 v7, v31 offset:%d
        s_mov_b64 exec, -1
        v_mov_b32 v66, v22
        v_mov_b32 v67, v23
        v_mov_b32 v74, v22
        v_mov_b32 v75, v23
        """ % F_P)
        a.stamp()
        a("s_mov_b32 s64, SPIN")
        a.label("L_att_pw")
        a("ds_read2_b32 v[28:29], v7 offset0:%d offset1:%d" % (F_PROG // 4, F_P // 4))
        for w in range(4):
            a("ds_read_b128 v[%d:%d], v15 offset:%d" % (48 + 4 * w, 51 + 4 * w, 1024 * w))
        a("""
        s_sub_u32 s64, s64, 1
        s_cbranch_scc1 L_end
        s_cmp_eq_u32 s65, 2
        s_waitcnt lgkmcnt(0)
        s_cbranch_scc1 L_att_nv2
        v_cmp_gt_u32 vcc, 0x%x, v28
        s_cbranch_vccnz L_att_nv2
        """ % TH_V)
        for chi in range(4): vread(chi)
        a("s_mov_b32 s65, 2")
        a.label("L_att_nv2")
        a("""
        v_and_b32 v30, 7, v29
        v_cmp_ne_u32 vcc, 4, v30
        s_cbranch_vccnz L_att_pw
        """)
        a.stamp()
        a("""
        v_cmp_ne_u32 vcc, 4, v29
        s_cbranch_vccnz L_att_gen
        s_cmp_lg_u32 s62, 0
        s_cbranch_scc1 L_att_nl0
        """)
        for chi in range(4):
            a("v_mfma_f32_16x16x32_bf16 v[68:71], v[212:215], v[%d:%d], %s" % (48 + 4 * chi, 51 + 4 * chi, "v[68:71]" if chi else "0"))
        a.label("L_att_nl0")
        a.pad("PAD_A1", "L_att_x")
        a("s_cmp_lg_u32 s65, 2")
        a("s_cbranch_scc1 L_att_nv3")
        a("s_waitcnt lgkmcnt(0)")
        for chi in range(4): zmfma(chi)
        a.label("L_att_nv3")
        a("""
        s_cmp_lg_u32 s62, 0
        s_cbranch_scc1 L_att_nost
        s_nop 7
        v_mov_b32 v65, v68
        """)
        stats_pub("")
        a.label("L_att_nost")
        a("s_cmp_eq_u32 s65, 2")
        a("s_cbranch_scc1 L_att_sel")
        lds_wait_ge(a, 7, 76, F_PROG, TH_V3, sleep=1)
        for chi in range(3): vread(chi)
        a("ds_read_b32 v76, v7 offset:%d" % F_PROG)
        for chi in range(3): zmfma(chi, 9 - 4 * chi)
        a("s_waitcnt lgkmcnt(0)")
        a("v_cmp_gt_u32 vcc, 0x%x, v76" % TH_V)
        a("s_cbranch_vccz L_att_pv3")
        lds_wait_ge(a, 7, 76, F_PROG, TH_V, sleep=0)
        a.label("L_att_pv3")
        vread(3)
        zmfma(3, 0)
        a.label("L_att_sel")
        a.stamp()
        a.nop(8)
        a.nop(2)
        a("""
        v_cndmask_b32_e64 v160, v160, v162, s[8:9]
        v_cndmask_b32_e64 v161, v161, v163, s[8:9]
        v_cndmask_b32_e64 v164, v164, v166, s[8:9]
        v_cndmask_b32_e64 v165, v165, v167, s[8:9]
        v_cndmask_b32_e64 v72, v160, v164, s[10:11]
        v_cndmask_b32_e64 v73, v161, v165, s[10:11]
        """)
        a.label("L_att_pub")
    else:
        a("""
        v_max3_f32 v92, v80, v81, v82
        v_max3_f32 v93, v83, v84, v85
        v_max3_f32 v92, v92, v86, v87
        v_max_f32 v92, v92, v93
        """)
        xreduce(a, "max", [92], [93])
        a("v_mul_f32 v92, s15, v92")
        for i in range(8):
            a("v_fma_f32 v%d, v%d, s15, -v92" % (80 + i, 80 + i))
        for i in range(8):
            a("v_exp_f32 v%d, v%d" % (80 + i, 80 + i))
        a.nop(1)
        for i in range(4):
            a("v_cvt_pk_bf16_f32 v%d, v%d, v%d" % (88 + i, 80 + 2 * i, 81 + 2 * i))
        a("ds_write_b128 v14, v[88:91]")
        a("""
        v_add_f32 v93, v80, v81
        v_add_f32 v94, v82, v83
        v_add_f32 v95, v84, v85
        v_add_f32 v31, v86, v87
        v_add_f32 v93, v93, v94
        v_add_f32 v95, v95, v31
        v_add_f32 v93, v93, v95
        """)
        xreduce(a, "add", [93], [31])
        a("""
        v_mov_b32 v94, 1
        v_mov_b32 v95, 1
        s_mov_b64 exec, 0x1111
        ds_write_b128 v16, v[92:95]
        s_mov_b64 exec, -1
        """)
        a.stamp()
        if VP:
            a("""
            s_cmp_eq_u32 s65, 2
            s_cbranch_scc1 L_att_nv2
            ds_read_b32 v28, v7 offset:%d
            s_waitcnt lgkmcnt(0)
            v_cmp_gt_u32 vcc, 0x%x, v28
            s_cbranch_vccnz L_att_nv2
            """ % (F_PROG, TH_V))
            for chi in range(4): vread(chi)
            a("s_mov_b32 s65, 2")
            a.label("L_att_nv2")
        a("s_mov_b32 s64, SPIN")
        a.label("L_att_pw")
        a("s_sub_u32 s64, s64, 1")
        a("s_cbranch_scc1 L_end")
        for w in range(4):
            a("ds_read_b128 v[%d:%d], v17 offset:%d" % (32 + 4 * w, 35 + 4 * w, 64 * w))
        for w in range(4):
            a("ds_read_b128 v[%d:%d], v15 offset:%d" % (48 + 4 * w, 51 + 4 * w, 1024 * w))
        a("""
        s_waitcnt lgkmcnt(0)
        v_min_u32 v64, v34, v38
        v_min3_u32 v64, v64, v42, v46
        v_cmp_eq_u32 vcc, 0, v64
        s_cbranch_vccnz L_att_pw
        """)
        a.stamp()
        if VP:
            a("s_cmp_lg_u32 s65, 2")
            a("s_cbranch_scc1 L_att_nv3")
            for chi in range(4):
                for t in range(2):
                    r = 96 + chi * 8 + 4 * t; d = 160 + chi * 8 + 4 * t
                    a("v_mfma_f32_16x16x32_bf16 v[%d:%d], v[%d:%d], v[%d:%d], 0" % (d, d + 3, r, r + 3, 48 + 4 * chi, 51 + 4 * chi))
            a.label("L_att_nv3")
        a("""
        v_max3_f32 v64, v32, v36, v40
        v_max_f32 v64, v64, v44
        """)
        for w in range(4):
            a("v_sub_f32 v%d, v%d, v64" % (68 + w, 32 + 4 * w))
        for w in range(4):
            a("v_exp_f32 v%d, v%d" % (68 + w, 68 + w))
        a.nop(1)
        a("v_mul_f32 v65, v68, v33")
        for w in range(1, 4):
            a("v_fmac_f32 v65, v%d, v%d" % (68 + w, 33 + 4 * w))
        a("""
        v_mov_b32 v66, v22
        v_mov_b32 v67, v23
        v_mov_b32 v74, v22
        v_mov_b32 v75, v23
        s_cmp_lg_u32 s62, 0
        s_cbranch_scc1 L_att_nost
        s_mov_b64 exec, 0x1111
        s_cmp_eq_u32 s45, 4
        s_cbranch_scc1 L_att_stf
        buffer_store_dwordx4 v[64:67], v19, s[56:59], s13 offen sc1
        s_branch L_att_st2
        """)
        a.label("L_att_stf")
        a("buffer_store_dwordx4 v[64:67], v19, s[56:59], s13 offen")
        a.label("L_att_st2")
        a("s_mov_b64 exec, -1")
        a("ds_write_b32 v7, v34 offset:%d" % F_APUB)
        a.label("L_att_nost")
        a.pad("PAD_A1", "L_att_x")
        def vmfma(chi, left):
            for t in range(2):
                a("s_waitcnt lgkmcnt(%d)" % (left + 2 - 2 * t))
                r = 96 + chi * 8 + 4 * t; d = 160 + chi * 8 + 4 * t
                a("v_mfma_f32_16x16x32_bf16 v[%d:%d], v[%d:%d], v[%d:%d], 0" % (d, d + 3, r, r + 3, 48 + 4 * chi, 51 + 4 * chi))
        def vsel(chi):
            d = 160 + chi * 8
            a("""
            v_cndmask_b32_e64 v%d, v%d, v%d, s[8:9]
            v_cndmask_b32_e64 v%d, v%d, v%d, s[8:9]
            v_cndmask_b32_e64 v%d, v%d, v%d, s[8:9]
            v_cndmask_b32_e64 v%d, v%d, v%d, s[8:9]
            v_cndmask_b32_e64 v%d, v%d, v%d, s[10:11]
            v_cndmask_b32_e64 v%d, v%d, v%d, s[10:11]
            """ % (d, d, d + 2, d + 1, d + 1, d + 3, d + 4, d + 4, d + 6, d + 5, d + 5, d + 7, d, d, d + 4, d + 1, d + 1, d + 5))
            if chi == 0:
                a("v_mul_f32 v72, v68, v%d" % d)
                a("v_mul_f32 v73, v68, v%d" % (d + 1))
            else:
                a("v_fmac_f32 v72, v%d, v%d" % (68 + chi, d))
                a("v_fmac_f32 v73, v%d, v%d" % (68 + chi, d + 1))
        if VP:
            a("s_cmp_lg_u32 s65, 2")
            a("s_cbranch_scc1 L_att_nv4")
            a.stamp()
            a.nstamp -= 1
            for chi in range(3): vsel(chi)
            a("s_branch L_att_pv3")
            a.label("L_att_nv4")
        lds_wait_ge(a, 7, 76, F_PROG, TH_V3, sleep=1)
        for chi in range(3): vread(chi)
        a("ds_read_b32 v76, v7 offset:%d" % F_PROG)
        for chi in range(3): vmfma(chi, 9 - 4 * chi)
        a("s_waitcnt lgkmcnt(0)")
        a("v_cmp_gt_u32 vcc, 0x%x, v76" % TH_V)
        a("s_cbranch_vccnz L_att_pvs")
        a.stamp()
        vread(3)
        vsel(0)
        vsel(1)
        vmfma(3, 0)
        vsel(2)
        a("s_branch L_att_pv3")
        a.label("L_att_pvs")
        a.nstamp -= 1
        a.nop(4)
        for chi in range(3): vsel(chi)
        lds_wait_ge(a, 7, 76, F_PROG, TH_V, sleep=0)
        a.stamp()
        vread(3)
        vmfma(3, 0)
        a.nop(8)
        a.label("L_att_pv3")
        a.nop(2)
        vsel(3)
    a("""
    s_cmp_eq_u32 s45, 4
    s_cbranch_scc1 L_att_of
    buffer_store_dwordx4 v[72:75], v18, s[56:59], s12 offen sc1
    s_branch L_att_o2
    """)
    a.label("L_att_of")
    a("buffer_store_dwordx4 v[72:75], v18, s[56:59], s12 offen")
    RS = opt("rs", 0)
    if RS & 1:
        a.stamp(); a.nstamp -= 1
        lds_wait_ge(a, 7, 76, F_OPUB, 1, sleep=4)
        if opt("rsd", 0): a("s_sleep %d" % opt("rsd", 0))
        a("buffer_store_dwordx4 v[72:75], v18, s[56:59], s12 offen sc1")
        a("s_cmp_lg_u32 s62, 0")
        a("s_cbranch_scc1 L_att_o3")
        a("s_mov_b64 exec, 0x1111")
        a("buffer_store_dwordx4 v[64:67], v19, s[56:59], s13 offen sc1")
        a("s_mov_b64 exec, -1")
        a("s_branch L_att_o3")
    a.label("L_att_o2")
    if PZ:
        a("v_mov_b32 v24, 1")
        a("s_mov_b64 exec, 1")
        a("ds_add_u32 v7, v24 offset:%d" % F_PZ)
        a("s_mov_b64 exec, -1")
    a.stamp()
    if RS & 1: a.label("L_att_o3")
    if diag:
        a("s_cmp_lg_u32 s62, 0")
        a("s_cbranch_scc1 L_att_nl")
        a("s_waitcnt vmcnt(0)")
        a.log_flush(208, 210, 0)
        a.label("L_att_nl")
    a.stamp_flush(28)
    a("s_endpgm")
    if FZ:
        a.label("L_att_fb")
        a("""
        v_max3_f32 v92, v80, v81, v82
        v_max3_f32 v93, v83, v84, v85
        v_max3_f32 v92, v92, v86, v87
        v_max_f32 v92, v92, v93
        """)
        xreduce(a, "max", [92], [93])
        for i in range(8): a("v_sub_f32 v%d, v%d, v92" % (80 + i, 80 + i))
        a("""
        s_mov_b64 exec, 0x1111
        ds_write_b32 v16, v92
        s_mov_b64 exec, -1
        v_mov_b32 v31, 0x101
        s_branch L_att_z
        """)
        a.label("L_att_gen")
        for w in range(4):
            a("ds_read_b32 v%d, v17 offset:%d" % (32 + 4 * w, 64 * w))
        for chi in range(4):
            a("v_mfma_f32_16x16x32_bf16 v[%d:%d], v[212:215], v[%d:%d], 0" % (192 + 4 * chi, 195 + 4 * chi, 48 + 4 * chi, 51 + 4 * chi))
        lds_wait_ge(a, 7, 76, F_PROG, TH_V, sleep=1)
        for chi in range(4): vread(chi)
        a("s_waitcnt lgkmcnt(0)")
        for chi in range(4):
            for t in range(2):
                r = 96 + chi * 8 + 4 * t; d = 160 + chi * 8 + 4 * t
                a("v_mfma_f32_16x16x32_bf16 v[%d:%d], v[%d:%d], v[%d:%d], 0" % (d, d + 3, r, r + 3, 48 + 4 * chi, 51 + 4 * chi))
        a("""
        v_max3_f32 v64, v32, v36, v40
        v_max_f32 v64, v64, v44
        """)
        for w in range(4): a("v_sub_f32 v%d, v%d, v64" % (68 + w, 32 + 4 * w))
        for w in range(4): a("v_exp_f32 v%d, v%d" % (68 + w, 68 + w))
        a.nop(1)
        a("v_mul_f32 v65, v68, v192")
        for w in range(1, 4): a("v_fmac_f32 v65, v%d, v%d" % (68 + w, 192 + 4 * w))
        a("s_cmp_lg_u32 s62, 0")
        a("s_cbranch_scc1 L_att_nostg")
        stats_pub("g")
        a.label("L_att_nostg")
        a.nop(8)
        for chi in range(4):
            d = 160 + chi * 8
            a("""
            v_cndmask_b32_e64 v%d, v%d, v%d, s[8:9]
            v_cndmask_b32_e64 v%d, v%d, v%d, s[8:9]
            v_cndmask_b32_e64 v%d, v%d, v%d, s[8:9]
            v_cndmask_b32_e64 v%d, v%d, v%d, s[8:9]
            v_cndmask_b32_e64 v%d, v%d, v%d, s[10:11]
            v_cndmask_b32_e64 v%d, v%d, v%d, s[10:11]
            """ % (d, d, d + 2, d + 1, d + 1, d + 3, d + 4, d + 4, d + 6, d + 5, d + 5, d + 7, d, d, d + 4, d + 1, d + 1, d + 5))
            if chi == 0:
                a("v_mul_f32 v72, v68, v%d" % d)
                a("v_mul_f32 v73, v68, v%d" % (d + 1))
            else:
                a("v_fmac_f32 v72, v%d, v%d" % (68 + chi, d))
                a("v_fmac_f32 v73, v%d, v%d" % (68 + chi, d + 1))
        a("s_branch L_att_pub")
    a.label("L_a_slow")
    a("""
    ds_write_b32 v7, v24 offset:%d
    v_mov_b32 v24, 0x101
    s_waitcnt vmcnt(0)
    s_mov_b32 s64, 0
    """ % F_SLOW)
    for m in QM[0]: a("s_mov_b64 s[%d:%d], -1" % (m, m + 1))
    a.label("L_a_spoll")
    a("""
    s_mov_b32 s6, 0
    s_bitcmp1_b32 s64, 0
    s_cselect_b32 s6, 0, 0x%x
    """ % (INB1S - INB1))
    for k in range(4): a("s_add_u32 s%d, s%d, s6" % (28 + k, 16 + k))
    qissue(0, 28)
    a("s_add_u32 s64, s64, 1")
    a("s_cmp_gt_u32 s64, SPIN")
    a("s_cbranch_scc1 L_end")
    a("s_waitcnt vmcnt(0)")
    for k in range(4):
        m = QM[0][k]
        a("v_xor_b32 v26, s40, v%d" % (QB[0] + 2 + 4 * k))
        a("v_cmp_lt_u32 s[%d:%d], 15, v26" % (m, m + 1))
        a("v_cmp_ne_u32 vcc, s41, v%d" % (QB[0] + 3 + 4 * k))
        a("s_or_b64 s[%d:%d], s[%d:%d], vcc" % (m, m + 1, m, m + 1))
        a("s_or_b64 s[60:61], s[%d:%d], %s" % (m, m + 1, "s[60:61]" if k else "0"))
    a("s_cbranch_scc1 L_a_spoll")
    a("s_branch L_q_d0")

    a.nstamp = nst0
    a.page()
    a.label("L_o")
    if opt("skip", 0) & 64: a("s_endpgm")
    if opt("tw", 0): touches(a, opt("tw", 0))
    if opt("sw", 0):
        if opt("swd", 0): a("s_sleep %d" % opt("swd", 0))
        stouch(a, opt("sw", 0))
    ST = opt("st", 0); SG = opt("sg", 64)
    if ST & 1:
        a("""
        s_lshl_b32 s6, s4, 14
        s_lshl_b32 s7, s5, 9
        s_add_u32 s6, s6, s7
        s_add_u32 s6, s6, 0x%x
        """ % INB1)
        for o in range(0, 512, SG): a("s_load_dword s70, s[56:57], s6 offset:%d" % o)
    if ST & 2:
        if opt("sdel", 0): a("s_sleep %d" % opt("sdel", 0))
        a("""
        s_lshl_b32 s6, s4, 17
        s_lshl_b32 s7, s5, 8
        s_add_u32 s6, s6, s7
        s_add_u32 s6, s6, 0x%x
        s_lshl_b32 s10, s4, 11
        s_lshl_b32 s7, s5, 4
        s_add_u32 s10, s10, s7
        s_add_u32 s10, s10, 0x%x
        """ % (INB2, INBS))
        for h in range(4): a("s_load_dword s70, s[56:57], s10 offset:%d" % (h * 512))
        for b in range(16):
            for o in range(0, 256, SG): a("s_load_dword s70, s[56:57], s6 offset:%d" % (b * 8192 + o))
    a("""
    s_lshl_b32 s10, s4, 11
    s_lshr_b32 s6, s5, 3
    s_lshl_b32 s6, s6, 9
    s_add_u32 s10, s10, s6
    s_add_u32 s10, s10, 0x%x
    v_lshlrev_b32 v8, 4, v5
    s_lshl_b32 s6, s4, 4
    s_lshr_b32 s7, s5, 1
    s_add_u32 s6, s6, s7
    s_lshl_b32 s11, s6, 13
    s_add_u32 s11, s11, 0x%x
    s_add_u32 s12, s11, 4096
    v_lshlrev_b32 v2, 4, v0
    v_bfe_u32 v3, v0, 1, 1
    v_lshlrev_b32 v9, 5, v3
    v_bfe_u32 v3, v0, 2, 2
    v_lshl_or_b32 v9, v3, 3, v9
    v_and_b32 v6, 1, v0
    v_lshl_or_b32 v9, v6, 2, v9
    v_add_u32 v9, %d, v9
    v_lshrrev_b32 v10, 1, v4
    v_lshlrev_b32 v10, 6, v10
    v_lshl_or_b32 v10, v5, 4, v10
    v_add_u32 v10, %d, v10
    v_lshl_add_u32 v6, v5, 3, v3
    v_lshlrev_b32 v6, 9, v6
    v_add_u32 v6, %d, v6
    v_and_b32 v11, 3, v0
    """ % (INBS, INB2, L_OW + 7 * 64, L_OW, L_WO))
    for aa in range(4):
        a("v_xor_b32 v16, %d, v3" % aa)
        a("v_lshl_or_b32 v16, v16, 2, v11")
        a("v_lshl_add_u32 v%d, v16, 4, v6" % (12 + aa))
    a("""
    s_lshl_b32 s6, s6, 6
    s_and_b32 s7, s5, 1
    s_lshl_b32 s7, s7, 18
    s_add_u32 s6, s6, s7
    s_add_u32 s14, s6, 0x%x
    s_add_u32 s15, s14, 0x20000
    v_lshl_add_u32 v6, v3, 2, v5
    v_lshlrev_b32 v6, 13, v6
    v_lshl_or_b32 v6, v11, 4, v6
    s_mov_b32 s8, 0xaaaaaaaa
    s_mov_b32 s9, 0xaaaaaaaa
    v_mov_b32 v11, 1
    """ % INB3S)
    a("""
    v_and_b32 v18, 31, v0
    v_lshlrev_b32 v8, 4, v18
    v_and_b32 v16, 3, v0
    v_lshlrev_b32 v16, 5, v16
    v_and_b32 v18, 28, v0
    v_add3_u32 v16, v16, v18, %d
    v_lshlrev_b32 v17, 5, v5
    v_add_u32 v17, v17, v19
    """ .replace("%d", "v19").replace("v_and_b32 v18, 31, v0", "v_mov_b32 v19, %d\n    v_and_b32 v18, 31, v0" % L_AL, 1))
    get_tag(a, 56)
    a.stamp()
    MA = [16 + 2 * k for k in range(8)]
    MB = [32, 34, 36, 38, 44, 46, 48, 50]
    MS = [52, 54]
    SV = [204, 208]
    for m in MA + MB + MS: a("s_mov_b64 s[%d:%d], -1" % (m, m + 1))
    if diag:
        a("v_mov_b32 v200, 0")
        a("v_mov_b32 v201, 0")
        a("s_mov_b32 s63, 1")
    a("s_mov_b32 s65, 0")
    a("s_mov_b32 s66, 0")
    def mcheck(base, M):
        for k in range(8):
            a("v_cmp_ne_u64 s[%d:%d], s[40:41], v[%d:%d]" % (M[k], M[k] + 1, base + 4 * k + 2, base + 4 * k + 3))
            if opt("skip", 0) & 4: a("s_mov_b64 s[%d:%d], 0" % (M[k], M[k] + 1))
        for k in range(8):
            a("s_or_b64 s[60:61], s[%d:%d], %s" % (M[k], M[k] + 1, "s[60:61]" if k else "0"))
    def oissue(i):
        base, M = (128, MA) if i == 0 else (160, MB)
        a("s_mov_b64 exec, s[%d:%d]" % (MS[i], MS[i] + 1))
        fl = FLV[opt("of", 0) if i == 0 else opt("of2", 0)]
        a("buffer_load_dwordx4 v[%d:%d], v8, s[56:59], s10 offen%s" % (SV[i], SV[i] + 3, fl))
        for k in range(8):
            a("s_mov_b64 exec, s[%d:%d]" % (M[k], M[k] + 1))
            a("buffer_load_dwordx4 v[%d:%d], v2, s[56:59], s%d offen offset:%d%s" % (base + 4 * k, base + 3 + 4 * k, 11 + k // 4, (k % 4) * 1024, fl))
        a("s_mov_b64 exec, -1")
    def stats(i):
        lab = "L_o_ns%d" % i
        v = SV[i]
        a("s_cmp_lg_u32 s66, 0")
        a("s_cbranch_scc1 %s" % lab)
        a("v_cmp_ne_u64 vcc, s[40:41], v[%d:%d]" % (v + 2, v + 3))
        a("s_mov_b64 s[%d:%d], vcc" % (MS[i], MS[i] + 1))
        a("s_cbranch_vccnz %s" % lab)
        a("v_mov_b32 v56, v%d" % v)
        allreduce(a, "max", 56, 57)
        a("v_sub_f32 v56, v%d, v56" % v)
        a("v_exp_f32 v56, v56")
        a("s_mov_b32 s66, 1")
        a("v_mul_f32 v57, v56, v%d" % (v + 1))
        a("ds_write_b32 v16, v56")
        a("ds_read_b128 v[48:51], v17")
        a("ds_read_b128 v[52:55], v17 offset:16")
        allreduce(a, "add", 57, 58)
        a("v_mul_f32 v57, 0.5, v57")
        a("v_rcp_f32 v58, v57")
        a("s_mov_b64 s[%d:%d], 0" % (MS[1 - i], MS[1 - i] + 1))
        a("s_waitcnt lgkmcnt(0)")
        a.label(lab)
    lds_wait_ge(a, 7, 59, F_APUB, 1, sleep=3)
    lds_wait_ge(a, 7, 59, F_PROG, opt('ogate', TH_V), sleep=1)
    a.stamp()
    a("s_setprio 3")
    if opt("odn", 0):
        a("""
        s_lshr_b32 s6, s4, 2
        s_lshl_b32 s6, s6, 3
        s_add_u32 s6, s6, s5
        s_cmp_lt_u32 s6, 32
        s_cbranch_scc1 L_o_nd
        s_sleep %d
        """ % opt("odn", 0))
        a.label("L_o_nd")
    if opt("odel", 0): a("s_sleep %d" % opt("odel", 0))
    O1 = opt("o1", 0)
    oissue(0)
    if opt("ow2", 0):
        lds_wait_ge(a, 7, 59, F_PROG, opt("ow2", 0), sleep=1)
    if not O1:
        if not opt("ow2", 0): a("s_sleep %d" % opt('ostag', 8))
        oissue(1)
    def wo_pre():
        for al in range(2):
            for t in range(8):
                for h in range(2):
                    r = 64 + ((al * 8 + t) * 2 + h) * 2
                    a("ds_read_b64_tr_b16 v[%d:%d], v%d offset:%d" % (r, r + 1, 12 + (t >> 1), al * 256 + (t & 1) * 8 + h * 2048))
    def opp(lab):
        a("s_cmp_lg_u32 s65, 0")
        a("s_cbranch_scc1 %s" % lab)
        a("ds_read_b32 v59, v7 offset:%d" % F_PROG)
        a("s_waitcnt lgkmcnt(0)")
        a("v_cmp_gt_u32 vcc, 0x%x, v59" % TH_WO)
        a("s_cbranch_vccnz %s" % lab)
        wo_pre()
        a("s_mov_b32 s65, 1")
        a.label(lab)
    a("s_mov_b32 s64, SPIN")
    a.label("L_o_poll")
    opp("L_o_np")
    for i in range(1 if O1 else 2):
        a("s_waitcnt vmcnt(%d)" % (0 if O1 else 9))
        stats(i)
        mcheck(128 + 32 * i, MA if i == 0 else MB)
        a("s_or_b64 s[60:61], s[%d:%d], s[60:61]" % (MS[i], MS[i] + 1))
        a.log(63, "s[60:61]", 200)
        a("s_cbranch_scc0 L_o_d%d" % i)
        if opt("osl", 0): a("s_sleep %d" % opt("osl", 0))
        oissue(i)
    a("s_sub_u32 s64, s64, 1")
    a("s_cbranch_scc1 L_end")
    a("s_branch L_o_poll")
    for nm, base in (("L_o_d0", 128), ("L_o_d1", 160)):
        a.label(nm)
        a("v_mul_f32 v60, v48, v%d" % base)
        a("v_mul_f32 v61, v48, v%d" % (base + 1))
        a("v_mul_f32 v62, v49, v%d" % (base + 4))
        a("v_mul_f32 v63, v49, v%d" % (base + 5))
        for k in range(2, 8):
            a("v_fmac_f32 v%d, v%d, v%d" % (60 + 2 * (k & 1), 48 + k, base + 4 * k))
            a("v_fmac_f32 v%d, v%d, v%d" % (61 + 2 * (k & 1), 48 + k, base + 4 * k + 1))
        if base == 128: a("s_branch L_o_dd")
    a.label("L_o_dd")
    if opt("wb", 0) & 8: a("ds_write_b32 v7, v11 offset:%d" % F_PZ)
    a.stamp()
    a("v_add_f32 v60, v60, v62")
    a("v_add_f32 v61, v61, v63")
    xreduce(a, "add", [60, 61], [62, 63])
    for r in (60, 61):
        a("v_mul_f32 v62, v%d, v58" % r)
        a("v_fma_f32 v63, -v62, v57, v%d" % r)
        a("v_fma_f32 v%d, v63, v58, v62" % r)
    a("v_cvt_pk_bf16_f32 v60, v60, v61")
    a("ds_write_b32 v9, v60")
    for t in range(8):
        a("ds_read_b128 v[%d:%d], v10 offset:%d" % (16 + 4 * t, 19 + 4 * t, (7 - t) * 64))
    a("s_cmp_lg_u32 s65, 0")
    a("s_cbranch_scc1 L_o_have")
    lds_wait_ge(a, 7, 59, F_PROG, TH_WO, sleep=0)
    wo_pre()
    a.label("L_o_have")
    a("""
    v_mov_b32 v194, s40
    v_mov_b32 v195, s41
    v_mov_b32 v198, s40
    v_mov_b32 v199, s41
    s_waitcnt lgkmcnt(0)
    """)
    a.stamp()
    for t in range(8):
        for al in range(2):
            r = 64 + (al * 8 + t) * 4
            c_ = "0" if t == 0 else "v[%d:%d]" % (48 + 4 * al, 51 + 4 * al)
            a("v_mfma_f32_16x16x32_bf16 v[%d:%d], v[%d:%d], v[%d:%d], %s" % (48 + 4 * al, 51 + 4 * al, r, r + 3, 16 + 4 * t, 19 + 4 * t, c_))
    a.nop(7)
    a("""
    v_cndmask_b32_e64 v192, v48, v50, s[8:9]
    v_cndmask_b32_e64 v193, v49, v51, s[8:9]
    v_cndmask_b32_e64 v196, v52, v54, s[8:9]
    v_cndmask_b32_e64 v197, v53, v55, s[8:9]
    buffer_store_dwordx4 v[192:195], v6, s[56:59], s14 offen sc1
    buffer_store_dwordx4 v[196:199], v6, s[56:59], s15 offen sc1
    ds_write_b32 v7, v11 offset:%d
    """ % F_OPUB)
    if opt("wb", 0) & 1:
        a("s_cmp_lg_u32 s5, %d" % opt("wbc", 0))
        a("s_cbranch_scc1 L_o_nwb")
        if opt("wbd", 0): a("s_sleep %d" % opt("wbd", 0))
        a("buffer_wbl2 sc1")
        a.label("L_o_nwb")
    a.stamp()
    a.log_flush(200, 202, 1)
    a.stamp_flush(28)
    a("s_endpgm")

    a.nstamp = nst0
    a.page()
    a.label("L_f")
    if opt("skip", 0) & 128: a("s_endpgm")
    fcoords(a)
    a("s_cbranch_scc1 L_f_go")
    srd(a, 48, 16, 1024)
    srd(a, 52, 34, 1024)
    a("v_lshlrev_b32 v2, 4, v0")
    get_tag(a, 42)
    a("s_branch L_fin")
    a.label("L_f_go")
    a("""
    s_lshl_b32 s6, s15, 8
    s_add_u32 s6, s6, %d
    v_lshlrev_b32 v13, 4, v5
    v_add_u32 v13, s6, v13
    """ % L_XN)
    traddr128(a, 52, L_G, 3, 6)
    a("""
    v_lshrrev_b32 v3, 2, v4
    v_lshl_add_u32 v2, v5, 3, v3
    """)
    a("""
    v_lshlrev_b32 v2, 8, v2
    v_add_u32 v2, %d, v2
    v_and_b32 v12, 3, v0
    """ % L_WD)
    for aa in range(4):
        a("v_xor_b32 v16, %d, v3" % aa)
        a("v_lshl_or_b32 v16, v16, 2, v12")
        a("v_lshl_add_u32 v%d, v16, 4, v2" % (8 + aa))
    a("""
    s_lshl_b32 s11, s14, 11
    s_add_u32 s11, s11, 0x%x
    s_and_b32 s6, s5, 7
    s_lshl_b32 s6, s6, 8
    s_lshr_b32 s10, s14, 1
    s_lshl_b32 s10, s10, 12
    s_add_u32 s10, s10, s6
    s_add_u32 s10, s10, 0x%x
    v_bfe_u32 v16, v0, 2, 1
    v_lshlrev_b32 v16, 11, v16
    v_lshl_or_b32 v16, v5, 6, v16
    v_lshl_or_b32 v16, v12, 4, v16
    v_lshlrev_b32 v2, 4, v0
    v_bfe_u32 v6, v0, 1, 1
    v_lshlrev_b32 v17, 5, v6
    v_lshl_or_b32 v17, v3, 3, v17
    v_and_b32 v6, 1, v0
    v_lshl_or_b32 v17, v6, 2, v17
    v_add_u32 v17, %d, v17
    v_lshrrev_b32 v18, 1, v4
    v_lshlrev_b32 v18, 6, v18
    v_lshl_or_b32 v18, v5, 4, v18
    v_add_u32 v18, %d, v18
    s_mul_i32 s12, s15, 57344
    s_lshl_b32 s6, s14, 6
    s_add_u32 s12, s12, s6
    s_add_u32 s12, s12, 0x%x
    v_lshl_add_u32 v19, v3, 2, v5
    v_mul_u32_u24 v19, 0xe00, v19
    v_lshl_or_b32 v19, v12, 4, v19
    s_mov_b32 s8, 0xaaaaaaaa
    s_mov_b32 s9, 0xaaaaaaaa
    v_bfe_u32 v6, v0, 1, 2
    """ % (INB4, INB4, L_HW + 7 * 64, L_HW, INB3D))
    if ST & 4:
        if opt("sdel", 0): a("s_sleep %d" % opt("sdel", 0))
        for b in range(2):
            for o in range(0, 256, SG): a("s_load_dword s70, s[56:57], s10 offset:%d" % (b * 2048 + o))
    if PT & 4:
        a("""
        s_mov_b32 exec_lo, 0x00ff00ff
        s_mov_b32 exec_hi, 0x00ff00ff
        buffer_load_dwordx4 v[196:199], v16, s[56:59], s10 offen sc1
        s_mov_b64 exec, -1
        """)
    get_tag(a, 42)
    if opt("pwg", 0):
        a("buffer_load_dwordx4 v[20:23], v2, s[56:59], s11 offen sc1")
        a("buffer_load_dwordx4 v[24:27], v2, s[56:59], s11 offen offset:1024 sc1")
        a("s_waitcnt vmcnt(0)")
    a.stamp()
    lds_wait_ge(a, 7, 20, F_XN, 1, sleep=4)
    for k in range(4):
        a("ds_read_b128 v[%d:%d], v13 offset:%d" % (20 + 4 * k, 23 + 4 * k, k * 64))
    a("v_mov_b32 v36, 0")
    a("s_waitcnt lgkmcnt(0)")
    for u in range(4):
        a("v_cmp_eq_u32 vcc, %d, v6" % u)
        a.nop(2)
        for k in range(4):
            for i in range(4):
                a("v_cndmask_b32 v%d, v36, v%d, vcc" % (128 + (u * 4 + k) * 4 + i, 20 + 4 * k + i))
    a("s_mov_b32 s64, SPIN")
    a.label("L_f_qw")
    a("""
    ds_read_b32 v20, v7 offset:%d
    s_waitcnt lgkmcnt(0)
    v_and_b32 v21, 7, v20
    v_cmp_ne_u32 vcc, 4, v21
    s_cbranch_vccz L_f_qok
    s_sleep 4
    s_sub_u32 s64, s64, 1
    s_cbranch_scc1 L_end
    s_branch L_f_qw
    """ % F_Q)
    a.label("L_f_qok")
    a("v_readfirstlane_b32 s45, v20")
    if opt("g2", 0):
        for half in range(2):
            lds_wait_ge(a, 7, 20, F_PROG, PV[("G", 7)] if half == 0 else TH_G, sleep=1 - half)
            if half: a.stamp()
            else: a("s_setprio 3")
            for u in range(4):
                for k in (2 * half, 2 * half + 1):
                    for h in range(2):
                        r = 64 + ((u * 4 + k) * 2 + h) * 2
                        a("ds_read_b64_tr_b16 v[%d:%d], v%d offset:%d" % (r, r + 1, 52 + u, k * 4096 + h * 512))
            for u in range(4):
                for k in (2 * half, 2 * half + 1):
                    a("s_waitcnt lgkmcnt(%d)" % (14 - 4 * u - 2 * (k & 1)))
                    n = u * 4 + k
                    c_ = "0" if n == 0 else "v[36:39]"
                    a("v_mfma_f32_16x16x32_bf16 v[36:39], v[%d:%d], v[%d:%d], %s" % (64 + n * 4, 67 + n * 4, 128 + n * 4, 131 + n * 4, c_))
    else:
        lds_wait_ge(a, 7, 20, F_PROG, TH_G, sleep=1)
        a.stamp()
        a("s_setprio 3")
        for u in range(4):
            for k in range(4):
                for h in range(2):
                    r = 64 + ((u * 4 + k) * 2 + h) * 2
                    a("ds_read_b64_tr_b16 v[%d:%d], v%d offset:%d" % (r, r + 1, 52 + u, k * 4096 + h * 512))
            if u >= 1:
                a("s_waitcnt lgkmcnt(8)")
                for k in range(4):
                    n = (u - 1) * 4 + k
                    c_ = "0" if n == 0 else "v[36:39]"
                    a("v_mfma_f32_16x16x32_bf16 v[36:39], v[%d:%d], v[%d:%d], %s" % (64 + n * 4, 67 + n * 4, 128 + n * 4, 131 + n * 4, c_))
        a("s_waitcnt lgkmcnt(0)")
        for k in range(4):
            n = 12 + k
            a("v_mfma_f32_16x16x32_bf16 v[36:39], v[%d:%d], v[%d:%d], v[36:39]" % (64 + n * 4, 67 + n * 4, 128 + n * 4, 131 + n * 4))
    a.nop(8)
    a("""
    v_cndmask_b32_e64 v40, v36, v38, s[8:9]
    v_cndmask_b32_e64 v41, v37, v39, s[8:9]
    s_mov_b32 exec_lo, 0x00ff00ff
    s_mov_b32 exec_hi, 0x00ff00ff
    s_cmp_eq_u32 s45, 4
    s_cbranch_scc1 L_f_pf
    buffer_store_dwordx4 v[40:43], v16, s[56:59], s10 offen sc1
    s_branch L_f_p2
    """)
    a.label("L_f_pf")
    a("buffer_store_dwordx4 v[40:43], v16, s[56:59], s10 offen")
    a.label("L_f_p2")
    if opt("rs", 0) & 4:
        for i in range(4): a("v_mov_b32 v%d, v%d" % (200 + i, 40 + i))
    if PZ:
        a("s_mov_b64 exec, 1")
        a("ds_add_u32 v7, v44 offset:%d" % F_PZ)
    a("s_mov_b64 exec, -1")
    a.stamp()
    a("s_mov_b32 s65, 0")
    def wd_pre():
        for t in range(8):
            for h in range(2):
                r = 64 + (t * 2 + h) * 2
                a("ds_read_b64_tr_b16 v[%d:%d], v%d offset:%d" % (r, r + 1, 8 + (t >> 1), (t & 1) * 8 + h * 1024))
    def gissue(base):
        fl = FLV[opt("gf", 0) if base == 20 else opt("gf2", 0)]
        a("buffer_load_dwordx4 v[%d:%d], v2, s[56:59], s11 offen%s" % (base, base + 3, fl))
        a("buffer_load_dwordx4 v[%d:%d], v2, s[56:59], s11 offen offset:1024%s" % (base + 4, base + 7, fl))
    if opt("gdel", 0): a("s_sleep %d" % opt("gdel", 0))
    gissue(20)
    a("s_sleep %d" % opt("gstag", 4))
    gissue(28)
    a("s_mov_b32 s64, SPIN")
    a.label("L_f_poll")
    a("""
    s_cmp_lg_u32 s65, 0
    s_cbranch_scc1 L_f_np
    ds_read_b32 v44, v7 offset:%d
    s_waitcnt lgkmcnt(0)
    v_cmp_gt_u32 vcc, 0x%x, v44
    s_cbranch_vccnz L_f_np
    """ % (F_PROG, TH_WD))
    wd_pre()
    a("s_mov_b32 s65, 1")
    a.label("L_f_np")
    a("s_waitcnt vmcnt(2)")
    tagcheck(a, [20, 24])
    if opt("skip", 0) & 16: a("s_branch L_f_d0")
    a("s_cbranch_vccz L_f_d0")
    if opt("gsl", 0): a("s_sleep %d" % opt("gsl", 0))
    gissue(20)
    a("s_waitcnt vmcnt(2)")
    tagcheck(a, [28, 32])
    a("s_cbranch_vccz L_f_d1")
    if opt("gsl", 0): a("s_sleep %d" % opt("gsl", 0))
    gissue(28)
    a("s_sub_u32 s64, s64, 1")
    a("s_cbranch_scc1 L_end")
    a("s_branch L_f_poll")
    for nm, base in (("L_f_d0", 20), ("L_f_d1", 28)):
        a.label(nm)
        a("v_mov_b32 v44, v%d" % base)
        a("v_mov_b32 v45, v%d" % (base + 1))
        a("v_mov_b32 v46, v%d" % (base + 4))
        a("v_mov_b32 v47, v%d" % (base + 5))
        if base == 20: a("s_branch L_f_dd")
    a.label("L_f_dd")
    a.stamp()
    xreduce(a, "add", [44, 45, 46, 47], [48, 49, 50, 51])
    a("""
    s_mov_b32 s16, 0x3d372713
    s_mov_b32 s17, 0xc0135761
    v_cvt_pk_bf16_f32 v48, v44, v45
    v_cvt_pk_bf16_f32 v49, v46, v47
    v_lshlrev_b32 v44, 16, v48
    v_and_b32 v45, 0xffff0000, v48
    v_lshlrev_b32 v46, 16, v49
    v_and_b32 v47, 0xffff0000, v49
    v_mul_f32 v48, v44, v44
    v_mul_f32 v49, v45, v45
    v_mul_f32 v48, v48, v44
    v_mul_f32 v49, v49, v45
    v_fma_f32 v48, v48, s16, v44
    v_fma_f32 v49, v49, s16, v45
    v_mul_f32 v48, s17, v48
    v_mul_f32 v49, s17, v49
    v_exp_f32 v48, v48
    v_exp_f32 v49, v49
    s_nop 0
    v_add_f32 v48, 1.0, v48
    v_add_f32 v49, 1.0, v49
    v_rcp_f32 v48, v48
    v_rcp_f32 v49, v49
    s_nop 0
    v_mul_f32 v44, v44, v48
    v_mul_f32 v45, v45, v49
    v_cvt_pk_bf16_f32 v48, v44, v45
    v_lshlrev_b32 v44, 16, v48
    v_and_b32 v45, 0xffff0000, v48
    v_mul_f32 v44, v44, v46
    v_mul_f32 v45, v45, v47
    v_cvt_pk_bf16_f32 v48, v44, v45
    ds_write_b32 v17, v48
    """)
    for t in range(8):
        a("ds_read_b128 v[%d:%d], v18 offset:%d" % (128 + 4 * t, 131 + 4 * t, (7 - t) * 64))
    a("s_cmp_lg_u32 s65, 0")
    a("s_cbranch_scc1 L_f_have")
    lds_wait_ge(a, 7, 44, F_PROG, TH_WD, sleep=1 if opt("ord", 0) else 0)
    wd_pre()
    a.label("L_f_have")
    a("s_waitcnt lgkmcnt(0)")
    a.stamp()
    for t in range(8):
        c_ = "0" if t == 0 else "v[36:39]"
        a("v_mfma_f32_16x16x32_bf16 v[36:39], v[%d:%d], v[%d:%d], %s" % (64 + 4 * t, 67 + 4 * t, 128 + 4 * t, 131 + 4 * t, c_))
    a.nop(8)
    a("""
    v_cndmask_b32_e64 v40, v36, v38, s[8:9]
    v_cndmask_b32_e64 v41, v37, v39, s[8:9]
    buffer_store_dwordx4 v[40:43], v19, s[56:59], s12 offen sc1
    """)
    a.stamp()
    if opt("rs", 0) & 4:
        if opt("rsf", 0): a("s_sleep %d" % opt("rsf", 0))
        a("""
        s_mov_b32 exec_lo, 0x00ff00ff
        s_mov_b32 exec_hi, 0x00ff00ff
        buffer_store_dwordx4 v[200:203], v16, s[56:59], s10 offen sc1
        s_mov_b64 exec, -1
        """)
    a.stamp_flush(28)
    a.label("L_end")
    a("s_endpgm")

    out += a.l
    out.append('''.section .rodata,"a"
.p2align 6
.amdhsa_kernel %s_kernel
  .amdhsa_next_free_vgpr 216
  .amdhsa_next_free_sgpr 102
  .amdhsa_accum_offset 216
  .amdhsa_group_segment_fixed_size 0
  .amdhsa_kernarg_size 96
  .amdhsa_user_sgpr_count 2
  .amdhsa_user_sgpr_kernarg_segment_ptr 1
  .amdhsa_system_sgpr_workgroup_id_x 1
  .amdhsa_float_denorm_mode_32 3
.end_amdhsa_kernel'''.replace('216', '240' if FN == 4 else '216') % NAME)
    return "\n".join(out) + "\n"

if __name__ == "__main__":
    ap = argparse.ArgumentParser()
    ap.add_argument("-o", default="cdna_kernels/%s.s" % NAME)
    ap.add_argument("--diag", action="store_true")
    ap.add_argument("--slow", action="store_true")
    ap.add_argument("-W", type=int, default=16)
    ap.add_argument("--W0", type=int, default=24)
    ap.add_argument("-P", nargs="*", default=[])
    ap.add_argument("--onlyld", action="store_true")
    ap.add_argument("--kv", type=int, default=1)
    args = ap.parse_args()
    open(args.o, "w").write(gen(diag=args.diag, W=args.W, forceslow=args.slow, onlyld=args.onlyld, kvmode=args.kv, W0=args.W0, P={x.split('=')[0]: int(x.split('=')[1]) for x in args.P}))
    print("wrote", args.o)
```

```python
import sys, argparse

NAME = "recurrent_scan__sliding_block_cached__glu_gated_geglu__decode"
HEADER = open("cdna_kernels/%s.s.ref" % NAME).read().split("; Override launch")[0]

INBS = 0x1000
INB4 = 0x5000
INB1 = 0x200000
INB1S = 0x220000
INB3D = 0x41000
INB3S = 0x80000
INB2 = 0x100000
DIAG = 0x1000000
L_WQ = 0
L_K = 16384
L_V = 49152
L_G = 81920
L_U = 90112
L_WO = 98304
L_WD = 114688
L_M = 122880
L_XN = L_M
L_Q = L_M + 1024
L_P = L_M + 2048
L_Z = L_M + 6144
L_OW = L_Z
L_HW = L_Z + 1024
L_ST = L_Z + 2048
L_FL = L_Z + 2304
L_AL = L_Z + 2560
F_PROG = 0
F_XN = 4
F_Q = 8
F_SLOW = 12
F_TAG = 16
F_TAGV = 24
F_APUB = 28
F_OPUB = 32
F_QPUB = 36
F_PZ = 40
F_P = 44
LDS_BYTES = L_Z + 4096

LOG2E = 0x3fb8aa3b
SCALE = 0x3db504f3
ST0 = 76
OGATE = 72
OSTAG = 4

class Asm:
    def __init__(self, diag=False):
        self.l = []; self.diag = diag; self.nstamp = 0; self.uid = 0
    def __call__(self, s):
        for x in s.strip().split("\n"):
            x = x.strip()
            if x: self.l.append("    " + x)
    def label(self, n): self.l.append(n + ":")
    def nop(self, n=1): self("s_nop %d" % (n - 1))
    def comment(self, s): self.l.append("    ; " + s)
    def page(self): self.l.append(".p2align 12")
    def pad(self, name, target):
        self.label(name); self("s_cbranch_execz %s" % target)
    def newlabel(self, p):
        self.uid += 1; return "%s_%d" % (p, self.uid)
    def stamp(self):
        if not self.diag: return
        i = self.nstamp; assert i < 13, "too many stamps"
        self("s_memrealtime s[%d:%d]" % (ST0 + 2 * i, ST0 + 1 + 2 * i))
        self.nstamp += 1
    def log(self, sidx, smask, vlog, tmp=62):
        if not self.diag: return
        self("s_memrealtime s[6:7]")
        self("s_bcnt1_i32_b64 s%d, %s" % (tmp, smask))
        self("s_min_u32 m0, s%d, 63" % sidx)
        self("s_waitcnt lgkmcnt(0)")
        self("v_writelane_b32 v%d, s6, m0" % vlog)
        self("v_writelane_b32 v%d, s%d, m0" % (vlog + 1, tmp))
        self("s_add_u32 s%d, s%d, 1" % (sidx, sidx))
        self("s_cmp_lg_u64 %s, 0" % smask)
    def log_flush(self, vlog, vt, slot):
        if not self.diag: return
        self("s_mov_b64 exec, -1")
        self("s_lshl_b32 s64, s2, 12")
        self("s_add_u32 s64, s64, 0x%x" % (DIAG + 0x100000 + slot * 512))
        self("v_lshlrev_b32 v%d, 2, v0" % vt)
        self("buffer_store_dword v%d, v%d, s[56:59], s64 offen" % (vlog, vt))
        self("buffer_store_dword v%d, v%d, s[56:59], s64 offen offset:256" % (vlog + 1, vt))
    def dbg_flush(self, vtmp, ents):
        self("s_load_dwordx2 s[60:61], s[0:1], 80")
        self("s_mov_b32 s62, 256")
        self("s_mov_b32 s63, 0x20000")
        self("s_waitcnt lgkmcnt(0)")
        for op, i, slot in ents:
            if op == "min": self("v_not_b32 v%d, s%d" % (vtmp, ST0 + 2 * i))
            elif op == "max": self("v_mov_b32 v%d, s%d" % (vtmp, ST0 + 2 * i))
            elif op == "max1":
                self("s_cmp_eq_u32 s3, 1")
                self("s_cselect_b32 s65, s%d, 0" % (ST0 + 2 * i))
                self("v_mov_b32 v%d, s65" % vtmp)
            else:
                self("s_sub_u32 s65, s%d, s%d" % (ST0 + 2 * i, ST0))
                self("v_mov_b32 v%d, s65" % vtmp)
            self("buffer_atomic_%s v%d, v%d, s[60:63], 0 offen offset:%d sc1" % ("add" if op == "sum" else "umax", vtmp, vtmp + 2, slot * 4))
            self.nop(2)
    def stamp_flush(self, vtmp, dbg=None):
        if not self.diag: return
        self._sf(vtmp)
        if dbg and DBGD: self.dbg_flush(vtmp, dbg)
    def _sf(self, vtmp):
        n = self.nstamp
        self("s_waitcnt vmcnt(0) lgkmcnt(0)")
        self("s_mov_b64 exec, 1")
        self("s_lshl_b32 s64, s2, 10")
        self("s_lshl_b32 s65, s3, 7")
        self("s_add_u32 s64, s64, s65")
        self("s_add_u32 s64, s64, 0x%x" % DIAG)
        self("v_mov_b32 v%d, 0" % (vtmp + 2))
        for i in range(n):
            self("v_mov_b32 v%d, s%d" % (vtmp, ST0 + 2 * i))
            self("v_mov_b32 v%d, s%d" % (vtmp + 1, ST0 + 1 + 2 * i))
            self("buffer_store_dwordx2 v[%d:%d], v%d, s[56:59], s64 offen offset:%d" % (vtmp, vtmp + 1, vtmp + 2, i * 8))
            self.nop(2)
        self("v_mov_b32 v%d, %d" % (vtmp, n))
        self("buffer_store_dword v%d, v%d, s[56:59], s64 offen offset:120" % (vtmp, vtmp + 2))

def allreduce(a, op, v, t):
    for r in (1, 2, 4, 8):
        a.nop(2)
        a("v_%s_f32_dpp v%d, v%d, v%d row_ror:%d row_mask:0xf bank_mask:0xf" % (op, v, v, v, r))
    for sw in ("16", "32"):
        a("v_mov_b32 v%d, v%d" % (t, v))
        a.nop(2)
        a("v_permlane%s_swap_b32 v%d, v%d" % (sw, v, t))
        a("v_%s_f32 v%d, v%d, v%d" % (op, v, v, t))

def xreduce(a, op, regs, tmps):
    for sw in ("16", "32"):
        for r, t in zip(regs, tmps):
            a("v_mov_b32 v%d, v%d" % (t, r))
        a.nop(2 if len(regs) < 3 else 1)
        for r, t in zip(regs, tmps):
            a("v_permlane%s_swap_b32 v%d, v%d" % (sw, r, t))
        for r, t in zip(regs, tmps):
            a("v_%s_f32 v%d, v%d, v%d" % (op, r, r, t))

def bf16_round(a, dst, src, tmp):
    a("v_cvt_pk_bf16_f32 v%d, v%d, v%d" % (tmp, src, src))
    a("v_lshlrev_b32 v%d, 16, v%d" % (dst, tmp))

def layernorm(a, xr, f, t, xp):
    for i in range(4):
        a("v_lshlrev_b32 v%d, 16, v%d" % (f + 2 * i, xr + i))
        a("v_and_b32 v%d, 0xffff0000, v%d" % (f + 2 * i + 1, xr + i))
    a("v_add_f32 v%d, v%d, v%d" % (t, f, f + 1))
    a("v_add_f32 v%d, v%d, v%d" % (t + 1, f + 2, f + 3))
    a("v_add_f32 v%d, v%d, v%d" % (t + 2, f + 4, f + 5))
    a("v_add_f32 v%d, v%d, v%d" % (t + 3, f + 6, f + 7))
    a("v_add_f32 v%d, v%d, v%d" % (t, t, t + 1))
    a("v_add_f32 v%d, v%d, v%d" % (t + 2, t + 2, t + 3))
    a("v_add_f32 v%d, v%d, v%d" % (t, t, t + 2))
    allreduce(a, "add", t, t + 1)
    a("v_mul_f32 v%d, 0x3b000000, v%d" % (t, t))
    a("v_sub_f32 v%d, v%d, v%d" % (t + 2, f, t))
    a("v_mul_f32 v%d, v%d, v%d" % (t + 1, t + 2, t + 2))
    for i in range(1, 8):
        a("v_sub_f32 v%d, v%d, v%d" % (t + 2, f + i, t))
        a("v_fmac_f32 v%d, v%d, v%d" % (t + 1, t + 2, t + 2))
    allreduce(a, "add", t + 1, t + 2)
    a("v_mul_f32 v%d, 0x3b000000, v%d" % (t + 1, t + 1))
    a("v_cvt_pk_bf16_f32 v%d, v%d, v%d" % (t + 2, t, t + 1))
    a("v_lshlrev_b32 v%d, 16, v%d" % (t, t + 2))
    a("v_and_b32 v%d, 0xffff0000, v%d" % (t + 1, t + 2))
    a("v_add_f32 v%d, 0x3727c5ac, v%d" % (t + 1, t + 1))
    bf16_round(a, t + 1, t + 1, t + 2)
    a("v_sqrt_f32 v%d, v%d" % (t + 1, t + 1))
    a.nop(1)
    bf16_round(a, t + 1, t + 1, t + 2)
    a("v_rcp_f32 v%d, v%d" % (t + 2, t + 1))
    for i in range(8):
        a("v_sub_f32 v%d, v%d, v%d" % (f + i, f + i, t))
    for i in range(4):
        a("v_cvt_pk_bf16_f32 v%d, v%d, v%d" % (xp + i, f + 2 * i, f + 2 * i + 1))
    for i in range(4):
        a("v_lshlrev_b32 v%d, 16, v%d" % (f + 2 * i, xp + i))
        a("v_and_b32 v%d, 0xffff0000, v%d" % (f + 2 * i + 1, xp + i))
    for i in range(8):
        a("v_mul_f32 v%d, v%d, v%d" % (t + 3, f + i, t + 2))
        a("v_fma_f32 v%d, -v%d, v%d, v%d" % (t + 4, t + 3, t + 1, f + i))
        a("v_fma_f32 v%d, v%d, v%d, v%d" % (f + i, t + 4, t + 2, t + 3))
    for i in range(4):
        a("v_cvt_pk_bf16_f32 v%d, v%d, v%d" % (xp + i, f + 2 * i, f + 2 * i + 1))

def srd(a, d, base, nbytes):
    a("s_mov_b32 s%d, s%d" % (d, base))
    a("s_mov_b32 s%d, s%d" % (d + 1, base + 1))
    a("s_mov_b32 s%d, 0x%x" % (d + 2, nbytes))
    a("s_mov_b32 s%d, 0x20000" % (d + 3))

def fcoords(a):
    a("""
    s_and_b32 s14, s4, 3
    s_mul_i32 s14, s14, 14
    s_lshr_b32 s36, s4, 2
    s_lshl_b32 s7, s36, 3
    s_add_u32 s14, s14, s7
    s_lshr_b32 s7, s5, 2
    s_add_u32 s14, s14, s7
    s_and_b32 s15, s5, 3
    s_lshl_b32 s36, s36, 3
    s_add_u32 s36, s36, s5
    s_cmp_lt_u32 s36, 32
    s_cselect_b32 s36, 1, 0
    """)

def touches(a, tw, vz=212):
    a("s_mov_b64 exec, 1")
    a("v_mov_b32 v%d, 0" % vz)
    n = 1
    if tw & 1:
        srd(a, 68, 20, 0x8000000)
        a("""
        s_lshl_b32 s6, s4, 24
        s_lshl_b32 s7, s5, 12
        s_add_u32 s6, s6, s7
        s_add_u32 s6, s6, 0xf00000
        buffer_load_dword v%d, v%d, s[68:71], s6 offen
        """ % (vz + 1, vz))
    if tw & 2:
        srd(a, 72, 24, 4096 * 512 * 2)
        a("""
        s_lshl_b32 s6, s4, 19
        s_lshr_b32 s7, s5, 1
        s_lshl_b32 s7, s7, 15
        s_add_u32 s6, s6, s7
        buffer_load_dword v%d, v%d, s[72:75], s6 offen
        """ % (vz + 1, vz))
    if tw & 4:
        fcoords(a)
        a("s_bitcmp1_b32 s5, 2")
        a("s_cselect_b32 s68, s30, s28")
        a("s_cselect_b32 s69, s31, s29")
        a("s_mov_b32 s70, 0x%x" % (512 * 1792 * 2))
        a("s_mov_b32 s71, 0x20000")
        srd(a, 72, 32, 1792 * 512 * 2)
        a("""
        s_mul_i32 s6, s15, %d
        s_lshl_b32 s7, s14, 6
        s_and_b32 s7, s7, -128
        s_add_u32 s6, s6, s7
        buffer_load_dword v%d, v%d, s[68:71], s6 offen
        s_lshl_b32 s6, s14, 15
        s_lshl_b32 s7, s15, 8
        s_add_u32 s6, s6, s7
        buffer_load_dword v%d, v%d, s[72:75], s6 offen
        """ % (128 * 3584, vz + 1, vz, vz + 1, vz))
    if tw & 8:
        a("""
        s_mov_b32 s6, 0x30000
        buffer_load_dword v%d, v%d, s[56:59], s6 offen
        s_mov_b32 s6, 0x240000
        buffer_load_dword v%d, v%d, s[56:59], s6 offen
        """ % (vz + 1, vz, vz + 1, vz))
    a("s_mov_b64 exec, -1")

def stouch(a, m):
    if m & 1:
        a("""
        s_lshl_b32 s6, s4, 24
        s_lshl_b32 s7, s5, 12
        s_add_u32 s6, s6, s7
        s_add_u32 s6, s6, 0xf00000
        s_load_dword s70, s[20:21], s6
        """)
    if m & 2:
        a("""
        s_lshl_b32 s6, s4, 19
        s_lshr_b32 s7, s5, 1
        s_lshl_b32 s7, s7, 15
        s_add_u32 s6, s6, s7
        s_load_dword s70, s[24:25], s6
        """)
    if m & 4:
        a("""
        s_and_b32 s6, s5, 3
        s_mul_i32 s6, s6, %d
        s_load_dword s70, s[28:29], s6
        s_load_dword s70, s[30:31], s6
        s_load_dword s70, s[32:33], s6
        """ % (128 * 3584))
    if m & 8:
        a("""
        s_mov_b32 s6, 0x240000
        s_load_dword s70, s[38:39], s6
        s_load_dword s70, s[34:35], 0
        """)

def traddr128(a, d, base, t0, t1):
    a("""
    v_lshrrev_b32 v%d, 2, v4
    v_lshl_add_u32 v%d, v5, 3, v%d
    v_lshlrev_b32 v%d, 7, v%d
    v_bfe_u32 v%d, v0, 3, 2
    v_lshl_or_b32 v%d, v%d, 5, v%d
    v_and_b32 v%d, 3, v0
    v_lshl_or_b32 v%d, v%d, 3, v%d
    """ % (t0, t0, t0, t0, t0, t1, t0, t1, t0, t1, d, t1, t0))
    if base: a("v_add_u32 v%d, %d, v%d" % (d, base, d))
    for u in range(1, 4):
        a("v_xor_b32 v%d, %d, v%d" % (d + u, 32 * u, d))

def early_barrier(a):
    a("s_waitcnt lgkmcnt(0)")
    a("s_barrier")
    srd(a, 56, 38, 0x20000000)

def make_tag(a):
    a("""
    s_waitcnt lgkmcnt(0)
    s_add_u32 s40, s40, 16
    s_and_b32 s40, s40, -16
    s_add_u32 s41, s41, 0x9e3779b9
    """)

def get_tag(a, vt):
    if OWNTAG:
        make_tag(a)
        a("v_mov_b32 v%d, s40" % vt)
        a("v_mov_b32 v%d, s41" % (vt + 1))
        a("v_mov_b32 v%d, 1" % (vt + 2))
        return
    name = a.newlabel("L_gt")
    a("s_mov_b32 s64, SPIN")
    a.label(name)
    a("ds_read_b96 v[%d:%d], v7 offset:%d" % (vt, vt + 2, F_TAG))
    a("s_waitcnt lgkmcnt(0)")
    a("v_cmp_eq_u32 vcc, 0, v%d" % (vt + 2))
    a("s_cbranch_vccz %s_ok" % name)
    a("s_sleep 10")
    a("s_sub_u32 s64, s64, 1")
    a("s_cbranch_scc1 L_end")
    a("s_branch %s" % name)
    a.label(name + "_ok")
    a("v_readfirstlane_b32 s40, v%d" % vt)
    a("v_readfirstlane_b32 s41, v%d" % (vt + 1))
    a.nop(2)

def lds_wait_ge(a, vfl, vtmp, off, thr, sleep=1):
    name = a.newlabel("L_w")
    a("s_mov_b32 s64, SPIN")
    a.label(name)
    a("ds_read_b32 v%d, v%d offset:%d" % (vtmp, vfl, off))
    a("s_waitcnt lgkmcnt(0)")
    a("v_cmp_gt_u32 vcc, %d, v%d" % (thr, vtmp) if thr <= 64 else "v_cmp_gt_u32 vcc, 0x%x, v%d" % (thr, vtmp))
    a("s_cbranch_vccz %s_ok" % name)
    if sleep: a("s_sleep %d" % sleep)
    a("s_sub_u32 s64, s64, 1")
    a("s_cbranch_scc1 L_end")
    a("s_branch %s" % name)
    a.label(name + "_ok")

def tagcheck(a, regs, tag="s[40:41]"):
    a("v_cmp_ne_u64 vcc, %s, v[%d:%d]" % (tag, regs[0] + 2, regs[0] + 3))
    for r in regs[1:]:
        a("v_cmp_ne_u64 s[60:61], %s, v[%d:%d]" % (tag, r + 2, r + 3))
        a("s_or_b64 vcc, vcc, s[60:61]")

def gen(diag=False, W=16, forceslow=False, onlyld=False, kvmode=1, W0=24, P=None):
    P = P or {}
    global OWNTAG, DBGD
    DBGD = P.get("dbgd", 0)
    OWNTAG = P.get("owntag", 0)
    if OWNTAG: P["epf"] = 1
    def opt(k, d): return P.get(k, d)
    a = Asm(diag)
    XS = opt("xs", 0)
    out = []
    out.append(HEADER.rstrip("\n"))
    out.append("; @launch grid=(256,1,1) block=(512,1,1) lds=%d" % LDS_BYTES)
    out.append('.amdgcn_target "amdgcn-amd-amdhsa--gfx950"')
    out.append(".set SPIN, 0x40000")
    out.append(".text")
    out.append(".globl %s_kernel" % NAME)
    out.append(".p2align 8")
    out.append(".type %s_kernel,@function" % NAME)
    out.append("%s_kernel:" % NAME)

    a("""
    s_cmp_ge_u32 s2, 256
    s_cbranch_scc1 L_end0
    s_load_dwordx16 s[16:31], s[0:1], 0
    s_load_dwordx8 s[32:39], s[0:1], 64
    v_lshrrev_b32 v1, 6, v0
    v_lshlrev_b32 v2, 3, v0
    v_mov_b32 v8, 0
    v_mov_b32 v9, 0
    v_readfirstlane_b32 s3, v1
    v_add_u32 v2, %d, v2
    v_and_b32 v0, 63, v0
    ds_write_b64 v2, v[8:9]
    s_and_b32 s4, s2, 7
    s_lshr_b32 s5, s2, 3
    v_and_b32 v4, 15, v0
    v_lshrrev_b32 v5, 4, v0
    v_mov_b32 v7, %d
    """ % (L_Z, L_FL))
    a.stamp()
    nst0 = a.nstamp
    a("""
    s_cmp_eq_u32 s3, 0
    s_cbranch_scc1 L_ld
    """)
    if onlyld:
        if opt("sw", 0):
            a("s_cmp_lg_u32 s3, 7")
            a("s_cbranch_scc1 L_end0")
            a("s_waitcnt lgkmcnt(0)")
            a("s_barrier")
            if opt("swd", 0): a("s_sleep %d" % opt("swd", 0))
            stouch(a, opt("sw", 0))
            a("s_waitcnt lgkmcnt(0)")
        if opt("tw", 0):
            a("s_cmp_lg_u32 s3, 7")
            a("s_cbranch_scc1 L_end0")
            a("s_waitcnt lgkmcnt(0)")
            srd(a, 56, 38, 0x20000000)
            touches(a, opt("tw", 0))
            a("s_barrier")
        a("s_branch L_end0")
    a("""
    s_cmp_eq_u32 s3, 1
    s_cbranch_scc1 L_qh
    %s
    s_mov_b32 s58, 0x20000000
    s_mov_b32 s59, 0x20000
    s_waitcnt lgkmcnt(0)
    s_load_dwordx2 s[40:41], s[38:39], 0
    s_mov_b32 s56, s38
    s_mov_b32 s57, s39
    s_getreg_b32 s44, hwreg(HW_REG_XCC_ID, 0, 4)
    s_barrier
    s_cmp_eq_u32 s3, 6
    s_cbranch_scc1 L_f
    s_cmp_eq_u32 s3, 7
    s_cbranch_scc1 L_o
    s_cmp_eq_u32 s3, 2
    s_cbranch_scc1 L_att
    s_mov_b64 exec, 0
    s_cmp_eq_u32 s3, 3
    s_cbranch_scc1 PAD_Q1
    s_cmp_eq_u32 s3, 4
    s_cbranch_scc1 PAD_Q2
    s_branch PAD_A1
    """ % ("s_cmp_eq_u32 s3, 7\n s_cbranch_scc1 L_xh" if XS else ""))
    a.label("L_end0")
    a("s_endpgm")
    for lab, tgt, ld in ((("L_xh", "L_x", 1), ("L_qh", "L_q", 0)) if XS else (("L_qh", "L_q", 1),)):
        a.label(lab)
        a("""
        s_setprio 3
        v_lshlrev_b32 v2, 4, v0
        s_mov_b32 s50, 1024
        s_mov_b32 s51, 0x20000
        s_mov_b32 s58, 0x20000000
        s_mov_b32 s59, 0x20000
        s_waitcnt lgkmcnt(0)
        s_mov_b32 s48, s16
        s_mov_b32 s49, s17
        s_mov_b32 s56, s38
        s_mov_b32 s57, s39
        %s
        s_getreg_b32 s44, hwreg(HW_REG_XCC_ID, 0, 4)
        s_barrier
        s_branch %s
        """ % ("buffer_load_dwordx4 v[8:11], v2, s[48:51], 0 offen" if ld else "", tgt))

    a.label("L_ld")
    a("s_setprio 2")
    a("""
    v_lshrrev_b32 v6, 3, v0
    v_bfe_u32 v3, v0, 4, 1
    v_lshlrev_b32 v3, 1, v3
    v_and_b32 v8, 7, v0
    v_xor_b32 v8, v8, v3
    v_lshlrev_b32 v8, 4, v8
    v_lshl_or_b32 v10, v6, 13, v8
    v_xor_b32 v21, 64, v10
    v_lshrrev_b32 v9, 5, v0
    s_lshr_b32 s6, s5, 3
    s_lshl_b32 s6, s6, 20
    s_lshl_b32 s7, s4, 10
    s_add_u32 s6, s6, s7
    s_and_b32 s7, s5, 7
    s_lshl_b32 s7, s7, 7
    s_add_u32 s6, s6, s7
    s_mov_b32 s46, 0x400000
    s_mov_b32 s47, 0x20000
    s_mov_b32 m0, %d
    s_movk_i32 s42, 1024
    s_movk_i32 s43, 4096
    s_mov_b32 s40, 0x20000
    s_mov_b32 s41, 0x10000
    """ % L_WQ)
    for b in range(4):
        a("v_add_u32 v2, %d, v5" % (4 * b))
        a("v_xor_b32 v2, v4, v2")
        a("v_lshlrev_b32 v2, 4, v2")
        a("v_lshl_or_b32 v%d, v5, 8, v2" % (12 + b))
    a("""
    s_lshl_b32 s8, s4, 24
    s_lshl_b32 s7, s5, %d
    s_add_u32 s8, s8, s7
    s_add_u32 s8, s8, 0xf00000
    s_mov_b32 s9, s8
    s_mov_b32 s50, 0x8000000
    s_mov_b32 s51, 0x20000
    s_waitcnt lgkmcnt(0)
    s_mov_b32 s44, s22
    s_mov_b32 s45, s23
    s_mov_b32 s48, s18
    s_mov_b32 s49, s19
    """ % ({0: 15, 1: 12}[kvmode]))
    a.stamp()

    def loader_setup2():
        a("v_mul_u32_u24 v11, %d, v6" % 3584)
        a("v_add_u32 v11, v11, v8")
        a("v_xor_b32 v22, 64, v11")
        for b in range(2):
            a("v_add_u32 v2, %d, v5" % (4 * b))
            a("v_lshlrev_b32 v2, 1, v2")
            a("v_xor_b32 v2, v4, v2")
            a("v_lshlrev_b32 v2, 4, v2")
            a("v_lshl_or_b32 v%d, v5, 8, v2" % (16 + b))
        a("v_and_b32 v3, 31, v0")
        for b in range(2):
            a("v_add_u32 v2, %d, v9" % (2 * b))
            a("v_lshlrev_b32 v2, 2, v2")
            a("v_xor_b32 v2, v3, v2")
            a("v_lshlrev_b32 v2, 4, v2")
            a("v_lshl_or_b32 v%d, v9, 10, v2" % (18 + b))
        a("v_lshlrev_b32 v2, 2, v5")
        a("v_xor_b32 v2, v4, v2")
        a("v_lshlrev_b32 v2, 4, v2")
        a("v_lshl_or_b32 v20, v5, 10, v2")
        srd(a, 52, 20, 0x8000000)
        a("s_bitcmp1_b32 s5, 2")
        a("s_cselect_b32 s60, s30, s28")
        a("s_cselect_b32 s61, s31, s29")
        a("s_mov_b32 s62, 0x%x" % (512 * 1792 * 2))
        a("s_mov_b32 s63, 0x20000")
        srd(a, 68, 24, 4096 * 512 * 2)
        srd(a, 72, 32, 1792 * 512 * 2)
        srd(a, 56, 38, 0x20000000)
        fcoords(a)
        a("""
        s_mul_i32 s10, s15, %d
        s_lshl_b32 s7, s14, 6
        s_and_b32 s7, s7, -128
        s_add_u32 s10, s10, s7
        s_movk_i32 s41, %d
        """ % (128 * 3584, 8 * 3584))
        a("""
        s_lshl_b32 s12, s4, 19
        s_lshr_b32 s7, s5, 1
        s_lshl_b32 s7, s7, 15
        s_add_u32 s12, s12, s7
        s_and_b32 s7, s5, 1
        s_lshl_b32 s7, s7, 9
        s_add_u32 s12, s12, s7
        """)
        a("""
        s_lshl_b32 s13, s14, 15
        s_lshl_b32 s7, s15, 8
        s_add_u32 s13, s13, s7
        """)

    def item(kind, i):
        def m0set(base, i): return "s_mov_b32 m0, %d" % base if i == 0 else "s_add_u32 m0, m0, s42"
        if kind == "wq":
            pre = [] if i == 0 else ["s_add_u32 m0, m0, s42", "s_add_u32 s6, s6, s41"]
            return pre + ["buffer_load_dwordx4 v%d, s[44:47], s6 offen nt lds" % (21 if i & 1 else 10)]
        if kind in ("K", "V"):
            base = L_K if kind == "K" else L_V
            sr = 8 if kind == "K" else 9
            pre = []
            if i % 4 == 0:
                pre = ["s_mov_b32 m0, %d" % (base + i * 1024) if i in (0, 16) else "s_add_u32 m0, m0, s43", ("s_add_u32 s%d, s%d, %s" % (sr, sr, "s43" if kvmode == 0 else "s40")) if i else "s_nop 0"]
                if opt("kvx", 0) and i:
                    u = i // 4
                    pre[1] = "s_xor_b32 s%d, s%d, 0x%x" % (sr, sr, (u * 0x21000) ^ ((u - 1) * 0x21000))
            vr = 12 + (i % 4) if kind == "K" else 16 + (i % 2)
            return pre + ["buffer_load_dwordx4 v%d, s[%d:%d], s%d offen offset:%d nt lds" % (vr, 48 if kind == "K" else 52, 51 if kind == "K" else 55, sr, (i % 4) * 1024)]
        if kind == "G":
            pre = [m0set(L_G, i), "s_add_u32 s10, s10, s41" if i else "s_nop 0"]
            return pre + ["buffer_load_dwordx4 v%d, s[60:63], s10 offen nt lds" % (22 if i & 1 else 11)]
        if kind == "wo":
            pre = [m0set(L_WO, i), "s_add_u32 s12, s12, 0x800" if i else "s_nop 0"]
            return pre + ["buffer_load_dwordx4 v%d, s[68:71], s12 offen nt lds" % (18 + (i % 2))]
        if kind == "wd":
            pre = [m0set(L_WD, i), "s_add_u32 s13, s13, s43" if i else "s_nop 0"]
            return pre + ["buffer_load_dwordx4 v20, s[72:75], s13 offen nt lds"]

    ORD = {0: "K V G wo wd", 1: "K G wd wo V", 2: "K G wo V wd", 3: "K G V wo wd", 4: "K G Va wo wd Vb", 5: "K G wd Va wo Vb", 6: "K Va G wd wo Vb", 7: "K G wo wd V"}[opt("ord", 0)].split()
    CNT = {"wq": 16, "K": 32, "V": 32, "G": 16, "wo": 16, "wd": 8}
    def expand(k):
        if k == "Va": return [("V", i) for i in range(16)]
        if k == "Vb": return [("V", i) for i in range(16, 32)]
        return [(k, i) for i in range(CNT[k])]
    seqfull = expand("wq")
    for k in ORD: seqfull += expand(k)
    PV = {it: n + 1 for n, it in enumerate(seqfull)}
    def mark(k, i):
        if k == "wq": return i in ((3, 7, 11, 15) if opt("q4", 0) else (7, 15))
        if k in ("K", "V"): return i % 8 == 7
        if k == "G": return i == 15 or (opt("g2", 0) and i == 7)
        return i == CNT[k] - 1
    TH_K0 = PV[("K", 7)]; TH_V3 = PV[("V", 23)]; TH_V = PV[("V", 31)]; TH_G = PV[("G", 15)]; TH_WO = PV[("wo", 15)]; TH_WD = PV[("wd", 7)]
    STAMPS = (16, PV[("K", 31)], TH_V, TH_G, TH_WO, TH_WD)
    def stream(full):
        seq = [it for it in seqfull if full or it[0] not in ("G", "wd")]
        prog = {}
        for n, (k, i) in enumerate(seq):
            if mark(k, i): prog[n + 1] = PV[(k, i)]
        return seq, prog

    WL = opt("WL", W)
    def win(n):
        if n >= 80: return WL
        if n < opt("wqn", 0): return max(opt("wqw", W), W0 - max(0, n - W0) * opt("shrink", 1))
        return max(W, W0 - max(0, n - W0) * opt("shrink", 1))
    seqF, progF = stream(True)
    seqS, progS = stream(False)
    NB = opt("nb", 6)
    if NB == 0: a("s_barrier")
    for i in range(16):
        for x in item("wq", i): a(x)
        if i == NB - 1: a("s_barrier")
    assert 16 <= W0 <= 48
    for n in range(16, W0):
        for x in item(*seqF[n]): a(x)
    a.stamp()
    loader_setup2()

    def publish(prog, cnt):
        a("v_mov_b32 v2, %d" % prog[cnt])
        a("ds_write_b32 v7, v2 offset:%d" % F_PROG)
        if prog[cnt] in STAMPS: a.stamp()
    def emit(seq, prog, n0, n1, done):
        for n in range(n0, n1):
            target = n - win(n) + 1
            for cnt in range(done + 1, target + 1):
                if cnt in prog and cnt < target:
                    a("s_waitcnt vmcnt(%d)" % (n - cnt))
                    publish(prog, cnt)
            if target > done:
                a("s_waitcnt vmcnt(%d)" % (n - target))
            for x in item(*seq[n]): a(x)
            if target > done and target in prog: publish(prog, target)
            done = max(done, target)
        return done
    def drain(seq, prog, done):
        N = len(seq)
        for cnt in range(done + 1, N + 1):
            if cnt in prog:
                a("s_waitcnt vmcnt(%d)" % (N - cnt))
                publish(prog, cnt)
    PZ = opt("pause", 0)
    def tail(seq, prog, done, np_, need):
        if not PZ:
            d2 = emit(seq, prog, 80, len(seq), done)
            drain(seq, prog, d2)
            return
        ahead = opt("pzah", 0)
        d2 = emit(seq, prog, 80, np_ + ahead, done)
        for cnt in range(d2 + 1, np_ + 1):
            if cnt in prog:
                a("s_waitcnt vmcnt(%d)" % (np_ + ahead - cnt))
                publish(prog, cnt)
        lab = a.newlabel("L_pz")
        a("s_mov_b32 s37, %d" % opt("pzmax", 24))
        a.label(lab)
        a("ds_read_b32 v3, v7 offset:%d" % F_PZ)
        a("s_waitcnt lgkmcnt(0)")
        a("v_cmp_gt_u32 vcc, %d, v3" % need)
        a("s_cbranch_vccz %s_ok" % lab)
        a("s_sub_u32 s37, s37, 1")
        a("s_cbranch_scc0 %s" % lab)
        a.label(lab + "_ok")
        for n in range(np_ + ahead, len(seq)):
            for x in item(*seq[n]): a(x)
        drain(seq, prog, np_)
    NC = 0
    while seqF[NC] == seqS[NC]: NC += 1
    done = emit(seqF, progF, W0, NC, 0)
    nst1 = a.nstamp
    a("s_cmp_lg_u32 s36, 0")
    a("s_cbranch_scc1 L_ld_full")
    drain(seqS, progS, emit(seqS, progS, NC, len(seqS), done))
    a.stamp_flush(28)
    a("s_endpgm")
    a.label("L_ld_full")
    a.nstamp = nst1
    drain(seqF, progF, emit(seqF, progF, NC, len(seqF), done))
    if opt("wb", 0) & 4:
        a("s_cmp_lg_u32 s5, %d" % opt("wbc", 0))
        a("s_cbranch_scc1 L_ld_nwb")
        if opt("wbd", 0): a("s_sleep %d" % opt("wbd", 0))
        a("buffer_wbl2 sc1")
        a.label("L_ld_nwb")
    a.stamp_flush(28, [("min", 0, 0), ("max", 0, 1)] + [("max", 3 + i, 2 + i) for i in range(6)] + [("sum", 3 + i, 8 + i) for i in range(6)])
    a("s_endpgm")

    a.nstamp = nst0
    a.page()
    a.label("L_q")
    a("""
    v_add_u32 v12, %d, v2
    s_lshr_b32 s6, s5, 3
    s_lshl_b32 s6, s6, 8
    s_add_u32 s6, s6, %d
    v_lshlrev_b32 v13, 4, v5
    v_add_u32 v13, s6, v13
    """ % (L_XN, L_XN))
    traddr128(a, 120, L_WQ, 3, 6)
    a("""
    s_lshl_b32 s14, s4, 14
    s_lshl_b32 s15, s5, 9
    s_add_u32 s15, s15, s14
    s_add_u32 s15, s15, 0x%x
    v_lshrrev_b32 v3, 1, v4
    v_lshlrev_b32 v3, 7, v3
    v_lshl_or_b32 v3, v5, 5, v3
    v_and_b32 v6, 1, v0
    v_lshl_or_b32 v3, v6, 4, v3
    s_mov_b32 s8, 0xaaaaaaaa
    s_mov_b32 s9, 0xaaaaaaaa
    s_mov_b32 s10, 0xcccccccc
    s_mov_b32 s11, 0xcccccccc
    s_mov_b32 s12, 0xf0f0f0f0
    s_mov_b32 s13, 0xf0f0f0f0
    v_mov_b32 v149, 1
    """ % INB1)
    a("""
    s_mov_b32 s52, s34
    s_mov_b32 s53, s35
    s_mov_b32 s54, 1024
    s_mov_b32 s55, 0x20000
    """)
    PT = opt("pt", 0)
    if PT & 1:
        a("""
        s_mov_b32 exec_lo, 0x00ff00ff
        s_mov_b32 exec_hi, 0x00ff00ff
        buffer_load_dwordx4 v[160:163], v3, s[56:59], s15 offen sc1
        s_mov_b64 exec, -1
        s_waitcnt vmcnt(1)
        """)
    elif not XS:
        a("s_waitcnt vmcnt(0)")
    def hreads(half):
        for kk in range(2):
            k = half * 2 + kk
            for u in range(4):
                for h in range(2):
                    r = 16 + (kk * 8 + u * 2 + h) * 2 + half * 32
                    a("ds_read_b64_tr_b16 v[%d:%d], v%d offset:%d" % (r, r + 1, 120 + u, k * 4096 + h * 512))
        if half == 1: a("ds_read_b96 v[150:152], v7 offset:%d" % F_TAG)
    def hmfma(half, counted):
        for kk in range(2):
            k = half * 2 + kk
            for u in range(4):
                if counted and u % 2 == 0: a("s_waitcnt lgkmcnt(%d)" % (12 - 8 * kk - 2 * u + half))
                r = 16 + (kk * 8 + u * 2) * 2 + half * 32
                c_ = "0" if k == 0 else "v[%d:%d]" % (132 + 4 * u, 135 + 4 * u)
                a("v_mfma_f32_16x16x32_bf16 v[%d:%d], v[%d:%d], v[%d:%d], %s" % (132 + 4 * u, 135 + 4 * u, r, r + 3, 100 + 4 * k, 103 + 4 * k, c_))
    def flagsB():
        a("ds_read_b64 v[80:81], v7 offset:%d" % F_PROG)
        for k in range(4):
            a("ds_read_b128 v[%d:%d], v13 offset:%d" % (100 + 4 * k, 103 + 4 * k, k * 64))
        a("s_sub_u32 s64, s64, 1")
        a("s_cbranch_scc1 L_end")
        a("s_waitcnt lgkmcnt(0)")
    if XS:
        assert F_XN == F_PROG + 4
        a.stamp()
        lds_wait_ge(a, 7, 80, F_PROG, 8, sleep=0)
        hreads(0)
        a.pad("PAD_Q1", "L_att_x")
        a.stamp()
        a("s_mov_b32 s64, SPIN")
        a.label("L_qs_w")
        flagsB()
        a("""
        v_cmp_ne_u32 s[60:61], 0, v81
        v_cmp_gt_u32 vcc, 16, v80
        s_cbranch_vccz L_qs_t1
        s_cmp_eq_u64 s[60:61], 0
        s_cbranch_scc1 L_qs_w
        """)
        hmfma(0, False)
        lds_wait_ge(a, 7, 80, F_PROG, 16, sleep=0)
        hreads(1)
        a("s_branch L_qs_t3")
        a.label("L_qs_t1")
        hreads(1)
        a("s_cmp_lg_u64 s[60:61], 0")
        a("s_cbranch_scc1 L_qs_t2")
        a.label("L_qs_w2")
        flagsB()
        a("v_cmp_eq_u32 vcc, 0, v81")
        a("s_cbranch_vccnz L_qs_w2")
        a.label("L_qs_t2")
        hmfma(0, False)
        a.label("L_qs_t3")
        hmfma(1, True)
    else:
        a.stamp()
        layernorm(a, 8, 80, 88, 96)
        a("ds_write_b128 v12, v[96:99]")
        a("ds_write_b32 v7, v149 offset:%d" % F_XN)
        a.pad("PAD_Q1", "L_att_x")
        for k in range(4):
            a("ds_read_b128 v[%d:%d], v13 offset:%d" % (100 + 4 * k, 103 + 4 * k, k * 64))
        a.stamp()
        for k in range(4 if opt("q4", 0) else 0):
            lds_wait_ge(a, 7, 80, F_PROG, 4 * (k + 1), sleep=0)
            for u in range(4):
                for h in range(2):
                    r = 16 + k * 16 + (u * 2 + h) * 2
                    a("ds_read_b64_tr_b16 v[%d:%d], v%d offset:%d" % (r, r + 1, 120 + u, k * 4096 + h * 512))
            if k == 3: a("ds_read_b96 v[150:152], v7 offset:%d" % F_TAG)
            for u in range(4):
                a("s_waitcnt lgkmcnt(%d)" % (6 - 2 * u + (k == 3)))
                r = 16 + k * 16 + u * 4
                c_ = "0" if k == 0 else "v[%d:%d]" % (132 + 4 * u, 135 + 4 * u)
                a("v_mfma_f32_16x16x32_bf16 v[%d:%d], v[%d:%d], v[%d:%d], %s" % (132 + 4 * u, 135 + 4 * u, r, r + 3, 100 + 4 * k, 103 + 4 * k, c_))
        for half in range(0 if opt("q4", 0) else 2):
            lds_wait_ge(a, 7, 80, F_PROG, 8 * (half + 1), sleep=0)
            for kk in range(2):
                k = half * 2 + kk
                for u in range(4):
                    for h in range(2):
                        r = 16 + (kk * 8 + u * 2 + h) * 2 + half * 32
                        a("ds_read_b64_tr_b16 v[%d:%d], v%d offset:%d" % (r, r + 1, 120 + u, k * 4096 + h * 512))
            if half == 1: a("ds_read_b96 v[150:152], v7 offset:%d" % F_TAG)
            for kk in range(2):
                k = half * 2 + kk
                for u in range(4):
                    if u % 2 == 0: a("s_waitcnt lgkmcnt(%d)" % (12 - 8 * kk - 2 * u + half))
                    r = 16 + (kk * 8 + u * 2) * 2 + half * 32
                    c_ = "0" if k == 0 else "v[%d:%d]" % (132 + 4 * u, 135 + 4 * u)
                    a("v_mfma_f32_16x16x32_bf16 v[%d:%d], v[%d:%d], v[%d:%d], %s" % (132 + 4 * u, 135 + 4 * u, r, r + 3, 100 + 4 * k, 103 + 4 * k, c_))
    a.stamp()
    a("s_mov_b32 s64, SPIN")
    a.pad("PAD_Q2", "L_att_x")
    a.label("L_q_tw")
    a("""
    s_waitcnt lgkmcnt(0)
    v_cmp_eq_u32 vcc, 0, v152
    s_cbranch_vccz L_q_tok
    ds_read_b96 v[150:152], v7 offset:%d
    s_sub_u32 s64, s64, 1
    s_cbranch_scc1 L_end
    s_branch L_q_tw
    """ % F_TAG)
    a.label("L_q_tok")
    a("""
    v_or_b32 v158, s44, v150
    v_mov_b32 v159, v151
    v_readfirstlane_b32 s40, v150
    v_readfirstlane_b32 s41, v151
    """)
    for u in range(4):
        a("v_cndmask_b32_e64 v%d, v%d, v%d, s[8:9]" % (80 + 2 * u, 132 + 4 * u, 134 + 4 * u))
        a("v_cndmask_b32_e64 v%d, v%d, v%d, s[8:9]" % (81 + 2 * u, 133 + 4 * u, 135 + 4 * u))
    a("""
    v_cndmask_b32_e64 v80, v80, v82, s[10:11]
    v_cndmask_b32_e64 v81, v81, v83, s[10:11]
    v_cndmask_b32_e64 v84, v84, v86, s[10:11]
    v_cndmask_b32_e64 v85, v85, v87, s[10:11]
    s_mov_b32 exec_lo, 0x00ff00ff
    s_mov_b32 exec_hi, 0x00ff00ff
    v_cndmask_b32_e64 v156, v80, v84, s[12:13]
    v_cndmask_b32_e64 v157, v81, v85, s[12:13]
    %s
    ds_write_b32 v7, v149 offset:%d
    """ % ("s_nop 0" if forceslow else "buffer_store_dwordx4 v[156:159], v3, s[56:59], s15 offen", F_QPUB))
    a.stamp()
    a("s_setprio 0")
    a("s_mov_b32 s64, SPIN")
    a.label("L_q_w")
    a("""
    s_sleep 4
    ds_read_b64 v[80:81], v7 offset:%d
    s_sub_u32 s64, s64, 1
    s_cbranch_scc1 L_end
    s_waitcnt lgkmcnt(0)
    v_cmp_ne_u32 vcc, 0, v81
    s_cbranch_vccnz L_q_slow
    v_and_b32 v80, 7, v80
    v_cmp_ne_u32 vcc, 4, v80
    s_cbranch_vccnz L_q_w
    """ % F_Q)
    if opt("rs", 0) & 2:
        lds_wait_ge(a, 7, 80, F_APUB, 1, sleep=4)
        if opt("rsq", 0): a("s_sleep %d" % opt("rsq", 0))
        a("buffer_store_dwordx4 v[156:159], v3, s[56:59], s15 offen sc1")
    a("s_branch L_q_dd")
    a.label("L_q_slow")
    a("""
    s_add_u32 s15, s15, 0x%x
    buffer_store_dwordx4 v[156:159], v3, s[56:59], s15 offen sc1
    """ % (INB1S - INB1))
    a.label("L_q_dd")
    a("s_mov_b64 exec, -1")
    a.stamp()
    a("s_lshr_b32 s6, s4, 2")
    a("s_lshl_b32 s6, s6, 3")
    a("s_add_u32 s6, s6, s5")
    a("s_cmp_ge_u32 s6, 32")
    a("s_cbranch_scc1 L_fin")
    if opt("wb", 0) & 8:
        if opt("wbm", 0):
            a("s_bitcmp0_b32 0x%x, s5" % opt("wbm", 0))
        else:
            a("s_cmp_lg_u32 s5, %d" % opt("wbc", 0))
        a("s_cbranch_scc1 L_q_nwb")
        lds_wait_ge(a, 7, 160, F_PZ, 1, sleep=4)
        if opt("wbd", 0): a("s_sleep %d" % opt("wbd", 0))
        a("buffer_wbl2 %ssc1" % ("sc0 " if opt("wbs", 0) else ""))
        a.label("L_q_nwb")
    if diag: a("s_branch L_q_done")
    a("s_endpgm")
    a.page()
    a.label("L_fin")
    if opt("skip", 0) & 32: a("s_endpgm")
    a("""
    s_setprio 1
    s_and_b32 s6, s4, 3
    s_lshl_b32 s6, s6, 3
    s_add_u32 s6, s6, s5
    s_sub_u32 s6, s6, 24
    s_lshl_b32 s6, s6, 1
    s_lshr_b32 s7, s3, 2
    s_add_u32 s6, s6, s7
    s_mov_b32 s65, s6
    s_lshl_b32 s12, s6, 13
    s_add_u32 s12, s12, 0x%x
    s_add_u32 s13, s12, 4096
    s_mul_i32 s14, s6, 3584
    s_add_u32 s14, s14, 0x%x
    s_lshl_b32 s15, s6, 4
    v_and_b32 v3, 3, v0
    v_lshlrev_b32 v3, 2, v3
    v_add_u32 v3, s15, v3
    s_waitcnt vmcnt(0)
    buffer_load_dword v6, v3, s[48:51], 0 offen
    """ % (INB3S, INB3D))
    FN = opt("fn", 0)
    for i, M in enumerate([[16 + 2 * k for k in range(12)], [42, 44, 46, 66, 68, 70, 72, 74, 94, 96, 98, 100]]):
        if FN and i: break
        for m in M: a("s_mov_b64 s[%d:%d], -1" % (m, m + 1))
        a("s_mov_b32 s%d, 0" % (M[11] + 1))
        a("v_mov_b32 v%d, 0" % (16 + 48 * i + 44))
        a("v_mov_b32 v%d, 0" % (16 + 48 * i + 45))
    for b in [16, 64, 112, 190][1:FN]:
        a("v_mov_b32 v%d, 0" % (b + 44))
        a("v_mov_b32 v%d, 0" % (b + 45))
    if diag:
        a("v_mov_b32 v180, 0")
        a("v_mov_b32 v181, 0")
        a("s_mov_b32 s63, 1")
    if opt("fpre", 0):
        if opt("fpre", 0) > 1: lds_wait_ge(a, 7, 160, F_PROG, opt("fpre", 0), sleep=2)
        for j in range(3): a("s_add_u32 s%d, s%d, 0x%x" % (8 + j, 12 + j, opt("fprd", 0) * 0x100000))
        for k in range(12):
            if k == 11: a("s_mov_b64 exec, 0xffffffff")
            a("buffer_load_dwordx4 v[%d:%d], v2, s[56:59], s%d offen offset:%d sc1" % (16 + 4 * k, 19 + 4 * k, 8 + k // 4, (k % 4) * 1024))
        a("s_mov_b64 exec, -1")
        a("s_waitcnt vmcnt(0)")
    lds_wait_ge(a, 7, 160, F_OPUB, 1, sleep=2)
    a("s_setprio 3")
    a.stamp()
    NS = 2
    SK = opt("skip", 0)
    FM = [[16 + 2 * k for k in range(12)], [42, 44, 46, 66, 68, 70, 72, 74, 94, 96, 98, 100]]
    bases = [16 + 48 * i for i in range(NS)]
    if FN:
        NS = FN; bases = [16, 64, 112, 190][:FN]; FM = [FM[0]] * FN
    def fissue(i):
        base = bases[i]
        for k in range(12):
            a("s_mov_b64 exec, s[%d:%d]" % (FM[i][k], FM[i][k] + 1))
            a("buffer_load_dwordx4 v[%d:%d], v2, s[56:59], s%d offen offset:%d sc1%s" % (base + 4 * k, base + 3 + 4 * k, 12 + k // 4, (k % 4) * 1024, " nt" if opt("ff", 0) else ""))
        a("s_mov_b64 exec, -1")
    def fcheck(i, lab):
        base = bases[i]
        for k in range(12):
            a("v_cmp_ne_u64 s[%d:%d], s[40:41], v[%d:%d]" % (FM[i][k], FM[i][k] + 1, base + 4 * k + 2, base + 4 * k + 3))
        a("s_mov_b32 s%d, 0" % (FM[i][11] + 1))
        for k in range(12):
            if (SK & 1 and k >= 8) or (SK & 2 and k < 8): a("s_mov_b64 s[%d:%d], 0" % (FM[i][k], FM[i][k] + 1))
        for k in range(12):
            a("s_or_b64 s[60:61], s[%d:%d], %s" % (FM[i][k], FM[i][k] + 1, "s[60:61]" if k else "0"))
        a.log(63, "s[60:61]", 180)
        a("s_cbranch_scc0 %s" % lab)
    a("s_mov_b32 s64, SPIN")
    if opt("fdel", 0): a("s_sleep %d" % opt("fdel", 0))
    FK = opt("fk", 0)
    if FK:
        bases = bases[:1]; NS = 1
        for i in range(FK):
            fissue(0)
            if i < FK - 1: a("s_sleep %d" % opt("fstag", 8))
        a.label("L_f_poll3")
        a("s_waitcnt vmcnt(%d)" % (12 * (FK - 1)))
        fcheck(0, "L_fin_d0")
        fissue(0)
    else:
        for i in range(NS):
            fissue(i)
            if i < NS - 1: a("s_sleep %d" % opt("fstag", 8))
        a.label("L_f_poll3")
        for i in range(NS):
            a("s_waitcnt vmcnt(%d)" % (12 * (NS - 1)))
            fcheck(i, "L_fin_d%d" % i)
            fissue(i)
    a("s_sub_u32 s64, s64, 1")
    a("s_cbranch_scc1 L_end")
    a("s_branch L_f_poll3")
    for i, b in enumerate(bases):
        a.label("L_fin_d%d" % i)
        for e in range(2):
            a("v_add_f32 v%d, v%d, v%d" % (160 + e, b + e, b + 4 + e))
            a("v_add_f32 v%d, v%d, v%d" % (164 + e, b + 8 + e, b + 12 + e))
            a("v_add_f32 v%d, v%d, v%d" % (166 + e, b + 16 + e, b + 20 + e))
            a("v_add_f32 v%d, v%d, v%d" % (168 + e, b + 24 + e, b + 28 + e))
            a("v_add_f32 v%d, v%d, v%d" % (162 + e, b + 32 + e, b + 36 + e))
            a("v_add_f32 v%d, v%d, v%d" % (170 + e, b + 40 + e, b + 44 + e))
        if i < NS - 1: a("s_branch L_fin_dd")
    a.label("L_fin_dd")
    a.stamp()
    a("""
    v_add_f32 v160, v160, v164
    v_add_f32 v161, v161, v165
    v_add_f32 v166, v166, v168
    v_add_f32 v167, v167, v169
    v_add_f32 v162, v162, v170
    v_add_f32 v163, v163, v171
    v_add_f32 v160, v160, v166
    v_add_f32 v161, v161, v167
    """)
    for r in (4, 8):
        a.nop(1)
        for v in (162, 163, 160, 161):
            a("v_add_f32_dpp v%d, v%d, v%d row_ror:%d row_mask:0xf bank_mask:0xf" % (v, v, v, r))
    xreduce(a, "add", [160, 161, 162, 163], [164, 165, 166, 167])
    a("""
    v_cvt_pk_bf16_f32 v164, v160, v161
    v_cvt_pk_bf16_f32 v165, v162, v163
    v_lshlrev_b32 v160, 16, v164
    v_and_b32 v161, 0xffff0000, v164
    v_lshlrev_b32 v162, 16, v165
    v_and_b32 v163, 0xffff0000, v165
    v_mul_f32 v164, 0xbfb8aa3b, v162
    v_mul_f32 v165, 0xbfb8aa3b, v163
    v_exp_f32 v164, v164
    v_exp_f32 v165, v165
    s_nop 0
    v_add_f32 v164, 1.0, v164
    v_add_f32 v165, 1.0, v165
    v_rcp_f32 v166, v164
    v_rcp_f32 v167, v165
    s_nop 0
    v_mul_f32 v168, v162, v166
    v_mul_f32 v169, v163, v167
    v_fma_f32 v170, -v168, v164, v162
    v_fma_f32 v171, -v169, v165, v163
    v_fma_f32 v170, v170, v166, v168
    v_fma_f32 v171, v171, v167, v169
    v_cmp_class_f32 vcc, v170, 3
    v_cmp_class_f32 s[60:61], v171, 3
    s_nop 1
    v_cndmask_b32 v170, v170, v168, vcc
    v_cndmask_b32_e64 v171, v171, v169, s[60:61]
    v_cvt_pk_bf16_f32 v164, v170, v171
    v_lshlrev_b32 v170, 16, v164
    v_and_b32 v171, 0xffff0000, v164
    v_mul_f32 v170, v160, v170
    v_mul_f32 v171, v161, v171
    v_cvt_pk_bf16_f32 v164, v170, v171
    v_lshlrev_b32 v170, 16, v164
    v_and_b32 v171, 0xffff0000, v164
    v_lshlrev_b32 v164, 16, v6
    v_and_b32 v165, 0xffff0000, v6
    v_add_f32 v170, v164, v170
    v_add_f32 v171, v165, v171
    v_cvt_pk_bf16_f32 v164, v170, v171
    s_mov_b64 exec, 15
    buffer_store_dword v164, v3, s[52:55], 0 offen%s
    """ % (" sc1" if opt("wb", 0) & 2 else ""))
    a.log_flush(180, 178, 2)
    a("""
    s_cmp_lg_u32 s65, 0
    s_cbranch_scc1 L_q_done
    s_mov_b64 exec, 1
    v_mov_b32 v166, s40
    v_mov_b32 v167, s41
    v_mov_b32 v168, 0
    buffer_store_dwordx2 v[166:167], v168, s[56:59], 0 offen%s
    """ % (" sc1" if opt("wb", 0) & 2 else ""))
    a.label("L_q_done")
    a.stamp()
    a.stamp_flush(172, [("max", 8, 14), ("max1", 5, 15)])
    a("s_endpgm")

    a.nstamp = nst0
    a.page()
    a.label("L_att_x")
    a("s_mov_b64 exec, -1")
    a.label("L_att")
    a("s_sub_u32 s62, s3, 2")
    a("""
    s_lshl_b32 s6, s62, 13
    s_add_u32 s6, s6, %d
    v_lshlrev_b32 v2, 8, v4
    v_add_u32 v2, s6, v2
    """ % L_K)
    for kk in range(4):
        a("v_add_u32 v3, %d, v5" % (4 * kk))
        a("v_xor_b32 v3, v3, v4")
        a("v_lshl_add_u32 v%d, v3, 4, v2" % (8 + kk))
    a("""
    v_lshrrev_b32 v3, 2, v4
    v_lshlrev_b32 v6, 8, v3
    v_lshl_or_b32 v6, v5, 4, v6
    v_add_u32 v6, %d, v6
    v_lshl_add_u32 v2, v5, 2, v3
    v_lshlrev_b32 v2, 8, v2
    v_add_u32 v2, %d, v2
    v_and_b32 v12, 1, v0
    v_lshl_add_u32 v2, v12, 3, v2
    v_and_b32 v12, 1, v5
    v_lshl_add_u32 v12, v12, 2, v3
    v_lshlrev_b32 v12, 1, v12
    v_bfe_u32 v13, v0, 1, 1
    s_lshl_b32 s6, s62, 2
    v_add_u32 v13, s6, v13
    v_xor_b32 v12, v12, v13
    v_lshl_add_u32 v12, v12, 4, v2
    v_xor_b32 v13, 32, v12
    """ % (L_Q, L_V))
    a("""
    v_lshlrev_b32 v15, 4, v0
    v_add_u32 v15, %d, v15
    s_lshl_b32 s6, s62, 10
    v_add_u32 v14, s6, v15
    v_lshlrev_b32 v17, 4, v3
    v_add_u32 v17, %d, v17
    s_lshl_b32 s6, s62, 6
    v_add_u32 v16, s6, v17
    """ % (L_P, L_ST))
    a("""
    s_lshl_b32 s6, s4, 17
    s_lshl_b32 s7, s62, 13
    s_add_u32 s6, s6, s7
    s_lshl_b32 s7, s5, 8
    s_add_u32 s6, s6, s7
    s_add_u32 s12, s6, 0x%x
    v_lshlrev_b32 v18, 15, v3
    v_lshl_or_b32 v18, v5, 6, v18
    v_and_b32 v2, 3, v0
    v_lshl_or_b32 v18, v2, 4, v18
    s_lshl_b32 s6, s4, 11
    s_lshl_b32 s7, s5, 4
    s_add_u32 s6, s6, s7
    s_add_u32 s13, s6, 0x%x
    v_lshlrev_b32 v19, 9, v3
    s_mov_b32 s8, 0xaaaaaaaa
    s_mov_b32 s9, 0xaaaaaaaa
    s_mov_b32 s10, 0xcccccccc
    s_mov_b32 s11, 0xcccccccc
    s_mov_b32 s14, 0x%x
    s_mov_b32 s15, 0x%x
    s_lshl_b32 s63, s62, 3
    s_add_u32 s63, s63, %d
    """ % (INB2, INBS, SCALE, LOG2E, TH_K0))
    if PT & 2:
        a("buffer_load_dwordx4 v[196:199], v18, s[56:59], s12 offen sc1")
    a("s_cmp_lg_u32 s62, 0")
    a("s_cbranch_scc1 L_att_gt")
    if PT & 2:
        a("s_mov_b64 exec, 0x1111")
        a("buffer_load_dwordx4 v[200:203], v19, s[56:59], s13 offen sc1")
        a("s_mov_b64 exec, -1")
    make_tag(a)
    a("""
    v_mov_b32 v22, s40
    v_mov_b32 v23, s41
    v_mov_b32 v24, 1
    ds_write_b96 v7, v[22:24] offset:%d
    s_branch L_att_nt
    """ % F_TAG)
    a.label("L_att_gt")
    get_tag(a, 22)
    a.label("L_att_nt")
    a("""
    s_lshl_b32 s16, s4, 14
    s_lshl_b32 s6, s62, 10
    s_add_u32 s16, s16, s6
    s_add_u32 s16, s16, 0x%x
    s_add_u32 s17, s16, 0x1000
    s_add_u32 s18, s16, 0x2000
    s_add_u32 s19, s16, 0x3000
    v_lshlrev_b32 v21, 4, v0
    s_lshl_b32 s6, s62, 8
    s_add_u32 s6, s6, %d
    v_lshlrev_b32 v25, 2, v0
    v_add_u32 v25, s6, v25
    s_or_b32 s46, s40, s44
    s_mov_b32 s47, s41
    s_mov_b32 s65, 0
    """ % (INB1, L_Q))
    if opt("fz", 0):
        for r in range(212, 216): a("v_mov_b32 v%d, 0x3f803f80" % r)
    QM = [[20, 22, 24, 26], [28, 30, 32, 34]]
    QB = [128, 144]
    for M in QM:
        for m in M: a("s_mov_b64 s[%d:%d], -1" % (m, m + 1))
    FLV = {0: " sc1", 1: "", 2: " nt", 3: " sc0", 4: " sc1 nt"}
    def qissue(i, sa=16, fl=0):
        for k in range(4):
            a("s_mov_b64 exec, s[%d:%d]" % (QM[i][k], QM[i][k] + 1))
            a("buffer_load_dwordx4 v[%d:%d], v21, s[56:59], s%d offen%s" % (QB[i] + 4 * k, QB[i] + 3 + 4 * k, sa + k, FLV[fl]))
        a("s_mov_b64 exec, -1")
    def qcheck(i):
        for k in range(4):
            a("v_cmp_ne_u64 s[%d:%d], s[46:47], v[%d:%d]" % (QM[i][k], QM[i][k] + 1, QB[i] + 2 + 4 * k, QB[i] + 3 + 4 * k))
            if opt("skip", 0) & 8: a("s_mov_b64 s[%d:%d], 0" % (QM[i][k], QM[i][k] + 1))
        for k in range(4):
            a("s_or_b64 s[60:61], s[%d:%d], %s" % (QM[i][k], QM[i][k] + 1, "s[60:61]" if k else "0"))
    def kfrags():
        for tau in range(2):
            for kk in range(4):
                r = 32 + (tau * 4 + kk) * 4
                a("ds_read_b128 v[%d:%d], v%d offset:%d" % (r, r + 3, 8 + kk, tau * 4096))
    if diag:
        a("v_mov_b32 v208, 0")
        a("v_mov_b32 v209, 0")
        a("s_mov_b32 s66, 1")
    a.stamp()
    lds_wait_ge(a, 7, 20, F_QPUB, 1, sleep=2)
    a("s_setprio 2")
    if opt("qdel", 0): a("s_sleep %d" % opt("qdel", 0))
    Q1 = opt("q1", 0)
    qissue(0, fl=opt("qf", 0))
    a("s_mov_b32 s64, %d" % opt("qthr", 16))
    if not Q1:
        a("s_sleep %d" % opt("qstag", 10))
        qissue(1, fl=opt("qf2", 0))
    a.label("L_q_poll")
    a("""
    s_cmp_lg_u32 s65, 0
    s_cbranch_scc1 L_q_nk
    ds_read_b32 v20, v7 offset:%d
    s_waitcnt lgkmcnt(0)
    v_cmp_gt_u32 vcc, s63, v20
    s_cbranch_vccnz L_q_nk
    """ % F_PROG)
    kfrags()
    a("s_mov_b32 s65, 1")
    a.label("L_q_nk")
    for i in range(1 if Q1 else 2):
        a("s_waitcnt vmcnt(%d)" % (0 if Q1 else 4))
        qcheck(i)
        a.log(66, "s[60:61]", 208, 67)
        a("s_cbranch_scc0 L_q_d%d" % i)
        qissue(i, fl=opt("qf2", 0))
    a("s_sub_u32 s64, s64, 1")
    a("s_cbranch_scc0 L_q_poll")
    a("s_branch L_a_slow")
    for i in (1, 0):
        a.label("L_q_d%d" % i)
        b = QB[i]
        a("v_add_f32 v26, v%d, v%d" % (b, b + 4))
        a("v_add_f32 v27, v%d, v%d" % (b + 1, b + 5))
        a("v_add_f32 v28, v%d, v%d" % (b + 8, b + 12))
        a("v_add_f32 v29, v%d, v%d" % (b + 9, b + 13))
        if i == 1: a("s_branch L_q_d")
    a.label("L_q_d")
    a("""
    v_add_f32 v26, v26, v28
    v_add_f32 v27, v27, v29
    v_cvt_pk_bf16_f32 v26, v26, v27
    ds_write_b32 v25, v26
    s_mov_b64 exec, 1
    ds_add_u32 v7, v24 offset:%d
    s_mov_b64 exec, -1
    """ % F_Q)
    a.stamp()
    a("s_cmp_lg_u32 s65, 0")
    a("s_cbranch_scc1 L_att_kok")
    a("s_mov_b32 s64, SPIN")
    a.label("L_att_kw")
    a("""
    ds_read_b32 v20, v7 offset:%d
    s_waitcnt lgkmcnt(0)
    v_cmp_gt_u32 vcc, s63, v20
    s_cbranch_vccz L_att_kgo
    s_sleep 1
    s_sub_u32 s64, s64, 1
    s_cbranch_scc1 L_end
    s_branch L_att_kw
    """ % F_PROG)
    a.label("L_att_kgo")
    kfrags()
    a.label("L_att_kok")
    a("s_mov_b32 s64, SPIN")
    VP = opt("vp", 0)
    def vread(chi):
        for t in range(2):
            for h in range(2):
                r = 96 + chi * 8 + t * 4 + h * 2
                a("ds_read_b64_tr_b16 v[%d:%d], v%d offset:%d" % (r, r + 1, 12 + t, chi * 8192 + h * 4096))
    a.label("L_att_qw")
    if VP:
        a("ds_read_b96 v[28:30], v7 offset:%d" % F_PROG)
    else:
        a("ds_read_b32 v20, v7 offset:%d" % F_Q)
    for kk in range(4):
        a("ds_read_b128 v[%d:%d], v6 offset:%d" % (64 + 4 * kk, 67 + 4 * kk, kk * 64))
    a("""
    s_waitcnt lgkmcnt(0)
    v_and_b32 v26, 7, v%d
    v_cmp_ne_u32 vcc, 4, v26
    s_cbranch_vccz L_att_qok
    s_sub_u32 s64, s64, 1
    s_cbranch_scc1 L_end
    s_branch L_att_qw
    """ % (30 if VP else 20))
    a.label("L_att_qok")
    if opt("skip", 0) & 256: a("s_endpgm")
    a.stamp()
    a("s_setprio 3")
    a("v_readfirstlane_b32 s45, v%d" % (30 if VP else 20))
    if VP: a("v_cmp_gt_u32 vcc, 0x%x, v28" % TH_V)
    for kk in range(4):
        for tau in range(2):
            r = 32 + (tau * 4 + kk) * 4
            c_ = "0" if kk == 0 else "v[%d:%d]" % (80 + 4 * tau, 83 + 4 * tau)
            a("v_mfma_f32_16x16x32_bf16 v[%d:%d], v[%d:%d], v[%d:%d], %s" % (80 + 4 * tau, 83 + 4 * tau, r, r + 3, 64 + 4 * kk, 67 + 4 * kk, c_))
    if VP:
        a("s_cbranch_vccnz L_att_nv1")
        for chi in range(4): vread(chi)
        a("s_mov_b32 s65, 2")
        a.label("L_att_nv1")
    a.nop(8)
    if opt("cv", 0):
        for i in range(8): a("v_cvt_pk_bf16_f32 v%d, 0, v%d" % (80 + i, 80 + i))
        for i in range(8): a("v_mul_f32 v%d, s14, v%d" % (80 + i, 80 + i))
        for i in range(8): a("v_cvt_pk_bf16_f32 v%d, 0, v%d" % (80 + i, 80 + i))
    else:
      for rnd in range(2):
        for i in range(4):
            a("v_cvt_pk_bf16_f32 v%d, v%d, v%d" % (88 + i, 80 + 2 * i, 81 + 2 * i))
        for i in range(4):
            a("v_lshlrev_b32 v%d, 16, v%d" % (80 + 2 * i, 88 + i))
            a("v_and_b32 v%d, 0xffff0000, v%d" % (81 + 2 * i, 88 + i))
        if rnd == 0:
            for i in range(8):
                a("v_mul_f32 v%d, s14, v%d" % (80 + i, 80 + i))
    FZ = opt("fz", 0)
    def stats_pub(sfx):
        a("""
        s_mov_b64 exec, 0x1111
        s_cmp_eq_u32 s45, 4
        s_cbranch_scc1 L_att_stf%s
        buffer_store_dwordx4 v[64:67], v19, s[56:59], s13 offen sc1
        s_branch L_att_st2%s
        """ % (sfx, sfx))
        a.label("L_att_stf" + sfx)
        a("buffer_store_dwordx4 v[64:67], v19, s[56:59], s13 offen")
        a.label("L_att_st2" + sfx)
        a("s_mov_b64 exec, -1")
        a("ds_write_b32 v7, v29 offset:%d" % F_APUB)
    def zmfma(chi, left=None):
        for t in range(2):
            if left is not None: a("s_waitcnt lgkmcnt(%d)" % (left + 2 - 2 * t))
            r = 96 + chi * 8 + 4 * t; d = 160 + 4 * t
            a("v_mfma_f32_16x16x32_bf16 v[%d:%d], v[%d:%d], v[%d:%d], %s" % (d, d + 3, r, r + 3, 48 + 4 * chi, 51 + 4 * chi, "v[%d:%d]" % (d, d + 3) if chi else "0"))
    if FZ:
        assert VP
        a("""
        v_max3_f32 v92, |v80|, |v81|, |v82|
        v_max3_f32 v93, |v83|, |v84|, |v85|
        v_max3_f32 v92, v92, |v86|, |v87|
        v_max_f32 v92, v92, v93
        v_cmp_nge_f32 vcc, 0x%x, v92
        v_mov_b32 v31, 1
        """ % opt("fzthr", 0x42000000))
        for i in range(8): a("v_mul_f32 v%d, s15, v%d" % (80 + i, 80 + i))
        a("s_cbranch_vccnz L_att_fb")
        a.label("L_att_z")
        for i in range(8): a("v_exp_f32 v%d, v%d" % (80 + i, 80 + i))
        a("v_mov_b32 v64, 0")
        for i in range(4): a("v_cvt_pk_bf16_f32 v%d, v%d, v%d" % (88 + i, 80 + 2 * i, 81 + 2 * i))
        a("""
        ds_write_b128 v14, v[88:91]
        s_mov_b64 exec, 1
        ds_add_u32 v7, v31 offset:%d
        s_mov_b64 exec, -1
        v_mov_b32 v66, v22
        v_mov_b32 v67, v23
        v_mov_b32 v74, v22
        v_mov_b32 v75, v23
        """ % F_P)
        a.stamp()
        a("s_mov_b32 s64, SPIN")
        a.label("L_att_pw")
        a("ds_read2_b32 v[28:29], v7 offset0:%d offset1:%d" % (F_PROG // 4, F_P // 4))
        for w in range(4):
            a("ds_read_b128 v[%d:%d], v15 offset:%d" % (48 + 4 * w, 51 + 4 * w, 1024 * w))
        a("""
        s_sub_u32 s64, s64, 1
        s_cbranch_scc1 L_end
        s_cmp_eq_u32 s65, 2
        s_waitcnt lgkmcnt(0)
        s_cbranch_scc1 L_att_nv2
        v_cmp_gt_u32 vcc, 0x%x, v28
        s_cbranch_vccnz L_att_nv2
        """ % TH_V)
        for chi in range(4): vread(chi)
        a("s_mov_b32 s65, 2")
        a.label("L_att_nv2")
        a("""
        v_and_b32 v30, 7, v29
        v_cmp_ne_u32 vcc, 4, v30
        s_cbranch_vccnz L_att_pw
        """)
        a.stamp()
        a("""
        v_cmp_ne_u32 vcc, 4, v29
        s_cbranch_vccnz L_att_gen
        s_cmp_lg_u32 s62, 0
        s_cbranch_scc1 L_att_nl0
        """)
        for chi in range(4):
            a("v_mfma_f32_16x16x32_bf16 v[68:71], v[212:215], v[%d:%d], %s" % (48 + 4 * chi, 51 + 4 * chi, "v[68:71]" if chi else "0"))
        a.label("L_att_nl0")
        a.pad("PAD_A1", "L_att_x")
        a("s_cmp_lg_u32 s65, 2")
        a("s_cbranch_scc1 L_att_nv3")
        a("s_waitcnt lgkmcnt(0)")
        for chi in range(4): zmfma(chi)
        a.label("L_att_nv3")
        a("""
        s_cmp_lg_u32 s62, 0
        s_cbranch_scc1 L_att_nost
        s_nop 7
        v_mov_b32 v65, v68
        """)
        stats_pub("")
        a.label("L_att_nost")
        a("s_cmp_eq_u32 s65, 2")
        a("s_cbranch_scc1 L_att_sel")
        lds_wait_ge(a, 7, 76, F_PROG, TH_V3, sleep=1)
        for chi in range(3): vread(chi)
        a("ds_read_b32 v76, v7 offset:%d" % F_PROG)
        for chi in range(3): zmfma(chi, 9 - 4 * chi)
        a("s_waitcnt lgkmcnt(0)")
        a("v_cmp_gt_u32 vcc, 0x%x, v76" % TH_V)
        a("s_cbranch_vccz L_att_pv3")
        lds_wait_ge(a, 7, 76, F_PROG, TH_V, sleep=0)
        a.label("L_att_pv3")
        vread(3)
        zmfma(3, 0)
        a.label("L_att_sel")
        a.stamp()
        a.nop(8)
        a.nop(2)
        a("""
        v_cndmask_b32_e64 v160, v160, v162, s[8:9]
        v_cndmask_b32_e64 v161, v161, v163, s[8:9]
        v_cndmask_b32_e64 v164, v164, v166, s[8:9]
        v_cndmask_b32_e64 v165, v165, v167, s[8:9]
        v_cndmask_b32_e64 v72, v160, v164, s[10:11]
        v_cndmask_b32_e64 v73, v161, v165, s[10:11]
        """)
        a.label("L_att_pub")
    else:
        a("""
        v_max3_f32 v92, v80, v81, v82
        v_max3_f32 v93, v83, v84, v85
        v_max3_f32 v92, v92, v86, v87
        v_max_f32 v92, v92, v93
        """)
        xreduce(a, "max", [92], [93])
        a("v_mul_f32 v92, s15, v92")
        for i in range(8):
            a("v_fma_f32 v%d, v%d, s15, -v92" % (80 + i, 80 + i))
        for i in range(8):
            a("v_exp_f32 v%d, v%d" % (80 + i, 80 + i))
        a.nop(1)
        for i in range(4):
            a("v_cvt_pk_bf16_f32 v%d, v%d, v%d" % (88 + i, 80 + 2 * i, 81 + 2 * i))
        a("ds_write_b128 v14, v[88:91]")
        a("""
        v_add_f32 v93, v80, v81
        v_add_f32 v94, v82, v83
        v_add_f32 v95, v84, v85
        v_add_f32 v31, v86, v87
        v_add_f32 v93, v93, v94
        v_add_f32 v95, v95, v31
        v_add_f32 v93, v93, v95
        """)
        xreduce(a, "add", [93], [31])
        a("""
        v_mov_b32 v94, 1
        v_mov_b32 v95, 1
        s_mov_b64 exec, 0x1111
        ds_write_b128 v16, v[92:95]
        s_mov_b64 exec, -1
        """)
        a.stamp()
        if VP:
            a("""
            s_cmp_eq_u32 s65, 2
            s_cbranch_scc1 L_att_nv2
            ds_read_b32 v28, v7 offset:%d
            s_waitcnt lgkmcnt(0)
            v_cmp_gt_u32 vcc, 0x%x, v28
            s_cbranch_vccnz L_att_nv2
            """ % (F_PROG, TH_V))
            for chi in range(4): vread(chi)
            a("s_mov_b32 s65, 2")
            a.label("L_att_nv2")
        a("s_mov_b32 s64, SPIN")
        a.label("L_att_pw")
        a("s_sub_u32 s64, s64, 1")
        a("s_cbranch_scc1 L_end")
        for w in range(4):
            a("ds_read_b128 v[%d:%d], v17 offset:%d" % (32 + 4 * w, 35 + 4 * w, 64 * w))
        for w in range(4):
            a("ds_read_b128 v[%d:%d], v15 offset:%d" % (48 + 4 * w, 51 + 4 * w, 1024 * w))
        a("""
        s_waitcnt lgkmcnt(0)
        v_min_u32 v64, v34, v38
        v_min3_u32 v64, v64, v42, v46
        v_cmp_eq_u32 vcc, 0, v64
        s_cbranch_vccnz L_att_pw
        """)
        a.stamp()
        if VP:
            a("s_cmp_lg_u32 s65, 2")
            a("s_cbranch_scc1 L_att_nv3")
            for chi in range(4):
                for t in range(2):
                    r = 96 + chi * 8 + 4 * t; d = 160 + chi * 8 + 4 * t
                    a("v_mfma_f32_16x16x32_bf16 v[%d:%d], v[%d:%d], v[%d:%d], 0" % (d, d + 3, r, r + 3, 48 + 4 * chi, 51 + 4 * chi))
            a.label("L_att_nv3")
        a("""
        v_max3_f32 v64, v32, v36, v40
        v_max_f32 v64, v64, v44
        """)
        for w in range(4):
            a("v_sub_f32 v%d, v%d, v64" % (68 + w, 32 + 4 * w))
        for w in range(4):
            a("v_exp_f32 v%d, v%d" % (68 + w, 68 + w))
        a.nop(1)
        a("v_mul_f32 v65, v68, v33")
        for w in range(1, 4):
            a("v_fmac_f32 v65, v%d, v%d" % (68 + w, 33 + 4 * w))
        a("""
        v_mov_b32 v66, v22
        v_mov_b32 v67, v23
        v_mov_b32 v74, v22
        v_mov_b32 v75, v23
        s_cmp_lg_u32 s62, 0
        s_cbranch_scc1 L_att_nost
        s_mov_b64 exec, 0x1111
        s_cmp_eq_u32 s45, 4
        s_cbranch_scc1 L_att_stf
        buffer_store_dwordx4 v[64:67], v19, s[56:59], s13 offen sc1
        s_branch L_att_st2
        """)
        a.label("L_att_stf")
        a("buffer_store_dwordx4 v[64:67], v19, s[56:59], s13 offen")
        a.label("L_att_st2")
        a("s_mov_b64 exec, -1")
        a("ds_write_b32 v7, v34 offset:%d" % F_APUB)
        a.label("L_att_nost")
        a.pad("PAD_A1", "L_att_x")
        def vmfma(chi, left):
            for t in range(2):
                a("s_waitcnt lgkmcnt(%d)" % (left + 2 - 2 * t))
                r = 96 + chi * 8 + 4 * t; d = 160 + chi * 8 + 4 * t
                a("v_mfma_f32_16x16x32_bf16 v[%d:%d], v[%d:%d], v[%d:%d], 0" % (d, d + 3, r, r + 3, 48 + 4 * chi, 51 + 4 * chi))
        def vsel(chi):
            d = 160 + chi * 8
            a("""
            v_cndmask_b32_e64 v%d, v%d, v%d, s[8:9]
            v_cndmask_b32_e64 v%d, v%d, v%d, s[8:9]
            v_cndmask_b32_e64 v%d, v%d, v%d, s[8:9]
            v_cndmask_b32_e64 v%d, v%d, v%d, s[8:9]
            v_cndmask_b32_e64 v%d, v%d, v%d, s[10:11]
            v_cndmask_b32_e64 v%d, v%d, v%d, s[10:11]
            """ % (d, d, d + 2, d + 1, d + 1, d + 3, d + 4, d + 4, d + 6, d + 5, d + 5, d + 7, d, d, d + 4, d + 1, d + 1, d + 5))
            if chi == 0:
                a("v_mul_f32 v72, v68, v%d" % d)
                a("v_mul_f32 v73, v68, v%d" % (d + 1))
            else:
                a("v_fmac_f32 v72, v%d, v%d" % (68 + chi, d))
                a("v_fmac_f32 v73, v%d, v%d" % (68 + chi, d + 1))
        if VP:
            a("s_cmp_lg_u32 s65, 2")
            a("s_cbranch_scc1 L_att_nv4")
            a.stamp()
            a.nstamp -= 1
            for chi in range(3): vsel(chi)
            a("s_branch L_att_pv3")
            a.label("L_att_nv4")
        lds_wait_ge(a, 7, 76, F_PROG, TH_V3, sleep=1)
        for chi in range(3): vread(chi)
        a("ds_read_b32 v76, v7 offset:%d" % F_PROG)
        for chi in range(3): vmfma(chi, 9 - 4 * chi)
        a("s_waitcnt lgkmcnt(0)")
        a("v_cmp_gt_u32 vcc, 0x%x, v76" % TH_V)
        a("s_cbranch_vccnz L_att_pvs")
        a.stamp()
        vread(3)
        vsel(0)
        vsel(1)
        vmfma(3, 0)
        vsel(2)
        a("s_branch L_att_pv3")
        a.label("L_att_pvs")
        a.nstamp -= 1
        a.nop(4)
        for chi in range(3): vsel(chi)
        lds_wait_ge(a, 7, 76, F_PROG, TH_V, sleep=0)
        a.stamp()
        vread(3)
        vmfma(3, 0)
        a.nop(8)
        a.label("L_att_pv3")
        a.nop(2)
        vsel(3)
    a("""
    s_cmp_eq_u32 s45, 4
    s_cbranch_scc1 L_att_of
    buffer_store_dwordx4 v[72:75], v18, s[56:59], s12 offen sc1
    s_branch L_att_o2
    """)
    a.label("L_att_of")
    a("buffer_store_dwordx4 v[72:75], v18, s[56:59], s12 offen")
    RS = opt("rs", 0)
    if RS & 1:
        a.stamp(); a.nstamp -= 1
        lds_wait_ge(a, 7, 76, F_OPUB, 1, sleep=4)
        if opt("rsd", 0): a("s_sleep %d" % opt("rsd", 0))
        a("buffer_store_dwordx4 v[72:75], v18, s[56:59], s12 offen sc1")
        a("s_cmp_lg_u32 s62, 0")
        a("s_cbranch_scc1 L_att_o3")
        a("s_mov_b64 exec, 0x1111")
        a("buffer_store_dwordx4 v[64:67], v19, s[56:59], s13 offen sc1")
        a("s_mov_b64 exec, -1")
        a("s_branch L_att_o3")
    a.label("L_att_o2")
    if PZ:
        a("v_mov_b32 v24, 1")
        a("s_mov_b64 exec, 1")
        a("ds_add_u32 v7, v24 offset:%d" % F_PZ)
        a("s_mov_b64 exec, -1")
    a.stamp()
    if RS & 1: a.label("L_att_o3")
    if diag:
        a("s_cmp_lg_u32 s62, 0")
        a("s_cbranch_scc1 L_att_nl")
        a("s_waitcnt vmcnt(0)")
        a.log_flush(208, 210, 0)
        a.label("L_att_nl")
    a.stamp_flush(28)
    a("s_endpgm")
    if FZ:
        a.label("L_att_fb")
        a("""
        v_max3_f32 v92, v80, v81, v82
        v_max3_f32 v93, v83, v84, v85
        v_max3_f32 v92, v92, v86, v87
        v_max_f32 v92, v92, v93
        """)
        xreduce(a, "max", [92], [93])
        for i in range(8): a("v_sub_f32 v%d, v%d, v92" % (80 + i, 80 + i))
        a("""
        s_mov_b64 exec, 0x1111
        ds_write_b32 v16, v92
        s_mov_b64 exec, -1
        v_mov_b32 v31, 0x101
        s_branch L_att_z
        """)
        a.label("L_att_gen")
        for w in range(4):
            a("ds_read_b32 v%d, v17 offset:%d" % (32 + 4 * w, 64 * w))
        for chi in range(4):
            a("v_mfma_f32_16x16x32_bf16 v[%d:%d], v[212:215], v[%d:%d], 0" % (192 + 4 * chi, 195 + 4 * chi, 48 + 4 * chi, 51 + 4 * chi))
        lds_wait_ge(a, 7, 76, F_PROG, TH_V, sleep=1)
        for chi in range(4): vread(chi)
        a("s_waitcnt lgkmcnt(0)")
        for chi in range(4):
            for t in range(2):
                r = 96 + chi * 8 + 4 * t; d = 160 + chi * 8 + 4 * t
                a("v_mfma_f32_16x16x32_bf16 v[%d:%d], v[%d:%d], v[%d:%d], 0" % (d, d + 3, r, r + 3, 48 + 4 * chi, 51 + 4 * chi))
        a("""
        v_max3_f32 v64, v32, v36, v40
        v_max_f32 v64, v64, v44
        """)
        for w in range(4): a("v_sub_f32 v%d, v%d, v64" % (68 + w, 32 + 4 * w))
        for w in range(4): a("v_exp_f32 v%d, v%d" % (68 + w, 68 + w))
        a.nop(1)
        a("v_mul_f32 v65, v68, v192")
        for w in range(1, 4): a("v_fmac_f32 v65, v%d, v%d" % (68 + w, 192 + 4 * w))
        a("s_cmp_lg_u32 s62, 0")
        a("s_cbranch_scc1 L_att_nostg")
        stats_pub("g")
        a.label("L_att_nostg")
        a.nop(8)
        for chi in range(4):
            d = 160 + chi * 8
            a("""
            v_cndmask_b32_e64 v%d, v%d, v%d, s[8:9]
            v_cndmask_b32_e64 v%d, v%d, v%d, s[8:9]
            v_cndmask_b32_e64 v%d, v%d, v%d, s[8:9]
            v_cndmask_b32_e64 v%d, v%d, v%d, s[8:9]
            v_cndmask_b32_e64 v%d, v%d, v%d, s[10:11]
            v_cndmask_b32_e64 v%d, v%d, v%d, s[10:11]
            """ % (d, d, d + 2, d + 1, d + 1, d + 3, d + 4, d + 4, d + 6, d + 5, d + 5, d + 7, d, d, d + 4, d + 1, d + 1, d + 5))
            if chi == 0:
                a("v_mul_f32 v72, v68, v%d" % d)
                a("v_mul_f32 v73, v68, v%d" % (d + 1))
            else:
                a("v_fmac_f32 v72, v%d, v%d" % (68 + chi, d))
                a("v_fmac_f32 v73, v%d, v%d" % (68 + chi, d + 1))
        a("s_branch L_att_pub")
    a.label("L_a_slow")
    a("""
    ds_write_b32 v7, v24 offset:%d
    v_mov_b32 v24, 0x101
    s_waitcnt vmcnt(0)
    s_mov_b32 s64, 0
    """ % F_SLOW)
    for m in QM[0]: a("s_mov_b64 s[%d:%d], -1" % (m, m + 1))
    a.label("L_a_spoll")
    a("""
    s_mov_b32 s6, 0
    s_bitcmp1_b32 s64, 0
    s_cselect_b32 s6, 0, 0x%x
    """ % (INB1S - INB1))
    for k in range(4): a("s_add_u32 s%d, s%d, s6" % (28 + k, 16 + k))
    qissue(0, 28)
    a("s_add_u32 s64, s64, 1")
    a("s_cmp_gt_u32 s64, SPIN")
    a("s_cbranch_scc1 L_end")
    a("s_waitcnt vmcnt(0)")
    for k in range(4):
        m = QM[0][k]
        a("v_xor_b32 v26, s40, v%d" % (QB[0] + 2 + 4 * k))
        a("v_cmp_lt_u32 s[%d:%d], 15, v26" % (m, m + 1))
        a("v_cmp_ne_u32 vcc, s41, v%d" % (QB[0] + 3 + 4 * k))
        a("s_or_b64 s[%d:%d], s[%d:%d], vcc" % (m, m + 1, m, m + 1))
        a("s_or_b64 s[60:61], s[%d:%d], %s" % (m, m + 1, "s[60:61]" if k else "0"))
    a("s_cbranch_scc1 L_a_spoll")
    a("s_branch L_q_d0")

    a.nstamp = nst0
    a.page()
    if XS:
        a.label("L_x")
        a("v_add_u32 v12, %d, v2" % L_XN)
        a("v_mov_b32 v149, 1")
        a("s_waitcnt vmcnt(0)")
        layernorm(a, 8, 80, 88, 96)
        a("ds_write_b128 v12, v[96:99]")
        a("ds_write_b32 v7, v149 offset:%d" % F_XN)
        a("s_setprio 0")
    a.label("L_o")
    if opt("skip", 0) & 64: a("s_endpgm")
    if opt("tw", 0): touches(a, opt("tw", 0))
    if opt("sw", 0):
        if opt("swd", 0): a("s_sleep %d" % opt("swd", 0))
        stouch(a, opt("sw", 0))
    ST = opt("st", 0); SG = opt("sg", 64)
    if ST & 1:
        a("""
        s_lshl_b32 s6, s4, 14
        s_lshl_b32 s7, s5, 9
        s_add_u32 s6, s6, s7
        s_add_u32 s6, s6, 0x%x
        """ % INB1)
        for o in range(0, 512, SG): a("s_load_dword s70, s[56:57], s6 offset:%d" % o)
    if ST & 2:
        if opt("sdel", 0): a("s_sleep %d" % opt("sdel", 0))
        a("""
        s_lshl_b32 s6, s4, 17
        s_lshl_b32 s7, s5, 8
        s_add_u32 s6, s6, s7
        s_add_u32 s6, s6, 0x%x
        s_lshl_b32 s10, s4, 11
        s_lshl_b32 s7, s5, 4
        s_add_u32 s10, s10, s7
        s_add_u32 s10, s10, 0x%x
        """ % (INB2, INBS))
        for h in range(4): a("s_load_dword s70, s[56:57], s10 offset:%d" % (h * 512))
        for b in range(16):
            for o in range(0, 256, SG): a("s_load_dword s70, s[56:57], s6 offset:%d" % (b * 8192 + o))
    a("""
    s_lshl_b32 s10, s4, 11
    s_lshr_b32 s6, s5, 3
    s_lshl_b32 s6, s6, 9
    s_add_u32 s10, s10, s6
    s_add_u32 s10, s10, 0x%x
    v_lshlrev_b32 v8, 4, v5
    s_lshl_b32 s6, s4, 4
    s_lshr_b32 s7, s5, 1
    s_add_u32 s6, s6, s7
    s_lshl_b32 s11, s6, 13
    s_add_u32 s11, s11, 0x%x
    s_add_u32 s12, s11, 4096
    v_lshlrev_b32 v2, 4, v0
    v_bfe_u32 v3, v0, 1, 1
    v_lshlrev_b32 v9, 5, v3
    v_bfe_u32 v3, v0, 2, 2
    v_lshl_or_b32 v9, v3, 3, v9
    v_and_b32 v6, 1, v0
    v_lshl_or_b32 v9, v6, 2, v9
    v_add_u32 v9, %d, v9
    v_lshrrev_b32 v10, 1, v4
    v_lshlrev_b32 v10, 6, v10
    v_lshl_or_b32 v10, v5, 4, v10
    v_add_u32 v10, %d, v10
    v_lshl_add_u32 v6, v5, 3, v3
    v_lshlrev_b32 v6, 9, v6
    v_add_u32 v6, %d, v6
    v_and_b32 v11, 3, v0
    """ % (INBS, INB2, L_OW + 7 * 64, L_OW, L_WO))
    for aa in range(4):
        a("v_xor_b32 v16, %d, v3" % aa)
        a("v_lshl_or_b32 v16, v16, 2, v11")
        a("v_lshl_add_u32 v%d, v16, 4, v6" % (12 + aa))
    a("""
    s_lshl_b32 s6, s6, 6
    s_and_b32 s7, s5, 1
    s_lshl_b32 s7, s7, 18
    s_add_u32 s6, s6, s7
    s_add_u32 s14, s6, 0x%x
    s_add_u32 s15, s14, 0x20000
    v_lshl_add_u32 v6, v3, 2, v5
    v_lshlrev_b32 v6, 13, v6
    v_lshl_or_b32 v6, v11, 4, v6
    s_mov_b32 s8, 0xaaaaaaaa
    s_mov_b32 s9, 0xaaaaaaaa
    v_mov_b32 v11, 1
    """ % INB3S)
    a("""
    v_and_b32 v18, 31, v0
    v_lshlrev_b32 v8, 4, v18
    v_and_b32 v16, 3, v0
    v_lshlrev_b32 v16, 5, v16
    v_and_b32 v18, 28, v0
    v_add3_u32 v16, v16, v18, %d
    v_lshlrev_b32 v17, 5, v5
    v_add_u32 v17, v17, v19
    """ .replace("%d", "v19").replace("v_and_b32 v18, 31, v0", "v_mov_b32 v19, %d\n    v_and_b32 v18, 31, v0" % L_AL, 1))
    get_tag(a, 56)
    a.stamp()
    MA = [16 + 2 * k for k in range(8)]
    MB = [32, 34, 36, 38, 44, 46, 48, 50]
    MS = [52, 54]
    SV = [204, 208]
    for m in MA + MB + MS: a("s_mov_b64 s[%d:%d], -1" % (m, m + 1))
    if diag:
        a("v_mov_b32 v200, 0")
        a("v_mov_b32 v201, 0")
        a("s_mov_b32 s63, 1")
    a("s_mov_b32 s65, 0")
    a("s_mov_b32 s66, 0")
    def mcheck(base, M):
        for k in range(8):
            a("v_cmp_ne_u64 s[%d:%d], s[40:41], v[%d:%d]" % (M[k], M[k] + 1, base + 4 * k + 2, base + 4 * k + 3))
            if opt("skip", 0) & 4: a("s_mov_b64 s[%d:%d], 0" % (M[k], M[k] + 1))
        for k in range(8):
            a("s_or_b64 s[60:61], s[%d:%d], %s" % (M[k], M[k] + 1, "s[60:61]" if k else "0"))
    def oissue(i):
        base, M = (128, MA) if i == 0 else (160, MB)
        a("s_mov_b64 exec, s[%d:%d]" % (MS[i], MS[i] + 1))
        fl = FLV[opt("of", 0) if i == 0 else opt("of2", 0)]
        a("buffer_load_dwordx4 v[%d:%d], v8, s[56:59], s10 offen%s" % (SV[i], SV[i] + 3, fl))
        for k in range(8):
            a("s_mov_b64 exec, s[%d:%d]" % (M[k], M[k] + 1))
            a("buffer_load_dwordx4 v[%d:%d], v2, s[56:59], s%d offen offset:%d%s" % (base + 4 * k, base + 3 + 4 * k, 11 + k // 4, (k % 4) * 1024, fl))
        a("s_mov_b64 exec, -1")
    def stats(i):
        lab = "L_o_ns%d" % i
        v = SV[i]
        a("s_cmp_lg_u32 s66, 0")
        a("s_cbranch_scc1 %s" % lab)
        a("v_cmp_ne_u64 vcc, s[40:41], v[%d:%d]" % (v + 2, v + 3))
        a("s_mov_b64 s[%d:%d], vcc" % (MS[i], MS[i] + 1))
        a("s_cbranch_vccnz %s" % lab)
        a("v_mov_b32 v56, v%d" % v)
        allreduce(a, "max", 56, 57)
        a("v_sub_f32 v56, v%d, v56" % v)
        a("v_exp_f32 v56, v56")
        a("s_mov_b32 s66, 1")
        a("v_mul_f32 v57, v56, v%d" % (v + 1))
        a("ds_write_b32 v16, v56")
        a("ds_read_b128 v[48:51], v17")
        a("ds_read_b128 v[52:55], v17 offset:16")
        allreduce(a, "add", 57, 58)
        a("v_mul_f32 v57, 0.5, v57")
        a("v_rcp_f32 v58, v57")
        a("s_mov_b64 s[%d:%d], 0" % (MS[1 - i], MS[1 - i] + 1))
        a("s_waitcnt lgkmcnt(0)")
        a.label(lab)
    if opt("opre", 0):
        if opt("opre", 0) > 1: lds_wait_ge(a, 7, 59, F_PROG, opt("opre", 0), sleep=3)
        own = opt("opf", 1) == 2
        a("s_xor_b32 s6, s11, %d" % (0 if own else 8192))
        a("s_xor_b32 s7, s10, %d" % (0 if own else 512))
        a("v_lshlrev_b32 v59, 7, v0")
        a("buffer_load_dword v128, v59, s[56:59], s6 offen%s" % FLV[opt("opf", 1)])
        a("s_mov_b64 exec, 15")
        a("buffer_load_dword v129, v59, s[56:59], s7 offen%s" % FLV[opt("opf", 1)])
        a("s_mov_b64 exec, -1")
        a("s_waitcnt vmcnt(0)")
    if opt("oap", 1): lds_wait_ge(a, 7, 59, F_APUB, 1, sleep=3)
    lds_wait_ge(a, 7, 59, F_PROG, opt('ogate', TH_V), sleep=1)
    a.stamp()
    a("s_setprio 3")
    if opt("odn", 0):
        a("""
        s_lshr_b32 s6, s4, 2
        s_lshl_b32 s6, s6, 3
        s_add_u32 s6, s6, s5
        s_cmp_lt_u32 s6, 32
        s_cbranch_scc1 L_o_nd
        s_sleep %d
        """ % opt("odn", 0))
        a.label("L_o_nd")
    if opt("odel", 0): a("s_sleep %d" % opt("odel", 0))
    O1 = opt("o1", 0)
    oissue(0)
    if opt("ow2", 0):
        lds_wait_ge(a, 7, 59, F_PROG, opt("ow2", 0), sleep=1)
    if not O1:
        if not opt("ow2", 0): a("s_sleep %d" % opt('ostag', 8))
        oissue(1)
    def wo_pre():
        for al in range(2):
            for t in range(8):
                for h in range(2):
                    r = 64 + ((al * 8 + t) * 2 + h) * 2
                    a("ds_read_b64_tr_b16 v[%d:%d], v%d offset:%d" % (r, r + 1, 12 + (t >> 1), al * 256 + (t & 1) * 8 + h * 2048))
    def opp(lab):
        a("s_cmp_lg_u32 s65, 0")
        a("s_cbranch_scc1 %s" % lab)
        a("ds_read_b32 v59, v7 offset:%d" % F_PROG)
        a("s_waitcnt lgkmcnt(0)")
        a("v_cmp_gt_u32 vcc, 0x%x, v59" % TH_WO)
        a("s_cbranch_vccnz %s" % lab)
        wo_pre()
        a("s_mov_b32 s65, 1")
        a.label(lab)
    a("s_mov_b32 s64, SPIN")
    a.label("L_o_poll")
    opp("L_o_np")
    for i in range(1 if O1 else 2):
        a("s_waitcnt vmcnt(%d)" % (0 if O1 else 9))
        stats(i)
        mcheck(128 + 32 * i, MA if i == 0 else MB)
        a("s_or_b64 s[60:61], s[%d:%d], s[60:61]" % (MS[i], MS[i] + 1))
        a.log(63, "s[60:61]", 200)
        a("s_cbranch_scc0 L_o_d%d" % i)
        if opt("osl", 0): a("s_sleep %d" % opt("osl", 0))
        oissue(i)
    a("s_sub_u32 s64, s64, 1")
    a("s_cbranch_scc1 L_end")
    a("s_branch L_o_poll")
    for nm, base in (("L_o_d0", 128), ("L_o_d1", 160)):
        a.label(nm)
        a("v_mul_f32 v60, v48, v%d" % base)
        a("v_mul_f32 v61, v48, v%d" % (base + 1))
        a("v_mul_f32 v62, v49, v%d" % (base + 4))
        a("v_mul_f32 v63, v49, v%d" % (base + 5))
        for k in range(2, 8):
            a("v_fmac_f32 v%d, v%d, v%d" % (60 + 2 * (k & 1), 48 + k, base + 4 * k))
            a("v_fmac_f32 v%d, v%d, v%d" % (61 + 2 * (k & 1), 48 + k, base + 4 * k + 1))
        if base == 128: a("s_branch L_o_dd")
    a.label("L_o_dd")
    if opt("wb", 0) & 8: a("ds_write_b32 v7, v11 offset:%d" % F_PZ)
    a.stamp()
    a("v_add_f32 v60, v60, v62")
    a("v_add_f32 v61, v61, v63")
    xreduce(a, "add", [60, 61], [62, 63])
    for r in (60, 61):
        a("v_mul_f32 v62, v%d, v58" % r)
        a("v_fma_f32 v63, -v62, v57, v%d" % r)
        a("v_fma_f32 v%d, v63, v58, v62" % r)
    a("v_cvt_pk_bf16_f32 v60, v60, v61")
    a("ds_write_b32 v9, v60")
    for t in range(8):
        a("ds_read_b128 v[%d:%d], v10 offset:%d" % (16 + 4 * t, 19 + 4 * t, (7 - t) * 64))
    a("s_cmp_lg_u32 s65, 0")
    a("s_cbranch_scc1 L_o_have")
    lds_wait_ge(a, 7, 59, F_PROG, TH_WO, sleep=0)
    wo_pre()
    a.label("L_o_have")
    a("""
    v_mov_b32 v194, s40
    v_mov_b32 v195, s41
    v_mov_b32 v198, s40
    v_mov_b32 v199, s41
    s_waitcnt lgkmcnt(0)
    """)
    a.stamp()
    for t in range(8):
        for al in range(2):
            r = 64 + (al * 8 + t) * 4
            c_ = "0" if t == 0 else "v[%d:%d]" % (48 + 4 * al, 51 + 4 * al)
            a("v_mfma_f32_16x16x32_bf16 v[%d:%d], v[%d:%d], v[%d:%d], %s" % (48 + 4 * al, 51 + 4 * al, r, r + 3, 16 + 4 * t, 19 + 4 * t, c_))
    a.nop(7)
    a("""
    v_cndmask_b32_e64 v192, v48, v50, s[8:9]
    v_cndmask_b32_e64 v193, v49, v51, s[8:9]
    v_cndmask_b32_e64 v196, v52, v54, s[8:9]
    v_cndmask_b32_e64 v197, v53, v55, s[8:9]
    buffer_store_dwordx4 v[192:195], v6, s[56:59], s14 offen sc1
    buffer_store_dwordx4 v[196:199], v6, s[56:59], s15 offen sc1
    ds_write_b32 v7, v11 offset:%d
    """ % F_OPUB)
    if opt("wb", 0) & 1:
        a("s_cmp_lg_u32 s5, %d" % opt("wbc", 0))
        a("s_cbranch_scc1 L_o_nwb")
        if opt("wbd", 0): a("s_sleep %d" % opt("wbd", 0))
        a("buffer_wbl2 sc1")
        a.label("L_o_nwb")
    a.stamp()
    a.log_flush(200, 202, 1)
    a.stamp_flush(28)
    a("s_endpgm")

    a.nstamp = nst0
    a.page()
    a.label("L_f")
    if opt("skip", 0) & 128: a("s_endpgm")
    fcoords(a)
    a("s_cbranch_scc1 L_f_go")
    srd(a, 48, 16, 1024)
    srd(a, 52, 34, 1024)
    a("v_lshlrev_b32 v2, 4, v0")
    get_tag(a, 42)
    a("s_branch L_fin")
    a.label("L_f_go")
    a("""
    s_lshl_b32 s6, s15, 8
    s_add_u32 s6, s6, %d
    v_lshlrev_b32 v13, 4, v5
    v_add_u32 v13, s6, v13
    """ % L_XN)
    traddr128(a, 52, L_G, 3, 6)
    a("""
    v_lshrrev_b32 v3, 2, v4
    v_lshl_add_u32 v2, v5, 3, v3
    """)
    a("""
    v_lshlrev_b32 v2, 8, v2
    v_add_u32 v2, %d, v2
    v_and_b32 v12, 3, v0
    """ % L_WD)
    for aa in range(4):
        a("v_xor_b32 v16, %d, v3" % aa)
        a("v_lshl_or_b32 v16, v16, 2, v12")
        a("v_lshl_add_u32 v%d, v16, 4, v2" % (8 + aa))
    a("""
    s_lshl_b32 s11, s14, 11
    s_add_u32 s11, s11, 0x%x
    s_and_b32 s6, s5, 7
    s_lshl_b32 s6, s6, 8
    s_lshr_b32 s10, s14, 1
    s_lshl_b32 s10, s10, 12
    s_add_u32 s10, s10, s6
    s_add_u32 s10, s10, 0x%x
    v_bfe_u32 v16, v0, 2, 1
    v_lshlrev_b32 v16, 11, v16
    v_lshl_or_b32 v16, v5, 6, v16
    v_lshl_or_b32 v16, v12, 4, v16
    v_lshlrev_b32 v2, 4, v0
    v_bfe_u32 v6, v0, 1, 1
    v_lshlrev_b32 v17, 5, v6
    v_lshl_or_b32 v17, v3, 3, v17
    v_and_b32 v6, 1, v0
    v_lshl_or_b32 v17, v6, 2, v17
    v_add_u32 v17, %d, v17
    v_lshrrev_b32 v18, 1, v4
    v_lshlrev_b32 v18, 6, v18
    v_lshl_or_b32 v18, v5, 4, v18
    v_add_u32 v18, %d, v18
    s_mul_i32 s12, s15, 57344
    s_lshl_b32 s6, s14, 6
    s_add_u32 s12, s12, s6
    s_add_u32 s12, s12, 0x%x
    v_lshl_add_u32 v19, v3, 2, v5
    v_mul_u32_u24 v19, 0xe00, v19
    v_lshl_or_b32 v19, v12, 4, v19
    s_mov_b32 s8, 0xaaaaaaaa
    s_mov_b32 s9, 0xaaaaaaaa
    v_bfe_u32 v6, v0, 1, 2
    """ % (INB4, INB4, L_HW + 7 * 64, L_HW, INB3D))
    if ST & 4:
        if opt("sdel", 0): a("s_sleep %d" % opt("sdel", 0))
        for b in range(2):
            for o in range(0, 256, SG): a("s_load_dword s70, s[56:57], s10 offset:%d" % (b * 2048 + o))
    if PT & 4:
        a("""
        s_mov_b32 exec_lo, 0x00ff00ff
        s_mov_b32 exec_hi, 0x00ff00ff
        buffer_load_dwordx4 v[196:199], v16, s[56:59], s10 offen sc1
        s_mov_b64 exec, -1
        """)
    get_tag(a, 42)
    if opt("pwg", 0):
        a("buffer_load_dwordx4 v[20:23], v2, s[56:59], s11 offen sc1")
        a("buffer_load_dwordx4 v[24:27], v2, s[56:59], s11 offen offset:1024 sc1")
        a("s_waitcnt vmcnt(0)")
    a.stamp()
    lds_wait_ge(a, 7, 20, F_XN, 1, sleep=4)
    for k in range(4):
        a("ds_read_b128 v[%d:%d], v13 offset:%d" % (20 + 4 * k, 23 + 4 * k, k * 64))
    a("v_mov_b32 v36, 0")
    a("s_waitcnt lgkmcnt(0)")
    for u in range(4):
        a("v_cmp_eq_u32 vcc, %d, v6" % u)
        a.nop(2)
        for k in range(4):
            for i in range(4):
                a("v_cndmask_b32 v%d, v36, v%d, vcc" % (128 + (u * 4 + k) * 4 + i, 20 + 4 * k + i))
    a("s_mov_b32 s64, SPIN")
    a.label("L_f_qw")
    a("""
    ds_read_b32 v20, v7 offset:%d
    s_waitcnt lgkmcnt(0)
    v_and_b32 v21, 7, v20
    v_cmp_ne_u32 vcc, 4, v21
    s_cbranch_vccz L_f_qok
    s_sleep 4
    s_sub_u32 s64, s64, 1
    s_cbranch_scc1 L_end
    s_branch L_f_qw
    """ % F_Q)
    a.label("L_f_qok")
    a("v_readfirstlane_b32 s45, v20")
    if opt("g2", 0):
        for half in range(2):
            lds_wait_ge(a, 7, 20, F_PROG, PV[("G", 7)] if half == 0 else TH_G, sleep=1 - half)
            if half: a.stamp()
            else: a("s_setprio 3")
            for u in range(4):
                for k in (2 * half, 2 * half + 1):
                    for h in range(2):
                        r = 64 + ((u * 4 + k) * 2 + h) * 2
                        a("ds_read_b64_tr_b16 v[%d:%d], v%d offset:%d" % (r, r + 1, 52 + u, k * 4096 + h * 512))
            for u in range(4):
                for k in (2 * half, 2 * half + 1):
                    a("s_waitcnt lgkmcnt(%d)" % (14 - 4 * u - 2 * (k & 1)))
                    n = u * 4 + k
                    c_ = "0" if n == 0 else "v[36:39]"
                    a("v_mfma_f32_16x16x32_bf16 v[36:39], v[%d:%d], v[%d:%d], %s" % (64 + n * 4, 67 + n * 4, 128 + n * 4, 131 + n * 4, c_))
    else:
        lds_wait_ge(a, 7, 20, F_PROG, TH_G, sleep=1)
        a.stamp()
        a("s_setprio 3")
        for u in range(4):
            for k in range(4):
                for h in range(2):
                    r = 64 + ((u * 4 + k) * 2 + h) * 2
                    a("ds_read_b64_tr_b16 v[%d:%d], v%d offset:%d" % (r, r + 1, 52 + u, k * 4096 + h * 512))
            if u >= 1:
                a("s_waitcnt lgkmcnt(8)")
                for k in range(4):
                    n = (u - 1) * 4 + k
                    c_ = "0" if n == 0 else "v[36:39]"
                    a("v_mfma_f32_16x16x32_bf16 v[36:39], v[%d:%d], v[%d:%d], %s" % (64 + n * 4, 67 + n * 4, 128 + n * 4, 131 + n * 4, c_))
        a("s_waitcnt lgkmcnt(0)")
        for k in range(4):
            n = 12 + k
            a("v_mfma_f32_16x16x32_bf16 v[36:39], v[%d:%d], v[%d:%d], v[36:39]" % (64 + n * 4, 67 + n * 4, 128 + n * 4, 131 + n * 4))
    a.nop(8)
    a("""
    v_cndmask_b32_e64 v40, v36, v38, s[8:9]
    v_cndmask_b32_e64 v41, v37, v39, s[8:9]
    s_mov_b32 exec_lo, 0x00ff00ff
    s_mov_b32 exec_hi, 0x00ff00ff
    s_cmp_eq_u32 s45, 4
    s_cbranch_scc1 L_f_pf
    buffer_store_dwordx4 v[40:43], v16, s[56:59], s10 offen sc1
    s_branch L_f_p2
    """)
    a.label("L_f_pf")
    a("buffer_store_dwordx4 v[40:43], v16, s[56:59], s10 offen")
    a.label("L_f_p2")
    if opt("rs", 0) & 4:
        for i in range(4): a("v_mov_b32 v%d, v%d" % (200 + i, 40 + i))
    if PZ:
        a("s_mov_b64 exec, 1")
        a("ds_add_u32 v7, v44 offset:%d" % F_PZ)
    a("s_mov_b64 exec, -1")
    a.stamp()
    a("s_mov_b32 s65, 0")
    def wd_pre():
        for t in range(8):
            for h in range(2):
                r = 64 + (t * 2 + h) * 2
                a("ds_read_b64_tr_b16 v[%d:%d], v%d offset:%d" % (r, r + 1, 8 + (t >> 1), (t & 1) * 8 + h * 1024))
    def gissue(base):
        fl = FLV[opt("gf", 0) if base == 20 else opt("gf2", 0)]
        a("buffer_load_dwordx4 v[%d:%d], v2, s[56:59], s11 offen%s" % (base, base + 3, fl))
        a("buffer_load_dwordx4 v[%d:%d], v2, s[56:59], s11 offen offset:1024%s" % (base + 4, base + 7, fl))
    if opt("gdel", 0): a("s_sleep %d" % opt("gdel", 0))
    gissue(20)
    a("s_sleep %d" % opt("gstag", 4))
    gissue(28)
    a("s_mov_b32 s64, SPIN")
    a.label("L_f_poll")
    a("""
    s_cmp_lg_u32 s65, 0
    s_cbranch_scc1 L_f_np
    ds_read_b32 v44, v7 offset:%d
    s_waitcnt lgkmcnt(0)
    v_cmp_gt_u32 vcc, 0x%x, v44
    s_cbranch_vccnz L_f_np
    """ % (F_PROG, TH_WD))
    wd_pre()
    a("s_mov_b32 s65, 1")
    a.label("L_f_np")
    a("s_waitcnt vmcnt(2)")
    tagcheck(a, [20, 24])
    if opt("skip", 0) & 16: a("s_branch L_f_d0")
    a("s_cbranch_vccz L_f_d0")
    if opt("gsl", 0): a("s_sleep %d" % opt("gsl", 0))
    gissue(20)
    a("s_waitcnt vmcnt(2)")
    tagcheck(a, [28, 32])
    a("s_cbranch_vccz L_f_d1")
    if opt("gsl", 0): a("s_sleep %d" % opt("gsl", 0))
    gissue(28)
    a("s_sub_u32 s64, s64, 1")
    a("s_cbranch_scc1 L_end")
    a("s_branch L_f_poll")
    for nm, base in (("L_f_d0", 20), ("L_f_d1", 28)):
        a.label(nm)
        a("v_mov_b32 v44, v%d" % base)
        a("v_mov_b32 v45, v%d" % (base + 1))
        a("v_mov_b32 v46, v%d" % (base + 4))
        a("v_mov_b32 v47, v%d" % (base + 5))
        if base == 20: a("s_branch L_f_dd")
    a.label("L_f_dd")
    a.stamp()
    xreduce(a, "add", [44, 45, 46, 47], [48, 49, 50, 51])
    a("""
    s_mov_b32 s16, 0x3d372713
    s_mov_b32 s17, 0xc0135761
    v_cvt_pk_bf16_f32 v48, v44, v45
    v_cvt_pk_bf16_f32 v49, v46, v47
    v_lshlrev_b32 v44, 16, v48
    v_and_b32 v45, 0xffff0000, v48
    v_lshlrev_b32 v46, 16, v49
    v_and_b32 v47, 0xffff0000, v49
    v_mul_f32 v48, v44, v44
    v_mul_f32 v49, v45, v45
    v_mul_f32 v48, v48, v44
    v_mul_f32 v49, v49, v45
    v_fma_f32 v48, v48, s16, v44
    v_fma_f32 v49, v49, s16, v45
    v_mul_f32 v48, s17, v48
    v_mul_f32 v49, s17, v49
    v_exp_f32 v48, v48
    v_exp_f32 v49, v49
    s_nop 0
    v_add_f32 v48, 1.0, v48
    v_add_f32 v49, 1.0, v49
    v_rcp_f32 v48, v48
    v_rcp_f32 v49, v49
    s_nop 0
    v_mul_f32 v44, v44, v48
    v_mul_f32 v45, v45, v49
    v_cvt_pk_bf16_f32 v48, v44, v45
    v_lshlrev_b32 v44, 16, v48
    v_and_b32 v45, 0xffff0000, v48
    v_mul_f32 v44, v44, v46
    v_mul_f32 v45, v45, v47
    v_cvt_pk_bf16_f32 v48, v44, v45
    ds_write_b32 v17, v48
    """)
    for t in range(8):
        a("ds_read_b128 v[%d:%d], v18 offset:%d" % (128 + 4 * t, 131 + 4 * t, (7 - t) * 64))
    a("s_cmp_lg_u32 s65, 0")
    a("s_cbranch_scc1 L_f_have")
    lds_wait_ge(a, 7, 44, F_PROG, TH_WD, sleep=1 if opt("ord", 0) else 0)
    wd_pre()
    a.label("L_f_have")
    a("s_waitcnt lgkmcnt(0)")
    a.stamp()
    for t in range(8):
        c_ = "0" if t == 0 else "v[36:39]"
        a("v_mfma_f32_16x16x32_bf16 v[36:39], v[%d:%d], v[%d:%d], %s" % (64 + 4 * t, 67 + 4 * t, 128 + 4 * t, 131 + 4 * t, c_))
    a.nop(8)
    a("""
    v_cndmask_b32_e64 v40, v36, v38, s[8:9]
    v_cndmask_b32_e64 v41, v37, v39, s[8:9]
    buffer_store_dwordx4 v[40:43], v19, s[56:59], s12 offen sc1
    """)
    a.stamp()
    if opt("rs", 0) & 4:
        if opt("rsf", 0): a("s_sleep %d" % opt("rsf", 0))
        a("""
        s_mov_b32 exec_lo, 0x00ff00ff
        s_mov_b32 exec_hi, 0x00ff00ff
        buffer_store_dwordx4 v[200:203], v16, s[56:59], s10 offen sc1
        s_mov_b64 exec, -1
        """)
    a.stamp_flush(28)
    a.label("L_end")
    a("s_endpgm")

    SF = opt("sf", 0)
    if SF:
        for n, ln in enumerate(a.l):
            if ln.strip().startswith("buffer_store") and "s[56:59]" in ln and " nt" not in ln and "x4" in ln:
                if (SF & 2 if "sc1" in ln else SF & 1): a.l[n] = ln + " nt"
            if SF & 4 and ln.strip().startswith("buffer_load") and "s[48:51]" in ln and " nt" not in ln and "lds" not in ln: a.l[n] = ln + " nt"
    out += a.l
    out.append('''.section .rodata,"a"
.p2align 6
.amdhsa_kernel %s_kernel
  .amdhsa_next_free_vgpr 216
  .amdhsa_next_free_sgpr 102
  .amdhsa_accum_offset 216
  .amdhsa_group_segment_fixed_size 0
  .amdhsa_kernarg_size 96
  .amdhsa_user_sgpr_count 2
  .amdhsa_user_sgpr_kernarg_segment_ptr 1
  .amdhsa_system_sgpr_workgroup_id_x 1
  .amdhsa_float_denorm_mode_32 3
.end_amdhsa_kernel'''.replace('216', '240' if FN == 4 else '216') % NAME)
    return "\n".join(out) + "\n"

if __name__ == "__main__":
    ap = argparse.ArgumentParser()
    ap.add_argument("-o", default="cdna_kernels/%s.s" % NAME)
    ap.add_argument("--diag", action="store_true")
    ap.add_argument("--slow", action="store_true")
    ap.add_argument("-W", type=int, default=16)
    ap.add_argument("--W0", type=int, default=24)
    ap.add_argument("-P", nargs="*", default=[])
    ap.add_argument("--onlyld", action="store_true")
    ap.add_argument("--kv", type=int, default=1)
    args = ap.parse_args()
    open(args.o, "w").write(gen(diag=args.diag, W=args.W, forceslow=args.slow, onlyld=args.onlyld, kvmode=args.kv, W0=args.W0, P={x.split('=')[0]: int(x.split('=')[1]) for x in args.P}))
    print("wrote", args.o)
```
